```python
import torch

def _softmax(x, axis=-1):
    return torch.softmax(x, dim=axis)

def _gelu(x):
    return torch.nn.functional.gelu(x, approximate='tanh')

def _silu(x):
    return torch.nn.functional.silu(x)

def _sigmoid(x):
    return torch.sigmoid(x)

def _layernorm(x, axis=-1, eps=1e-05):
    m = x.mean(dim=axis, keepdim=True)
    v = x.var(dim=axis, keepdim=True, unbiased=False)
    return (x - m) / torch.sqrt(v + eps)

def _scatter_add(tgt, idx, src, axis=0):
    return tgt.clone().index_add_(axis, idx, src)

def _segment_sum(src, seg, n):
    out = torch.zeros((n,) + src.shape[1:], dtype=src.dtype)
    return out.index_add_(0, seg, src)

def _pad(x, pw):
    flat = tuple((v for pair in reversed(pw) for v in pair))
    return torch.nn.functional.pad(x, flat)
kernel_name = 'adaLN_cond__gqa_block_cached__glu_gated_swiglu__decode'

def setup_inputs():

    _w = lambda a: (lambda t: t.to(torch.bfloat16) if t.is_floating_point() else t)(torch.as_tensor(a))

    def _A_setup():
        B, Sq, D = (4, 1, 1024)
        Hq, Hkv, Sk, Dh = (32, 4, 16384, 128)
        assert Hq % Hkv == 0, (Hq, Hkv)
        return {'x': _w((lambda *s: torch.randn(*s, dtype=torch.bfloat16) * 0.1)(B, Sq, D)), 'k_cache': _w((lambda *s: torch.randn(*s, dtype=torch.bfloat16) * 0.8)(B, Hkv, Sk, Dh)), 'v_cache': _w((lambda *s: torch.randn(*s, dtype=torch.bfloat16) * 3.2)(B, Hkv, Sk, Dh)), 'wq': _w((lambda *s: torch.randn(*s, dtype=torch.bfloat16) * 0.8)(D, Hq * Dh) * D ** (-0.5)), 'wo': _w((lambda *s: torch.randn(*s, dtype=torch.bfloat16) * 3.2)(Hq * Dh, D) * (Hq * Dh) ** (-0.5))}
    _A_in = _A_setup()

    def _B_setup():
        B, S, D, F = (4, 1, 1024, 3584)
        return {'x': _w((lambda *s: torch.randn(*s, dtype=torch.bfloat16) * 0.1)(B, S, D)), 'w1': _w((lambda *s: torch.randn(*s, dtype=torch.bfloat16) * 3.2)(D, F) * (2.0 / D) ** 0.5), 'w3': _w((lambda *s: torch.randn(*s, dtype=torch.bfloat16) * 3.2)(D, F) * (2.0 / D) ** 0.5), 'w2': _w((lambda *s: torch.randn(*s, dtype=torch.bfloat16) * 3.2)(F, D) * (2.0 / F) ** 0.5)}
    _B_in = _B_setup()
    return {'A_x': _A_in['x'], 'A_k_cache': _A_in['k_cache'], 'A_v_cache': _A_in['v_cache'], 'A_wq': _A_in['wq'], 'A_wo': _A_in['wo'], 'B_x': _B_in['x'], 'B_w1': _B_in['w1'], 'B_w3': _B_in['w3'], 'B_w2': _B_in['w2'], 'c': _w((lambda *s: torch.randn(*s, dtype=torch.bfloat16) * 0.2)(4, 1024) * 8.0), 'w_mod': _w((lambda *s: torch.randn(*s, dtype=torch.bfloat16) * 0.2)(1024, 6 * 1024) * 1024 ** (-0.5) * 8.0)}

def reference(A_x, A_k_cache, A_v_cache, A_wq, A_wo, B_x, B_w1, B_w3, B_w2, c, w_mod):

    def _A_ref(x, k_cache, v_cache, wq, wo):
        B, Sq, D = x.shape
        Hq, Dh = (32, 128)
        Hkv = k_cache.shape[1]
        rep = Hq // Hkv
        q = (lambda x, *d: x.permute(*d))((x @ wq).reshape(B, Sq, Hq, Dh), 0, 2, 1, 3)
        k = (lambda x, n, axis: torch.repeat_interleave(x, n, dim=axis))(k_cache, rep, axis=1)
        v = (lambda x, n, axis: torch.repeat_interleave(x, n, dim=axis))(v_cache, rep, axis=1)
        scores = torch.einsum('bhqd,bhkd->bhqk', q, k) * Dh ** (-0.5)
        p = _softmax(scores, axis=-1)
        o = torch.einsum('bhqk,bhkd->bhqd', p, v)
        return (lambda x, *d: x.permute(*d))(o, 0, 2, 1, 3).reshape(B, Sq, Hq * Dh) @ wo

    def _B_ref(x, w1, w3, w2):
        gate = torch.einsum('bsd,df->bsf', x, w1)
        up = torch.einsum('bsd,df->bsf', x, w3)
        h = _silu(gate) * up
        out = torch.einsum('bsf,fd->bsd', h, w2)
        return out
    x = A_x
    mod = (_silu(c) @ w_mod).reshape(c.shape[0], 6, 1, -1)
    sa, ca, ga, sb, cb, gb = (mod[:, 0].clone(), mod[:, 1].clone(), mod[:, 2].clone(), mod[:, 3].clone(), mod[:, 4].clone(), mod[:, 5].clone())
    h = _layernorm(x, axis=-1) * (1 + ca) + sa
    x = x + ga * _A_ref(h, A_k_cache, A_v_cache, A_wq, A_wo)
    h = _layernorm(x, axis=-1) * (1 + cb) + sb
    x = x + gb * _B_ref(h, B_w1, B_w3, B_w2)
    return x
```

```python
import re

_REG = re.compile(r'\b([vsa])(\d+)\b|\b([vsa])\[(\d+):(\d+)\]')
TRANS = ('v_exp_f32', 'v_log_f32', 'v_rcp_f32', 'v_rsq_f32', 'v_sqrt_f32', 'v_sin_f32', 'v_cos_f32')


def regs_of(op):
    out = set()
    op = op.strip()
    if op in ('vcc', 'vcc_lo', 'vcc_hi'):
        return {('s', 106), ('s', 107)}
    if op == 'exec':
        return {('s', 126), ('s', 127)}
    for m in _REG.finditer(op):
        if m.group(1):
            out.add((m.group(1), int(m.group(2))))
        else:
            for k in range(int(m.group(4)), int(m.group(5)) + 1):
                out.add((m.group(3), k))
    return out


def split_ops(rest):
    ops, depth, cur = [], 0, ''
    for ch in rest:
        if ch == '[':
            depth += 1
        if ch == ']':
            depth -= 1
        if ch == ',' and depth == 0:
            ops.append(cur.strip())
            cur = ''
        else:
            cur += ch
    if cur.strip():
        ops.append(cur.strip())
    return ops


class Ins:
    def __init__(self, text):
        self.text = text
        t = text.split(';')[0].strip()
        self.label = None
        self.mn = ''
        self.w = set()
        self.r = set()
        self.kind = 'other'
        self.states = 1
        self.target = None
        self.dpp = False
        self.srcC = set()
        self.srcAB = set()
        self.stdata = set()
        if not t or t.startswith('.'):
            self.kind = 'dir'
            self.states = 0
            return
        if t.endswith(':'):
            self.kind = 'label'
            self.label = t[:-1]
            self.states = 0
            return
        parts = t.split(None, 1)
        mn = self.mn = parts[0]
        rest = parts[1] if len(parts) > 1 else ''
        ops = split_ops(rest)
        rest0 = re.split(r' (?:op_sel|op_sel_hi|neg_lo|neg_hi|quad_perm):', rest)[0]
        ops = split_ops(rest0)
        if ops:
            ops[-1] = ops[-1].split(' ')[0] if not ops[-1].startswith('hwreg') else ops[-1]
        R = [regs_of(o) for o in ops]
        if mn == 's_nop':
            self.kind = 'nop'
            self.states = int(ops[0], 0) + 1
        elif mn.startswith('s_cbranch') or mn == 's_branch':
            self.kind = 'branch'
            self.target = ops[0]
        elif mn == 's_endpgm':
            self.kind = 'end'
        elif mn.startswith('s_'):
            self.kind = 'salu'
            if not (mn.startswith('s_cmp') or mn.startswith('s_bitcmp') or mn in ('s_waitcnt', 's_barrier', 's_sleep', 's_setprio')):
                if R:
                    self.w = R[0]
                for x in R[1:]:
                    self.r |= x
            else:
                for x in R:
                    self.r |= x
        elif mn.startswith('v_mfma') or mn.startswith('v_smfmac'):
            self.kind = 'mfma'
            self.w = R[0]
            self.srcAB = R[1] | R[2]
            self.srcC = R[3]
            if mn.startswith('v_smfmac'):
                self.srcAB |= R[3]
                self.srcC = R[0]
            self.r = self.srcAB | self.srcC
        elif mn.startswith('v_'):
            self.kind = 'valu'
            self.dpp = '_dpp' in mn or 'row_' in rest or 'quad_perm' in rest
            base = mn.replace('_e32', '').replace('_e64', '').replace('_dpp', '').replace('_sdwa', '')
            self.base = base
            if base.startswith('v_permlane'):
                self.w = R[0] | R[1]
                self.r = R[0] | R[1]
            elif base.startswith('v_cmp'):
                self.w = R[0]
                for x in R[1:]:
                    self.r |= x
            elif base in ('v_add_co_u32', 'v_sub_co_u32', 'v_addc_co_u32', 'v_subb_co_u32'):
                self.w = R[0] | R[1]
                for x in R[2:]:
                    self.r |= x
            else:
                self.w = R[0]
                for x in R[1:]:
                    self.r |= x
                if base.startswith('v_fmac') or base.startswith('v_dot2c') or self.dpp or base == 'v_writelane_b32':
                    self.r |= R[0]
        elif mn.startswith('buffer_') or mn.startswith('global_'):
            self.kind = 'vmem'
            if 'load' in mn:
                if ' lds' in (' ' + rest):
                    for x in R:
                        self.r |= x
                else:
                    self.w = R[0]
                    for x in R[1:]:
                        self.r |= x
            else:
                for x in R:
                    self.r |= x
                if 'x4' in mn or 'x3' in mn:
                    self.stdata = R[0] if mn.startswith('buffer_') else R[1]
                if 'atomic' in mn and 'sc0' in rest:
                    self.w = R[0]
        elif mn.startswith('ds_'):
            self.kind = 'ds'
            if mn.startswith('ds_read') or '_rtn' in mn or 'permute' in mn or 'swizzle' in mn:
                self.w = R[0]
                for x in R[1:]:
                    self.r |= x
            else:
                for x in R:
                    self.r |= x
        else:
            raise ValueError('unknown instruction ' + text)


def need_states(p, c):
    n = 0
    vw = {x for x in p.w if x[0] in 'va'}
    sw = {x for x in p.w if x[0] == 's'}
    if p.kind == 'valu':
        if vw:
            if c.kind == 'valu':
                hit = vw & c.r
                if hit:
                    if c.dpp:
                        n = max(n, 2)
                    if c.base.startswith('v_permlane'):
                        n = max(n, 2)
                    if c.base in ('v_readfirstlane_b32', 'v_readlane_b32'):
                        n = max(n, 1)
                    if p.base in TRANS:
                        n = max(n, 1)
            if c.kind == 'mfma' and vw & c.r:
                n = max(n, 2)
        if sw:
            if c.kind == 'valu' and sw & c.r:
                n = max(n, 4 if c.base in ('v_readlane_b32', 'v_writelane_b32') else 2)
            if c.kind == 'vmem' and sw & c.r:
                n = max(n, 5)
    if p.kind == 'mfma':
        big = '32x32' in p.mn
        a, b = (12, 10) if big else (8, 6)
        if c.kind in ('valu', 'vmem', 'ds') and p.w & (c.r | c.w):
            n = max(n, a)
        if c.kind == 'mfma':
            if p.w & c.srcAB:
                n = max(n, a)
            if p.w & c.srcC and not (p.w == c.srcC and p.mn == c.mn):
                n = max(n, b)
            if p.w & c.w and not (p.w == c.srcC):
                n = max(n, b)
        if c.kind == 'valu' and p.srcC & c.w:
            n = max(n, 7 if big else 3)
    if p.kind == 'vmem' and p.stdata and p.stdata & c.w:
        n = max(n, 2)
    return n


def pad_hazards(lines):
    ins = [Ins(t) for t in lines]
    labels = {}
    for i, x in enumerate(ins):
        if x.kind == 'label':
            labels[x.label] = i
    srcs = {}
    for i, x in enumerate(ins):
        if x.kind == 'branch' and x.target in labels:
            srcs.setdefault(labels[x.target], []).append(i)
    pad = [0] * len(ins)
    MAXD = 13

    def required(i):
        c = ins[i]
        best = 0
        stack = [(i, 0)]
        seen = {}
        while stack:
            j, dist = stack.pop()
            preds = []
            if j > 0:
                q = ins[j - 1]
                if not (q.kind == 'end' or q.mn == 's_branch'):
                    preds.append(j - 1)
            if ins[j].kind == 'label':
                preds += srcs.get(j, [])
            for k in preds:
                p = ins[k]
                if p.states:
                    nd = need_states(p, c)
                    if nd > dist:
                        best = max(best, nd - dist)
                d2 = dist + p.states + pad[k]
                if d2 < MAXD and seen.get(k, 99) > d2:
                    seen[k] = d2
                    stack.append((k, d2))
        return best

    for i, x in enumerate(ins):
        if x.kind in ('valu', 'mfma', 'vmem', 'ds'):
            pad[i] = required(i)
    out = []
    for i, x in enumerate(ins):
        if pad[i]:
            out.append(f's_nop {pad[i] - 1}')
        out.append(x.text)
    return out
```

```python
import sys
from collections import deque
from asmlib import pad_hazards

NAME = 'adaLN_cond__gqa_block_cached__glu_gated_swiglu__decode'

CFG = dict(
    W=4,
    W_PRE=6,
    W_M=5,
    W_POST=8,
    W_INIT=10,
    STAMPS=False,
    SPIN=1 << 18,
)

WS_MOD = 0x00000
WS_Q = 0x10000
WS_ML = 0x20000
WS_AP = 0x30000
WS_OP = 0x40000
WS_FP = 0xC0000
WS_STAMP = 0x200000
WS_BYTES = 268435456

L_KT = 0
L_OPART = 0
L_XA = 40960
L_ZERO = 49152
L_MLW = 49664
L_CNT = 50176
L_STATS = 50432
L_X2 = 50688
L_FINB = 51200
L_X1 = 52224
L_RED = 60416
L_STASH = 83968
L_TOTAL = 116736

SENT_MASKS = {}


def vr(a, n=4):
    return f'v[{a}:{a + n - 1}]' if n > 1 else f'v{a}'


def sr(a, n=2):
    return f's[{a}:{a + n - 1}]' if n > 1 else f's{a}'


S_WV, S_W8, S_ROT, S_KV = 3, 4, 6, 7
SRD_K, SRD_V, SRD_WS, SRD_W, SRD_A, SRD_D = 8, 12, 16, 20, 24, 28
P_X, P_K, P_V, P_WQ, P_WO, P_W1, P_W3, P_W2, P_C, P_WMOD, P_OUT, P_DBG, P_WS = 32, 34, 36, 38, 40, 44, 46, 48, 50, 52, 54, 56, 58
S_T0, S_T1, S_T2, S_T3 = 60, 61, 62, 63
S_PLO, S_PHI = 64, 65
S_MASK = 66
S_SAVE = 68
S_SPIN = 70
S_VALID = 71
S_U = 72
S_C64 = 80
S_C64B = 82
S_STAMP = 84


class Prog:
    def __init__(self, name):
        self.name = name
        self.L = []
        self.vm = []
        self.stream = deque()
        self.released = set()
        self.W = CFG['W']
        self.nlab = 0
        self.nstamp = 0
        self.stamp_names = []

    def e(self, s):
        for line in s.split('\n'):
            line = line.strip()
            if line:
                self.L.append(line)

    def lab(self, base):
        self.nlab += 1
        return f'L_{self.name}_{base}{self.nlab}'

    def vmem(self, s, tag):
        self.e(s)
        self.vm.append(tag)
        assert len(self.vm) <= 56, 'too many outstanding'

    def waitn(self, n):
        if len(self.vm) > n:
            self.e(f's_waitcnt vmcnt({n})')
            self.vm = self.vm[len(self.vm) - n:] if n else []

    def wait(self, tag):
        if tag in self.vm:
            idx = len(self.vm) - 1 - self.vm[::-1].index(tag)
            self.waitn(len(self.vm) - 1 - idx)

    def push(self, tag, fn, need=None):
        self.stream.append((tag, fn, need))

    def can_pump(self):
        return self.stream and (self.stream[0][2] is None or self.stream[0][2] in self.released)

    def pump(self, k=1):
        for _ in range(k):
            if not self.can_pump():
                return
            tag, fn, _n = self.stream.popleft()
            self.waitn(self.W - 1)
            fn(tag)

    def fill(self):
        while self.can_pump() and len(self.vm) < self.W:
            self.pump(1)

    def burst(self, k):
        self.W += k
        self.fill()
        self.W -= k

    def need(self, tag):
        while any(t[0] == tag for t in self.stream):
            assert self.can_pump(), f'{self.name}: stream blocked before {tag} at {self.stream[0][0]}'
            self.pump(1)
        while tag in self.vm:
            if self.can_pump():
                self.pump(1)
            else:
                self.wait(tag)

    def release(self, x):
        self.released.add(x)

    def stamp(self, name):
        if CFG['STAMPS']:
            k = S_STAMP + self.nstamp
            assert k < 100
            self.e(f's_memrealtime s[100:101]\ns_waitcnt lgkmcnt(0)\ns_mov_b32 s{k}, s100')
            self.nstamp += 1
            self.stamp_names.append(name)

    def srd(self, d, p, nbytes):
        self.e(f's_mov_b32 s{d}, s{p}\ns_mov_b32 s{d + 1}, s{p + 1}\ns_mov_b32 s{d + 2}, {hex(nbytes)}\ns_mov_b32 s{d + 3}, 0x20000')

    def lane(self, dst, terms, const=0, sadd=None, tmp=None):
        first = True
        for sh, bits, mul in terms:
            t = dst if first else tmp
            assert t is not None
            if sh == 0 and bits >= 6:
                src = 'v1'
            elif sh == 0:
                self.e(f'v_and_b32 v{t}, {(1 << bits) - 1}, v1')
                src = f'v{t}'
            elif sh + bits >= 6:
                self.e(f'v_lshrrev_b32 v{t}, {sh}, v1')
                src = f'v{t}'
            else:
                self.e(f'v_bfe_u32 v{t}, v1, {sh}, {bits}')
                src = f'v{t}'
            if first:
                if mul & (mul - 1) == 0:
                    self.e(f'v_lshlrev_b32 v{dst}, {mul.bit_length() - 1}, {src}')
                else:
                    self.e(f'v_mul_u32_u24 v{dst}, {mul}, {src}')
            else:
                if mul & (mul - 1) == 0:
                    self.e(f'v_lshl_add_u32 v{dst}, {src}, {mul.bit_length() - 1}, v{dst}')
                else:
                    self.e(f'v_mul_u32_u24 v{t}, {mul}, {src}\nv_add_u32 v{dst}, v{t}, v{dst}')
            first = False
        if const:
            self.e(f'v_add_u32 v{dst}, {const}, v{dst}')
        if sadd is not None:
            self.e(f'v_add_u32 v{dst}, s{sadd}, v{dst}')

    def exec_set(self, mask):
        lo, hi = mask & 0xffffffff, mask >> 32
        self.e(f's_mov_b32 exec_lo, {hex(lo)}\ns_mov_b32 exec_hi, {hex(hi)}')

    def exec_all(self):
        self.e('s_mov_b64 exec, -1')

    def maxu(self, dst, regs):
        regs = list(regs)
        if len(regs) % 2 == 0:
            self.e(f'v_max_u32 v{dst}, v{regs[0]}, v{regs[1]}')
            regs = regs[2:]
        else:
            self.e(f'v_max3_u32 v{dst}, v{regs[0]}, v{regs[1]}, v{regs[2]}')
            regs = regs[3:]
        while regs:
            self.e(f'v_max3_u32 v{dst}, v{dst}, v{regs[0]}, v{regs[1]}')
            regs = regs[2:]

    def check_retry(self, issue, regs, tmp):
        ok, lp = self.lab('ok'), self.lab('retry')
        if len(regs) > 1:
            self.maxu(tmp, regs)
        else:
            tmp = regs[0]
        self.e(f'v_cmp_eq_u32 vcc, -1, v{tmp}\ns_cbranch_vccz {ok}\ns_mov_b32 s{S_SPIN}, 0\n{lp}:')
        issue()
        self.e('s_waitcnt vmcnt(0)')
        if len(regs) > 1:
            self.maxu(tmp, regs)
        self.e(f's_add_u32 s{S_SPIN}, s{S_SPIN}, 1\ns_cmp_ge_u32 s{S_SPIN}, {CFG["SPIN"]}\ns_cbranch_scc1 {ok}')
        self.e(f'v_cmp_eq_u32 vcc, -1, v{tmp}\ns_cbranch_vccnz {lp}\n{ok}:')

    def poll_masked(self, issuers, regs, tmp):
        n = len(issuers)
        lp, done = self.lab('poll'), self.lab('polldone')
        self.waitn(0)
        self.e(f's_mov_b32 s{S_VALID}, 0\ns_mov_b32 s{S_SPIN}, 0\n{lp}:')
        for t in range(n):
            sk = self.lab('pi')
            self.e(f's_bitcmp1_b32 s{S_VALID}, {t}\ns_cbranch_scc1 {sk}')
            issuers[t]()
            self.e(f'{sk}:')
        self.e('s_waitcnt vmcnt(0)')
        for t in range(n):
            sk = self.lab('pc')
            self.e(f's_bitcmp1_b32 s{S_VALID}, {t}\ns_cbranch_scc1 {sk}')
            self.maxu(tmp, regs[t])
            self.e(f'v_cmp_eq_u32 vcc, -1, v{tmp}\ns_cbranch_vccnz {sk}\ns_bitset1_b32 s{S_VALID}, {t}\n{sk}:')
        self.e(f's_add_u32 s{S_SPIN}, s{S_SPIN}, 1\ns_cmp_ge_u32 s{S_SPIN}, {CFG["SPIN"]}\ns_cbranch_scc1 {done}')
        self.e(f's_cmp_lg_u32 s{S_VALID}, {hex((1 << n) - 1)}\ns_cbranch_scc1 {lp}\n{done}:')

    def perm_chunk(self, raw, dst, pump_every=0):
        k = 0
        for c in range(4):
            for hi in range(2):
                for jj in range(4):
                    a, b = raw + 4 * (2 * jj) + c, raw + 4 * (2 * jj + 1) + c
                    sel = S_PHI if hi else S_PLO
                    self.e(f'v_perm_b32 v{dst + 4 * (2 * c + hi) + jj}, v{b}, v{a}, s{sel}')
                    k += 1
                    if pump_every and k % pump_every == 0:
                        self.fill()

    def unpack(self, src, d0, d1):
        self.e(f'v_lshlrev_b32 v{d0}, 16, v{src}\nv_and_b32 v{d1}, 0xffff0000, v{src}')

    def rnd2(self, a, b, t):
        self.e(f'v_cvt_pk_bf16_f32 v{t}, v{a}, v{b}')
        self.unpack(t, a, b)

    def rowsum(self, regs, steps):
        for st in steps:
            for r in regs:
                self.e(f'v_add_f32_dpp v{r}, v{r}, v{r} row_ror:{st} row_mask:0xf bank_mask:0xf')

    def swapred(self, op, which, regs, tmps):
        for r, t in zip(regs, tmps):
            self.e(f'v_mov_b32 v{t}, v{r}')
        for r, t in zip(regs, tmps):
            self.e(f'v_permlane{which}_swap_b32 v{r}, v{t}')
        for r, t in zip(regs, tmps):
            self.e(f'{op} v{r}, v{r}, v{t}')


LOG2E = 0x3fb8aa3b
AL_TERMS = [(5, 1, 2048), (0, 4, 16), (4, 1, 8)]
XA_TERMS = [(5, 1, 256), (0, 4, 16), (4, 1, 8)]


def layernorm(p, X, T, fix):
    s0, s1, t0, t1, m0, m1, ad = T[0], T[1], T[2], T[3], T[4], T[5], T[6]
    for q, s in ((0, s0), (1, s1)):
        x = X[4 * q:4 * q + 4]
        p.e(f'v_add_f32 v{s}, v{x[0]}, v{x[1]}\nv_add_f32 v{T[2 + q]}, v{x[2]}, v{x[3]}')
    p.e(f'v_add_f32 v{s0}, v{s0}, v{t0}\nv_add_f32 v{s1}, v{s1}, v{t1}')
    p.rowsum([s0, s1], (8, 4, 2, 1))
    p.swapred('v_add_f32', 16, [s0, s1], [t0, t1])
    A, B = T[8], T[10]
    assert A % 2 == 0 and B % 2 == 0 and T[9] == A + 1 and T[11] == B + 1
    p.e(f'v_mul_f32 v{A}, 0x3c000000, v{s0}\nv_mul_f32 v{B}, 0x3c000000, v{s1}')
    for q, mean in ((0, A), (1, B)):
        x = X[4 * q:4 * q + 4]
        p.e(f'v_sub_f32 v{t0}, v{x[0]}, v{mean}\nv_sub_f32 v{t1}, v{x[1]}, v{mean}')
        p.e(f'v_mul_f32 v{mean + 1}, v{t0}, v{t0}\nv_fmac_f32 v{mean + 1}, v{t1}, v{t1}')
        p.e(f'v_sub_f32 v{t0}, v{x[2]}, v{mean}\nv_sub_f32 v{t1}, v{x[3]}, v{mean}')
        p.e(f'v_fmac_f32 v{mean + 1}, v{t0}, v{t0}\nv_fmac_f32 v{mean + 1}, v{t1}, v{t1}')
    p.rowsum([A + 1, B + 1], (8, 4, 2, 1))
    p.swapred('v_add_f32', 16, [A + 1, B + 1], [t0, t1])
    p.e(f's_lshl_b32 s{S_T0}, s{S_WV}, 5\ns_add_u32 s{S_T0}, s{S_T0}, {L_STATS}')
    p.lane(ad, [(5, 1, 8)], sadd=S_T0)
    p.exec_set(0x0000000100000001)
    p.e(f'ds_write_b64 v{ad}, {vr(A, 2)}\nds_write_b64 v{ad}, {vr(B, 2)} offset:16')
    p.exec_all()
    p.lane(ad, [(0, 3, 32), (5, 1, 8)], const=L_STATS, tmp=t0)
    p.e('s_waitcnt lgkmcnt(0)\ns_barrier')
    p.e(f'ds_read_b64 {vr(A, 2)}, v{ad}\nds_read_b64 {vr(B, 2)}, v{ad} offset:16\ns_waitcnt lgkmcnt(0)')
    p.e(f'v_mov_b32 v{m0}, v{A}\nv_mov_b32 v{m1}, v{B}')
    p.rowsum([m0, m1], (4, 2, 1))
    p.e(f'v_mul_f32 v{m0}, 0x3e000000, v{m0}\nv_mul_f32 v{m1}, 0x3e000000, v{m1}')
    p.e(f'v_sub_f32 v{t0}, v{A}, v{m0}\nv_sub_f32 v{t1}, v{B}, v{m1}')
    p.e(f'v_mul_f32 v{s0}, 0x43000000, v{t0}\nv_mul_f32 v{s1}, 0x43000000, v{t1}')
    p.e(f'v_fmac_f32 v{A + 1}, v{s0}, v{t0}\nv_fmac_f32 v{B + 1}, v{s1}, v{t1}')
    p.rowsum([A + 1, B + 1], (4, 2, 1))
    p.rnd2(m0, m1, t0)
    p.e(f'v_mul_f32 v{s0}, 0x3a800000, v{A + 1}\nv_mul_f32 v{s1}, 0x3a800000, v{B + 1}')
    p.rnd2(s0, s1, t0)
    p.e(f'v_add_f32 v{s0}, 0x3727c5ac, v{s0}\nv_add_f32 v{s1}, 0x3727c5ac, v{s1}')
    p.rnd2(s0, s1, t0)
    p.e(f'v_sqrt_f32 v{s0}, v{s0}\nv_sqrt_f32 v{s1}, v{s1}')
    p.rnd2(s0, s1, t0)
    p.e(f'v_rcp_f32 v{A}, v{s0}\nv_rcp_f32 v{B}, v{s1}')
    for q, m, sd, ri in ((0, m0, s0, A), (1, m1, s1, B)):
        x = X[4 * q:4 * q + 4]
        for r in range(4):
            p.e(f'v_sub_f32 v{x[r]}, v{x[r]}, v{m}')
        p.rnd2(x[0], x[1], t0)
        p.rnd2(x[2], x[3], t1)
        for r in range(4):
            if fix:
                p.e(f'v_mul_f32 v{t0}, v{x[r]}, v{ri}\nv_fma_f32 v{x[r]}, -v{t0}, v{sd}, v{x[r]}\nv_fma_f32 v{x[r]}, v{x[r]}, v{ri}, v{t0}')
            else:
                p.e(f'v_mul_f32 v{x[r]}, v{x[r]}, v{ri}')
        p.rnd2(x[0], x[1], t0)
        p.rnd2(x[2], x[3], t1)


def modulate(p, X, C1, SH, T, out):
    a, b = T[0], T[1]
    for d in range(4):
        x0, x1 = X[2 * d], X[2 * d + 1]
        p.unpack(C1[d], a, b)
        p.e(f'v_mul_f32 v{x0}, v{x0}, v{a}\nv_mul_f32 v{x1}, v{x1}, v{b}')
        p.rnd2(x0, x1, a)
        p.unpack(SH[d], a, b)
        p.e(f'v_add_f32 v{x0}, v{x0}, v{a}\nv_add_f32 v{x1}, v{x1}, v{b}')
        p.e(f'v_cvt_pk_bf16_f32 v{out[d]}, v{x0}, v{x1}')


def one_plus(p, C, T):
    a, b = T[0], T[1]
    for c in C:
        p.unpack(c, a, b)
        p.e(f'v_add_f32 v{a}, 1.0, v{a}\nv_add_f32 v{b}, 1.0, v{b}\nv_cvt_pk_bf16_f32 v{c}, v{a}, v{b}')


def xa_base(p, s):
    p.e(f's_lshl_b32 s{s}, s{S_WV}, 10\ns_add_u32 s{s}, s{s}, {L_XA}')


def push_narrow_weights(p, tag0, pitch, raw0, raw1, vo, s_base, need=None):
    for u, raw in ((0, raw0), (1, raw1)):
        for jj in range(8):
            def fn(tag, u=u, raw=raw, jj=jj):
                p.e(f's_add_u32 s{S_T3}, s{s_base}, {(64 * u + jj) * pitch}')
                p.vmem(f'buffer_load_dwordx4 {vr(raw + 4 * jj)}, v{vo}, {sr(SRD_W, 4)}, s{S_T3} offen nt', tag)
            p.push(f'{tag0}{u}', fn, need[u] if need else None)


def narrow_setup(p, pitch, vo, s_base, s_col, tmp):
    p.lane(vo, [(3, 3, 8 * pitch), (0, 3, 16)], tmp=tmp)
    p.e(f's_mul_i32 s{s_base}, s{S_WV}, {128 * pitch}\ns_add_u32 s{s_base}, s{s_base}, s{s_col}')


def narrow_gemv(p, F0, F1, B, ACC, T, s_out):
    a0, a1, t0 = T[0], T[1], T[2]
    xa_base(p, S_T0)
    p.lane(a0, [(0, 2, 256), (4, 2, 32), (3, 1, 16)], sadd=S_T0, tmp=t0)
    p.e(f's_mov_b32 s{S_MASK}, 0x0f0f0f0f\ns_mov_b32 s{S_MASK + 1}, 0x0f0f0f0f\nv_mov_b32 v{t0}, {L_ZERO}')
    p.e(f'v_cndmask_b32 v{a1}, v{a0}, v{t0}, {sr(S_MASK)}\nv_cndmask_b32 v{a0}, v{t0}, v{a0}, {sr(S_MASK)}')
    for u in range(2):
        p.e(f'ds_read_b128 {vr(B + 8 * u)}, v{a0} offset:{128 * u}\nds_read_b128 {vr(B + 8 * u + 4)}, v{a1} offset:{128 * u}')
    p.e(f's_lshl_b32 s{S_T0}, s{S_WV}, 11\ns_add_u32 s{S_T0}, s{S_T0}, {L_RED}')
    p.lane(a0, [(5, 1, 1024), (0, 2, 256), (2, 1, 128), (4, 1, 16)], sadd=S_T0, tmp=t0)
    p.e('s_waitcnt lgkmcnt(0)')
    for u, F in ((0, F0), (1, F1)):
        for e in range(8):
            acc = vr(ACC + 4 * (e & 3))
            c = '0' if (u == 0 and e < 4) else acc
            p.e(f'v_mfma_f32_16x16x32_bf16 {acc}, {vr(F + 4 * e)}, {vr(B + 8 * u + 4 * (e >> 2))}, {c}')
        p.fill()
    p.exec_set(0xff00ff0000ff00ff)
    for a in range(4):
        p.e(f'ds_write_b128 v{a0}, {vr(ACC + 4 * a)} offset:{32 * a}')
    p.exec_all()
    p.e(f's_lshl_b32 s{S_T0}, s{S_WV}, 8\ns_add_u32 s{S_T0}, s{S_T0}, {L_RED}')
    p.lane(a1, [(2, 1, 128), (0, 2, 32), (5, 1, 16), (3, 2, 4)], sadd=S_T0, tmp=t0)
    p.fill()
    p.e('s_waitcnt lgkmcnt(0)\ns_barrier')
    sk = p.lab('fin')
    p.e(f's_cmp_ge_u32 s{S_WV}, 4\ns_cbranch_scc1 {sk}')
    for k in range(8):
        p.e(f'ds_read2st64_b32 {vr(B + 2 * k, 2)}, v{a1} offset0:{8 * k} offset1:{8 * k + 4}')
    so, stride = s_out
    p.e(f's_mul_i32 s{S_T0}, s{S_WV}, {stride}\ns_add_u32 s{S_T0}, s{S_T0}, s{so}\nv_lshlrev_b32 v{a0}, 1, v1\ns_waitcnt lgkmcnt(0)')
    for w in (8, 4, 2, 1):
        for k in range(w):
            p.e(f'v_add_f32 v{B + k}, v{B + k}, v{B + k + w}')
    p.e(f'v_mov_b32_dpp v{B + 1}, v{B} quad_perm:[1,1,3,3] row_mask:0xf bank_mask:0xf')
    p.e(f'v_cvt_pk_bf16_f32 v{ACC}, v{B}, v{B + 1}')
    for k in (1, 2, 3):
        p.e(f'v_mov_b32_dpp v{ACC + k}, v{ACC} row_shl:{2 * k} row_mask:0xf bank_mask:0xf')
    p.exec_set(0x0101010101010101)
    p.e(f'buffer_store_dwordx4 {vr(ACC)}, v{a0}, {sr(SRD_WS, 4)}, s{S_T0} offen sc1')
    p.exec_all()
    p.e(f'{sk}:')


def push_al_loads(p, tag, srd, dst, vo, s_base, flags=''):
    def issue(model=True):
        for q in range(2):
            p.e(f's_add_u32 s{S_T3}, s{s_base}, {4096 * q}')
            s = f'buffer_load_dwordx2 {vr(dst + 2 * q, 2)}, v{vo}, {sr(srd, 4)}, s{S_T3} offen {flags}'
            p.vmem(s, tag) if model else p.e(s)
    if tag is not None:
        p.push(tag, lambda t: issue())
    return issue


def silu_to_xa(p, C, T, wa):
    a, b, ea, eb = T[0], T[1], T[2], T[3]
    xa_base(p, S_T0)
    p.lane(wa, XA_TERMS, sadd=S_T0, tmp=a)
    for d in range(4):
        p.unpack(C + d, a, b)
        p.e(f'v_mul_f32 v{ea}, {hex(LOG2E | 0x80000000)}, v{a}\nv_mul_f32 v{eb}, {hex(LOG2E | 0x80000000)}, v{b}')
        p.e(f'v_exp_f32 v{ea}, v{ea}\nv_exp_f32 v{eb}, v{eb}')
        p.e(f'v_add_f32 v{ea}, 1.0, v{ea}\nv_add_f32 v{eb}, 1.0, v{eb}')
        p.e(f'v_rcp_f32 v{T[4]}, v{ea}\nv_rcp_f32 v{T[5]}, v{eb}')
        p.e(f'v_mul_f32 v{T[6]}, v{a}, v{T[4]}\nv_mul_f32 v{T[7]}, v{b}, v{T[5]}')
        p.e(f'v_cvt_pk_bf16_f32 v{C + d}, v{T[6]}, v{T[7]}')
    p.e(f'ds_write_b64 v{wa}, {vr(C, 2)}\nds_write_b64 v{wa}, {vr(C + 2, 2)} offset:512')


R_Q, R_S, R_V01, R_K = 16, 32, 64, 128
R_P0, R_P1, R_ACC = 16, 32, 48
VCH = [64, 96, 128, 160]


def entry(p):
    p.e(f'''
    s_cmp_ge_u32 s2, 256
    s_cbranch_scc1 L_end
    s_load_dwordx16 s[32:47], s[0:1], 0
    s_load_dwordx8 s[48:55], s[0:1], 64
    s_load_dwordx4 s[56:59], s[0:1], 96
    v_lshrrev_b32 v2, 6, v0
    v_and_b32 v1, 63, v0
    s_lshr_b32 s{S_W8}, s2, 3
    v_readfirstlane_b32 s{S_WV}, v2
    v_lshlrev_b32 v0, 4, v1
    s_getpc_b64 s[60:61]
    L_pc:
    s_lshl_b32 s62, s{S_W8}, 3
    s_add_u32 s62, s62, s{S_WV}
    s_lshl_b32 s62, s62, 10
    s_min_u32 s62, s62, L_code_end-{NAME}_kernel-1024
    s_sub_u32 s60, s60, L_pc-{NAME}_kernel
    s_subb_u32 s61, s61, 0
    s_add_u32 s60, s60, s62
    s_addc_u32 s61, s61, 0''')
    p.vmem('global_load_dwordx4 v[252:255], v0, s[60:61]', 'code')
    p.e(f'''
    s_add_u32 s{S_ROT}, s{S_W8}, s{S_WV}
    s_and_b32 s{S_ROT}, s{S_ROT}, 7
    s_lshl_b32 s{S_ROT}, s{S_ROT}, 12
    s_lshl_b32 s{S_KV}, s2, 18
    s_add_u32 s{S_KV}, s{S_KV}, s{S_ROT}
    s_mov_b32 s{SRD_K + 2}, 0x4000000
    s_mov_b32 s{SRD_K + 3}, 0x20000
    s_waitcnt lgkmcnt(0)
    s_mov_b32 s{SRD_K}, s{P_K}
    s_mov_b32 s{SRD_K + 1}, s{P_K + 1}''')
    for j in range(4):
        p.vmem(f'buffer_load_dwordx4 {vr(R_K + 4 * j)}, v0, {sr(SRD_K, 4)}, s{S_KV} offen offset:{1024 * j} nt', 'K0')
    p.stamp('start')
    p.srd(SRD_WS, P_WS, WS_BYTES)
    p.srd(SRD_V, P_V, 0x4000000)
    p.srd(SRD_D, P_DBG, 256)
    p.e(f'''
    s_mov_b32 s{S_PLO}, 0x05040100
    s_mov_b32 s{S_PHI}, 0x07060302
    v_mov_b32 v4, -1
    v_mov_b32 v5, -1
    v_mov_b32 v6, -1
    v_mov_b32 v7, -1
    s_cmp_ge_u32 s2, 120
    s_cbranch_scc1 L_hi
    s_cmp_ge_u32 s2, 64
    s_cbranch_scc1 L_class_M
    s_branch L_class_O
    L_hi:
    s_cmp_lt_u32 s2, 184
    s_cbranch_scc1 L_class_Q
    s_cmp_lt_u32 s2, 192
    s_cbranch_scc1 L_class_P
    s_cmp_lt_u32 s2, 216
    s_cbranch_scc1 L_class_PR
    s_branch L_class_R''')


def clear_rows(p, wave, s_off, stride, nb):
    sk = p.lab('clr')
    lanes = nb // 16
    sh = lanes.bit_length() - 1
    p.e(f's_cmp_lg_u32 s{S_WV}, {wave}\ns_cbranch_scc1 {sk}')
    p.lane(2, [(sh, 2, stride), (0, sh, 16)], tmp=3)
    if lanes * 4 < 64:
        p.exec_set((1 << (lanes * 4)) - 1)
    p.e(f'buffer_store_dwordx4 v[4:7], v2, {sr(SRD_WS, 4)}, s{s_off} offen sc1')
    p.exec_all()
    p.e(f'{sk}:')


def common_clears(p):
    sk = p.lab('clr')
    p.e(f's_cmp_lg_u32 s{S_WV}, 0\ns_cbranch_scc1 {sk}')
    p.e(f's_lshl_b32 s{S_T0}, s2, 7\ns_add_u32 s{S_T0}, s{S_T0}, {WS_ML}')
    p.exec_set(0xff)
    p.e(f'buffer_store_dwordx4 v[4:7], v0, {sr(SRD_WS, 4)}, s{S_T0} offen sc1')
    p.exec_all()
    p.e(f'v_mov_b32 v8, 0\nv_mov_b32 v9, 0\nv_lshlrev_b32 v2, 3, v1\nds_write_b64 v2, v[8:9] offset:{L_ZERO}\nds_write_b32 v8, v8 offset:{L_CNT}')
    p.e(f'{sk}:')
    p.e(f's_lshl_b32 s{S_T0}, s2, 11\ns_lshl_b32 s{S_T1}, s{S_WV}, 8\ns_add_u32 s{S_T0}, s{S_T0}, s{S_T1}\ns_add_u32 s{S_T0}, s{S_T0}, {WS_OP}')
    p.exec_set(0xffff)
    p.vmem(f'buffer_store_dwordx4 v[4:7], v0, {sr(SRD_WS, 4)}, s{S_T0} offen sc1', 'clear')
    p.exec_all()


def arrive(p):
    p.wait('clear')
    sk = p.lab('arr')
    p.e(f's_waitcnt lgkmcnt(0)\ns_barrier\ns_cmp_lg_u32 s{S_WV}, 0\ns_cbranch_scc1 {sk}')
    p.e('v_mov_b32 v15, 1\ns_mov_b64 exec, 1')
    p.e(f'buffer_atomic_add v15, off, {sr(SRD_D, 4)}, 0')
    p.exec_all()
    p.e(f'{sk}:')


def push_cnt(p, dst):
    p.push('CNT', lambda t: p.vmem(f'buffer_load_dword v{dst}, off, {sr(SRD_D, 4)}, 0 sc1', t))


def check_cnt(p, dst):
    p.need('CNT')
    ok, lp = p.lab('cok'), p.lab('cretry')
    p.e(f'v_readfirstlane_b32 s{S_T0}, v{dst}\ns_mov_b32 s{S_SPIN}, 0\ns_cmp_ge_u32 s{S_T0}, 256\ns_cbranch_scc1 {ok}\n{lp}:')
    p.e(f'buffer_load_dword v{dst}, off, {sr(SRD_D, 4)}, 0 sc1\ns_waitcnt vmcnt(0)\nv_readfirstlane_b32 s{S_T0}, v{dst}')
    p.e(f's_add_u32 s{S_SPIN}, s{S_SPIN}, 1\ns_cmp_ge_u32 s{S_SPIN}, {CFG["SPIN"]}\ns_cbranch_scc1 {ok}')
    p.e(f's_cmp_lt_u32 s{S_T0}, 256\ns_cbranch_scc1 {lp}\n{ok}:')
    p.release('cnt')


def push_page(p, srd, tag, page, dst, need=None):
    for j in range(4):
        def fn(t, j=j):
            if j == 0 or True:
                p.e(f's_add_u32 s{S_T3}, s{S_KV}, {page * 32768}')
            p.vmem(f'buffer_load_dwordx4 {vr(dst + 4 * j)}, v0, {sr(srd, 4)}, s{S_T3} offen offset:{1024 * j} nt', t)
        p.push(tag, fn, need)


def push_k(p, t):
    push_page(p, SRD_K, f'K{t}', t, R_K + 16 * t)


def push_v(p, u, need=None):
    push_page(p, SRD_V, f'V{u}', 2 * u, VCH[u], need)
    push_page(p, SRD_V, f'V{u}', 2 * u + 1, VCH[u] + 16, need)


def k_setup(p):
    p.e(f's_lshl_b32 s{S_T0}, s{S_WV}, 12')
    p.e(f'v_lshrrev_b32 v6, 4, v1\nv_lshlrev_b32 v7, 2, v6\nv_xor_b32 v7, v7, v1\nv_and_b32 v7, 15, v7\nv_lshlrev_b32 v7, 4, v7')
    p.e(f'v_lshl_add_u32 v2, v6, 8, v7\nv_add_u32 v2, s{S_T0}, v2')
    for j in (1, 2, 3):
        p.e(f'v_xor_b32 v{2 + j}, {16 * j}, v2')
    p.e(f'v_xor_b32 v7, v6, v1\nv_and_b32 v7, 15, v7\nv_lshlrev_b32 v7, 4, v7')
    p.e(f'v_and_b32 v8, 3, v1\nv_lshl_add_u32 v7, v8, 10, v7\nv_bfe_u32 v8, v1, 2, 2\nv_lshl_add_u32 v7, v8, 8, v7\nv_add_u32 v6, s{S_T0}, v7')
    for m in (1, 2, 3):
        p.e(f'v_xor_b32 v{6 + m}, {64 * m}, v6')


def k_trans(p, t):
    p.need(f'K{t}')
    for j in range(4):
        p.e(f'ds_write_b128 v{2 + j}, {vr(R_K + 16 * t + 4 * j)} offset:{1024 * j}')
    for m in range(4):
        p.e(f'ds_read_b128 {vr(R_K + 16 * t + 4 * m)}, v{6 + m}')


def q_loads(p, vo):
    def issue(model):
        for m in range(4):
            s = f'buffer_load_dwordx4 {vr(R_Q + 4 * m)}, v{vo}, {sr(SRD_WS, 4)}, s{S_U + 3} offen offset:{64 * m} sc1'
            p.vmem(s, 'Q') if model else p.e(s)
    return issue


def push_q(p, vo):
    def fn(t):
        p.e(f's_lshr_b32 s{S_U + 3}, s2, 4\ns_lshl_b32 s{S_U + 3}, s{S_U + 3}, 11\ns_add_u32 s{S_U + 3}, s{S_U + 3}, {WS_Q}')
        p.lane(vo, [(0, 3, 256), (4, 2, 16)], tmp=R_Q)
        q_loads(p, vo)(True)
    p.push('Q', fn, 'cnt')


def qk_softmax(p, vo_q):
    p.need('Q')
    p.stamp('q_landed')
    p.check_retry(lambda: q_loads(p, vo_q)(False), list(range(R_Q, R_Q + 16)), 10)
    p.e('s_waitcnt lgkmcnt(0)')
    p.stamp('q_ok')
    for t in range(8):
        for m in range(4):
            s = vr(R_S + 4 * t)
            p.e(f'v_mfma_f32_16x16x32_bf16 {s}, {vr(R_K + 16 * t + 4 * m)}, {vr(R_Q + 4 * m)}, {"0" if m == 0 else s}')
        if t == 1:
            p.release('K01')
            p.burst(4)
        if t == 7:
            p.release('K47')
        p.fill()
    T = 2
    for t in range(8):
        x = R_S + 4 * t
        for h in (0, 2):
            p.rnd2(x + h, x + h + 1, T + h // 2)
        for r in range(4):
            p.e(f'v_mul_f32 v{x + r}, 0x3db504f3, v{x + r}')
        for h in (0, 2):
            p.rnd2(x + h, x + h + 1, T + h // 2)
        if t == 0:
            p.e(f'v_max_f32 v4, v{x}, v{x + 1}')
        else:
            p.e(f'v_max3_f32 v4, v4, v{x}, v{x + 1}')
        p.e(f'v_max3_f32 v4, v4, v{x + 2}, v{x + 3}')
        if t % 2:
            p.fill()
    p.swapred('v_max_f32', 16, [4], [5])
    p.swapred('v_max_f32', 32, [4], [5])
    p.e(f'v_mul_f32 v6, {hex(LOG2E | 0x80000000)}, v4\ns_mov_b32 s{S_T0}, {hex(LOG2E)}')
    p.e(f's_mov_b32 s{S_MASK}, 0x00ff00ff\ns_mov_b32 s{S_MASK + 1}, 0x00ff00ff\nv_mov_b32 v5, 0')
    for t in range(8):
        x = R_S + 4 * t
        for r in range(4):
            p.e(f'v_fma_f32 v{x + r}, v{x + r}, s{S_T0}, v6')
        for r in range(4):
            p.e(f'v_exp_f32 v{x + r}, v{x + r}')
        p.e(f'v_add_f32 v7, v{x}, v{x + 1}\nv_add_f32 v8, v{x + 2}, v{x + 3}')
        p.e(f'v_cvt_pk_bf16_f32 v2, v{x}, v{x + 1}\nv_cvt_pk_bf16_f32 v3, v{x + 2}, v{x + 3}')
        p.e(f'v_add_f32 v5, v5, v7\nv_add_f32 v5, v5, v8')
        for d in range(2):
            p.e(f'v_cndmask_b32 v{R_P0 + 2 * t + d}, 0, v{2 + d}, {sr(S_MASK)}')
            p.e(f'v_cndmask_b32 v{R_P1 + 2 * t + d}, v{2 + d}, 0, {sr(S_MASK)}')
        if t % 2:
            p.fill()
    p.swapred('v_add_f32', 16, [5], [6])
    p.swapred('v_add_f32', 32, [5], [6])
    p.e(f's_lshl_b32 s{S_T0}, s{S_WV}, 6\ns_add_u32 s{S_T0}, s{S_T0}, {L_MLW}\nv_lshlrev_b32 v6, 3, v1\nv_add_u32 v7, s{S_T0}, v6')
    p.e(f'v_mov_b32 v8, 1\nv_mov_b32 v9, {L_CNT}')
    p.exec_set(0xff)
    p.e('ds_write_b64 v7, v[4:5]\ns_mov_b64 exec, 1\nds_add_rtn_u32 v8, v9, v8')
    p.exec_all()
    sk = p.lab('ml')
    p.e(f's_waitcnt lgkmcnt(0)\nv_readfirstlane_b32 s{S_T0}, v8\ns_cmp_lg_u32 s{S_T0}, 7\ns_cbranch_scc1 {sk}')
    p.e(f'ds_read_b64 v[8:9], v6 offset:{L_MLW}\ns_waitcnt lgkmcnt(0)')
    ml_combine(p, 8, 9, 2, 3, 7)
    p.e(f's_lshl_b32 s{S_T0}, s2, 7\ns_add_u32 s{S_T0}, s{S_T0}, {WS_ML}')
    p.exec_set(0xff)
    p.e(f'buffer_store_dwordx2 v[2:3], v6, {sr(SRD_WS, 4)}, s{S_T0} offen sc1')
    p.exec_all()
    p.e(f'{sk}:')
    p.stamp('softmax')


def ml_combine(p, m, l, M, L, t):
    p.e(f'v_max_f32_dpp v{M}, v{m}, v{m} row_ror:8 row_mask:0xf bank_mask:0xf')
    p.swapred('v_max_f32', 16, [M], [t])
    p.swapred('v_max_f32', 32, [M], [t])
    p.e(f'v_sub_f32 v{t}, v{m}, v{M}\nv_mul_f32 v{t}, {hex(LOG2E)}, v{t}\nv_exp_f32 v{t}, v{t}\nv_mul_f32 v{L}, v{l}, v{t}')
    p.e(f'v_add_f32_dpp v{L}, v{L}, v{L} row_ror:8 row_mask:0xf bank_mask:0xf')
    p.swapred('v_add_f32', 16, [L], [t])
    p.swapred('v_add_f32', 32, [L], [t])


def pv_chunk(p, u, T):
    p.need(f'V{u}')
    raw = VCH[u]
    for c in range(4):
        tb = T + 8 * (c & 1)
        for hi in range(2):
            for jj in range(4):
                a, b = raw + 4 * (2 * jj) + c, raw + 4 * (2 * jj + 1) + c
                p.e(f'v_perm_b32 v{tb + 4 * hi + jj}, v{b}, v{a}, s{S_PHI if hi else S_PLO}')
        for hi in range(2):
            e = 2 * c + hi
            acc = vr(R_ACC + 4 * (e & 3))
            cc = '0' if (u == 0 and e < 4) else acc
            pb = (R_P0 if e < 4 else R_P1) + 4 * u
            p.e(f'v_mfma_f32_16x16x32_bf16 {acc}, {vr(tb + 4 * hi)}, {vr(pb)}, {cc}')
        p.fill()


def ml_loads(p):
    def issue(model):
        for k in range(2):
            s = f'buffer_load_dwordx2 {vr(6 + 2 * k, 2)}, v2, {sr(SRD_WS, 4)}, s{S_U + 3} offen offset:{1024 * k} sc1'
            p.vmem(s, 'ML') if model else p.e(s)
    return issue


def push_ml(p):
    def fn(t):
        p.e(f's_lshr_b32 s{S_U + 3}, s2, 4\ns_lshl_b32 s{S_U + 3}, s{S_U + 3}, 11\ns_add_u32 s{S_U + 3}, s{S_U + 3}, {WS_ML}')
        p.lane(2, [(3, 3, 128), (0, 3, 8)], tmp=3)
        ml_loads(p)(True)
    p.push('ML', fn, 'sm')


def ml_scale(p):
    p.need('ML')
    p.check_retry(lambda: ml_loads(p)(False), [6, 7, 8, 9], 3)
    p.e(f'''v_max_f32 v3, v6, v8
    v_sub_f32 v6, v6, v3
    v_sub_f32 v8, v8, v3
    v_mul_f32 v6, {hex(LOG2E)}, v6
    v_mul_f32 v8, {hex(LOG2E)}, v8
    v_exp_f32 v6, v6
    v_exp_f32 v8, v8
    v_mul_f32 v7, v7, v6
    v_fmac_f32 v7, v9, v8''')
    ml_combine(p, 3, 7, 6, 8, 9)
    p.e(f'v_sub_f32 v4, v4, v6\nv_mul_f32 v4, {hex(LOG2E)}, v4\nv_exp_f32 v4, v4\nv_rcp_f32 v8, v8\nv_mul_f32 v5, v4, v8')
    p.e(f's_mul_i32 s{S_T0}, s{S_WV}, 4864\ns_add_u32 s{S_T0}, s{S_T0}, {L_OPART}')
    p.lane(6, [(0, 3, 592), (4, 2, 144), (3, 1, 64)], sadd=S_T0, tmp=3)
    p.e(f's_mul_i32 s{S_T0}, s{S_WV}, 592\ns_add_u32 s{S_T0}, s{S_T0}, {L_OPART}')
    p.lane(7, [(4, 2, 144), (1, 1, 64), (0, 1, 32), (2, 2, 4)], sadd=S_T0, tmp=3)
    p.e('v_add_u32 v8, 16, v7\nv_lshlrev_b32 v9, 2, v1')
    p.e(f's_lshl_b32 s{S_U + 3}, s2, 11\ns_lshl_b32 s{S_T1}, s{S_WV}, 8\ns_add_u32 s{S_U + 3}, s{S_U + 3}, s{S_T1}\ns_add_u32 s{S_U + 3}, s{S_U + 3}, {WS_OP}')


def quad_pack_store(p, D, vo, s_off):
    for k in (1, 2, 3):
        p.e(f'v_mov_b32_dpp v{D + k}, v{D} quad_perm:[{k},{k},{k},{k}] row_mask:0xf bank_mask:0xf')
    p.exec_set(0x1111111111111111)
    p.vmem(f'buffer_store_dwordx4 {vr(D)}, v{vo}, {sr(SRD_WS, 4)}, s{s_off} offen sc1', 'st')
    p.exec_all()


def attn_epilogue(p):
    for k in range(16):
        p.e(f'v_mul_f32 v{R_ACC + k}, v5, v{R_ACC + k}')
        if k % 4 == 3:
            p.e(f'ds_write_b128 v6, {vr(R_ACC + k - 3)} offset:{16 * (k // 4)}')
    p.e('s_waitcnt lgkmcnt(0)\ns_barrier')
    B = R_P0
    for k in range(4):
        p.e(f'ds_read2st64_b32 {vr(B + 2 * k, 2)}, v7 offset0:{38 * k} offset1:{38 * k + 19}')
        p.e(f'ds_read2st64_b32 {vr(B + 8 + 2 * k, 2)}, v8 offset0:{38 * k} offset1:{38 * k + 19}')
    p.e('s_waitcnt lgkmcnt(0)')
    for w in (4, 2, 1):
        for h in (0, 8):
            for k in range(w):
                p.e(f'v_add_f32 v{B + h + k}, v{B + h + k}, v{B + h + k + w}')
    p.e(f'v_cvt_pk_bf16_f32 v{B + 4}, v{B}, v{B + 8}')
    quad_pack_store(p, B + 4, 9, S_U + 3)
    p.stamp('o_stored')


def selectors(p, SA, t):
    p.e(f'v_and_b32 v{t}, 1, v1\nv_cmp_eq_u32 vcc, 1, v{t}\nv_mov_b32 v{t}, 0x3f80\nv_mov_b32 v{t + 1}, 1.0')
    p.e(f'v_cndmask_b32 v{t}, v{t}, v{t + 1}, vcc\nv_bfe_u32 v{t + 1}, v1, 1, 3')
    for d in range(8):
        p.e(f'v_cmp_eq_u32 vcc, {d}, v{t + 1}\nv_cndmask_b32 v{SA + d}, 0, v{t}, vcc')


def wide_b_addrs(p, A, base_terms, s_base, const, t):
    p.lane(t, base_terms, const=const, sadd=s_base, tmp=A)
    p.e(f'v_mov_b32 v{t + 1}, {L_ZERO}')
    for j in range(4):
        m = 0x11111111 << j
        p.e(f's_mov_b32 s{S_MASK}, {hex(m)}\ns_mov_b32 s{S_MASK + 1}, {hex(m)}')
        p.e(f'v_cndmask_b32 v{A + j}, v{t + 1}, v{t}, {sr(S_MASK)}')


def push_wide_rows(p, tag, raw, vo, s_base, row0, need=None):
    for jj in range(8):
        def fn(t, jj=jj):
            p.e(f's_add_u32 s{S_T3}, s{s_base}, {(row0 + (jj & ~1)) * 2048}')
            p.vmem(f'buffer_load_dwordx4 {vr(raw + 4 * jj)}, v{vo}, {sr(SRD_W, 4)}, s{S_T3} offen offset:{2048 * (jj & 1)} nt', t)
        p.push(tag, fn, need)


RED_W = [(2, 2, 656), (4, 2, 144), (0, 2, 32)]


def finish(p):
    if CFG['STAMPS']:
        p.e(f's_lshl_b32 s{S_T0}, s2, 3\ns_add_u32 s{S_T0}, s{S_T0}, s{S_WV}\ns_lshl_b32 s{S_T0}, s{S_T0}, 7\ns_add_u32 s{S_T0}, s{S_T0}, {WS_STAMP}')
        p.stamp('end')
        p.e('s_mov_b64 exec, 1\nv_mov_b32 v2, 0')
        for k in range(p.nstamp):
            p.e(f'v_mov_b32 v3, s{S_STAMP + k}\nbuffer_store_dword v3, v2, {sr(SRD_WS, 4)}, s{S_T0} offen offset:{4 * k}')
    p.e('s_endpgm')


def mod_unit_setup(p, s_unit, s_col, s_out):
    p.e(f's_lshl_b32 s{s_col}, s{s_unit}, 7')
    p.e(f's_lshr_b32 s{s_out}, s{s_unit}, 4\ns_lshl_b32 s{s_out}, s{s_out}, 13\ns_and_b32 s{S_T0}, s{s_unit}, 15')
    p.e(f's_lshl_b32 s{S_T0}, s{S_T0}, 7\ns_add_u32 s{s_out}, s{s_out}, s{S_T0}')
    if WS_MOD:
        p.e(f's_add_u32 s{s_out}, s{s_out}, {WS_MOD}')


def build_class(cls, vm0, stamp0):
    p = Prog(cls)
    p.vm = list(vm0)
    p.nstamp, p.stamp_names = len(stamp0), list(stamp0)
    p.e(f'L_class_{cls}:')
    pre = {'P': 'mod', 'PR': 'mod', 'Q': 'q'}.get(cls)
    post = {'PR': 'mod', 'R': 'mod', 'M': 'mlp'}.get(cls)
    Wattn = CFG['W_M'] if cls == 'M' else CFG['W']
    S_COL, S_OUT, S_WB = S_U, S_U + 1, S_U + 2
    S_OUT2, S_COL2 = S_U + 4, S_U + 5
    if pre == 'mod':
        p.srd(SRD_W, P_WMOD, 1024 * 12288)
        p.srd(SRD_A, P_C, 8192)
        p.e(f's_sub_u32 s{S_T1}, s2, 184')
        mod_unit_setup(p, S_T1, S_COL, S_OUT)
        narrow_setup(p, 12288, 10, S_WB, S_COL, 3)
    if pre == 'q':
        p.srd(SRD_W, P_WQ, 1024 * 8192)
        p.srd(SRD_A, P_X, 8192)
        p.e(f's_sub_u32 s{S_COL}, s2, 120\ns_lshl_b32 s{S_COL}, s{S_COL}, 7\ns_add_u32 s{S_OUT}, s{S_COL}, {WS_Q}')
        narrow_setup(p, 8192, 10, S_WB, S_COL, 3)
    if pre:
        p.lane(11, AL_TERMS, tmp=3)
        p.e(f's_lshl_b32 s{S_U + 6}, s{S_WV}, 8')
        push_al_loads(p, 'ACT', SRD_A, 16, 11, S_U + 6)
        push_narrow_weights(p, 'WA', 12288 if pre == 'mod' else 8192, 64, 96, 10, S_WB)
        p.W = CFG['W_PRE'] + 4
        p.fill()
        clear_rows(p, 1, S_OUT, 2048 if pre == 'mod' else 8192, 128)
    if post == 'mod':
        p.e(f's_sub_u32 s{S_T1}, s2, {192 - 72 if cls == "PR" else 216 - 32}')
        mod_unit_setup(p, S_T1, S_COL2, S_OUT2)
        clear_rows(p, 2, S_OUT2, 2048, 128)
    if cls == 'O':
        p.e(f's_and_b32 s{S_COL}, s2, 7\ns_lshl_b32 s{S_OUT}, s{S_COL}, 13\ns_lshl_b32 s{S_T0}, s{S_W8}, 8')
        p.e(f's_add_u32 s{S_OUT}, s{S_OUT}, s{S_T0}\ns_add_u32 s{S_OUT}, s{S_OUT}, {WS_AP}')
        clear_rows(p, 1, S_OUT, 2048, 256)
    if cls == 'M':
        p.e(f's_sub_u32 s{S_COL}, s2, 64\ns_lshl_b32 s{S_OUT}, s{S_COL}, 13\ns_lshl_b32 s{S_T0}, s{S_WV}, 10')
        p.e(f's_add_u32 s{S_OUT}, s{S_OUT}, s{S_T0}\ns_add_u32 s{S_OUT}, s{S_OUT}, {WS_FP}')
        p.e(f'buffer_store_dwordx4 v[4:7], v0, {sr(SRD_WS, 4)}, s{S_OUT} offen sc1')
    common_clears(p)
    for t in range(1, 8):
        if pre == 'q' and t == 2:
            push_cnt(p, 15)
        if pre == 'q' and t == 4:
            p.push('SC', lambda tg: sc_issue(True), 'cnt')
        if pre == 'mod' and t == 6:
            push_cnt(p, 10)
        push_k(p, t)
    if pre:
        push_q(p, 11)
        push_v(p, 0, 'pre')
    else:
        push_cnt(p, 10)
        push_v(p, 0)
        push_q(p, 11)
    push_v(p, 1, 'pre' if pre else None)
    push_v(p, 2, 'K01')
    if cls == 'O':
        p.push('WOs', lambda t: wo_setup(), None)
        push_wide_rows(p, 'WO0', 192, 12, S_WB, 0, 'K47')
        push_wide_rows(p, 'WO1', 224, 12, S_WB, 32, 'K47')
    push_page(p, SRD_V, 'V3', 6, VCH[3], 'pv0')
    push_ml(p)
    push_page(p, SRD_V, 'V3', 7, VCH[3] + 16, 'pv0')

    def wo_setup():
        p.srd(SRD_W, P_WO, 4096 * 2048)
        p.lane(12, [(4, 2, 8 * 2048), (0, 4, 16)], tmp=13)
        p.e(f's_lshl_b32 s{S_WB}, s{S_COL}, 3\ns_add_u32 s{S_WB}, s{S_WB}, s{S_WV}\ns_lshl_b32 s{S_WB}, s{S_WB}, 17')
        p.e(f's_lshl_b32 s{S_T2}, s{S_W8}, 8\ns_add_u32 s{S_WB}, s{S_WB}, s{S_T2}')

    def sc_issue(model):
        for k, chunk in ((0, 0), (1, 1)):
            for q in range(2):
                p.e(f's_add_u32 s{S_T3}, s{S_U + 6}, {WS_MOD + chunk * 8192 + 4096 * q}')
                s = f'buffer_load_dwordx2 {vr(24 + 4 * k + 2 * q, 2)}, v11, {sr(SRD_WS, 4)}, s{S_T3} offen sc1'
                p.vmem(s, 'SC') if model else p.e(s)

    if post == 'mod':
        def r_setup(t):
            p.srd(SRD_W, P_WMOD, 1024 * 12288)
            p.srd(SRD_A, P_C, 8192)
            narrow_setup(p, 12288, 12, S_WB, S_COL2, 13)
            p.lane(13, AL_TERMS, tmp=14)
            p.e(f's_lshl_b32 s{S_U + 6}, s{S_WV}, 8')
        p.push('Rs', r_setup)
        push_narrow_weights(p, 'WB', 12288, 192, 224, 12, S_WB, need=['K47', 'K47'])
        push_al_loads(p, 'ACT2', SRD_A, 96, 13, S_U + 6)
    if post == 'mlp':
        def m_setup(t):
            p.srd(SRD_W, P_W2, 3584 * 2048)
            p.srd(SRD_A, P_X, 8192)
            p.e(f's_mov_b32 s{S_MASK}, 0xff00ff00\ns_mov_b32 s{S_MASK + 1}, 0xff00ff00')
            p.e(f'v_mov_b32 v12, s{P_W1}\nv_mov_b32 v13, s{P_W1 + 1}\nv_mov_b32 v14, s{P_W3}\nv_mov_b32 v15, s{P_W3 + 1}')
            p.e(f'v_cndmask_b32 v12, v12, v14, {sr(S_MASK)}\nv_cndmask_b32 v13, v13, v15, {sr(S_MASK)}')
            p.e(f's_mul_i32 s{S_T0}, s{S_WV}, {128 * 7168}\ns_lshl_b32 s{S_T1}, s{S_COL}, 7\ns_add_u32 s{S_T0}, s{S_T0}, s{S_T1}')
            p.lane(14, [(4, 2, 8 * 7168), (0, 3, 16)], sadd=S_T0, tmp=15)
            p.e('v_mov_b32 v15, 0\nv_lshl_add_u64 v[12:13], v[14:15], 0, v[12:13]')
            p.e(f's_mov_b32 s{S_C64}, 7168\ns_mov_b32 s{S_C64 + 1}, 0\ns_mov_b32 s{S_C64B}, {25 * 7168}\ns_mov_b32 s{S_C64B + 1}, 0')
            p.lane(14, [(4, 2, 8 * 2048), (0, 4, 16)], tmp=15)
            p.e(f's_lshl_b32 s{S_WB}, s{S_COL}, 17\ns_lshl_b32 s{S_T0}, s{S_WV}, 8\ns_add_u32 s{S_WB}, s{S_WB}, s{S_T0}')
        p.push('Ms', m_setup)
        for u, raw, nd in ((0, 192, 'K47'), (1, 224, 'K47'), (2, 64, 'pv3'), (3, 96, 'pv3')):
            for jj in range(8):
                def fn(t, raw=raw, jj=jj):
                    p.vmem(f'global_load_dwordx4 {vr(raw + 4 * jj)}, v[12:13], off nt', t)
                    p.e(f'v_lshl_add_u64 v[12:13], {sr(S_C64B if jj == 7 else S_C64)}, 0, v[12:13]')
                p.push(f'WM{u}', fn, nd)
        push_wide_rows(p, 'WM4', 128, 14, S_WB, 0, 'pv3')
        push_wide_rows(p, 'WM5', 160, 14, S_WB, 32, 'pv3')

    if not pre:
        p.W = CFG['W_INIT']
    p.fill()
    k_setup(p)
    arrive(p)
    p.stamp('arrived')
    p.W = CFG['W_PRE'] if pre else Wattn
    k_trans(p, 0)
    if pre == 'mod':
        p.need('ACT')
        silu_to_xa(p, 16, list(range(20, 28)), 12)
        p.need('WA0')
        p.perm_chunk(64, 32, 8)
        p.need('WA1')
        p.W = Wattn
        p.perm_chunk(96, 64, 8)
        p.burst(2)
        narrow_gemv(p, 32, 64, 96, 112, [12, 13, 14], (S_OUT, 2048))
        p.release('pre')
        p.stamp('pre_done')
    if pre == 'q':
        p.need('ACT')
        X = list(range(40, 48))
        for d in range(4):
            p.unpack(16 + d, X[2 * d], X[2 * d + 1])
        layernorm(p, X, list(range(48, 60)), True)
        for d in range(4):
            p.e(f'v_cvt_pk_bf16_f32 v{16 + d}, v{X[2 * d]}, v{X[2 * d + 1]}')
        p.need('WA0')
        p.perm_chunk(64, 32, 8)
        p.need('WA1')
        p.W = Wattn
        p.perm_chunk(96, 64, 8)
    for t in range(1, 8):
        k_trans(p, t)
        if pre == 'q' and t == 2:
            check_cnt(p, 15)
        if pre == 'q' and t == 3:
            p.need('SC')
            p.stamp('sc_landed')
            p.check_retry(lambda: sc_issue(False), list(range(24, 32)), 12)
            p.stamp('sc_ok')
            p.burst(2)
            X = list(range(96, 104))
            for d in range(4):
                p.unpack(16 + d, X[2 * d], X[2 * d + 1])
            one_plus(p, [28, 29, 30, 31], [104, 105])
            modulate(p, X, [28, 29, 30, 31], [24, 25, 26, 27], [104, 105], [16, 17, 18, 19])
            xa_base(p, S_T0)
            p.lane(12, XA_TERMS, sadd=S_T0, tmp=13)
            p.e('ds_write_b64 v12, v[16:17]\nds_write_b64 v12, v[18:19] offset:512')
            narrow_gemv(p, 32, 64, 96, 112, [12, 13, 14], (S_OUT, 8192))
            p.release('pre')
            p.stamp('pre_done')
        if pre == 'mod' and t == 6:
            check_cnt(p, 10)
    if not pre:
        check_cnt(p, 10)
    p.stamp('k_done')
    qk_softmax(p, 11)
    p.release('sm')
    pv_chunk(p, 0, 160)
    p.release('pv0')
    pv_chunk(p, 1, 64)
    pv_chunk(p, 2, 64)
    if cls == 'O':
        p.need('WO0')
        p.perm_chunk(192, 96, 8)
        p.need('WO1')
        p.perm_chunk(224, 192, 8)
    ml_scale(p)
    p.stamp('ml_ok')
    if cls == 'O':
        o_setup(p, S_COL, S_OUT)
    pv_chunk(p, 3, 64)
    p.stamp('pv_done')
    p.release('pv3')
    if post:
        p.W = CFG['W_POST']
    attn_epilogue(p)
    if cls == 'O':
        o_tail(p, S_OUT)
    if post == 'mod':
        p.need('WB0')
        p.perm_chunk(192, 32, 8)
        p.need('WB1')
        p.perm_chunk(224, 64, 8)
        p.need('ACT2')
        silu_to_xa(p, 96, list(range(100, 108)), 12)
        narrow_gemv(p, 32, 64, 96, 112, [12, 13, 14], (S_OUT2, 2048))
        p.stamp('post_done')
    if post == 'mlp':
        m_tail(p, S_COL, S_OUT)
    assert not p.stream, [t[0] for t in p.stream]
    finish(p)
    return p


O_SEL, O_E3, O_B, O_F0, O_F1 = 224, 128, 232, 96, 192


def o_setup(p, S_KS, S_OUT):
    selectors(p, O_SEL, 10)
    p.lane(13, [(3, 1, 4 * 16 * 2048), (4, 2, 2048), (0, 3, 16)], tmp=10)
    p.e(f's_lshr_b32 s{S_T0}, s{S_KS}, 1\ns_lshl_b32 s{S_T0}, s{S_T0}, 15\ns_and_b32 s{S_T1}, s{S_KS}, 1\ns_lshl_b32 s{S_T1}, s{S_T1}, 10')
    p.e(f's_add_u32 s{S_T0}, s{S_T0}, s{S_T1}\ns_lshl_b32 s{S_T1}, s{S_WV}, 7\ns_add_u32 s{S_T0}, s{S_T0}, s{S_T1}\ns_add_u32 s{S_U + 7}, s{S_T0}, {WS_OP}')
    xa_base(p, S_T0)
    p.lane(14, [(5, 1, 256), (3, 1, 128), (0, 3, 16), (4, 1, 8)], sadd=S_T0, tmp=10)
    wide_b_addrs(p, O_B, [(2, 2, 128), (4, 2, 16)], S_T0, 0, 10)
    p.e(f's_mul_i32 s{S_T0}, s{S_WV}, 2816\ns_add_u32 s{S_T0}, s{S_T0}, {L_RED}')
    p.lane(15, RED_W, sadd=S_T0, tmp=10)
    p.e(f's_mul_i32 s{S_T0}, s{S_WV}, 656\ns_add_u32 s{S_T0}, s{S_T0}, {L_RED}')
    p.lane(O_B + 4, [(4, 2, 144), (0, 2, 32), (2, 2, 4)], sadd=S_T0, tmp=10)
    p.e(f'v_add_u32 v{O_B + 5}, 16, v{O_B + 4}')
    p.e(f's_lshl_b32 s{S_T0}, s{S_WV}, 11\ns_add_u32 s{S_OUT}, s{S_OUT}, s{S_T0}')


def o_tail(p, S_OUT):
    iss, regs = [], []
    for t in range(8):
        h, sh = t >> 2, t & 3

        def f(t=t, h=h, sh=sh):
            p.e(f's_add_u32 s{S_T3}, s{S_U + 7}, {h * 2 * 4 * 16 * 2048 + sh * 4 * 2048}')
            p.e(f'buffer_load_dwordx4 {vr(O_E3 + 4 * t)}, v13, {sr(SRD_WS, 4)}, s{S_T3} offen sc1')
        iss.append(f)
        regs.append(list(range(O_E3 + 4 * t, O_E3 + 4 * t + 4)))
    p.vm = []
    p.poll_masked(iss, regs, 10)
    p.stamp('e3_ok')
    D = 32
    for t in range(8):
        p.e(f'v_mfma_f32_16x16x32_bf16 {vr(D)}, {vr(O_SEL + 4 * (t >> 2))}, {vr(O_E3 + 4 * t)}, {"0" if t == 0 else vr(D)}')
    p.e(f'v_cvt_pk_bf16_f32 v{D}, v{D}, v{D + 1}\nv_cvt_pk_bf16_f32 v{D + 1}, v{D + 2}, v{D + 3}')
    p.e(f'ds_write_b64 v14, {vr(D, 2)}')
    B = 160
    for u in range(2):
        for j in range(4):
            p.e(f'ds_read_b128 {vr(B + 16 * u + 4 * j)}, v{O_B + j} offset:{64 * u}')
    A = 40
    for u, F in ((0, O_F0), (1, O_F1)):
        for e in range(8):
            if e % 2 == 0:
                p.e(f's_waitcnt lgkmcnt({7 - 4 * u - e // 2})')
            acc = vr(A + 4 * (e & 1))
            p.e(f'v_mfma_f32_16x16x32_bf16 {acc}, {vr(F + 4 * e)}, {vr(B + 16 * u + 4 * (e >> 1))}, {"0" if (u == 0 and e < 2) else acc}')
    for a in range(2):
        p.e(f'ds_write_b128 v15, {vr(A + 4 * a)} offset:{16 * a}')
    sk = p.lab('ofin')
    p.e(f's_waitcnt lgkmcnt(0)\ns_barrier\ns_cmp_ge_u32 s{S_WV}, 4\ns_cbranch_scc1 {sk}')
    for k in range(4):
        p.e(f'ds_read2st64_b32 {vr(B + 2 * k, 2)}, v{O_B + 4} offset0:{22 * k} offset1:{22 * k + 11}')
        p.e(f'ds_read2st64_b32 {vr(B + 8 + 2 * k, 2)}, v{O_B + 5} offset0:{22 * k} offset1:{22 * k + 11}')
    p.e('s_waitcnt lgkmcnt(0)')
    for w in (4, 2, 1):
        for h in (0, 8):
            for k in range(w):
                p.e(f'v_add_f32 v{B + h + k}, v{B + h + k}, v{B + h + k + w}')
    p.e(f'v_cvt_pk_bf16_f32 v{B + 4}, v{B}, v{B + 8}')
    quad_pack_store(p, B + 4, 9, S_OUT)
    p.e(f'{sk}:')
    p.stamp('a_stored')


def m_tail(p, S_MI, S_OUT):
    F = [32, 192, 224, 64, 96, 128]
    raw = [192, 224, 64, 96, 128, 160]
    for u in range(6):
        p.need(f'WM{u}')
        p.perm_chunk(raw[u], F[u], 8)
    p.stamp('w_ready')
    SP, SEL, D = 160, 16, 24
    p.lane(10, AL_TERMS, tmp=2)
    p.e(f's_lshl_b32 s{S_U + 6}, s{S_WV}, 8')

    def mod_issue(model):
        for k, chunk in enumerate((2, 4, 3)):
            for q in range(2):
                p.e(f's_add_u32 s{S_T3}, s{S_U + 6}, {WS_MOD + chunk * 8192 + 4096 * q}')
                s = f'buffer_load_dwordx2 {vr(SP + 4 + 4 * k + 2 * q, 2)}, v10, {sr(SRD_WS, 4)}, s{S_T3} offen sc1'
                p.vmem(s, 'MOD') if model else p.e(s)
    push_al_loads(p, None, SRD_A, SP, 10, S_U + 6)(False)
    mod_issue(True)
    selectors(p, SEL, 2)
    p.lane(11, [(4, 2, 8192), (0, 4, 16)], tmp=2)
    p.e(f's_add_u32 s{S_U + 7}, s{S_U + 6}, {WS_AP}')
    p.e(f's_lshl_b32 s{S_T0}, s{S_WV}, 12\ns_add_u32 s{S_T0}, s{S_T0}, {L_STASH}\nv_add_u32 v12, s{S_T0}, v0')
    sk = p.lab('gb')
    p.e(f's_cmp_lg_u32 s{S_WV}, 0\ns_cbranch_scc1 {sk}\ns_cmp_ge_u32 s{S_MI}, 32\ns_cbranch_scc1 {sk}')
    p.lane(2, [(2, 2, 2048), (0, 2, 4)], tmp=3)
    p.e(f's_lshl_b32 s{S_T2}, s{S_MI}, 6\ns_add_u32 s{S_T2}, s{S_T2}, {WS_MOD + 5 * 8192}')

    def gb_issue():
        for r in range(4):
            p.e(f'buffer_load_dword v{SP + 16 + r}, v2, {sr(SRD_WS, 4)}, s{S_T2} offen offset:{16 * r} sc1')
    gb_issue()
    p.e('s_waitcnt vmcnt(0)')
    p.check_retry(gb_issue, list(range(SP + 16, SP + 20)), 3)
    p.e(f'ds_write_b128 v0, {vr(SP + 16)} offset:{L_FINB}')
    p.e(f'{sk}:')
    p.waitn(0)
    p.check_retry(lambda: mod_issue(False), list(range(SP + 4, SP + 16)), 2)
    one_plus(p, list(range(SP + 8, SP + 12)), [2, 3])
    for k in range(4):
        p.e(f'ds_write_b128 v12, {vr(SP + 4 * k)} offset:{1024 * k}')
    xa_base(p, S_T0)
    p.lane(13, XA_TERMS, sadd=S_T0, tmp=2)
    wide_b_addrs(p, 4, [(2, 2, 256), (4, 2, 16)], S_T0, 0, 2)
    p.e(f's_add_u32 s{S_T0}, s{S_U + 6}, {L_X1}')
    p.lane(14, AL_TERMS, sadd=S_T0, tmp=2)
    p.e(f's_mul_i32 s{S_T0}, s{S_WV}, 2816\ns_add_u32 s{S_T0}, s{S_T0}, {L_RED}')
    p.lane(15, RED_W, sadd=S_T0, tmp=2)
    p.e(f's_lshr_b32 s{S_T0}, s{S_WV}, 1\ns_mul_i32 s{S_T0}, s{S_T0}, 656\ns_and_b32 s{S_T1}, s{S_WV}, 1\ns_mul_i32 s{S_T1}, s{S_T1}, 144')
    p.e(f's_add_u32 s{S_T0}, s{S_T0}, s{S_T1}\ns_add_u32 s{S_T0}, s{S_T0}, {L_RED}')
    p.lane(8, [(5, 1, 288), (1, 2, 32), (0, 1, 16), (3, 2, 4)], sadd=S_T0, tmp=2)
    p.e(f's_lshl_b32 s{S_T0}, s{S_WV}, 6\ns_add_u32 s{S_T0}, s{S_T0}, {L_X2}')
    p.lane(9, [(0, 5, 2)], sadd=S_T0)
    p.e('s_waitcnt lgkmcnt(0)')
    p.stamp('mod_ok')
    iss, regs = [], []
    for t in range(8):
        ksh, b = t & 1, t >> 1

        def f(t=t, ksh=ksh, b=b):
            p.e(f's_add_u32 s{S_T3}, s{S_U + 7}, {ksh * 4 * 8192 + b * 2048}')
            p.e(f'buffer_load_dwordx4 {vr(SP + 4 * t)}, v11, {sr(SRD_WS, 4)}, s{S_T3} offen sc1')
        iss.append(f)
        regs.append(list(range(SP + 4 * t, SP + 4 * t + 4)))
    p.poll_masked(iss, regs, 2)
    p.stamp('e4_ok')
    order = [0, 4, 1, 5, 2, 6, 3, 7]
    for k, t in enumerate(order):
        b = t >> 1
        d = vr(D + 4 * (b >> 1))
        p.e(f'v_mfma_f32_16x16x32_bf16 {d}, {vr(SEL + 4 * (b & 1))}, {vr(SP + 4 * t)}, {"0" if t in (0, 4) else d}')
        if k == 3:
            p.e(f'ds_read_b128 {vr(SP)}, v12\nds_read_b128 {vr(SP + 4)}, v12 offset:1024')
            p.e(f'ds_read_b128 {vr(SP + 16)}, v12 offset:2048\nds_read_b128 {vr(SP + 20)}, v12 offset:3072')
    X = list(range(D, D + 8))
    a, b = 2, 3
    p.e('s_waitcnt lgkmcnt(0)')
    for d in range(4):
        x0, x1 = X[2 * d], X[2 * d + 1]
        p.rnd2(x0, x1, a)
        p.unpack(SP + 4 + d, a, b)
        p.e(f'v_mul_f32 v{x0}, v{x0}, v{a}\nv_mul_f32 v{x1}, v{x1}, v{b}')
        p.rnd2(x0, x1, a)
        p.unpack(SP + d, a, b)
        p.e(f'v_add_f32 v{x0}, v{x0}, v{a}\nv_add_f32 v{x1}, v{x1}, v{b}')
        p.e(f'v_cvt_pk_bf16_f32 v{SP + d}, v{x0}, v{x1}')
        p.unpack(SP + d, x0, x1)
    p.e(f'ds_write_b64 v14, {vr(SP, 2)}\nds_write_b64 v14, {vr(SP + 2, 2)} offset:4096')
    layernorm(p, X, list(range(SP + 4, SP + 16)), False)
    modulate(p, X, list(range(SP + 16, SP + 20)), list(range(SP + 20, SP + 24)), [2, 3], list(range(SP, SP + 4)))
    p.e(f'ds_write_b64 v13, {vr(SP, 2)}\nds_write_b64 v13, {vr(SP + 2, 2)} offset:512')
    p.stamp('h2')
    A = D

    def breads(u):
        for j in range(4):
            p.e(f'ds_read_b128 {vr(SP + 16 * (u & 1) + 4 * j)}, v{4 + j} offset:{64 * u}')
    breads(0)
    breads(1)
    for u in range(4):
        for e in range(8):
            if e % 2 == 0:
                rem = (3 - e // 2) + (4 if u < 3 else 0)
                p.e(f's_waitcnt lgkmcnt({rem})')
            acc = vr(A + 4 * (e & 1))
            p.e(f'v_mfma_f32_16x16x32_bf16 {acc}, {vr(F[u] + 4 * e)}, {vr(SP + 16 * (u & 1) + 4 * (e >> 1))}, {"0" if (u == 0 and e < 2) else acc}')
        if u < 2:
            breads(u + 2)
    for a_ in range(2):
        p.e(f'ds_write_b128 v15, {vr(A + 4 * a_)} offset:{16 * a_}')
    wide_b_addrs(p, 4, [(2, 2, 128), (4, 2, 16)], None, L_X2, 2)
    p.e('s_waitcnt lgkmcnt(0)\ns_barrier')
    G = 32
    for k in range(4):
        p.e(f'ds_read2st64_b32 {vr(G + 2 * k, 2)}, v8 offset0:{22 * k} offset1:{22 * k + 11}')
    p.e('s_waitcnt lgkmcnt(0)')
    for w in (4, 2, 1):
        for k in range(w):
            p.e(f'v_add_f32 v{G + k}, v{G + k}, v{G + k + w}')
    p.e(f'v_cvt_pk_bf16_f32 v{G}, v{G}, v{G}\nv_and_b32 v{G}, 0xffff0000, v{G}\nv_mov_b32 v{G + 1}, v{G}')
    p.e(f'v_permlane32_swap_b32 v{G}, v{G + 1}')
    p.e(f'''v_mul_f32 v{G + 2}, {hex(LOG2E | 0x80000000)}, v{G}
    v_exp_f32 v{G + 2}, v{G + 2}
    v_add_f32 v{G + 2}, 1.0, v{G + 2}
    v_rcp_f32 v{G + 2}, v{G + 2}
    v_mul_f32 v{G}, v{G}, v{G + 2}
    v_cvt_pk_bf16_f32 v{G}, v{G}, v{G}
    v_and_b32 v{G}, 0xffff0000, v{G}
    v_mul_f32 v{G}, v{G}, v{G + 1}
    v_cvt_pk_bf16_f32 v{G}, v{G}, v{G}''')
    p.exec_set(0xffffffff)
    p.e(f'ds_write_b16 v9, v{G}')
    p.exec_all()
    p.e('s_waitcnt lgkmcnt(0)\ns_barrier')
    breads(0)
    breads(1)
    for u in range(2):
        for e in range(8):
            if e % 2 == 0:
                p.e(f's_waitcnt lgkmcnt({7 - 4 * u - e // 2})')
            acc = vr(A + 4 * (e & 1))
            p.e(f'v_mfma_f32_16x16x32_bf16 {acc}, {vr(F[4 + u] + 4 * e)}, {vr(SP + 16 * u + 4 * (e >> 1))}, {"0" if (u == 0 and e < 2) else acc}')
    for d in range(4):
        p.e(f'v_cvt_pk_bf16_f32 v{G + d}, v{A + 2 * d}, v{A + 2 * d + 1}')
    p.e(f'buffer_store_dwordx4 {vr(G)}, v0, {sr(SRD_WS, 4)}, s{S_OUT} offen sc1')
    p.stamp('f_stored')
    end = p.lab('mend')
    p.e(f's_cmp_lg_u32 s{S_WV}, 0\ns_cbranch_scc1 {end}\ns_cmp_ge_u32 s{S_MI}, 32\ns_cbranch_scc1 {end}')
    p.srd(SRD_A, P_OUT, 8192)
    p.lane(2, [(2, 2, 2048), (0, 2, 4)], tmp=3)
    p.e(f's_lshl_b32 s{S_T2}, s{S_MI}, 6\nv_add_u32 v2, s{S_T2}, v2')
    GB, X1 = 40, 44
    p.e(f'ds_read_b128 {vr(GB)}, v0 offset:{L_FINB}')
    for r in range(4):
        p.e(f'ds_read_b32 v{X1 + r}, v2 offset:{L_X1 + 16 * r}')
    p.lane(11, [(4, 2, 8192), (0, 4, 16)], tmp=3)
    p.e(f's_lshl_b32 s{S_U + 7}, s{S_MI}, 8\ns_add_u32 s{S_U + 7}, s{S_U + 7}, {WS_FP}')
    p.e(f's_mov_b32 s{S_MASK}, 0xffff0000\ns_mov_b32 s{S_MASK + 1}, 0xffff0000\ns_waitcnt lgkmcnt(0)')
    for k in range(8):
        p.unpack(GB + k, 4, 5)
        p.e(f'v_cndmask_b32 v{GB + k}, v4, v5, {sr(S_MASK)}')
    E = 64
    iss, regs = [], []
    for t in range(14):
        def f(t=t):
            p.e(f's_add_u32 s{S_T3}, s{S_U + 7}, {t * 4 * 8192}')
            p.e(f'buffer_load_dwordx4 {vr(E + 4 * t)}, v11, {sr(SRD_WS, 4)}, s{S_T3} offen sc1')
        iss.append(f)
        regs.append(list(range(E + 4 * t, E + 4 * t + 4)))
    p.poll_masked(iss, regs, 3)
    p.stamp('e5_ok')
    for t in range(14):
        d = vr(D + 4 * (t & 1))
        p.e(f'v_mfma_f32_16x16x32_bf16 {d}, {vr(SEL)}, {vr(E + 4 * t)}, {"0" if t < 2 else d}')
    for r in range(4):
        p.e(f'v_add_f32 v{D + r}, v{D + r}, v{D + 4 + r}')
    for h in (0, 2):
        p.rnd2(D + h, D + h + 1, 4)
    for r in range(4):
        p.e(f'v_mul_f32 v{D + r}, v{GB + r}, v{D + r}')
    for h in (0, 2):
        p.rnd2(D + h, D + h + 1, 4)
    for r in range(4):
        p.e(f'v_add_f32 v{D + r}, v{X1 + r}, v{D + r}\nv_mov_b32 v{D + 4 + r}, v{D + r}')
    for r in range(4):
        p.e(f'v_permlane16_swap_b32 v{D + r}, v{D + 4 + r}')
    for r in range(4):
        p.e(f'v_cvt_pk_bf16_f32 v{D + r}, v{D + r}, v{D + 4 + r}')
    p.exec_set(0xffff)
    for r in range(4):
        p.e(f'buffer_store_dword v{D + r}, v2, {sr(SRD_A, 4)}, 0 offen offset:{16 * r}')
    p.exec_all()
    p.e(f'{end}:')


def generate():
    hdr = open('cdna_kernels/' + NAME + '.s.ref').read().split('\n')
    out = [l for l in hdr if l.startswith(';') and '@launch' not in l]
    out.append(f'; @launch grid=(256,1,1) block=(512,1,1) lds={L_TOTAL}')
    out += ['.amdgcn_target "amdgcn-amd-amdhsa--gfx950"', '.text', f'.globl {NAME}_kernel', '.p2align 8',
            f'.type {NAME}_kernel,@function', f'{NAME}_kernel:']
    e = Prog('E')
    entry(e)
    body = list(e.L)
    names = {}
    for cls in ('O', 'M', 'Q', 'P', 'PR', 'R'):
        p = build_class(cls, e.vm, e.stamp_names)
        body.append('.p2align 6')
        body += p.L
        names[cls] = p.stamp_names
    body += ['L_end:', 's_endpgm']
    out += pad_hazards(body)
    out += ['.fill 64, 4, 0xbf800000', '.p2align 8', 'L_code_end:']
    out += ['.section .rodata,"a"', '.p2align 6', f'.amdhsa_kernel {NAME}_kernel',
            '  .amdhsa_next_free_vgpr 256', '  .amdhsa_next_free_sgpr 102', '  .amdhsa_accum_offset 256',
            '  .amdhsa_group_segment_fixed_size 0', '  .amdhsa_kernarg_size 112', '  .amdhsa_user_sgpr_count 2',
            '  .amdhsa_user_sgpr_kernarg_segment_ptr 1', '  .amdhsa_system_sgpr_workgroup_id_x 1',
            '  .amdhsa_float_denorm_mode_32 3', '.end_amdhsa_kernel']
    return '\n'.join(out) + '\n', names


if __name__ == '__main__':
    path = sys.argv[1]
    for kv in sys.argv[2:]:
        k, v = kv.split('=')
        CFG[k] = eval(v)
    txt, names = generate()
    open(path, 'w').write(txt)
    import json
    json.dump(names, open(path + '.stamps.json', 'w'))
```

```python
import sys
from collections import deque
from asmlib import pad_hazards

NAME = 'adaLN_cond__gqa_block_cached__glu_gated_swiglu__decode'

CFG = dict(
    W=4,
    W_PRE=24,
    SC_AT=1,
    W_LOW=2,
    T_LOW=3,
    QSHIFT=0,
    W_M=5,
    W_POST=8,
    W_INIT=5,
    STAMPS=False,
    SPIN=1 << 18,
)

WS_MOD = 0x00000
WS_Q = 0x10000
WS_ML = 0x20000
WS_AP = 0x30000
WS_OP = 0x40000
WS_FP = 0xC0000
WS_STAMP = 0x200000
WS_BYTES = 268435456

L_KT = 0
L_OPART = 0
L_XA = 40960
L_ZERO = 49152
L_MLW = 49664
L_CNT = 50176
L_STATS = 50432
L_X2 = 50688
L_FINB = 51200
L_X1 = 52224
L_RED = 60416
L_STASH = 83968
L_TOTAL = 116736

SENT_MASKS = {}


def vr(a, n=4):
    return f'v[{a}:{a + n - 1}]' if n > 1 else f'v{a}'


def sr(a, n=2):
    return f's[{a}:{a + n - 1}]' if n > 1 else f's{a}'


S_WV, S_W8, S_ROT, S_KV = 3, 4, 6, 7
SRD_K, SRD_V, SRD_WS, SRD_W, SRD_A, SRD_D = 8, 12, 16, 20, 24, 28
P_X, P_K, P_V, P_WQ, P_WO, P_W1, P_W3, P_W2, P_C, P_WMOD, P_OUT, P_DBG, P_WS = 32, 34, 36, 38, 40, 44, 46, 48, 50, 52, 54, 56, 58
S_T0, S_T1, S_T2, S_T3 = 60, 61, 62, 63
S_PLO, S_PHI = 64, 65
S_MASK = 66
S_SAVE = 68
S_SPIN = 70
S_VALID = 71
S_U = 72
S_C64 = 80
S_C64B = 82
S_STAMP = 84


class Prog:
    def __init__(self, name):
        self.name = name
        self.L = []
        self.vm = []
        self.stream = deque()
        self.released = set()
        self.W = CFG['W']
        self.nlab = 0
        self.nstamp = 0
        self.stamp_names = []

    def e(self, s):
        for line in s.split('\n'):
            line = line.strip()
            if line:
                self.L.append(line)

    def lab(self, base):
        self.nlab += 1
        return f'L_{self.name}_{base}{self.nlab}'

    def vmem(self, s, tag):
        self.e(s)
        self.vm.append(tag)
        assert len(self.vm) <= 56, 'too many outstanding'

    def waitn(self, n):
        if len(self.vm) > n:
            self.e(f's_waitcnt vmcnt({n})')
            self.vm = self.vm[len(self.vm) - n:] if n else []

    def wait(self, tag):
        if tag in self.vm:
            idx = len(self.vm) - 1 - self.vm[::-1].index(tag)
            self.waitn(len(self.vm) - 1 - idx)

    def push(self, tag, fn, need=None):
        self.stream.append((tag, fn, need))

    def can_pump(self):
        return self.stream and (self.stream[0][2] is None or self.stream[0][2] in self.released)

    def pump(self, k=1):
        for _ in range(k):
            if not self.can_pump():
                return
            tag, fn, _n = self.stream.popleft()
            self.waitn(self.W - 1)
            fn(tag)

    def fill(self):
        while self.can_pump() and len(self.vm) < self.W:
            self.pump(1)

    def burst(self, k):
        self.W += k
        self.fill()
        self.W -= k

    def need(self, tag):
        while any(t[0] == tag for t in self.stream):
            assert self.can_pump(), f'{self.name}: stream blocked before {tag} at {self.stream[0][0]}'
            self.pump(1)
        while tag in self.vm:
            if self.can_pump() and self.vm[::-1].index(tag) <= self.W - 1:
                self.pump(1)
            else:
                self.wait(tag)

    def release(self, x):
        self.released.add(x)

    def stamp(self, name):
        if CFG['STAMPS']:
            k = S_STAMP + self.nstamp
            assert k < 100
            self.e(f's_memrealtime s[100:101]\ns_waitcnt lgkmcnt(0)\ns_mov_b32 s{k}, s100')
            self.nstamp += 1
            self.stamp_names.append(name)

    def srd(self, d, p, nbytes):
        self.e(f's_mov_b32 s{d}, s{p}\ns_mov_b32 s{d + 1}, s{p + 1}\ns_mov_b32 s{d + 2}, {hex(nbytes)}\ns_mov_b32 s{d + 3}, 0x20000')

    def lane(self, dst, terms, const=0, sadd=None, tmp=None):
        first = True
        for sh, bits, mul in terms:
            t = dst if first else tmp
            assert t is not None
            if sh == 0 and bits >= 6:
                src = 'v1'
            elif sh == 0:
                self.e(f'v_and_b32 v{t}, {(1 << bits) - 1}, v1')
                src = f'v{t}'
            elif sh + bits >= 6:
                self.e(f'v_lshrrev_b32 v{t}, {sh}, v1')
                src = f'v{t}'
            else:
                self.e(f'v_bfe_u32 v{t}, v1, {sh}, {bits}')
                src = f'v{t}'
            if first:
                if mul & (mul - 1) == 0:
                    self.e(f'v_lshlrev_b32 v{dst}, {mul.bit_length() - 1}, {src}')
                else:
                    self.e(f'v_mul_u32_u24 v{dst}, {mul}, {src}')
            else:
                if mul & (mul - 1) == 0:
                    self.e(f'v_lshl_add_u32 v{dst}, {src}, {mul.bit_length() - 1}, v{dst}')
                else:
                    self.e(f'v_mul_u32_u24 v{t}, {mul}, {src}\nv_add_u32 v{dst}, v{t}, v{dst}')
            first = False
        if const:
            self.e(f'v_add_u32 v{dst}, {const}, v{dst}')
        if sadd is not None:
            self.e(f'v_add_u32 v{dst}, s{sadd}, v{dst}')

    def exec_set(self, mask):
        lo, hi = mask & 0xffffffff, mask >> 32
        self.e(f's_mov_b32 exec_lo, {hex(lo)}\ns_mov_b32 exec_hi, {hex(hi)}')

    def exec_all(self):
        self.e('s_mov_b64 exec, -1')

    def maxu(self, dst, regs):
        regs = list(regs)
        if len(regs) % 2 == 0:
            self.e(f'v_max_u32 v{dst}, v{regs[0]}, v{regs[1]}')
            regs = regs[2:]
        else:
            self.e(f'v_max3_u32 v{dst}, v{regs[0]}, v{regs[1]}, v{regs[2]}')
            regs = regs[3:]
        while regs:
            self.e(f'v_max3_u32 v{dst}, v{dst}, v{regs[0]}, v{regs[1]}')
            regs = regs[2:]

    def check_retry(self, issue, regs, tmp):
        ok, lp = self.lab('ok'), self.lab('retry')
        if len(regs) > 1:
            self.maxu(tmp, regs)
        else:
            tmp = regs[0]
        self.e(f'v_cmp_eq_u32 vcc, -1, v{tmp}\ns_cbranch_vccz {ok}\ns_mov_b32 s{S_SPIN}, 0\n{lp}:')
        issue()
        self.e('s_waitcnt vmcnt(0)')
        if len(regs) > 1:
            self.maxu(tmp, regs)
        self.e(f's_add_u32 s{S_SPIN}, s{S_SPIN}, 1\ns_cmp_ge_u32 s{S_SPIN}, {CFG["SPIN"]}\ns_cbranch_scc1 {ok}')
        self.e(f'v_cmp_eq_u32 vcc, -1, v{tmp}\ns_cbranch_vccnz {lp}\n{ok}:')

    def poll_masked(self, issuers, regs, tmp):
        n = len(issuers)
        lp, done = self.lab('poll'), self.lab('polldone')
        self.waitn(0)
        self.e(f's_mov_b32 s{S_VALID}, 0\ns_mov_b32 s{S_SPIN}, 0\n{lp}:')
        for t in range(n):
            sk = self.lab('pi')
            self.e(f's_bitcmp1_b32 s{S_VALID}, {t}\ns_cbranch_scc1 {sk}')
            issuers[t]()
            self.e(f'{sk}:')
        self.e('s_waitcnt vmcnt(0)')
        for t in range(n):
            sk = self.lab('pc')
            self.e(f's_bitcmp1_b32 s{S_VALID}, {t}\ns_cbranch_scc1 {sk}')
            self.maxu(tmp, regs[t])
            self.e(f'v_cmp_eq_u32 vcc, -1, v{tmp}\ns_cbranch_vccnz {sk}\ns_bitset1_b32 s{S_VALID}, {t}\n{sk}:')
        self.e(f's_add_u32 s{S_SPIN}, s{S_SPIN}, 1\ns_cmp_ge_u32 s{S_SPIN}, {CFG["SPIN"]}\ns_cbranch_scc1 {done}')
        self.e(f's_cmp_lg_u32 s{S_VALID}, {hex((1 << n) - 1)}\ns_cbranch_scc1 {lp}\n{done}:')

    def perm_chunk(self, raw, dst, pump_every=0):
        k = 0
        for c in range(4):
            for hi in range(2):
                for jj in range(4):
                    a, b = raw + 4 * (2 * jj) + c, raw + 4 * (2 * jj + 1) + c
                    sel = S_PHI if hi else S_PLO
                    self.e(f'v_perm_b32 v{dst + 4 * (2 * c + hi) + jj}, v{b}, v{a}, s{sel}')
                    k += 1
                    if pump_every and k % pump_every == 0:
                        self.fill()

    def unpack(self, src, d0, d1):
        self.e(f'v_lshlrev_b32 v{d0}, 16, v{src}\nv_and_b32 v{d1}, 0xffff0000, v{src}')

    def rnd2(self, a, b, t):
        self.e(f'v_cvt_pk_bf16_f32 v{t}, v{a}, v{b}')
        self.unpack(t, a, b)

    def rowsum(self, regs, steps):
        for st in steps:
            for r in regs:
                self.e(f'v_add_f32_dpp v{r}, v{r}, v{r} row_ror:{st} row_mask:0xf bank_mask:0xf')

    def swapred(self, op, which, regs, tmps):
        for r, t in zip(regs, tmps):
            self.e(f'v_mov_b32 v{t}, v{r}')
        for r, t in zip(regs, tmps):
            self.e(f'v_permlane{which}_swap_b32 v{r}, v{t}')
        for r, t in zip(regs, tmps):
            self.e(f'{op} v{r}, v{r}, v{t}')


LOG2E = 0x3fb8aa3b
AL_TERMS = [(5, 1, 2048), (0, 4, 16), (4, 1, 8)]
XA_TERMS = [(5, 1, 256), (0, 4, 16), (4, 1, 8)]


def layernorm(p, X, T, fix):
    s0, s1, t0, t1, m0, m1, ad = T[0], T[1], T[2], T[3], T[4], T[5], T[6]
    for q, s in ((0, s0), (1, s1)):
        x = X[4 * q:4 * q + 4]
        p.e(f'v_add_f32 v{s}, v{x[0]}, v{x[1]}\nv_add_f32 v{T[2 + q]}, v{x[2]}, v{x[3]}')
    p.e(f'v_add_f32 v{s0}, v{s0}, v{t0}\nv_add_f32 v{s1}, v{s1}, v{t1}')
    p.rowsum([s0, s1], (8, 4, 2, 1))
    p.swapred('v_add_f32', 16, [s0, s1], [t0, t1])
    A, B = T[8], T[10]
    assert A % 2 == 0 and B % 2 == 0 and T[9] == A + 1 and T[11] == B + 1
    p.e(f'v_mul_f32 v{A}, 0x3c000000, v{s0}\nv_mul_f32 v{B}, 0x3c000000, v{s1}')
    for q, mean in ((0, A), (1, B)):
        x = X[4 * q:4 * q + 4]
        p.e(f'v_sub_f32 v{t0}, v{x[0]}, v{mean}\nv_sub_f32 v{t1}, v{x[1]}, v{mean}')
        p.e(f'v_mul_f32 v{mean + 1}, v{t0}, v{t0}\nv_fmac_f32 v{mean + 1}, v{t1}, v{t1}')
        p.e(f'v_sub_f32 v{t0}, v{x[2]}, v{mean}\nv_sub_f32 v{t1}, v{x[3]}, v{mean}')
        p.e(f'v_fmac_f32 v{mean + 1}, v{t0}, v{t0}\nv_fmac_f32 v{mean + 1}, v{t1}, v{t1}')
    p.rowsum([A + 1, B + 1], (8, 4, 2, 1))
    p.swapred('v_add_f32', 16, [A + 1, B + 1], [t0, t1])
    p.e(f's_lshl_b32 s{S_T0}, s{S_WV}, 5\ns_add_u32 s{S_T0}, s{S_T0}, {L_STATS}')
    p.lane(ad, [(5, 1, 8)], sadd=S_T0)
    p.exec_set(0x0000000100000001)
    p.e(f'ds_write_b64 v{ad}, {vr(A, 2)}\nds_write_b64 v{ad}, {vr(B, 2)} offset:16')
    p.exec_all()
    p.lane(ad, [(0, 3, 32), (5, 1, 8)], const=L_STATS, tmp=t0)
    p.e('s_waitcnt lgkmcnt(0)\ns_barrier')
    p.e(f'ds_read_b64 {vr(A, 2)}, v{ad}\nds_read_b64 {vr(B, 2)}, v{ad} offset:16\ns_waitcnt lgkmcnt(0)')
    p.e(f'v_mov_b32 v{m0}, v{A}\nv_mov_b32 v{m1}, v{B}')
    p.rowsum([m0, m1], (4, 2, 1))
    p.e(f'v_mul_f32 v{m0}, 0x3e000000, v{m0}\nv_mul_f32 v{m1}, 0x3e000000, v{m1}')
    p.e(f'v_sub_f32 v{t0}, v{A}, v{m0}\nv_sub_f32 v{t1}, v{B}, v{m1}')
    p.e(f'v_mul_f32 v{s0}, 0x43000000, v{t0}\nv_mul_f32 v{s1}, 0x43000000, v{t1}')
    p.e(f'v_fmac_f32 v{A + 1}, v{s0}, v{t0}\nv_fmac_f32 v{B + 1}, v{s1}, v{t1}')
    p.rowsum([A + 1, B + 1], (4, 2, 1))
    p.rnd2(m0, m1, t0)
    p.e(f'v_mul_f32 v{s0}, 0x3a800000, v{A + 1}\nv_mul_f32 v{s1}, 0x3a800000, v{B + 1}')
    p.rnd2(s0, s1, t0)
    p.e(f'v_add_f32 v{s0}, 0x3727c5ac, v{s0}\nv_add_f32 v{s1}, 0x3727c5ac, v{s1}')
    p.rnd2(s0, s1, t0)
    p.e(f'v_sqrt_f32 v{s0}, v{s0}\nv_sqrt_f32 v{s1}, v{s1}')
    p.rnd2(s0, s1, t0)
    p.e(f'v_rcp_f32 v{A}, v{s0}\nv_rcp_f32 v{B}, v{s1}')
    for q, m, sd, ri in ((0, m0, s0, A), (1, m1, s1, B)):
        x = X[4 * q:4 * q + 4]
        for r in range(4):
            p.e(f'v_sub_f32 v{x[r]}, v{x[r]}, v{m}')
        p.rnd2(x[0], x[1], t0)
        p.rnd2(x[2], x[3], t1)
        for r in range(4):
            if fix:
                p.e(f'v_mul_f32 v{t0}, v{x[r]}, v{ri}\nv_fma_f32 v{x[r]}, -v{t0}, v{sd}, v{x[r]}\nv_fma_f32 v{x[r]}, v{x[r]}, v{ri}, v{t0}')
            else:
                p.e(f'v_mul_f32 v{x[r]}, v{x[r]}, v{ri}')
        p.rnd2(x[0], x[1], t0)
        p.rnd2(x[2], x[3], t1)


def modulate(p, X, C1, SH, T, out):
    a, b = T[0], T[1]
    for d in range(4):
        x0, x1 = X[2 * d], X[2 * d + 1]
        p.unpack(C1[d], a, b)
        p.e(f'v_mul_f32 v{x0}, v{x0}, v{a}\nv_mul_f32 v{x1}, v{x1}, v{b}')
        p.rnd2(x0, x1, a)
        p.unpack(SH[d], a, b)
        p.e(f'v_add_f32 v{x0}, v{x0}, v{a}\nv_add_f32 v{x1}, v{x1}, v{b}')
        p.e(f'v_cvt_pk_bf16_f32 v{out[d]}, v{x0}, v{x1}')


def one_plus(p, C, T):
    a, b = T[0], T[1]
    for c in C:
        p.unpack(c, a, b)
        p.e(f'v_add_f32 v{a}, 1.0, v{a}\nv_add_f32 v{b}, 1.0, v{b}\nv_cvt_pk_bf16_f32 v{c}, v{a}, v{b}')


def xa_base(p, s):
    p.e(f's_lshl_b32 s{s}, s{S_WV}, 10\ns_add_u32 s{s}, s{s}, {L_XA}')


def push_narrow_weights(p, tag0, pitch, raw0, raw1, vo, s_base, need=None):
    for u, raw in ((0, raw0), (1, raw1)):
        for jj in range(8):
            def fn(tag, u=u, raw=raw, jj=jj):
                p.e(f's_add_u32 s{S_T3}, s{s_base}, {(64 * u + jj) * pitch}')
                p.vmem(f'buffer_load_dwordx4 {vr(raw + 4 * jj)}, v{vo}, {sr(SRD_W, 4)}, s{S_T3} offen nt', tag)
            p.push(f'{tag0}{u}', fn, need[u] if need else None)


def narrow_setup(p, pitch, vo, s_base, s_col, tmp):
    p.lane(vo, [(3, 3, 8 * pitch), (0, 3, 16)], tmp=tmp)
    p.e(f's_mul_i32 s{s_base}, s{S_WV}, {128 * pitch}\ns_add_u32 s{s_base}, s{s_base}, s{s_col}')


def narrow_gemv(p, F0, F1, B, ACC, T, s_out):
    a0, a1, t0 = T[0], T[1], T[2]
    xa_base(p, S_T0)
    p.lane(a0, [(0, 2, 256), (4, 2, 32), (3, 1, 16)], sadd=S_T0, tmp=t0)
    p.e(f's_mov_b32 s{S_MASK}, 0x0f0f0f0f\ns_mov_b32 s{S_MASK + 1}, 0x0f0f0f0f\nv_mov_b32 v{t0}, {L_ZERO}')
    p.e(f'v_cndmask_b32 v{a1}, v{a0}, v{t0}, {sr(S_MASK)}\nv_cndmask_b32 v{a0}, v{t0}, v{a0}, {sr(S_MASK)}')
    for u in range(2):
        p.e(f'ds_read_b128 {vr(B + 8 * u)}, v{a0} offset:{128 * u}\nds_read_b128 {vr(B + 8 * u + 4)}, v{a1} offset:{128 * u}')
    p.e(f's_lshl_b32 s{S_T0}, s{S_WV}, 11\ns_add_u32 s{S_T0}, s{S_T0}, {L_RED}')
    p.lane(a0, [(5, 1, 1024), (0, 2, 256), (2, 1, 128), (4, 1, 16)], sadd=S_T0, tmp=t0)
    p.e('s_waitcnt lgkmcnt(0)')
    for u, F in ((0, F0), (1, F1)):
        for e in range(8):
            acc = vr(ACC + 4 * (e & 3))
            c = '0' if (u == 0 and e < 4) else acc
            p.e(f'v_mfma_f32_16x16x32_bf16 {acc}, {vr(F + 4 * e)}, {vr(B + 8 * u + 4 * (e >> 2))}, {c}')
        p.fill()
    p.exec_set(0xff00ff0000ff00ff)
    for a in range(4):
        p.e(f'ds_write_b128 v{a0}, {vr(ACC + 4 * a)} offset:{32 * a}')
    p.exec_all()
    p.e(f's_lshl_b32 s{S_T0}, s{S_WV}, 8\ns_add_u32 s{S_T0}, s{S_T0}, {L_RED}')
    p.lane(a1, [(2, 1, 128), (0, 2, 32), (5, 1, 16), (3, 2, 4)], sadd=S_T0, tmp=t0)
    p.fill()
    p.e('s_waitcnt lgkmcnt(0)\ns_barrier')
    sk = p.lab('fin')
    p.e(f's_cmp_ge_u32 s{S_WV}, 4\ns_cbranch_scc1 {sk}')
    for k in range(8):
        p.e(f'ds_read2st64_b32 {vr(B + 2 * k, 2)}, v{a1} offset0:{8 * k} offset1:{8 * k + 4}')
    so, stride = s_out
    p.e(f's_mul_i32 s{S_T0}, s{S_WV}, {stride}\ns_add_u32 s{S_T0}, s{S_T0}, s{so}\nv_lshlrev_b32 v{a0}, 1, v1\ns_waitcnt lgkmcnt(0)')
    for w in (8, 4, 2, 1):
        for k in range(w):
            p.e(f'v_add_f32 v{B + k}, v{B + k}, v{B + k + w}')
    p.e(f'v_mov_b32_dpp v{B + 1}, v{B} quad_perm:[1,1,3,3] row_mask:0xf bank_mask:0xf')
    p.e(f'v_cvt_pk_bf16_f32 v{ACC}, v{B}, v{B + 1}')
    for k in (1, 2, 3):
        p.e(f'v_mov_b32_dpp v{ACC + k}, v{ACC} row_shl:{2 * k} row_mask:0xf bank_mask:0xf')
    p.exec_set(0x0101010101010101)
    p.e(f'buffer_store_dwordx4 {vr(ACC)}, v{a0}, {sr(SRD_WS, 4)}, s{S_T0} offen sc1')
    p.exec_all()
    p.e(f'{sk}:')


def push_al_loads(p, tag, srd, dst, vo, s_base, flags=''):
    def issue(model=True):
        for q in range(2):
            p.e(f's_add_u32 s{S_T3}, s{s_base}, {4096 * q}')
            s = f'buffer_load_dwordx2 {vr(dst + 2 * q, 2)}, v{vo}, {sr(srd, 4)}, s{S_T3} offen {flags}'
            p.vmem(s, tag) if model else p.e(s)
    if tag is not None:
        p.push(tag, lambda t: issue())
    return issue


def silu_to_xa(p, C, T, wa):
    a, b, ea, eb = T[0], T[1], T[2], T[3]
    xa_base(p, S_T0)
    p.lane(wa, XA_TERMS, sadd=S_T0, tmp=a)
    for d in range(4):
        p.unpack(C + d, a, b)
        p.e(f'v_mul_f32 v{ea}, {hex(LOG2E | 0x80000000)}, v{a}\nv_mul_f32 v{eb}, {hex(LOG2E | 0x80000000)}, v{b}')
        p.e(f'v_exp_f32 v{ea}, v{ea}\nv_exp_f32 v{eb}, v{eb}')
        p.e(f'v_add_f32 v{ea}, 1.0, v{ea}\nv_add_f32 v{eb}, 1.0, v{eb}')
        p.e(f'v_rcp_f32 v{T[4]}, v{ea}\nv_rcp_f32 v{T[5]}, v{eb}')
        p.e(f'v_mul_f32 v{T[6]}, v{a}, v{T[4]}\nv_mul_f32 v{T[7]}, v{b}, v{T[5]}')
        p.e(f'v_cvt_pk_bf16_f32 v{C + d}, v{T[6]}, v{T[7]}')
    p.e(f'ds_write_b64 v{wa}, {vr(C, 2)}\nds_write_b64 v{wa}, {vr(C + 2, 2)} offset:512')


R_Q, R_S, R_V01, R_K = 16, 32, 64, 128
R_P0, R_P1, R_ACC = 16, 32, 48
VCH = [64, 96, 128, 160]


def entry(p):
    p.e(f'''
    s_cmp_ge_u32 s2, 256
    s_cbranch_scc1 L_end
    s_load_dwordx16 s[32:47], s[0:1], 0
    s_load_dwordx8 s[48:55], s[0:1], 64
    s_load_dwordx4 s[56:59], s[0:1], 96
    v_lshrrev_b32 v2, 6, v0
    v_and_b32 v1, 63, v0
    s_lshr_b32 s{S_W8}, s2, 3
    v_readfirstlane_b32 s{S_WV}, v2
    v_lshlrev_b32 v0, 4, v1
    s_getpc_b64 s[60:61]
    L_pc:
    s_lshl_b32 s62, s{S_W8}, 3
    s_add_u32 s62, s62, s{S_WV}
    s_lshl_b32 s62, s62, 10
    s_min_u32 s62, s62, L_code_end-{NAME}_kernel-1024
    s_sub_u32 s60, s60, L_pc-{NAME}_kernel
    s_subb_u32 s61, s61, 0
    s_add_u32 s60, s60, s62
    s_addc_u32 s61, s61, 0''')
    p.vmem('global_load_dwordx4 v[252:255], v0, s[60:61]', 'code')
    p.e(f'''
    s_add_u32 s{S_ROT}, s{S_W8}, s{S_WV}
    s_and_b32 s{S_ROT}, s{S_ROT}, 7
    s_lshl_b32 s{S_ROT}, s{S_ROT}, 12
    s_lshl_b32 s{S_KV}, s2, 18
    s_add_u32 s{S_KV}, s{S_KV}, s{S_ROT}
    s_mov_b32 s{SRD_K + 2}, 0x4000000
    s_mov_b32 s{SRD_K + 3}, 0x20000
    s_sub_u32 s62, s2, 120
    s_cmp_lt_u32 s62, 64
    s_cbranch_scc1 L_class_Q
    s_cmp_lt_u32 s62, 72
    s_cbranch_scc1 L_class_P
    s_cmp_lt_u32 s62, 96
    s_cbranch_scc1 L_class_PR''')
    p.vm_pre = list(p.vm)
    got_args(p)
    for j in range(4):
        p.vmem(f'buffer_load_dwordx4 {vr(R_K + 4 * j)}, v0, {sr(SRD_K, 4)}, s{S_KV} offen offset:{1024 * j} nt', 'K0')
    p.e(f'''
    s_cmp_lt_u32 s2, 64
    s_cbranch_scc1 L_class_O
    s_cmp_lt_u32 s2, 120
    s_cbranch_scc1 L_class_M
    s_branch L_class_R''')


def got_args(p):
    p.e(f's_waitcnt lgkmcnt(0)\ns_mov_b32 s{SRD_K}, s{P_K}\ns_mov_b32 s{SRD_K + 1}, s{P_K + 1}')


def common_setup(p):
    p.stamp('start')
    p.srd(SRD_WS, P_WS, WS_BYTES)
    p.e('v_mov_b32 v4, -1\nv_mov_b32 v5, -1\nv_mov_b32 v6, -1\nv_mov_b32 v7, -1')


def common_setup2(p):
    p.srd(SRD_V, P_V, 0x4000000)
    p.srd(SRD_D, P_DBG, 256)
    p.e(f's_mov_b32 s{S_PLO}, 0x05040100\ns_mov_b32 s{S_PHI}, 0x07060302')


def clear_rows(p, s_off, stride, nb):
    lanes = nb // 16
    sh = lanes.bit_length() - 1
    p.lane(2, [(sh, 2, stride), (0, sh, 16)], tmp=3)
    if lanes * 4 < 64:
        p.exec_set((1 << (lanes * 4)) - 1)
    p.e(f'buffer_store_dwordx4 v[4:7], v2, {sr(SRD_WS, 4)}, s{s_off} offen sc1')
    p.exec_all()


def clears(p, role):
    sk = p.lab('clr')
    p.e(f's_cmp_lg_u32 s{S_WV}, 0\ns_cbranch_scc1 {sk}\ns_setprio 3')
    role()
    p.e(f's_lshl_b32 s{S_T0}, s2, 11\ns_add_u32 s{S_T0}, s{S_T0}, {WS_OP}')
    p.e(f'buffer_store_dwordx4 v[4:7], v0, {sr(SRD_WS, 4)}, s{S_T0} offen sc1')
    p.e(f'buffer_store_dwordx4 v[4:7], v0, {sr(SRD_WS, 4)}, s{S_T0} offen offset:1024 sc1')
    p.e(f's_lshl_b32 s{S_T0}, s2, 7\ns_add_u32 s{S_T0}, s{S_T0}, {WS_ML}')
    p.exec_set(0xff)
    p.e(f'buffer_store_dwordx4 v[4:7], v0, {sr(SRD_WS, 4)}, s{S_T0} offen sc1')
    p.exec_all()
    p.e(f'v_mov_b32 v8, 0\nv_mov_b32 v9, 0\nv_lshlrev_b32 v2, 3, v1\nds_write_b64 v2, v[8:9] offset:{L_ZERO}\nds_write_b32 v8, v8 offset:{L_CNT}')
    p.e(f's_setprio 0\n{sk}:')
    p.nclear = len(p.vm)


def count_b(p):
    sk = p.lab('arr')
    p.e(f's_cmp_lg_u32 s{S_WV}, 0\ns_cbranch_scc1 {sk}\ns_mov_b32 s{S_T0}, 1')
    p.e(f's_atomic_add s{S_T0}, {sr(P_DBG)}, 0\n{sk}:')


def arrive(p, off):
    sk = p.lab('arr')
    p.e(f's_cmp_lg_u32 s{S_WV}, 0\ns_cbranch_scc1 {sk}')
    p.e(f's_waitcnt vmcnt({len(p.vm) - p.nclear}) lgkmcnt(0)')
    p.stamp('arrived')
    for o in off:
        p.e(f's_mov_b32 s{S_T0}, 1\ns_atomic_add s{S_T0}, {sr(P_DBG)}, {o}')
    p.e(f'{sk}:\ns_barrier')


def push_cnt(p, dst, tag='CNT', off=0):
    p.push(tag, lambda t: p.vmem(f'buffer_load_dword v{dst}, off, {sr(SRD_D, 4)}, 0 offset:{off} sc1', t))


def check_cnt(p, dst, tag='CNT', off=0, total=256):
    p.need(tag)
    ok, lp = p.lab('cok'), p.lab('cretry')
    p.e(f'v_readfirstlane_b32 s{S_T0}, v{dst}\ns_mov_b32 s{S_SPIN}, 0\ns_cmp_ge_u32 s{S_T0}, {total}\ns_cbranch_scc1 {ok}\n{lp}:')
    p.e(f'buffer_load_dword v{dst}, off, {sr(SRD_D, 4)}, 0 offset:{off} sc1\ns_waitcnt vmcnt(0)\nv_readfirstlane_b32 s{S_T0}, v{dst}')
    p.e(f's_add_u32 s{S_SPIN}, s{S_SPIN}, 1\ns_cmp_ge_u32 s{S_SPIN}, {CFG["SPIN"]}\ns_cbranch_scc1 {ok}')
    p.e(f's_cmp_lt_u32 s{S_T0}, {total}\ns_cbranch_scc1 {lp}\n{ok}:')
    p.release(tag.lower())


def push_page(p, srd, tag, page, dst, need=None):
    for j in range(4):
        def fn(t, j=j):
            if j == 0 or True:
                p.e(f's_add_u32 s{S_T3}, s{S_KV}, {page * 32768}')
            p.vmem(f'buffer_load_dwordx4 {vr(dst + 4 * j)}, v0, {sr(srd, 4)}, s{S_T3} offen offset:{1024 * j} nt', t)
        p.push(tag, fn, need)


def push_k(p, t):
    push_page(p, SRD_K, f'K{t}', t, R_K + 16 * t)


def push_v(p, u, need=None):
    push_page(p, SRD_V, f'V{u}', 2 * u, VCH[u], need)
    push_page(p, SRD_V, f'V{u}', 2 * u + 1, VCH[u] + 16, need)


def k_setup(p):
    p.e(f's_lshl_b32 s{S_T0}, s{S_WV}, 12')
    p.e(f'v_lshrrev_b32 v6, 4, v1\nv_lshlrev_b32 v7, 2, v6\nv_xor_b32 v7, v7, v1\nv_and_b32 v7, 15, v7\nv_lshlrev_b32 v7, 4, v7')
    p.e(f'v_lshl_add_u32 v2, v6, 8, v7\nv_add_u32 v2, s{S_T0}, v2')
    for j in (1, 2, 3):
        p.e(f'v_xor_b32 v{2 + j}, {16 * j}, v2')
    p.e(f'v_xor_b32 v7, v6, v1\nv_and_b32 v7, 15, v7\nv_lshlrev_b32 v7, 4, v7')
    p.e(f'v_and_b32 v8, 3, v1\nv_lshl_add_u32 v7, v8, 10, v7\nv_bfe_u32 v8, v1, 2, 2\nv_lshl_add_u32 v7, v8, 8, v7\nv_add_u32 v6, s{S_T0}, v7')
    for m in (1, 2, 3):
        p.e(f'v_xor_b32 v{6 + m}, {64 * m}, v6')


def k_trans(p, t):
    p.need(f'K{t}')
    for j in range(4):
        p.e(f'ds_write_b128 v{2 + j}, {vr(R_K + 16 * t + 4 * j)} offset:{1024 * j}')
    for m in range(4):
        p.e(f'ds_read_b128 {vr(R_K + 16 * t + 4 * m)}, v{6 + m}')


def q_loads(p, vo):
    def issue(model):
        for m in range(4):
            s = f'buffer_load_dwordx4 {vr(R_Q + 4 * m)}, v{vo}, {sr(SRD_WS, 4)}, s{S_U + 3} offen offset:{64 * m} sc1'
            p.vmem(s, 'Q') if model else p.e(s)
    return issue


def push_q(p, vo):
    def fn(t):
        p.e(f's_lshr_b32 s{S_U + 3}, s2, 4\ns_lshl_b32 s{S_U + 3}, s{S_U + 3}, 11\ns_add_u32 s{S_U + 3}, s{S_U + 3}, {WS_Q}')
        p.lane(vo, [(0, 3, 256), (4, 2, 16)], tmp=R_Q)
        q_loads(p, vo)(True)
    p.push('Q', fn, 'cnt')


def qk_softmax(p, vo_q):
    p.need('Q')
    p.stamp('q_landed')
    p.check_retry(lambda: q_loads(p, vo_q)(False), list(range(R_Q, R_Q + 16)), 10)
    p.e('s_waitcnt lgkmcnt(0)')
    p.stamp('q_ok')
    for t in range(8):
        for m in range(4):
            s = vr(R_S + 4 * t)
            p.e(f'v_mfma_f32_16x16x32_bf16 {s}, {vr(R_K + 16 * t + 4 * m)}, {vr(R_Q + 4 * m)}, {"0" if m == 0 else s}')
        if t == 1:
            p.release('K01')
            p.burst(4)
        if t == 7:
            p.release('K47')
        p.fill()
    T = 2
    for t in range(8):
        x = R_S + 4 * t
        for h in (0, 2):
            p.rnd2(x + h, x + h + 1, T + h // 2)
        for r in range(4):
            p.e(f'v_mul_f32 v{x + r}, 0x3db504f3, v{x + r}')
        for h in (0, 2):
            p.rnd2(x + h, x + h + 1, T + h // 2)
        if t == 0:
            p.e(f'v_max_f32 v4, v{x}, v{x + 1}')
        else:
            p.e(f'v_max3_f32 v4, v4, v{x}, v{x + 1}')
        p.e(f'v_max3_f32 v4, v4, v{x + 2}, v{x + 3}')
        if t % 2:
            p.fill()
    p.swapred('v_max_f32', 16, [4], [5])
    p.swapred('v_max_f32', 32, [4], [5])
    p.e(f'v_mul_f32 v6, {hex(LOG2E | 0x80000000)}, v4\ns_mov_b32 s{S_T0}, {hex(LOG2E)}')
    p.e(f's_mov_b32 s{S_MASK}, 0x00ff00ff\ns_mov_b32 s{S_MASK + 1}, 0x00ff00ff\nv_mov_b32 v5, 0')
    for t in range(8):
        x = R_S + 4 * t
        for r in range(4):
            p.e(f'v_fma_f32 v{x + r}, v{x + r}, s{S_T0}, v6')
        for r in range(4):
            p.e(f'v_exp_f32 v{x + r}, v{x + r}')
        p.e(f'v_add_f32 v7, v{x}, v{x + 1}\nv_add_f32 v8, v{x + 2}, v{x + 3}')
        p.e(f'v_cvt_pk_bf16_f32 v2, v{x}, v{x + 1}\nv_cvt_pk_bf16_f32 v3, v{x + 2}, v{x + 3}')
        p.e(f'v_add_f32 v5, v5, v7\nv_add_f32 v5, v5, v8')
        for d in range(2):
            p.e(f'v_cndmask_b32 v{R_P0 + 2 * t + d}, 0, v{2 + d}, {sr(S_MASK)}')
            p.e(f'v_cndmask_b32 v{R_P1 + 2 * t + d}, v{2 + d}, 0, {sr(S_MASK)}')
        if t % 2:
            p.fill()
    p.swapred('v_add_f32', 16, [5], [6])
    p.swapred('v_add_f32', 32, [5], [6])
    p.e(f's_lshl_b32 s{S_T0}, s{S_WV}, 6\ns_add_u32 s{S_T0}, s{S_T0}, {L_MLW}\nv_lshlrev_b32 v6, 3, v1\nv_add_u32 v7, s{S_T0}, v6')
    p.e(f'v_mov_b32 v8, 1\nv_mov_b32 v9, {L_CNT}')
    p.exec_set(0xff)
    p.e('ds_write_b64 v7, v[4:5]\ns_mov_b64 exec, 1\nds_add_rtn_u32 v8, v9, v8')
    p.exec_all()
    sk = p.lab('ml')
    p.e(f's_waitcnt lgkmcnt(0)\nv_readfirstlane_b32 s{S_T0}, v8\ns_cmp_lg_u32 s{S_T0}, 7\ns_cbranch_scc1 {sk}')
    p.e(f'ds_read_b64 v[8:9], v6 offset:{L_MLW}\ns_waitcnt lgkmcnt(0)')
    ml_combine(p, 8, 9, 2, 3, 7)
    p.e(f's_lshl_b32 s{S_T0}, s2, 7\ns_add_u32 s{S_T0}, s{S_T0}, {WS_ML}')
    p.exec_set(0xff)
    p.e(f'buffer_store_dwordx2 v[2:3], v6, {sr(SRD_WS, 4)}, s{S_T0} offen sc1')
    p.exec_all()
    p.e(f'{sk}:')
    p.stamp('softmax')


def ml_combine(p, m, l, M, L, t):
    p.e(f'v_max_f32_dpp v{M}, v{m}, v{m} row_ror:8 row_mask:0xf bank_mask:0xf')
    p.swapred('v_max_f32', 16, [M], [t])
    p.swapred('v_max_f32', 32, [M], [t])
    p.e(f'v_sub_f32 v{t}, v{m}, v{M}\nv_mul_f32 v{t}, {hex(LOG2E)}, v{t}\nv_exp_f32 v{t}, v{t}\nv_mul_f32 v{L}, v{l}, v{t}')
    p.e(f'v_add_f32_dpp v{L}, v{L}, v{L} row_ror:8 row_mask:0xf bank_mask:0xf')
    p.swapred('v_add_f32', 16, [L], [t])
    p.swapred('v_add_f32', 32, [L], [t])


def pv_chunk(p, u, T):
    p.need(f'V{u}')
    raw = VCH[u]
    for c in range(4):
        tb = T + 8 * (c & 1)
        for hi in range(2):
            for jj in range(4):
                a, b = raw + 4 * (2 * jj) + c, raw + 4 * (2 * jj + 1) + c
                p.e(f'v_perm_b32 v{tb + 4 * hi + jj}, v{b}, v{a}, s{S_PHI if hi else S_PLO}')
        for hi in range(2):
            e = 2 * c + hi
            acc = vr(R_ACC + 4 * (e & 3))
            cc = '0' if (u == 0 and e < 4) else acc
            pb = (R_P0 if e < 4 else R_P1) + 4 * u
            p.e(f'v_mfma_f32_16x16x32_bf16 {acc}, {vr(tb + 4 * hi)}, {vr(pb)}, {cc}')
        p.fill()


def ml_loads(p):
    def issue(model):
        for k in range(2):
            s = f'buffer_load_dwordx2 {vr(6 + 2 * k, 2)}, v2, {sr(SRD_WS, 4)}, s{S_U + 3} offen offset:{1024 * k} sc1'
            p.vmem(s, 'ML') if model else p.e(s)
    return issue


def push_ml(p):
    def fn(t):
        p.e(f's_lshr_b32 s{S_U + 3}, s2, 4\ns_lshl_b32 s{S_U + 3}, s{S_U + 3}, 11\ns_add_u32 s{S_U + 3}, s{S_U + 3}, {WS_ML}')
        p.lane(2, [(3, 3, 128), (0, 3, 8)], tmp=3)
        ml_loads(p)(True)
    p.push('ML', fn, 'sm')


def ml_scale(p):
    p.need('ML')
    p.check_retry(lambda: ml_loads(p)(False), [6, 7, 8, 9], 3)
    p.e(f'''v_max_f32 v3, v6, v8
    v_sub_f32 v6, v6, v3
    v_sub_f32 v8, v8, v3
    v_mul_f32 v6, {hex(LOG2E)}, v6
    v_mul_f32 v8, {hex(LOG2E)}, v8
    v_exp_f32 v6, v6
    v_exp_f32 v8, v8
    v_mul_f32 v7, v7, v6
    v_fmac_f32 v7, v9, v8''')
    ml_combine(p, 3, 7, 6, 8, 9)
    p.e(f'v_sub_f32 v4, v4, v6\nv_mul_f32 v4, {hex(LOG2E)}, v4\nv_exp_f32 v4, v4\nv_rcp_f32 v8, v8\nv_mul_f32 v5, v4, v8')
    p.e(f's_mul_i32 s{S_T0}, s{S_WV}, 4864\ns_add_u32 s{S_T0}, s{S_T0}, {L_OPART}')
    p.lane(6, [(0, 3, 592), (4, 2, 144), (3, 1, 64)], sadd=S_T0, tmp=3)
    p.e(f's_mul_i32 s{S_T0}, s{S_WV}, 592\ns_add_u32 s{S_T0}, s{S_T0}, {L_OPART}')
    p.lane(7, [(4, 2, 144), (1, 1, 64), (0, 1, 32), (2, 2, 4)], sadd=S_T0, tmp=3)
    p.e('v_add_u32 v8, 16, v7\nv_lshlrev_b32 v9, 2, v1')
    p.e(f's_lshl_b32 s{S_U + 3}, s2, 11\ns_lshl_b32 s{S_T1}, s{S_WV}, 8\ns_add_u32 s{S_U + 3}, s{S_U + 3}, s{S_T1}\ns_add_u32 s{S_U + 3}, s{S_U + 3}, {WS_OP}')


def quad_pack_store(p, D, vo, s_off):
    for k in (1, 2, 3):
        p.e(f'v_mov_b32_dpp v{D + k}, v{D} quad_perm:[{k},{k},{k},{k}] row_mask:0xf bank_mask:0xf')
    p.exec_set(0x1111111111111111)
    p.vmem(f'buffer_store_dwordx4 {vr(D)}, v{vo}, {sr(SRD_WS, 4)}, s{s_off} offen sc1', 'st')
    p.exec_all()


def attn_epilogue(p):
    for k in range(16):
        p.e(f'v_mul_f32 v{R_ACC + k}, v5, v{R_ACC + k}')
        if k % 4 == 3:
            p.e(f'ds_write_b128 v6, {vr(R_ACC + k - 3)} offset:{16 * (k // 4)}')
    p.e('s_waitcnt lgkmcnt(0)\ns_barrier')
    B = R_P0
    for k in range(4):
        p.e(f'ds_read2st64_b32 {vr(B + 2 * k, 2)}, v7 offset0:{38 * k} offset1:{38 * k + 19}')
        p.e(f'ds_read2st64_b32 {vr(B + 8 + 2 * k, 2)}, v8 offset0:{38 * k} offset1:{38 * k + 19}')
    p.e('s_waitcnt lgkmcnt(0)')
    for w in (4, 2, 1):
        for h in (0, 8):
            for k in range(w):
                p.e(f'v_add_f32 v{B + h + k}, v{B + h + k}, v{B + h + k + w}')
    p.e(f'v_cvt_pk_bf16_f32 v{B + 4}, v{B}, v{B + 8}')
    quad_pack_store(p, B + 4, 9, S_U + 3)
    p.stamp('o_stored')


def selectors(p, SA, t):
    p.e(f'v_and_b32 v{t}, 1, v1\nv_cmp_eq_u32 vcc, 1, v{t}\nv_mov_b32 v{t}, 0x3f80\nv_mov_b32 v{t + 1}, 1.0')
    p.e(f'v_cndmask_b32 v{t}, v{t}, v{t + 1}, vcc\nv_bfe_u32 v{t + 1}, v1, 1, 3')
    for d in range(8):
        p.e(f'v_cmp_eq_u32 vcc, {d}, v{t + 1}\nv_cndmask_b32 v{SA + d}, 0, v{t}, vcc')


def wide_b_addrs(p, A, base_terms, s_base, const, t):
    p.lane(t, base_terms, const=const, sadd=s_base, tmp=A)
    p.e(f'v_mov_b32 v{t + 1}, {L_ZERO}')
    for j in range(4):
        m = 0x11111111 << j
        p.e(f's_mov_b32 s{S_MASK}, {hex(m)}\ns_mov_b32 s{S_MASK + 1}, {hex(m)}')
        p.e(f'v_cndmask_b32 v{A + j}, v{t + 1}, v{t}, {sr(S_MASK)}')


def push_wide_rows(p, tag, raw, vo, s_base, row0, need=None):
    for jj in range(8):
        def fn(t, jj=jj):
            p.e(f's_add_u32 s{S_T3}, s{s_base}, {(row0 + (jj & ~1)) * 2048}')
            p.vmem(f'buffer_load_dwordx4 {vr(raw + 4 * jj)}, v{vo}, {sr(SRD_W, 4)}, s{S_T3} offen offset:{2048 * (jj & 1)} nt', t)
        p.push(tag, fn, need)


RED_W = [(2, 2, 656), (4, 2, 144), (0, 2, 32)]


def finish(p):
    if CFG['STAMPS']:
        p.e(f's_lshl_b32 s{S_T0}, s2, 3\ns_add_u32 s{S_T0}, s{S_T0}, s{S_WV}\ns_lshl_b32 s{S_T0}, s{S_T0}, 7\ns_add_u32 s{S_T0}, s{S_T0}, {WS_STAMP}')
        p.stamp('end')
        p.e('s_mov_b64 exec, 1\nv_mov_b32 v2, 0')
        for k in range(p.nstamp):
            p.e(f'v_mov_b32 v3, s{S_STAMP + k}\nbuffer_store_dword v3, v2, {sr(SRD_WS, 4)}, s{S_T0} offen offset:{4 * k}')
    p.e('s_endpgm')


def mod_unit_setup(p, s_unit, s_col, s_out):
    p.e(f's_lshl_b32 s{s_col}, s{s_unit}, 7')
    p.e(f's_lshr_b32 s{s_out}, s{s_unit}, 4\ns_lshl_b32 s{s_out}, s{s_out}, 13\ns_and_b32 s{S_T0}, s{s_unit}, 15')
    p.e(f's_lshl_b32 s{S_T0}, s{S_T0}, 7\ns_add_u32 s{s_out}, s{s_out}, s{S_T0}')
    if WS_MOD:
        p.e(f's_add_u32 s{s_out}, s{s_out}, {WS_MOD}')


def build_class(cls, ent):
    p = Prog(cls)
    pre = {'P': 'mod', 'PR': 'mod', 'Q': 'q'}.get(cls)
    p.vm = list(ent.vm_pre if pre else ent.vm)
    p.e(f'L_class_{cls}:')
    if pre:
        got_args(p)
    common_setup(p)
    post = {'PR': 'mod', 'R': 'mod', 'M': 'mlp'}.get(cls)
    Wattn = CFG['W_M'] if cls == 'M' else CFG['W']
    S_COL, S_OUT, S_WB = S_U, S_U + 1, S_U + 2
    S_OUT2, S_COL2 = S_U + 4, S_U + 5
    roles = []
    if pre == 'mod':
        p.srd(SRD_W, P_WMOD, 1024 * 12288)
        p.srd(SRD_A, P_C, 8192)
        p.e(f's_sub_u32 s{S_T1}, s2, 184')
        mod_unit_setup(p, S_T1, S_COL, S_OUT)
        narrow_setup(p, 12288, 10, S_WB, S_COL, 3)
    if pre == 'q':
        p.srd(SRD_W, P_WQ, 1024 * 8192)
        p.srd(SRD_A, P_X, 8192)
        p.e(f's_sub_u32 s{S_COL}, s2, {120 - CFG["QSHIFT"]}\ns_and_b32 s{S_COL}, s{S_COL}, 63\ns_lshl_b32 s{S_COL}, s{S_COL}, 7\ns_add_u32 s{S_OUT}, s{S_COL}, {WS_Q}')
        narrow_setup(p, 8192, 10, S_WB, S_COL, 3)
    if pre:
        p.lane(11, AL_TERMS, tmp=3)
        p.e(f's_lshl_b32 s{S_U + 6}, s{S_WV}, 8')
        push_al_loads(p, 'ACT', SRD_A, 16, 11, S_U + 6)
        push_narrow_weights(p, 'WA', 12288 if pre == 'mod' else 8192, 64, 96, 10, S_WB)
        roles.append(lambda: clear_rows(p, S_OUT, 2048 if pre == 'mod' else 8192, 128))
    if post == 'mod':
        p.e(f's_sub_u32 s{S_T1}, s2, {192 - 72 if cls == "PR" else 216 - 32}')
        a, b = (75, 71) if cls == 'PR' else (71, 75)
        p.e(f's_cmp_eq_u32 s{S_T1}, {a}\ns_cselect_b32 s{S_T1}, {b}, s{S_T1}')
        mod_unit_setup(p, S_T1, S_COL2, S_OUT2)
        roles.append(lambda: clear_rows(p, S_OUT2, 2048, 128))
    if cls == 'O':
        p.e(f's_and_b32 s{S_COL}, s2, 7\ns_lshl_b32 s{S_OUT}, s{S_COL}, 13\ns_lshl_b32 s{S_T0}, s{S_W8}, 8')
        p.e(f's_add_u32 s{S_OUT}, s{S_OUT}, s{S_T0}\ns_add_u32 s{S_OUT}, s{S_OUT}, {WS_AP}')
        roles.append(lambda: clear_rows(p, S_OUT, 2048, 256))
    if cls == 'M':
        p.e(f's_sub_u32 s{S_COL}, s2, 64\ns_lshl_b32 s{S_OUT}, s{S_COL}, 13\ns_lshl_b32 s{S_T0}, s{S_WV}, 10')
        p.e(f's_add_u32 s{S_OUT}, s{S_OUT}, s{S_T0}\ns_add_u32 s{S_OUT}, s{S_OUT}, {WS_FP}')

        def fp_clear():
            for k in range(8):
                if k % 4 == 0:
                    p.e(f's_add_u32 s{S_T0}, s{S_OUT}, {1024 * k}')
                p.e(f'buffer_store_dwordx4 v[4:7], v0, {sr(SRD_WS, 4)}, s{S_T0} offen offset:{1024 * (k % 4)} sc1')
        roles.append(fp_clear)
    clears(p, lambda: [r() for r in roles])
    for t in range(0 if pre else 1, 8):
        if pre == 'q' and t == 0:
            push_cnt(p, 14, 'CNTA', 128)
        if pre == 'q' and t == CFG['SC_AT']:
            p.push('SC', lambda tg: sc_issue(True), 'cnta')
        if pre and t == 6:
            push_cnt(p, 10)
        push_k(p, t)
    if pre:
        push_q(p, 11)
        push_v(p, 0, 'pre')
    else:
        push_cnt(p, 10)
        push_v(p, 0)
        push_q(p, 11)
    push_v(p, 1, 'pre' if pre else None)
    push_v(p, 2, 'K01')
    if cls == 'O':
        p.push('WOs', lambda t: wo_setup(), None)
        push_wide_rows(p, 'WO0', 192, 12, S_WB, 0, 'K47')
        push_wide_rows(p, 'WO1', 224, 12, S_WB, 32, 'K47')
    push_page(p, SRD_V, 'V3', 6, VCH[3], 'pv0')
    push_ml(p)
    push_page(p, SRD_V, 'V3', 7, VCH[3] + 16, 'pv0')

    def wo_setup():
        p.srd(SRD_W, P_WO, 4096 * 2048)
        p.lane(12, [(4, 2, 8 * 2048), (0, 4, 16)], tmp=13)
        p.e(f's_lshl_b32 s{S_WB}, s{S_COL}, 3\ns_add_u32 s{S_WB}, s{S_WB}, s{S_WV}\ns_lshl_b32 s{S_WB}, s{S_WB}, 17')
        p.e(f's_lshl_b32 s{S_T2}, s{S_W8}, 8\ns_add_u32 s{S_WB}, s{S_WB}, s{S_T2}')

    def sc_issue(model):
        for k, chunk in ((0, 0), (1, 1)):
            for q in range(2):
                p.e(f's_add_u32 s{S_T3}, s{S_U + 6}, {WS_MOD + chunk * 8192 + 4096 * q}')
                s = f'buffer_load_dwordx2 {vr(24 + 4 * k + 2 * q, 2)}, v11, {sr(SRD_WS, 4)}, s{S_T3} offen sc1'
                p.vmem(s, 'SC') if model else p.e(s)

    if post == 'mod':
        def r_setup(t):
            p.srd(SRD_W, P_WMOD, 1024 * 12288)
            p.srd(SRD_A, P_C, 8192)
            narrow_setup(p, 12288, 12, S_WB, S_COL2, 13)
            p.lane(13, AL_TERMS, tmp=14)
            p.e(f's_lshl_b32 s{S_U + 6}, s{S_WV}, 8')
        p.push('Rs', r_setup)
        push_narrow_weights(p, 'WB', 12288, 192, 224, 12, S_WB, need=['K47', 'K47'])
        push_al_loads(p, 'ACT2', SRD_A, 96, 13, S_U + 6)
    if post == 'mlp':
        def m_setup(t):
            p.srd(SRD_W, P_W2, 3584 * 2048)
            p.srd(SRD_A, P_X, 8192)
            p.e(f's_mov_b32 s{S_MASK}, 0xff00ff00\ns_mov_b32 s{S_MASK + 1}, 0xff00ff00')
            p.e(f'v_mov_b32 v12, s{P_W1}\nv_mov_b32 v13, s{P_W1 + 1}\nv_mov_b32 v14, s{P_W3}\nv_mov_b32 v15, s{P_W3 + 1}')
            p.e(f'v_cndmask_b32 v12, v12, v14, {sr(S_MASK)}\nv_cndmask_b32 v13, v13, v15, {sr(S_MASK)}')
            p.e(f's_mul_i32 s{S_T0}, s{S_WV}, {128 * 7168}\ns_lshl_b32 s{S_T1}, s{S_COL}, 7\ns_add_u32 s{S_T0}, s{S_T0}, s{S_T1}')
            p.lane(14, [(4, 2, 8 * 7168), (0, 3, 16)], sadd=S_T0, tmp=15)
            p.e('v_mov_b32 v15, 0\nv_lshl_add_u64 v[12:13], v[14:15], 0, v[12:13]')
            p.e(f's_mov_b32 s{S_C64}, 7168\ns_mov_b32 s{S_C64 + 1}, 0\ns_mov_b32 s{S_C64B}, {25 * 7168}\ns_mov_b32 s{S_C64B + 1}, 0')
            p.lane(14, [(4, 2, 8 * 2048), (0, 4, 16)], tmp=15)
            p.e(f's_lshl_b32 s{S_WB}, s{S_COL}, 17\ns_lshl_b32 s{S_T0}, s{S_WV}, 8\ns_add_u32 s{S_WB}, s{S_WB}, s{S_T0}')
        p.push('Ms', m_setup)
        for u, raw, nd in ((0, 192, 'K47'), (1, 224, 'K47'), (2, 64, 'pv3'), (3, 96, 'pv3')):
            for jj in range(8):
                def fn(t, raw=raw, jj=jj):
                    p.vmem(f'global_load_dwordx4 {vr(raw + 4 * jj)}, v[12:13], off nt', t)
                    p.e(f'v_lshl_add_u64 v[12:13], {sr(S_C64B if jj == 7 else S_C64)}, 0, v[12:13]')
                p.push(f'WM{u}', fn, nd)
        push_wide_rows(p, 'WM4', 128, 14, S_WB, 0, 'pv3')
        push_wide_rows(p, 'WM5', 160, 14, S_WB, 32, 'pv3')

    p.W = CFG['W_PRE'] if pre else CFG['W_INIT']
    if pre:
        p.pump(17)
    else:
        p.fill()
    common_setup2(p)
    k_setup(p)
    arrive(p, {'mod': [128, 0], 'q': [0], None: []}[pre])
    p.W = Wattn if pre else CFG['W_LOW']
    if not pre:
        k_trans(p, 0)
    if pre == 'mod':
        p.need('ACT')
        silu_to_xa(p, 16, list(range(20, 28)), 12)
        p.need('WA0')
        p.perm_chunk(64, 32, 8)
        p.need('WA1')
        p.stamp('w_landed')
        p.perm_chunk(96, 64, 8)
        p.burst(2)
        narrow_gemv(p, 32, 64, 96, 112, [12, 13, 14], (S_OUT, 2048))
        p.release('pre')
        p.stamp('pre_done')
    if pre == 'q':
        p.need('ACT')
        X = list(range(40, 48))
        for d in range(4):
            p.unpack(16 + d, X[2 * d], X[2 * d + 1])
        layernorm(p, X, list(range(48, 60)), True)
        for d in range(4):
            p.e(f'v_cvt_pk_bf16_f32 v{16 + d}, v{X[2 * d]}, v{X[2 * d + 1]}')
        p.need('WA0')
        p.perm_chunk(64, 32, 8)
        p.need('WA1')
        p.stamp('w_landed')
        p.perm_chunk(96, 64, 8)
        check_cnt(p, 14, 'CNTA', 128, 32)
    for t in range(0 if pre else 1, 8):
        if not pre and t == CFG['T_LOW']:
            p.W = Wattn
        k_trans(p, t)
        if not pre and t == 1:
            count_b(p)
        if pre == 'q' and t == CFG['SC_AT'] - 1:
            p.need('SC')
            p.stamp('sc_landed')
            p.check_retry(lambda: sc_issue(False), list(range(24, 32)), 12)
            p.stamp('sc_ok')
            p.burst(2)
            X = list(range(96, 104))
            for d in range(4):
                p.unpack(16 + d, X[2 * d], X[2 * d + 1])
            one_plus(p, [28, 29, 30, 31], [104, 105])
            modulate(p, X, [28, 29, 30, 31], [24, 25, 26, 27], [104, 105], [16, 17, 18, 19])
            xa_base(p, S_T0)
            p.lane(12, XA_TERMS, sadd=S_T0, tmp=13)
            p.e('ds_write_b64 v12, v[16:17]\nds_write_b64 v12, v[18:19] offset:512')
            narrow_gemv(p, 32, 64, 96, 112, [12, 13, 14], (S_OUT, 8192))
            p.release('pre')
            p.stamp('pre_done')
        if pre and t == 6:
            check_cnt(p, 10)
    if not pre:
        check_cnt(p, 10)
    p.stamp('k_done')
    qk_softmax(p, 11)
    p.release('sm')
    pv_chunk(p, 0, 160)
    p.release('pv0')
    pv_chunk(p, 1, 64)
    pv_chunk(p, 2, 64)
    if cls == 'O':
        p.need('WO0')
        p.perm_chunk(192, 96, 8)
        p.need('WO1')
        p.perm_chunk(224, 192, 8)
    ml_scale(p)
    p.stamp('ml_ok')
    if cls == 'O':
        o_setup(p, S_COL, S_OUT)
    pv_chunk(p, 3, 64)
    p.stamp('pv_done')
    p.release('pv3')
    if post:
        p.W = CFG['W_POST']
    attn_epilogue(p)
    if cls == 'O':
        o_tail(p, S_OUT)
    if post == 'mod':
        p.need('WB0')
        p.perm_chunk(192, 32, 8)
        p.need('WB1')
        p.perm_chunk(224, 64, 8)
        p.need('ACT2')
        silu_to_xa(p, 96, list(range(100, 108)), 12)
        narrow_gemv(p, 32, 64, 96, 112, [12, 13, 14], (S_OUT2, 2048))
        p.stamp('post_done')
    if post == 'mlp':
        m_tail(p, S_COL, S_OUT)
    assert not p.stream, [t[0] for t in p.stream]
    finish(p)
    return p


O_SEL, O_E3, O_B, O_F0, O_F1 = 224, 128, 232, 96, 192


def o_setup(p, S_KS, S_OUT):
    selectors(p, O_SEL, 10)
    p.lane(13, [(3, 1, 4 * 16 * 2048), (4, 2, 2048), (0, 3, 16)], tmp=10)
    p.e(f's_lshr_b32 s{S_T0}, s{S_KS}, 1\ns_lshl_b32 s{S_T0}, s{S_T0}, 15\ns_and_b32 s{S_T1}, s{S_KS}, 1\ns_lshl_b32 s{S_T1}, s{S_T1}, 10')
    p.e(f's_add_u32 s{S_T0}, s{S_T0}, s{S_T1}\ns_lshl_b32 s{S_T1}, s{S_WV}, 7\ns_add_u32 s{S_T0}, s{S_T0}, s{S_T1}\ns_add_u32 s{S_U + 7}, s{S_T0}, {WS_OP}')
    xa_base(p, S_T0)
    p.lane(14, [(5, 1, 256), (3, 1, 128), (0, 3, 16), (4, 1, 8)], sadd=S_T0, tmp=10)
    wide_b_addrs(p, O_B, [(2, 2, 128), (4, 2, 16)], S_T0, 0, 10)
    p.e(f's_mul_i32 s{S_T0}, s{S_WV}, 2816\ns_add_u32 s{S_T0}, s{S_T0}, {L_RED}')
    p.lane(15, RED_W, sadd=S_T0, tmp=10)
    p.e(f's_mul_i32 s{S_T0}, s{S_WV}, 656\ns_add_u32 s{S_T0}, s{S_T0}, {L_RED}')
    p.lane(O_B + 4, [(4, 2, 144), (0, 2, 32), (2, 2, 4)], sadd=S_T0, tmp=10)
    p.e(f'v_add_u32 v{O_B + 5}, 16, v{O_B + 4}')
    p.e(f's_lshl_b32 s{S_T0}, s{S_WV}, 11\ns_add_u32 s{S_OUT}, s{S_OUT}, s{S_T0}')


def o_tail(p, S_OUT):
    iss, regs = [], []
    for t in range(8):
        h, sh = t >> 2, t & 3

        def f(t=t, h=h, sh=sh):
            p.e(f's_add_u32 s{S_T3}, s{S_U + 7}, {h * 2 * 4 * 16 * 2048 + sh * 4 * 2048}')
            p.e(f'buffer_load_dwordx4 {vr(O_E3 + 4 * t)}, v13, {sr(SRD_WS, 4)}, s{S_T3} offen sc1')
        iss.append(f)
        regs.append(list(range(O_E3 + 4 * t, O_E3 + 4 * t + 4)))
    p.vm = []
    p.poll_masked(iss, regs, 10)
    p.stamp('e3_ok')
    D = 32
    for t in range(8):
        p.e(f'v_mfma_f32_16x16x32_bf16 {vr(D)}, {vr(O_SEL + 4 * (t >> 2))}, {vr(O_E3 + 4 * t)}, {"0" if t == 0 else vr(D)}')
    p.e(f'v_cvt_pk_bf16_f32 v{D}, v{D}, v{D + 1}\nv_cvt_pk_bf16_f32 v{D + 1}, v{D + 2}, v{D + 3}')
    p.e(f'ds_write_b64 v14, {vr(D, 2)}')
    B = 160
    for u in range(2):
        for j in range(4):
            p.e(f'ds_read_b128 {vr(B + 16 * u + 4 * j)}, v{O_B + j} offset:{64 * u}')
    A = 40
    for u, F in ((0, O_F0), (1, O_F1)):
        for e in range(8):
            if e % 2 == 0:
                p.e(f's_waitcnt lgkmcnt({7 - 4 * u - e // 2})')
            acc = vr(A + 4 * (e & 1))
            p.e(f'v_mfma_f32_16x16x32_bf16 {acc}, {vr(F + 4 * e)}, {vr(B + 16 * u + 4 * (e >> 1))}, {"0" if (u == 0 and e < 2) else acc}')
    for a in range(2):
        p.e(f'ds_write_b128 v15, {vr(A + 4 * a)} offset:{16 * a}')
    sk = p.lab('ofin')
    p.e(f's_waitcnt lgkmcnt(0)\ns_barrier\ns_cmp_ge_u32 s{S_WV}, 4\ns_cbranch_scc1 {sk}')
    for k in range(4):
        p.e(f'ds_read2st64_b32 {vr(B + 2 * k, 2)}, v{O_B + 4} offset0:{22 * k} offset1:{22 * k + 11}')
        p.e(f'ds_read2st64_b32 {vr(B + 8 + 2 * k, 2)}, v{O_B + 5} offset0:{22 * k} offset1:{22 * k + 11}')
    p.e('s_waitcnt lgkmcnt(0)')
    for w in (4, 2, 1):
        for h in (0, 8):
            for k in range(w):
                p.e(f'v_add_f32 v{B + h + k}, v{B + h + k}, v{B + h + k + w}')
    p.e(f'v_cvt_pk_bf16_f32 v{B + 4}, v{B}, v{B + 8}')
    quad_pack_store(p, B + 4, 9, S_OUT)
    p.e(f'{sk}:')
    p.stamp('a_stored')


def m_tail(p, S_MI, S_OUT):
    F = [32, 192, 224, 64, 96, 128]
    raw = [192, 224, 64, 96, 128, 160]
    for u in range(6):
        p.need(f'WM{u}')
        p.perm_chunk(raw[u], F[u], 8)
    p.stamp('w_ready')
    SP, SEL, D = 160, 16, 24
    p.lane(10, AL_TERMS, tmp=2)
    p.e(f's_lshl_b32 s{S_U + 6}, s{S_WV}, 8')

    def mod_issue(model):
        for k, chunk in enumerate((2, 4, 3)):
            for q in range(2):
                p.e(f's_add_u32 s{S_T3}, s{S_U + 6}, {WS_MOD + chunk * 8192 + 4096 * q}')
                s = f'buffer_load_dwordx2 {vr(SP + 4 + 4 * k + 2 * q, 2)}, v10, {sr(SRD_WS, 4)}, s{S_T3} offen sc1'
                p.vmem(s, 'MOD') if model else p.e(s)
    push_al_loads(p, None, SRD_A, SP, 10, S_U + 6)(False)
    mod_issue(True)
    selectors(p, SEL, 2)
    p.lane(11, [(4, 2, 8192), (0, 4, 16)], tmp=2)
    p.e(f's_add_u32 s{S_U + 7}, s{S_U + 6}, {WS_AP}')
    p.e(f's_lshl_b32 s{S_T0}, s{S_WV}, 12\ns_add_u32 s{S_T0}, s{S_T0}, {L_STASH}\nv_add_u32 v12, s{S_T0}, v0')
    sk = p.lab('gb')
    p.e(f's_cmp_lg_u32 s{S_WV}, 0\ns_cbranch_scc1 {sk}\ns_cmp_ge_u32 s{S_MI}, 32\ns_cbranch_scc1 {sk}')
    p.lane(2, [(2, 2, 2048), (0, 2, 4)], tmp=3)
    p.e(f's_lshl_b32 s{S_T2}, s{S_MI}, 6\ns_add_u32 s{S_T2}, s{S_T2}, {WS_MOD + 5 * 8192}')

    def gb_issue():
        for r in range(4):
            p.e(f'buffer_load_dword v{SP + 16 + r}, v2, {sr(SRD_WS, 4)}, s{S_T2} offen offset:{16 * r} sc1')
    gb_issue()
    p.e('s_waitcnt vmcnt(0)')
    p.check_retry(gb_issue, list(range(SP + 16, SP + 20)), 3)
    p.e(f'ds_write_b128 v0, {vr(SP + 16)} offset:{L_FINB}')
    p.e(f'{sk}:')
    p.waitn(0)
    p.check_retry(lambda: mod_issue(False), list(range(SP + 4, SP + 16)), 2)
    one_plus(p, list(range(SP + 8, SP + 12)), [2, 3])
    for k in range(4):
        p.e(f'ds_write_b128 v12, {vr(SP + 4 * k)} offset:{1024 * k}')
    xa_base(p, S_T0)
    p.lane(13, XA_TERMS, sadd=S_T0, tmp=2)
    wide_b_addrs(p, 4, [(2, 2, 256), (4, 2, 16)], S_T0, 0, 2)
    p.e(f's_add_u32 s{S_T0}, s{S_U + 6}, {L_X1}')
    p.lane(14, AL_TERMS, sadd=S_T0, tmp=2)
    p.e(f's_mul_i32 s{S_T0}, s{S_WV}, 2816\ns_add_u32 s{S_T0}, s{S_T0}, {L_RED}')
    p.lane(15, RED_W, sadd=S_T0, tmp=2)
    p.e(f's_lshr_b32 s{S_T0}, s{S_WV}, 1\ns_mul_i32 s{S_T0}, s{S_T0}, 656\ns_and_b32 s{S_T1}, s{S_WV}, 1\ns_mul_i32 s{S_T1}, s{S_T1}, 144')
    p.e(f's_add_u32 s{S_T0}, s{S_T0}, s{S_T1}\ns_add_u32 s{S_T0}, s{S_T0}, {L_RED}')
    p.lane(8, [(5, 1, 288), (1, 2, 32), (0, 1, 16), (3, 2, 4)], sadd=S_T0, tmp=2)
    p.e(f's_lshl_b32 s{S_T0}, s{S_WV}, 6\ns_add_u32 s{S_T0}, s{S_T0}, {L_X2}')
    p.lane(9, [(0, 5, 2)], sadd=S_T0)
    p.e('s_waitcnt lgkmcnt(0)')
    p.stamp('mod_ok')
    iss, regs = [], []
    for t in range(8):
        ksh, b = t & 1, t >> 1

        def f(t=t, ksh=ksh, b=b):
            p.e(f's_add_u32 s{S_T3}, s{S_U + 7}, {ksh * 4 * 8192 + b * 2048}')
            p.e(f'buffer_load_dwordx4 {vr(SP + 4 * t)}, v11, {sr(SRD_WS, 4)}, s{S_T3} offen sc1')
        iss.append(f)
        regs.append(list(range(SP + 4 * t, SP + 4 * t + 4)))
    p.poll_masked(iss, regs, 2)
    p.stamp('e4_ok')
    order = [0, 4, 1, 5, 2, 6, 3, 7]
    for k, t in enumerate(order):
        b = t >> 1
        d = vr(D + 4 * (b >> 1))
        p.e(f'v_mfma_f32_16x16x32_bf16 {d}, {vr(SEL + 4 * (b & 1))}, {vr(SP + 4 * t)}, {"0" if t in (0, 4) else d}')
        if k == 3:
            p.e(f'ds_read_b128 {vr(SP)}, v12\nds_read_b128 {vr(SP + 4)}, v12 offset:1024')
            p.e(f'ds_read_b128 {vr(SP + 16)}, v12 offset:2048\nds_read_b128 {vr(SP + 20)}, v12 offset:3072')
    X = list(range(D, D + 8))
    a, b = 2, 3
    p.e('s_waitcnt lgkmcnt(0)')
    for d in range(4):
        x0, x1 = X[2 * d], X[2 * d + 1]
        p.rnd2(x0, x1, a)
        p.unpack(SP + 4 + d, a, b)
        p.e(f'v_mul_f32 v{x0}, v{x0}, v{a}\nv_mul_f32 v{x1}, v{x1}, v{b}')
        p.rnd2(x0, x1, a)
        p.unpack(SP + d, a, b)
        p.e(f'v_add_f32 v{x0}, v{x0}, v{a}\nv_add_f32 v{x1}, v{x1}, v{b}')
        p.e(f'v_cvt_pk_bf16_f32 v{SP + d}, v{x0}, v{x1}')
        p.unpack(SP + d, x0, x1)
    p.e(f'ds_write_b64 v14, {vr(SP, 2)}\nds_write_b64 v14, {vr(SP + 2, 2)} offset:4096')
    layernorm(p, X, list(range(SP + 4, SP + 16)), False)
    modulate(p, X, list(range(SP + 16, SP + 20)), list(range(SP + 20, SP + 24)), [2, 3], list(range(SP, SP + 4)))
    p.e(f'ds_write_b64 v13, {vr(SP, 2)}\nds_write_b64 v13, {vr(SP + 2, 2)} offset:512')
    p.stamp('h2')
    A = D

    def breads(u):
        for j in range(4):
            p.e(f'ds_read_b128 {vr(SP + 16 * (u & 1) + 4 * j)}, v{4 + j} offset:{64 * u}')
    breads(0)
    breads(1)
    for u in range(4):
        for e in range(8):
            if e % 2 == 0:
                rem = (3 - e // 2) + (4 if u < 3 else 0)
                p.e(f's_waitcnt lgkmcnt({rem})')
            acc = vr(A + 4 * (e & 1))
            p.e(f'v_mfma_f32_16x16x32_bf16 {acc}, {vr(F[u] + 4 * e)}, {vr(SP + 16 * (u & 1) + 4 * (e >> 1))}, {"0" if (u == 0 and e < 2) else acc}')
        if u < 2:
            breads(u + 2)
    for a_ in range(2):
        p.e(f'ds_write_b128 v15, {vr(A + 4 * a_)} offset:{16 * a_}')
    wide_b_addrs(p, 4, [(2, 2, 128), (4, 2, 16)], None, L_X2, 2)
    p.e('s_waitcnt lgkmcnt(0)\ns_barrier')
    G = 32
    for k in range(4):
        p.e(f'ds_read2st64_b32 {vr(G + 2 * k, 2)}, v8 offset0:{22 * k} offset1:{22 * k + 11}')
    p.e('s_waitcnt lgkmcnt(0)')
    for w in (4, 2, 1):
        for k in range(w):
            p.e(f'v_add_f32 v{G + k}, v{G + k}, v{G + k + w}')
    p.e(f'v_cvt_pk_bf16_f32 v{G}, v{G}, v{G}\nv_and_b32 v{G}, 0xffff0000, v{G}\nv_mov_b32 v{G + 1}, v{G}')
    p.e(f'v_permlane32_swap_b32 v{G}, v{G + 1}')
    p.e(f'''v_mul_f32 v{G + 2}, {hex(LOG2E | 0x80000000)}, v{G}
    v_exp_f32 v{G + 2}, v{G + 2}
    v_add_f32 v{G + 2}, 1.0, v{G + 2}
    v_rcp_f32 v{G + 2}, v{G + 2}
    v_mul_f32 v{G}, v{G}, v{G + 2}
    v_cvt_pk_bf16_f32 v{G}, v{G}, v{G}
    v_and_b32 v{G}, 0xffff0000, v{G}
    v_mul_f32 v{G}, v{G}, v{G + 1}
    v_cvt_pk_bf16_f32 v{G}, v{G}, v{G}''')
    p.exec_set(0xffffffff)
    p.e(f'ds_write_b16 v9, v{G}')
    p.exec_all()
    p.e('s_waitcnt lgkmcnt(0)\ns_barrier')
    breads(0)
    breads(1)
    for u in range(2):
        for e in range(8):
            if e % 2 == 0:
                p.e(f's_waitcnt lgkmcnt({7 - 4 * u - e // 2})')
            acc = vr(A + 4 * (e & 1))
            p.e(f'v_mfma_f32_16x16x32_bf16 {acc}, {vr(F[4 + u] + 4 * e)}, {vr(SP + 16 * u + 4 * (e >> 1))}, {"0" if (u == 0 and e < 2) else acc}')
    for d in range(4):
        p.e(f'v_cvt_pk_bf16_f32 v{G + d}, v{A + 2 * d}, v{A + 2 * d + 1}')
    p.e(f'buffer_store_dwordx4 {vr(G)}, v0, {sr(SRD_WS, 4)}, s{S_OUT} offen sc1')
    p.stamp('f_stored')
    end = p.lab('mend')
    p.e(f's_cmp_lg_u32 s{S_WV}, 0\ns_cbranch_scc1 {end}\ns_cmp_ge_u32 s{S_MI}, 32\ns_cbranch_scc1 {end}')
    p.srd(SRD_A, P_OUT, 8192)
    p.lane(2, [(2, 2, 2048), (0, 2, 4)], tmp=3)
    p.e(f's_lshl_b32 s{S_T2}, s{S_MI}, 6\nv_add_u32 v2, s{S_T2}, v2')
    GB, X1 = 40, 44
    p.e(f'ds_read_b128 {vr(GB)}, v0 offset:{L_FINB}')
    for r in range(4):
        p.e(f'ds_read_b32 v{X1 + r}, v2 offset:{L_X1 + 16 * r}')
    p.lane(11, [(4, 2, 8192), (0, 4, 16)], tmp=3)
    p.e(f's_lshl_b32 s{S_U + 7}, s{S_MI}, 8\ns_add_u32 s{S_U + 7}, s{S_U + 7}, {WS_FP}')
    p.e(f's_mov_b32 s{S_MASK}, 0xffff0000\ns_mov_b32 s{S_MASK + 1}, 0xffff0000\ns_waitcnt lgkmcnt(0)')
    for k in range(8):
        p.unpack(GB + k, 4, 5)
        p.e(f'v_cndmask_b32 v{GB + k}, v4, v5, {sr(S_MASK)}')
    E = 64
    iss, regs = [], []
    for t in range(14):
        def f(t=t):
            p.e(f's_add_u32 s{S_T3}, s{S_U + 7}, {t * 4 * 8192}')
            p.e(f'buffer_load_dwordx4 {vr(E + 4 * t)}, v11, {sr(SRD_WS, 4)}, s{S_T3} offen sc1')
        iss.append(f)
        regs.append(list(range(E + 4 * t, E + 4 * t + 4)))
    p.poll_masked(iss, regs, 3)
    p.stamp('e5_ok')
    for t in range(14):
        d = vr(D + 4 * (t & 1))
        p.e(f'v_mfma_f32_16x16x32_bf16 {d}, {vr(SEL)}, {vr(E + 4 * t)}, {"0" if t < 2 else d}')
    for r in range(4):
        p.e(f'v_add_f32 v{D + r}, v{D + r}, v{D + 4 + r}')
    for h in (0, 2):
        p.rnd2(D + h, D + h + 1, 4)
    for r in range(4):
        p.e(f'v_mul_f32 v{D + r}, v{GB + r}, v{D + r}')
    for h in (0, 2):
        p.rnd2(D + h, D + h + 1, 4)
    for r in range(4):
        p.e(f'v_add_f32 v{D + r}, v{X1 + r}, v{D + r}\nv_mov_b32 v{D + 4 + r}, v{D + r}')
    for r in range(4):
        p.e(f'v_permlane16_swap_b32 v{D + r}, v{D + 4 + r}')
    for r in range(4):
        p.e(f'v_cvt_pk_bf16_f32 v{D + r}, v{D + r}, v{D + 4 + r}')
    p.exec_set(0xffff)
    for r in range(4):
        p.e(f'buffer_store_dword v{D + r}, v2, {sr(SRD_A, 4)}, 0 offen offset:{16 * r}')
    p.exec_all()
    p.e(f'{end}:')


def generate():
    hdr = open('cdna_kernels/' + NAME + '.s.ref').read().split('\n')
    out = [l for l in hdr if l.startswith(';') and '@launch' not in l]
    out.append(f'; @launch grid=(256,1,1) block=(512,1,1) lds={L_TOTAL}')
    out += ['.amdgcn_target "amdgcn-amd-amdhsa--gfx950"', '.text', f'.globl {NAME}_kernel', '.p2align 8',
            f'.type {NAME}_kernel,@function', f'{NAME}_kernel:']
    e = Prog('E')
    entry(e)
    body = list(e.L)
    names = {}
    for cls in ('O', 'M', 'Q', 'P', 'PR', 'R'):
        p = build_class(cls, e)
        body.append('.p2align 6')
        body += p.L
        names[cls] = p.stamp_names
    body += ['L_end:', 's_endpgm']
    out += pad_hazards(body)
    out += ['.fill 64, 4, 0xbf800000', '.p2align 8', 'L_code_end:']
    out += ['.section .rodata,"a"', '.p2align 6', f'.amdhsa_kernel {NAME}_kernel',
            '  .amdhsa_next_free_vgpr 256', '  .amdhsa_next_free_sgpr 102', '  .amdhsa_accum_offset 256',
            '  .amdhsa_group_segment_fixed_size 0', '  .amdhsa_kernarg_size 112', '  .amdhsa_user_sgpr_count 2',
            '  .amdhsa_user_sgpr_kernarg_segment_ptr 1', '  .amdhsa_system_sgpr_workgroup_id_x 1',
            '  .amdhsa_float_denorm_mode_32 3', '.end_amdhsa_kernel']
    return '\n'.join(out) + '\n', names


if __name__ == '__main__':
    path = sys.argv[1]
    for kv in sys.argv[2:]:
        k, v = kv.split('=')
        CFG[k] = eval(v)
    txt, names = generate()
    open(path, 'w').write(txt)
    import json
    json.dump(names, open(path + '.stamps.json', 'w'))
```

```python
import sys
from collections import deque
from asmlib import pad_hazards

NAME = 'adaLN_cond__gqa_block_cached__glu_gated_swiglu__decode'

CFG = dict(
    W=4,
    W_PRE=24,
    SC_AT=2,
    W_LOW=2,
    T_LOW=3,
    W_PREQ=8,
    P_HOLD=True,
    Q_AT=12,
    HP3=True,
    H5=0,
    BURST=5,
    C3Q=False,
    C3=True,
    HPR=False,
    M_EARLY=True,
    W2=None,
    W_PR=4,
    W_PM=6,
    PR_EARLY=0,
    R_BURST=6,
    M_BURST=4,
    M_DMA=True,
    Q_AT_M=18,
    W_END=None,
    W_Q=None,
    T_LOW_M=2,
    REWARM=True,
    MOD_AT=8,
    W_M=5,
    W_POST=8,
    W_INIT=5,
    STAMPS=False,
    SPIN=1 << 18,
)

WS_MOD = 0x00000
WS_Q = 0x10000
WS_ML = 0x20000
WS_AP = 0x30000
WS_OP = 0x40000
WS_FP = 0xC0000
WS_STAMP = 0x200000
WS_BYTES = 268435456

L_KT = 0
L_OPART = 0
L_XA = 40960
L_ZERO = 49152
L_MLW = 49664
L_CNT = 50176
L_STATS = 50432
L_X2 = 50688
L_FINB = 51200
L_X1 = 52224
L_RED = 60416
L_STASH = 83968
L_TOTAL = 149504

SENT_MASKS = {}


def vr(a, n=4):
    return f'v[{a}:{a + n - 1}]' if n > 1 else f'v{a}'


def sr(a, n=2):
    return f's[{a}:{a + n - 1}]' if n > 1 else f's{a}'


S_WV, S_W8, S_ROT, S_KV = 3, 4, 6, 7
SRD_K, SRD_V, SRD_WS, SRD_W, SRD_A, SRD_D = 8, 12, 16, 20, 24, 28
P_X, P_K, P_V, P_WQ, P_WO, P_W1, P_W3, P_W2, P_C, P_WMOD, P_OUT, P_DBG, P_WS = 32, 34, 36, 38, 40, 44, 46, 48, 50, 52, 54, 56, 58
S_T0, S_T1, S_T2, S_T3 = 60, 61, 62, 63
S_PLO, S_PHI = 64, 65
S_MASK = 66
S_SAVE = 68
S_SPIN = 70
S_VALID = 71
S_U = 72
S_C64 = 80
S_C64B = 82
S_STAMP = 84


class Prog:
    def __init__(self, name):
        self.name = name
        self.L = []
        self.vm = []
        self.stream = deque()
        self.released = set()
        self.W = CFG['W']
        self.nlab = 0
        self.nstamp = 0
        self.stamp_names = []

    def e(self, s):
        for line in s.split('\n'):
            line = line.strip()
            if line:
                self.L.append(line)

    def lab(self, base):
        self.nlab += 1
        return f'L_{self.name}_{base}{self.nlab}'

    def vmem(self, s, tag):
        self.e(s)
        self.vm.append(tag)
        assert len(self.vm) <= 56, 'too many outstanding'

    def waitn(self, n):
        if len(self.vm) > n:
            self.e(f's_waitcnt vmcnt({n})')
            self.vm = self.vm[len(self.vm) - n:] if n else []

    def wait(self, tag):
        if tag in self.vm:
            idx = len(self.vm) - 1 - self.vm[::-1].index(tag)
            self.waitn(len(self.vm) - 1 - idx)

    def push(self, tag, fn, need=None):
        self.stream.append((tag, fn, need))

    def can_pump(self):
        return self.stream and (self.stream[0][2] is None or self.stream[0][2] in self.released)

    def pump(self, k=1):
        for _ in range(k):
            if not self.can_pump():
                return
            tag, fn, _n = self.stream.popleft()
            self.waitn(self.W - 1)
            fn(tag)

    def fill(self):
        while self.can_pump() and len(self.vm) < self.W:
            self.pump(1)

    def burst(self, k):
        self.W += k
        self.fill()
        self.W -= k

    def need(self, tag):
        while any(t[0] == tag for t in self.stream):
            assert self.can_pump(), f'{self.name}: stream blocked before {tag} at {self.stream[0][0]}'
            self.pump(1)
        while tag in self.vm:
            if self.can_pump() and self.vm[::-1].index(tag) <= self.W - 1:
                self.pump(1)
            else:
                self.wait(tag)

    def release(self, x):
        self.released.add(x)

    def stamp(self, name):
        if CFG['STAMPS'] == 'lite' and name not in ('start', 'pre_done', 'q_ok', 'k_done', 'o_stored', 'post_done', 'e3_ok', 'a_stored', 'w_ready', 'e4_ok', 'f_stored', 'end'):
            return
        if CFG['STAMPS'] == 'm' and name not in ('start', 'q_ok', 'softmax', 'v2', 'pv_done', 'o_stored', 'wm0', 'wm1', 'wm2', 'wm4', 'wm3', 'wm5', 'mod_landed', 'mod_ok', 'e4_ok', 'end'):
            return
        if CFG['STAMPS'] is True and name in ('v2', 'wm0', 'wm1', 'wm2', 'wm4', 'wm3', 'wm5'):
            return
        if CFG['STAMPS']:
            k = S_STAMP + self.nstamp
            assert k < 100
            self.e(f's_memrealtime s[100:101]\ns_waitcnt lgkmcnt(0)\ns_mov_b32 s{k}, s100')
            self.nstamp += 1
            self.stamp_names.append(name)

    def srd(self, d, p, nbytes):
        self.e(f's_mov_b32 s{d}, s{p}\ns_mov_b32 s{d + 1}, s{p + 1}\ns_mov_b32 s{d + 2}, {hex(nbytes)}\ns_mov_b32 s{d + 3}, 0x20000')

    def lane(self, dst, terms, const=0, sadd=None, tmp=None):
        first = True
        for sh, bits, mul in terms:
            t = dst if first else tmp
            assert t is not None
            if sh == 0 and bits >= 6:
                src = 'v1'
            elif sh == 0:
                self.e(f'v_and_b32 v{t}, {(1 << bits) - 1}, v1')
                src = f'v{t}'
            elif sh + bits >= 6:
                self.e(f'v_lshrrev_b32 v{t}, {sh}, v1')
                src = f'v{t}'
            else:
                self.e(f'v_bfe_u32 v{t}, v1, {sh}, {bits}')
                src = f'v{t}'
            if first:
                if mul & (mul - 1) == 0:
                    self.e(f'v_lshlrev_b32 v{dst}, {mul.bit_length() - 1}, {src}')
                else:
                    self.e(f'v_mul_u32_u24 v{dst}, {mul}, {src}')
            else:
                if mul & (mul - 1) == 0:
                    self.e(f'v_lshl_add_u32 v{dst}, {src}, {mul.bit_length() - 1}, v{dst}')
                else:
                    self.e(f'v_mul_u32_u24 v{t}, {mul}, {src}\nv_add_u32 v{dst}, v{t}, v{dst}')
            first = False
        if const:
            self.e(f'v_add_u32 v{dst}, {const}, v{dst}')
        if sadd is not None:
            self.e(f'v_add_u32 v{dst}, s{sadd}, v{dst}')

    def exec_set(self, mask):
        lo, hi = mask & 0xffffffff, mask >> 32
        self.e(f's_mov_b32 exec_lo, {hex(lo)}\ns_mov_b32 exec_hi, {hex(hi)}')

    def exec_all(self):
        self.e('s_mov_b64 exec, -1')

    def maxu(self, dst, regs):
        regs = list(regs)
        if len(regs) % 2 == 0:
            self.e(f'v_max_u32 v{dst}, v{regs[0]}, v{regs[1]}')
            regs = regs[2:]
        else:
            self.e(f'v_max3_u32 v{dst}, v{regs[0]}, v{regs[1]}, v{regs[2]}')
            regs = regs[3:]
        while regs:
            self.e(f'v_max3_u32 v{dst}, v{dst}, v{regs[0]}, v{regs[1]}')
            regs = regs[2:]

    def check_retry(self, issue, regs, tmp):
        ok, lp = self.lab('ok'), self.lab('retry')
        if len(regs) > 1:
            self.maxu(tmp, regs)
        else:
            tmp = regs[0]
        self.e(f'v_cmp_eq_u32 vcc, -1, v{tmp}\ns_cbranch_vccz {ok}\ns_mov_b32 s{S_SPIN}, 0\n{lp}:')
        issue()
        self.e('s_waitcnt vmcnt(0)')
        if len(regs) > 1:
            self.maxu(tmp, regs)
        self.e(f's_add_u32 s{S_SPIN}, s{S_SPIN}, 1\ns_cmp_ge_u32 s{S_SPIN}, {CFG["SPIN"]}\ns_cbranch_scc1 {ok}')
        self.e(f'v_cmp_eq_u32 vcc, -1, v{tmp}\ns_cbranch_vccnz {lp}\n{ok}:')

    def poll_masked(self, issuers, regs, tmp):
        n = len(issuers)
        lp, done = self.lab('poll'), self.lab('polldone')
        self.waitn(0)
        self.e(f's_mov_b32 s{S_VALID}, 0\ns_mov_b32 s{S_SPIN}, 0\n{lp}:')
        for t in range(n):
            sk = self.lab('pi')
            self.e(f's_bitcmp1_b32 s{S_VALID}, {t}\ns_cbranch_scc1 {sk}')
            issuers[t]()
            self.e(f'{sk}:')
        self.e('s_waitcnt vmcnt(0)')
        for t in range(n):
            sk = self.lab('pc')
            self.e(f's_bitcmp1_b32 s{S_VALID}, {t}\ns_cbranch_scc1 {sk}')
            self.maxu(tmp, regs[t])
            self.e(f'v_cmp_eq_u32 vcc, -1, v{tmp}\ns_cbranch_vccnz {sk}\ns_bitset1_b32 s{S_VALID}, {t}\n{sk}:')
        self.e(f's_add_u32 s{S_SPIN}, s{S_SPIN}, 1\ns_cmp_ge_u32 s{S_SPIN}, {CFG["SPIN"]}\ns_cbranch_scc1 {done}')
        self.e(f's_cmp_lg_u32 s{S_VALID}, {hex((1 << n) - 1)}\ns_cbranch_scc1 {lp}\n{done}:')

    def perm_chunk(self, raw, dst, pump_every=0):
        k = 0
        for c in range(4):
            for hi in range(2):
                for jj in range(4):
                    a, b = raw + 4 * (2 * jj) + c, raw + 4 * (2 * jj + 1) + c
                    sel = S_PHI if hi else S_PLO
                    self.e(f'v_perm_b32 v{dst + 4 * (2 * c + hi) + jj}, v{b}, v{a}, s{sel}')
                    k += 1
                    if pump_every and k % pump_every == 0:
                        self.fill()

    def unpack(self, src, d0, d1):
        self.e(f'v_lshlrev_b32 v{d0}, 16, v{src}\nv_and_b32 v{d1}, 0xffff0000, v{src}')

    def rnd2(self, a, b, t):
        self.e(f'v_cvt_pk_bf16_f32 v{t}, v{a}, v{b}')
        self.unpack(t, a, b)

    def rowsum(self, regs, steps):
        for st in steps:
            for r in regs:
                self.e(f'v_add_f32_dpp v{r}, v{r}, v{r} row_ror:{st} row_mask:0xf bank_mask:0xf')

    def swapred(self, op, which, regs, tmps):
        for r, t in zip(regs, tmps):
            self.e(f'v_mov_b32 v{t}, v{r}')
        for r, t in zip(regs, tmps):
            self.e(f'v_permlane{which}_swap_b32 v{r}, v{t}')
        for r, t in zip(regs, tmps):
            self.e(f'{op} v{r}, v{r}, v{t}')


LOG2E = 0x3fb8aa3b
AL_TERMS = [(5, 1, 2048), (0, 4, 16), (4, 1, 8)]
XA_TERMS = [(5, 1, 256), (0, 4, 16), (4, 1, 8)]


def layernorm(p, X, T, fix):
    s0, s1, t0, t1, m0, m1, ad = T[0], T[1], T[2], T[3], T[4], T[5], T[6]
    for q, s in ((0, s0), (1, s1)):
        x = X[4 * q:4 * q + 4]
        p.e(f'v_add_f32 v{s}, v{x[0]}, v{x[1]}\nv_add_f32 v{T[2 + q]}, v{x[2]}, v{x[3]}')
    p.e(f'v_add_f32 v{s0}, v{s0}, v{t0}\nv_add_f32 v{s1}, v{s1}, v{t1}')
    p.rowsum([s0, s1], (8, 4, 2, 1))
    p.swapred('v_add_f32', 16, [s0, s1], [t0, t1])
    A, B = T[8], T[10]
    assert A % 2 == 0 and B % 2 == 0 and T[9] == A + 1 and T[11] == B + 1
    p.e(f'v_mul_f32 v{A}, 0x3c000000, v{s0}\nv_mul_f32 v{B}, 0x3c000000, v{s1}')
    for q, mean in ((0, A), (1, B)):
        x = X[4 * q:4 * q + 4]
        p.e(f'v_sub_f32 v{t0}, v{x[0]}, v{mean}\nv_sub_f32 v{t1}, v{x[1]}, v{mean}')
        p.e(f'v_mul_f32 v{mean + 1}, v{t0}, v{t0}\nv_fmac_f32 v{mean + 1}, v{t1}, v{t1}')
        p.e(f'v_sub_f32 v{t0}, v{x[2]}, v{mean}\nv_sub_f32 v{t1}, v{x[3]}, v{mean}')
        p.e(f'v_fmac_f32 v{mean + 1}, v{t0}, v{t0}\nv_fmac_f32 v{mean + 1}, v{t1}, v{t1}')
    p.rowsum([A + 1, B + 1], (8, 4, 2, 1))
    p.swapred('v_add_f32', 16, [A + 1, B + 1], [t0, t1])
    p.e(f's_lshl_b32 s{S_T0}, s{S_WV}, 5\ns_add_u32 s{S_T0}, s{S_T0}, {L_STATS}')
    p.lane(ad, [(5, 1, 8)], sadd=S_T0)
    p.exec_set(0x0000000100000001)
    p.e(f'ds_write_b64 v{ad}, {vr(A, 2)}\nds_write_b64 v{ad}, {vr(B, 2)} offset:16')
    p.exec_all()
    p.lane(ad, [(0, 3, 32), (5, 1, 8)], const=L_STATS, tmp=t0)
    p.e('s_waitcnt lgkmcnt(0)\ns_barrier')
    p.e(f'ds_read_b64 {vr(A, 2)}, v{ad}\nds_read_b64 {vr(B, 2)}, v{ad} offset:16\ns_waitcnt lgkmcnt(0)')
    p.e(f'v_mov_b32 v{m0}, v{A}\nv_mov_b32 v{m1}, v{B}')
    p.rowsum([m0, m1], (4, 2, 1))
    p.e(f'v_mul_f32 v{m0}, 0x3e000000, v{m0}\nv_mul_f32 v{m1}, 0x3e000000, v{m1}')
    p.e(f'v_sub_f32 v{t0}, v{A}, v{m0}\nv_sub_f32 v{t1}, v{B}, v{m1}')
    p.e(f'v_mul_f32 v{s0}, 0x43000000, v{t0}\nv_mul_f32 v{s1}, 0x43000000, v{t1}')
    p.e(f'v_fmac_f32 v{A + 1}, v{s0}, v{t0}\nv_fmac_f32 v{B + 1}, v{s1}, v{t1}')
    p.rowsum([A + 1, B + 1], (4, 2, 1))
    p.rnd2(m0, m1, t0)
    p.e(f'v_mul_f32 v{s0}, 0x3a800000, v{A + 1}\nv_mul_f32 v{s1}, 0x3a800000, v{B + 1}')
    p.rnd2(s0, s1, t0)
    p.e(f'v_add_f32 v{s0}, 0x3727c5ac, v{s0}\nv_add_f32 v{s1}, 0x3727c5ac, v{s1}')
    p.rnd2(s0, s1, t0)
    p.e(f'v_sqrt_f32 v{s0}, v{s0}\nv_sqrt_f32 v{s1}, v{s1}')
    p.rnd2(s0, s1, t0)
    p.e(f'v_rcp_f32 v{A}, v{s0}\nv_rcp_f32 v{B}, v{s1}')
    for q, m, sd, ri in ((0, m0, s0, A), (1, m1, s1, B)):
        x = X[4 * q:4 * q + 4]
        for r in range(4):
            p.e(f'v_sub_f32 v{x[r]}, v{x[r]}, v{m}')
        p.rnd2(x[0], x[1], t0)
        p.rnd2(x[2], x[3], t1)
        for r in range(4):
            if fix:
                p.e(f'v_mul_f32 v{t0}, v{x[r]}, v{ri}\nv_fma_f32 v{x[r]}, -v{t0}, v{sd}, v{x[r]}\nv_fma_f32 v{x[r]}, v{x[r]}, v{ri}, v{t0}')
            else:
                p.e(f'v_mul_f32 v{x[r]}, v{x[r]}, v{ri}')
        p.rnd2(x[0], x[1], t0)
        p.rnd2(x[2], x[3], t1)


def modulate(p, X, C1, SH, T, out):
    a, b = T[0], T[1]
    for d in range(4):
        x0, x1 = X[2 * d], X[2 * d + 1]
        p.unpack(C1[d], a, b)
        p.e(f'v_mul_f32 v{x0}, v{x0}, v{a}\nv_mul_f32 v{x1}, v{x1}, v{b}')
        p.rnd2(x0, x1, a)
        p.unpack(SH[d], a, b)
        p.e(f'v_add_f32 v{x0}, v{x0}, v{a}\nv_add_f32 v{x1}, v{x1}, v{b}')
        p.e(f'v_cvt_pk_bf16_f32 v{out[d]}, v{x0}, v{x1}')


def one_plus(p, C, T):
    a, b = T[0], T[1]
    for c in C:
        p.unpack(c, a, b)
        p.e(f'v_add_f32 v{a}, 1.0, v{a}\nv_add_f32 v{b}, 1.0, v{b}\nv_cvt_pk_bf16_f32 v{c}, v{a}, v{b}')


def xa_base(p, s):
    p.e(f's_lshl_b32 s{s}, s{S_WV}, 10\ns_add_u32 s{s}, s{s}, {L_XA}')


def push_narrow_weights(p, tag0, pitch, raw0, raw1, vo, s_base, need=None):
    for u, raw in ((0, raw0), (1, raw1)):
        for jj in range(8):
            def fn(tag, u=u, raw=raw, jj=jj):
                p.e(f's_add_u32 s{S_T3}, s{s_base}, {(64 * u + jj) * pitch}')
                p.vmem(f'buffer_load_dwordx4 {vr(raw + 4 * jj)}, v{vo}, {sr(SRD_W, 4)}, s{S_T3} offen nt', tag)
            p.push(f'{tag0}{u}', fn, need[u] if need else None)


def narrow_setup(p, pitch, vo, s_base, s_col, tmp):
    p.lane(vo, [(3, 3, 8 * pitch), (0, 3, 16)], tmp=tmp)
    p.e(f's_mul_i32 s{s_base}, s{S_WV}, {128 * pitch}\ns_add_u32 s{s_base}, s{s_base}, s{s_col}')


def narrow_gemv(p, F0, F1, B, ACC, T, s_out):
    a0, a1, t0 = T[0], T[1], T[2]
    xa_base(p, S_T0)
    p.lane(a0, [(0, 2, 256), (4, 2, 32), (3, 1, 16)], sadd=S_T0, tmp=t0)
    p.e(f's_mov_b32 s{S_MASK}, 0x0f0f0f0f\ns_mov_b32 s{S_MASK + 1}, 0x0f0f0f0f\nv_mov_b32 v{t0}, {L_ZERO}')
    p.e(f'v_cndmask_b32 v{a1}, v{a0}, v{t0}, {sr(S_MASK)}\nv_cndmask_b32 v{a0}, v{t0}, v{a0}, {sr(S_MASK)}')
    for u in range(2):
        p.e(f'ds_read_b128 {vr(B + 8 * u)}, v{a0} offset:{128 * u}\nds_read_b128 {vr(B + 8 * u + 4)}, v{a1} offset:{128 * u}')
    p.e(f's_lshl_b32 s{S_T0}, s{S_WV}, 11\ns_add_u32 s{S_T0}, s{S_T0}, {L_RED}')
    p.lane(a0, [(5, 1, 1024), (0, 2, 256), (2, 1, 128), (4, 1, 16)], sadd=S_T0, tmp=t0)
    p.e('s_waitcnt lgkmcnt(0)')
    for u, F in ((0, F0), (1, F1)):
        for e in range(8):
            acc = vr(ACC + 4 * (e & 3))
            c = '0' if (u == 0 and e < 4) else acc
            p.e(f'v_mfma_f32_16x16x32_bf16 {acc}, {vr(F + 4 * e)}, {vr(B + 8 * u + 4 * (e >> 2))}, {c}')
        p.fill()
    p.exec_set(0xff00ff0000ff00ff)
    for a in range(4):
        p.e(f'ds_write_b128 v{a0}, {vr(ACC + 4 * a)} offset:{32 * a}')
    p.exec_all()
    p.e(f's_lshl_b32 s{S_T0}, s{S_WV}, 8\ns_add_u32 s{S_T0}, s{S_T0}, {L_RED}')
    p.lane(a1, [(2, 1, 128), (0, 2, 32), (5, 1, 16), (3, 2, 4)], sadd=S_T0, tmp=t0)
    p.fill()
    p.e('s_waitcnt lgkmcnt(0)\ns_barrier')
    sk = p.lab('fin')
    p.e(f's_cmp_ge_u32 s{S_WV}, 4\ns_cbranch_scc1 {sk}')
    for k in range(8):
        p.e(f'ds_read2st64_b32 {vr(B + 2 * k, 2)}, v{a1} offset0:{8 * k} offset1:{8 * k + 4}')
    so, stride = s_out
    p.e(f's_mul_i32 s{S_T0}, s{S_WV}, {stride}\ns_add_u32 s{S_T0}, s{S_T0}, s{so}\nv_lshlrev_b32 v{a0}, 1, v1\ns_waitcnt lgkmcnt(0)')
    for w in (8, 4, 2, 1):
        for k in range(w):
            p.e(f'v_add_f32 v{B + k}, v{B + k}, v{B + k + w}')
    p.e(f'v_mov_b32_dpp v{B + 1}, v{B} quad_perm:[1,1,3,3] row_mask:0xf bank_mask:0xf')
    p.e(f'v_cvt_pk_bf16_f32 v{ACC}, v{B}, v{B + 1}')
    for k in (1, 2, 3):
        p.e(f'v_mov_b32_dpp v{ACC + k}, v{ACC} row_shl:{2 * k} row_mask:0xf bank_mask:0xf')
    p.exec_set(0x0101010101010101)
    p.e(f'buffer_store_dwordx4 {vr(ACC)}, v{a0}, {sr(SRD_WS, 4)}, s{S_T0} offen sc1')
    p.exec_all()
    p.e(f'{sk}:')


def push_al_loads(p, tag, srd, dst, vo, s_base, flags=''):
    def issue(model=True):
        for q in range(2):
            p.e(f's_add_u32 s{S_T3}, s{s_base}, {4096 * q}')
            s = f'buffer_load_dwordx2 {vr(dst + 2 * q, 2)}, v{vo}, {sr(srd, 4)}, s{S_T3} offen {flags}'
            p.vmem(s, tag) if model else p.e(s)
    if tag is not None:
        p.push(tag, lambda t: issue())
    return issue


def silu_to_xa(p, C, T, wa):
    a, b, ea, eb = T[0], T[1], T[2], T[3]
    xa_base(p, S_T0)
    p.lane(wa, XA_TERMS, sadd=S_T0, tmp=a)
    for d in range(4):
        p.unpack(C + d, a, b)
        p.e(f'v_mul_f32 v{ea}, {hex(LOG2E | 0x80000000)}, v{a}\nv_mul_f32 v{eb}, {hex(LOG2E | 0x80000000)}, v{b}')
        p.e(f'v_exp_f32 v{ea}, v{ea}\nv_exp_f32 v{eb}, v{eb}')
        p.e(f'v_add_f32 v{ea}, 1.0, v{ea}\nv_add_f32 v{eb}, 1.0, v{eb}')
        p.e(f'v_rcp_f32 v{T[4]}, v{ea}\nv_rcp_f32 v{T[5]}, v{eb}')
        p.e(f'v_mul_f32 v{T[6]}, v{a}, v{T[4]}\nv_mul_f32 v{T[7]}, v{b}, v{T[5]}')
        p.e(f'v_cvt_pk_bf16_f32 v{C + d}, v{T[6]}, v{T[7]}')
    p.e(f'ds_write_b64 v{wa}, {vr(C, 2)}\nds_write_b64 v{wa}, {vr(C + 2, 2)} offset:512')


R_Q, R_S, R_V01, R_K = 16, 32, 64, 128
R_P0, R_P1, R_ACC = 16, 32, 48
VCH = [64, 96, 128, 160]


def entry(p):
    p.e(f'''
    s_cmp_ge_u32 s2, 256
    s_cbranch_scc1 L_end
    s_load_dwordx16 s[32:47], s[0:1], 0
    s_load_dwordx8 s[48:55], s[0:1], 64
    s_load_dwordx4 s[56:59], s[0:1], 96
    v_lshrrev_b32 v2, 6, v0
    v_and_b32 v1, 63, v0
    s_lshr_b32 s{S_W8}, s2, 3
    v_readfirstlane_b32 s{S_WV}, v2
    v_lshlrev_b32 v0, 4, v1
    s_getpc_b64 s[60:61]
    L_pc:
    s_lshl_b32 s62, s{S_W8}, 3
    s_add_u32 s62, s62, s{S_WV}
    s_lshl_b32 s62, s62, 10
    s_min_u32 s62, s62, L_code_end-{NAME}_kernel-1024
    s_sub_u32 s60, s60, L_pc-{NAME}_kernel
    s_subb_u32 s61, s61, 0
    s_add_u32 s60, s60, s62
    s_addc_u32 s61, s61, 0''')
    p.vmem('global_load_dwordx4 v[252:255], v0, s[60:61]', 'code')
    p.e(f'''
    s_add_u32 s{S_ROT}, s{S_W8}, s{S_WV}
    s_and_b32 s{S_ROT}, s{S_ROT}, 7
    s_lshl_b32 s{S_ROT}, s{S_ROT}, 12
    s_lshl_b32 s{S_KV}, s2, 18
    s_add_u32 s{S_KV}, s{S_KV}, s{S_ROT}
    s_mov_b32 s{SRD_K + 2}, 0x4000000
    s_mov_b32 s{SRD_K + 3}, 0x20000
    s_sub_u32 s62, s2, 120
    s_cmp_lt_u32 s62, 64
    s_cbranch_scc1 L_class_Q
    s_cmp_lt_u32 s62, 72
    s_cbranch_scc1 L_class_P
    s_cmp_lt_u32 s62, 80
    s_cbranch_scc1 L_class_PM
    s_cmp_lt_u32 s62, 96
    s_cbranch_scc1 L_class_PR''')
    p.vm_pre = list(p.vm)
    got_args(p)
    for j in range(4):
        p.vmem(f'buffer_load_dwordx4 {vr(R_K + 4 * j)}, v0, {sr(SRD_K, 4)}, s{S_KV} offen offset:{1024 * j} nt', 'K0')
    p.e(f'''
    s_cmp_lt_u32 s2, 64
    s_cbranch_scc1 L_class_O
    s_cmp_lt_u32 s2, 120
    s_cbranch_scc1 L_class_M
    s_branch L_class_R''')


def got_args(p):
    p.e(f's_waitcnt lgkmcnt(0)\ns_mov_b32 s{SRD_K}, s{P_K}\ns_mov_b32 s{SRD_K + 1}, s{P_K + 1}')


def common_setup(p):
    p.stamp('start')
    p.srd(SRD_WS, P_WS, WS_BYTES)
    p.e('v_mov_b32 v4, -1\nv_mov_b32 v5, -1\nv_mov_b32 v6, -1\nv_mov_b32 v7, -1')


def common_setup2(p):
    p.srd(SRD_V, P_V, 0x4000000)
    p.srd(SRD_D, P_DBG, 256)
    p.e(f's_mov_b32 s{S_PLO}, 0x05040100\ns_mov_b32 s{S_PHI}, 0x07060302')


def clear_rows(p, s_off, stride, nb):
    lanes = nb // 16
    sh = lanes.bit_length() - 1
    p.lane(2, [(sh, 2, stride), (0, sh, 16)], tmp=3)
    if lanes * 4 < 64:
        p.exec_set((1 << (lanes * 4)) - 1)
    p.e(f'buffer_store_dwordx4 v[4:7], v2, {sr(SRD_WS, 4)}, s{s_off} offen sc1')
    p.exec_all()


def clears(p, role):
    sk = p.lab('clr')
    p.e(f's_cmp_lg_u32 s{S_WV}, 0\ns_cbranch_scc1 {sk}\ns_setprio 3')
    role()
    p.e(f's_lshl_b32 s{S_T0}, s2, 11\ns_add_u32 s{S_T0}, s{S_T0}, {WS_OP}')
    p.e(f'buffer_store_dwordx4 v[4:7], v0, {sr(SRD_WS, 4)}, s{S_T0} offen sc1')
    p.e(f'buffer_store_dwordx4 v[4:7], v0, {sr(SRD_WS, 4)}, s{S_T0} offen offset:1024 sc1')
    p.e(f's_lshl_b32 s{S_T0}, s2, 7\ns_add_u32 s{S_T0}, s{S_T0}, {WS_ML}')
    p.exec_set(0xff)
    p.e(f'buffer_store_dwordx4 v[4:7], v0, {sr(SRD_WS, 4)}, s{S_T0} offen sc1')
    p.exec_all()
    p.e(f'v_mov_b32 v8, 0\nv_mov_b32 v9, 0\nv_lshlrev_b32 v2, 3, v1\nds_write_b64 v2, v[8:9] offset:{L_ZERO}\nds_write_b32 v8, v8 offset:{L_CNT}')
    p.e(f's_setprio 0\n{sk}:')
    p.nclear = len(p.vm)


def count_b(p):
    sk = p.lab('arr')
    p.e(f's_cmp_lg_u32 s{S_WV}, 0\ns_cbranch_scc1 {sk}\ns_mov_b32 s{S_T0}, 1')
    p.e(f's_atomic_add s{S_T0}, {sr(P_DBG)}, 0\n{sk}:')


def arrive(p, off):
    sk = p.lab('arr')
    p.e(f's_cmp_lg_u32 s{S_WV}, 0\ns_cbranch_scc1 {sk}')
    p.e(f's_waitcnt vmcnt({len(p.vm) - p.nclear}) lgkmcnt(0)')
    p.stamp('arrived')
    for o in off:
        p.e(f's_mov_b32 s{S_T0}, 1\ns_atomic_add s{S_T0}, {sr(P_DBG)}, {o}')
    p.e(f'{sk}:\ns_barrier')


def push_cnt(p, dst, tag='CNT', off=0):
    p.push(tag, lambda t: p.vmem(f'buffer_load_dword v{dst}, off, {sr(SRD_D, 4)}, 0 offset:{off} sc1', t))


def check_cnt(p, dst, tag='CNT', off=0, total=256):
    p.need(tag)
    ok, lp = p.lab('cok'), p.lab('cretry')
    p.e(f'v_readfirstlane_b32 s{S_T0}, v{dst}\ns_mov_b32 s{S_SPIN}, 0\ns_cmp_ge_u32 s{S_T0}, {total}\ns_cbranch_scc1 {ok}\n{lp}:')
    p.e(f'buffer_load_dword v{dst}, off, {sr(SRD_D, 4)}, 0 offset:{off} sc1\ns_waitcnt vmcnt(0)\nv_readfirstlane_b32 s{S_T0}, v{dst}')
    p.e(f's_add_u32 s{S_SPIN}, s{S_SPIN}, 1\ns_cmp_ge_u32 s{S_SPIN}, {CFG["SPIN"]}\ns_cbranch_scc1 {ok}')
    p.e(f's_cmp_lt_u32 s{S_T0}, {total}\ns_cbranch_scc1 {lp}\n{ok}:')
    p.release(tag.lower())


def push_page(p, srd, tag, page, dst, need=None):
    for j in range(4):
        def fn(t, j=j):
            if j == 0 or True:
                p.e(f's_add_u32 s{S_T3}, s{S_KV}, {page * 32768}')
            p.vmem(f'buffer_load_dwordx4 {vr(dst + 4 * j)}, v0, {sr(srd, 4)}, s{S_T3} offen offset:{1024 * j} nt', t)
        p.push(tag, fn, need)


def push_k(p, t):
    push_page(p, SRD_K, f'K{t}', t, R_K + 16 * t)


def push_v(p, u, need=None):
    push_page(p, SRD_V, f'V{u}', 2 * u, VCH[u], need)
    push_page(p, SRD_V, f'V{u}', 2 * u + 1, VCH[u] + 16, need)


def k_setup(p):
    p.e(f's_lshl_b32 s{S_T0}, s{S_WV}, 12')
    p.e(f'v_lshrrev_b32 v6, 4, v1\nv_lshlrev_b32 v7, 2, v6\nv_xor_b32 v7, v7, v1\nv_and_b32 v7, 15, v7\nv_lshlrev_b32 v7, 4, v7')
    p.e(f'v_lshl_add_u32 v2, v6, 8, v7\nv_add_u32 v2, s{S_T0}, v2')
    for j in (1, 2, 3):
        p.e(f'v_xor_b32 v{2 + j}, {16 * j}, v2')
    p.e(f'v_xor_b32 v7, v6, v1\nv_and_b32 v7, 15, v7\nv_lshlrev_b32 v7, 4, v7')
    p.e(f'v_and_b32 v8, 3, v1\nv_lshl_add_u32 v7, v8, 10, v7\nv_bfe_u32 v8, v1, 2, 2\nv_lshl_add_u32 v7, v8, 8, v7\nv_add_u32 v6, s{S_T0}, v7')
    for m in (1, 2, 3):
        p.e(f'v_xor_b32 v{6 + m}, {64 * m}, v6')


def k_trans(p, t):
    p.need(f'K{t}')
    for j in range(4):
        p.e(f'ds_write_b128 v{2 + j}, {vr(R_K + 16 * t + 4 * j)} offset:{1024 * j}')
    for m in range(4):
        p.e(f'ds_read_b128 {vr(R_K + 16 * t + 4 * m)}, v{6 + m}')


def q_loads(p, vo):
    def issue(model):
        for m in range(4):
            s = f'buffer_load_dwordx4 {vr(R_Q + 4 * m)}, v{vo}, {sr(SRD_WS, 4)}, s{S_U + 3} offen offset:{64 * m} sc1'
            p.vmem(s, 'Q') if model else p.e(s)
    return issue


def push_q(p, vo):
    def fn(t):
        p.e(f's_lshr_b32 s{S_U + 3}, s2, 4\ns_lshl_b32 s{S_U + 3}, s{S_U + 3}, 11\ns_add_u32 s{S_U + 3}, s{S_U + 3}, {WS_Q}')
        p.lane(vo, [(0, 3, 256), (4, 2, 16)], tmp=R_Q)
        q_loads(p, vo)(True)
    p.push('Q', fn, 'cnt')


def qk_softmax(p, vo_q):
    p.need('Q')
    p.check_retry(lambda: q_loads(p, vo_q)(False), list(range(R_Q, R_Q + 16)), 10)
    p.e('s_waitcnt lgkmcnt(0)')
    p.stamp('q_ok')
    for t in range(8):
        for m in range(4):
            s = vr(R_S + 4 * t)
            p.e(f'v_mfma_f32_16x16x32_bf16 {s}, {vr(R_K + 16 * t + 4 * m)}, {vr(R_Q + 4 * m)}, {"0" if m == 0 else s}')
        if t == 1:
            p.release('K01')
            p.burst(2)
        if t == 7:
            p.release('K47')
            p.burst(CFG['BURST'])
    T = 2
    for t in range(8):
        x = R_S + 4 * t
        for h in (0, 2):
            p.rnd2(x + h, x + h + 1, T + h // 2)
        for r in range(4):
            p.e(f'v_mul_f32 v{x + r}, 0x3db504f3, v{x + r}')
        for h in (0, 2):
            p.rnd2(x + h, x + h + 1, T + h // 2)
        if t == 0:
            p.e(f'v_max_f32 v4, v{x}, v{x + 1}')
        else:
            p.e(f'v_max3_f32 v4, v4, v{x}, v{x + 1}')
        p.e(f'v_max3_f32 v4, v4, v{x + 2}, v{x + 3}')
        if t % 2:
            p.fill()
    p.W += CFG['BURST'] - 2
    p.pump(2)
    p.W -= CFG['BURST'] - 2
    p.swapred('v_max_f32', 16, [4], [5])
    p.swapred('v_max_f32', 32, [4], [5])
    p.e(f'v_mul_f32 v6, {hex(LOG2E | 0x80000000)}, v4\ns_mov_b32 s{S_T0}, {hex(LOG2E)}')
    p.e(f's_mov_b32 s{S_MASK}, 0x00ff00ff\ns_mov_b32 s{S_MASK + 1}, 0x00ff00ff\nv_mov_b32 v5, 0')
    for t in range(8):
        x = R_S + 4 * t
        for r in range(4):
            p.e(f'v_fma_f32 v{x + r}, v{x + r}, s{S_T0}, v6')
        for r in range(4):
            p.e(f'v_exp_f32 v{x + r}, v{x + r}')
        p.e(f'v_add_f32 v7, v{x}, v{x + 1}\nv_add_f32 v8, v{x + 2}, v{x + 3}')
        p.e(f'v_cvt_pk_bf16_f32 v2, v{x}, v{x + 1}\nv_cvt_pk_bf16_f32 v3, v{x + 2}, v{x + 3}')
        p.e(f'v_add_f32 v5, v5, v7\nv_add_f32 v5, v5, v8')
        for d in range(2):
            p.e(f'v_cndmask_b32 v{R_P0 + 2 * t + d}, 0, v{2 + d}, {sr(S_MASK)}')
            p.e(f'v_cndmask_b32 v{R_P1 + 2 * t + d}, v{2 + d}, 0, {sr(S_MASK)}')
        if t % 2:
            p.fill()
    p.swapred('v_add_f32', 16, [5], [6])
    p.swapred('v_add_f32', 32, [5], [6])
    p.e(f's_lshl_b32 s{S_T0}, s{S_WV}, 6\ns_add_u32 s{S_T0}, s{S_T0}, {L_MLW}\nv_lshlrev_b32 v6, 3, v1\nv_add_u32 v7, s{S_T0}, v6')
    p.e(f'v_mov_b32 v8, 1\nv_mov_b32 v9, {L_CNT}')
    p.exec_set(0xff)
    p.e('ds_write_b64 v7, v[4:5]\ns_mov_b64 exec, 1\nds_add_rtn_u32 v8, v9, v8')
    p.exec_all()
    sk = p.lab('ml')
    p.e(f's_waitcnt lgkmcnt(0)\nv_readfirstlane_b32 s{S_T0}, v8\ns_cmp_lg_u32 s{S_T0}, 7\ns_cbranch_scc1 {sk}')
    p.e(f'ds_read_b64 v[8:9], v6 offset:{L_MLW}\ns_waitcnt lgkmcnt(0)')
    ml_combine(p, 8, 9, 2, 3, 7)
    p.e(f's_lshl_b32 s{S_T0}, s2, 7\ns_add_u32 s{S_T0}, s{S_T0}, {WS_ML}')
    p.exec_set(0xff)
    p.e(f'buffer_store_dwordx2 v[2:3], v6, {sr(SRD_WS, 4)}, s{S_T0} offen sc1')
    p.exec_all()
    p.e(f'{sk}:')
    p.stamp('softmax')


def ml_combine(p, m, l, M, L, t):
    p.e(f'v_max_f32_dpp v{M}, v{m}, v{m} row_ror:8 row_mask:0xf bank_mask:0xf')
    p.swapred('v_max_f32', 16, [M], [t])
    p.swapred('v_max_f32', 32, [M], [t])
    p.e(f'v_sub_f32 v{t}, v{m}, v{M}\nv_mul_f32 v{t}, {hex(LOG2E)}, v{t}\nv_exp_f32 v{t}, v{t}\nv_mul_f32 v{L}, v{l}, v{t}')
    p.e(f'v_add_f32_dpp v{L}, v{L}, v{L} row_ror:8 row_mask:0xf bank_mask:0xf')
    p.swapred('v_add_f32', 16, [L], [t])
    p.swapred('v_add_f32', 32, [L], [t])


def pv_chunk(p, u, T):
    p.need(f'V{u}')
    raw = VCH[u]
    for c in range(4):
        tb = T + 8 * (c & 1)
        for hi in range(2):
            for jj in range(4):
                a, b = raw + 4 * (2 * jj) + c, raw + 4 * (2 * jj + 1) + c
                p.e(f'v_perm_b32 v{tb + 4 * hi + jj}, v{b}, v{a}, s{S_PHI if hi else S_PLO}')
        for hi in range(2):
            e = 2 * c + hi
            acc = vr(R_ACC + 4 * (e & 3))
            cc = '0' if (u == 0 and e < 4) else acc
            pb = (R_P0 if e < 4 else R_P1) + 4 * u
            p.e(f'v_mfma_f32_16x16x32_bf16 {acc}, {vr(tb + 4 * hi)}, {vr(pb)}, {cc}')
        p.fill()


def ml_loads(p):
    def issue(model):
        for k in range(2):
            s = f'buffer_load_dwordx2 {vr(6 + 2 * k, 2)}, v2, {sr(SRD_WS, 4)}, s{S_U + 3} offen offset:{1024 * k} sc1'
            p.vmem(s, 'ML') if model else p.e(s)
    return issue


def push_ml(p):
    def fn(t):
        p.e(f's_lshr_b32 s{S_U + 3}, s2, 4\ns_lshl_b32 s{S_U + 3}, s{S_U + 3}, 11\ns_add_u32 s{S_U + 3}, s{S_U + 3}, {WS_ML}')
        p.lane(2, [(3, 3, 128), (0, 3, 8)], tmp=3)
        ml_loads(p)(True)
    p.push('ML', fn, 'sm')


def ml_scale(p):
    p.need('ML')
    p.check_retry(lambda: ml_loads(p)(False), [6, 7, 8, 9], 3)
    p.e(f'''v_max_f32 v3, v6, v8
    v_sub_f32 v6, v6, v3
    v_sub_f32 v8, v8, v3
    v_mul_f32 v6, {hex(LOG2E)}, v6
    v_mul_f32 v8, {hex(LOG2E)}, v8
    v_exp_f32 v6, v6
    v_exp_f32 v8, v8
    v_mul_f32 v7, v7, v6
    v_fmac_f32 v7, v9, v8''')
    ml_combine(p, 3, 7, 6, 8, 9)
    p.e(f'v_sub_f32 v4, v4, v6\nv_mul_f32 v4, {hex(LOG2E)}, v4\nv_exp_f32 v4, v4\nv_rcp_f32 v8, v8\nv_mul_f32 v5, v4, v8')
    p.e(f's_mul_i32 s{S_T0}, s{S_WV}, 4864\ns_add_u32 s{S_T0}, s{S_T0}, {L_OPART}')
    p.lane(6, [(0, 3, 592), (4, 2, 144), (3, 1, 64)], sadd=S_T0, tmp=3)
    p.e(f's_mul_i32 s{S_T0}, s{S_WV}, 592\ns_add_u32 s{S_T0}, s{S_T0}, {L_OPART}')
    p.lane(7, [(4, 2, 144), (1, 1, 64), (0, 1, 32), (2, 2, 4)], sadd=S_T0, tmp=3)
    p.e('v_add_u32 v8, 16, v7\nv_lshlrev_b32 v9, 2, v1')
    p.e(f's_lshl_b32 s{S_U + 3}, s2, 11\ns_lshl_b32 s{S_T1}, s{S_WV}, 8\ns_add_u32 s{S_U + 3}, s{S_U + 3}, s{S_T1}\ns_add_u32 s{S_U + 3}, s{S_U + 3}, {WS_OP}')


def quad_pack_store(p, D, vo, s_off):
    for k in (1, 2, 3):
        p.e(f'v_mov_b32_dpp v{D + k}, v{D} quad_perm:[{k},{k},{k},{k}] row_mask:0xf bank_mask:0xf')
    p.exec_set(0x1111111111111111)
    p.vmem(f'buffer_store_dwordx4 {vr(D)}, v{vo}, {sr(SRD_WS, 4)}, s{s_off} offen sc1', 'st')
    p.exec_all()


def attn_epilogue(p):
    for k in range(16):
        p.e(f'v_mul_f32 v{R_ACC + k}, v5, v{R_ACC + k}')
        if k % 4 == 3:
            p.e(f'ds_write_b128 v6, {vr(R_ACC + k - 3)} offset:{16 * (k // 4)}')
    p.e('s_waitcnt lgkmcnt(0)\ns_barrier')
    B = R_P0
    for k in range(4):
        p.e(f'ds_read2st64_b32 {vr(B + 2 * k, 2)}, v7 offset0:{38 * k} offset1:{38 * k + 19}')
        p.e(f'ds_read2st64_b32 {vr(B + 8 + 2 * k, 2)}, v8 offset0:{38 * k} offset1:{38 * k + 19}')
    p.e('s_waitcnt lgkmcnt(0)')
    for w in (4, 2, 1):
        for h in (0, 8):
            for k in range(w):
                p.e(f'v_add_f32 v{B + h + k}, v{B + h + k}, v{B + h + k + w}')
    p.e(f'v_cvt_pk_bf16_f32 v{B + 4}, v{B}, v{B + 8}')
    quad_pack_store(p, B + 4, 9, S_U + 3)
    p.stamp('o_stored')


def selectors(p, SA, t):
    p.e(f'v_and_b32 v{t}, 1, v1\nv_cmp_eq_u32 vcc, 1, v{t}\nv_mov_b32 v{t}, 0x3f80\nv_mov_b32 v{t + 1}, 1.0')
    p.e(f'v_cndmask_b32 v{t}, v{t}, v{t + 1}, vcc\nv_bfe_u32 v{t + 1}, v1, 1, 3')
    for d in range(8):
        p.e(f'v_cmp_eq_u32 vcc, {d}, v{t + 1}\nv_cndmask_b32 v{SA + d}, 0, v{t}, vcc')


def wide_b_addrs(p, A, base_terms, s_base, const, t):
    p.lane(t, base_terms, const=const, sadd=s_base, tmp=A)
    p.e(f'v_mov_b32 v{t + 1}, {L_ZERO}')
    for j in range(4):
        m = 0x11111111 << j
        p.e(f's_mov_b32 s{S_MASK}, {hex(m)}\ns_mov_b32 s{S_MASK + 1}, {hex(m)}')
        p.e(f'v_cndmask_b32 v{A + j}, v{t + 1}, v{t}, {sr(S_MASK)}')


def push_wide_rows(p, tag, raw, vo, s_base, row0, need=None):
    for jj in range(8):
        def fn(t, jj=jj):
            p.e(f's_add_u32 s{S_T3}, s{s_base}, {(row0 + (jj & ~1)) * 2048}')
            p.vmem(f'buffer_load_dwordx4 {vr(raw + 4 * jj)}, v{vo}, {sr(SRD_W, 4)}, s{S_T3} offen offset:{2048 * (jj & 1)} nt', t)
        p.push(tag, fn, need)


RED_W = [(2, 2, 656), (4, 2, 144), (0, 2, 32)]


def finish(p):
    if CFG['STAMPS']:
        p.e(f's_lshl_b32 s{S_T0}, s2, 3\ns_add_u32 s{S_T0}, s{S_T0}, s{S_WV}\ns_lshl_b32 s{S_T0}, s{S_T0}, 7\ns_add_u32 s{S_T0}, s{S_T0}, {WS_STAMP}')
        p.stamp('end')
        p.e('s_mov_b64 exec, 1\nv_mov_b32 v2, 0')
        for k in range(p.nstamp):
            p.e(f'v_mov_b32 v3, s{S_STAMP + k}\nbuffer_store_dword v3, v2, {sr(SRD_WS, 4)}, s{S_T0} offen offset:{4 * k}')
    p.e('s_endpgm')


def mod_unit_setup(p, s_unit, s_col, s_out):
    p.e(f's_lshl_b32 s{s_col}, s{s_unit}, 7')
    p.e(f's_lshr_b32 s{s_out}, s{s_unit}, 4\ns_lshl_b32 s{s_out}, s{s_out}, 13\ns_and_b32 s{S_T0}, s{s_unit}, 15')
    p.e(f's_lshl_b32 s{S_T0}, s{S_T0}, 7\ns_add_u32 s{s_out}, s{s_out}, s{S_T0}')
    if WS_MOD:
        p.e(f's_add_u32 s{s_out}, s{s_out}, {WS_MOD}')


def capture(p, fn):
    old, p.stream = p.stream, deque()
    fn()
    items, p.stream = list(p.stream), old
    return items


def weave(a, b, lead=0):
    out, a, b = [], list(a), list(b)
    out += b[:lead]
    b = b[lead:]
    while a or b:
        if b:
            out.append(b.pop(0))
        if a:
            out.append(a.pop(0))
    return out


def push_c3(p, tag, ptr, nbytes, wbase, n, first=0, dst=252):
    def setup(t):
        p.srd(SRD_A, ptr, nbytes)
        p.e(f's_sub_u32 s{S_T2}, s2, {wbase}\ns_lshl_b32 s{S_T2}, s{S_T2}, 3\ns_add_u32 s{S_T2}, s{S_T2}, s{S_WV}')
        p.e(f's_mul_i32 s{S_T2}, s{S_T2}, {n * 8192}\ns_add_u32 s{S_T2}, s{S_T2}, {first * 8192 + 384}')
        p.lane(15, [(3, 3, 1024), (0, 3, 16)], tmp=dst)
        for k in range(n):
            if k:
                p.e(f's_add_u32 s{S_T2}, s{S_T2}, 8192')
            p.vmem(f'buffer_load_dwordx4 {vr(dst)}, v15, {sr(SRD_A, 4)}, s{S_T2} offen', t)
    p.push(tag, setup)


def push_c3mod(p, dst=252):
    def fn(t):
        p.srd(SRD_A, P_WMOD, 1024 * 12288)
        p.e(f's_sub_u32 s{S_T2}, s2, 120\ns_lshl_b32 s{S_T2}, s{S_T2}, 3\ns_add_u32 s{S_T2}, s{S_T2}, s{S_WV}')
        p.e(f's_lshr_b32 s{S_T3}, s{S_T2}, 7\ns_lshl_b32 s{S_T3}, s{S_T3}, 10\ns_and_b32 s{S_T2}, s{S_T2}, 127')
        p.e(f's_mul_i32 s{S_T2}, s{S_T2}, {8 * 12288}\ns_add_u32 s{S_T2}, s{S_T2}, s{S_T3}\ns_add_u32 s{S_T2}, s{S_T2}, 4096')
        p.lane(15, [(3, 3, 12288), (0, 3, 16)], tmp=dst)
        p.vmem(f'buffer_load_dwordx4 {vr(dst)}, v15, {sr(SRD_A, 4)}, s{S_T2} offen offset:384', t)
        p.e(f's_add_u32 s{S_T2}, s{S_T2}, 4096')
        p.vmem(f'buffer_load_dwordx4 {vr(dst)}, v15, {sr(SRD_A, 4)}, s{S_T2} offen offset:384', t)
    p.push('c3', fn)


def push_hpr(p, dst=252):
    def fn(t):
        p.srd(SRD_A, P_WMOD, 1024 * 12288)
        p.e(f's_sub_u32 s{S_T2}, s2, 120\ns_lshl_b32 s{S_T2}, s{S_T2}, 3\ns_add_u32 s{S_T2}, s{S_T2}, s{S_WV}')
        p.e(f's_mul_i32 s{S_T2}, s{S_T2}, 12288\ns_add_u32 s{S_T2}, s{S_T2}, 9216')
        for k in range(3):
            p.vmem(f'buffer_load_dwordx4 {vr(dst)}, v0, {sr(SRD_A, 4)}, s{S_T2} offen offset:{1024 * k}', t)
    p.push('hpr', fn)


def rewarm(p, label, n, dst):
    if not CFG['REWARM']:
        return
    here = p.lab('pc')
    p.e(f's_getpc_b64 s[{S_T0}:{S_T1}]\n{here}:\ns_lshl_b32 s{S_T2}, s{S_WV}, 10\ns_add_u32 s{S_T2}, s{S_T2}, ({label}-{here})&0xfffffff0')
    p.e(f's_min_u32 s{S_T2}, s{S_T2}, (L_code_end-{here}-{1024 + 8192 * (n - 1)})&0xfffffff0')
    p.e(f's_and_b32 s{S_T0}, s{S_T0}, 0xfffffff0\ns_add_u32 s{S_T0}, s{S_T0}, s{S_T2}\ns_addc_u32 s{S_T1}, s{S_T1}, 0')
    for k in range(n):
        if k:
            p.e(f's_add_u32 s{S_T0}, s{S_T0}, 8192\ns_addc_u32 s{S_T1}, s{S_T1}, 0')
        p.vmem(f'global_load_dwordx4 {vr(dst)}, v0, s[{S_T0}:{S_T1}]', 'code')


def h5_prefetch(p, hbase):
    D = 252
    p.e(f's_sub_u32 s{S_T0}, s2, {hbase}')
    p.e(f's_cmp_ge_u32 s{S_T0}, 56\ns_cselect_b32 s{SRD_W}, s{P_W3}, s{P_W1}\ns_cselect_b32 s{SRD_W + 1}, s{P_W3 + 1}, s{P_W1 + 1}')
    p.e(f's_cselect_b32 s{S_T1}, 56, 0\ns_sub_u32 s{S_T1}, s{S_T0}, s{S_T1}')
    p.e(f's_mov_b32 s{SRD_W + 2}, {1024 * 7168}\ns_mov_b32 s{SRD_W + 3}, 0x20000')
    p.srd(SRD_A, P_W2, 3584 * 2048)
    p.e(f's_mul_i32 s{S_T2}, s{S_T1}, 37\ns_lshr_b32 s{S_T2}, s{S_T2}, 8')
    p.e(f's_mul_i32 s{S_T3}, s{S_T2}, 7\ns_sub_u32 s{S_T1}, s{S_T1}, s{S_T3}\ns_lshl_b32 s{S_T1}, s{S_T1}, 15')
    p.e(f's_mul_i32 s{S_T2}, s{S_T2}, {128 * 7168}\ns_add_u32 s{S_T1}, s{S_T1}, s{S_T2}\ns_add_u32 s{S_T1}, s{S_T1}, s{S_ROT}')
    p.e(f's_lshr_b32 s{S_T2}, s{S_T0}, 1\ns_lshl_b32 s{S_T2}, s{S_T2}, 17\ns_and_b32 s{S_T0}, s{S_T0}, 1\ns_lshl_b32 s{S_T0}, s{S_T0}, 15')
    p.e(f's_add_u32 s{S_T2}, s{S_T2}, s{S_T0}\ns_add_u32 s{S_T2}, s{S_T2}, s{S_ROT}')
    order = [(SRD_W, S_T1, 96 * 7168), (SRD_A, S_T2, 65536), (SRD_W, S_T1, 64 * 7168), (SRD_A, S_T2, 0)]
    for srd, sb, off in order[:CFG['H5']]:
        p.e(f's_add_u32 s{S_T3}, s{sb}, {off}')
        for j in range(4):
            p.e(f'buffer_load_dwordx4 {vr(D)}, v0, {sr(srd, 4)}, s{S_T3} offen offset:{1024 * j}')


def build_class(cls, ent):
    p = Prog(cls)
    pre = {'P': 'mod', 'PR': 'mod', 'PM': 'mod', 'Q': 'q'}.get(cls)
    p.vm = list(ent.vm_pre if pre else ent.vm)
    p.e(f'L_class_{cls}:')
    if pre:
        got_args(p)
    common_setup(p)
    Wattn = CFG['W_M'] if cls == 'M' else CFG['W_PR'] if cls == 'PR' else CFG['W_PM'] if cls == 'PM' else CFG['W_Q'] if (cls == 'Q' and CFG['W_Q']) else CFG['W']
    S_COL, S_OUT, S_WB = S_U, S_U + 1, S_U + 2
    S_OUT2, S_COL2 = S_U + 4, S_U + 5
    roles = []
    if pre == 'mod':
        p.srd(SRD_W, P_WMOD, 1024 * 12288)
        p.srd(SRD_A, P_C, 8192)
        p.e(f's_sub_u32 s{S_T1}, s2, 184')
        mod_unit_setup(p, S_T1, S_COL, S_OUT)
        narrow_setup(p, 12288, 10, S_WB, S_COL, 3)
    if pre == 'q':
        p.srd(SRD_W, P_WQ, 1024 * 8192)
        p.srd(SRD_A, P_X, 8192)
        p.e(f's_sub_u32 s{S_COL}, s2, 120\ns_lshl_b32 s{S_COL}, s{S_COL}, 7\ns_add_u32 s{S_OUT}, s{S_COL}, {WS_Q}')
        narrow_setup(p, 8192, 10, S_WB, S_COL, 3)
    if pre:
        p.lane(11, AL_TERMS, tmp=3)
        p.e(f's_lshl_b32 s{S_U + 6}, s{S_WV}, 8')
        push_al_loads(p, 'ACT', SRD_A, 16, 11, S_U + 6)
        push_narrow_weights(p, 'WA', 12288 if pre == 'mod' else 8192, 64, 96, 10, S_WB)
        roles.append(lambda: clear_rows(p, S_OUT, 2048 if pre == 'mod' else 8192, 128))
    if cls == 'O' and CFG['HP3']:
        p.srd(SRD_W, P_WMOD, 1024 * 12288)
        p.e(f's_lshl_b32 s{S_T0}, s2, 3\ns_add_u32 s{S_T0}, s{S_T0}, s{S_WV}\ns_lshr_b32 s{S_T1}, s{S_T0}, 7\ns_lshl_b32 s{S_T1}, s{S_T1}, 10')
        p.e(f's_and_b32 s{S_T0}, s{S_T0}, 127\ns_mul_i32 s{S_T0}, s{S_T0}, {8 * 12288}\ns_add_u32 s{S_T0}, s{S_T0}, s{S_T1}')
        p.lane(10, [(3, 3, 12288), (0, 3, 16)], tmp=3)
        p.vmem(f'buffer_load_dwordx4 v[252:255], v10, {sr(SRD_W, 4)}, s{S_T0} offen offset:384', 'hp3')
    if cls in ('PR', 'PM', 'R'):
        p.e(f's_sub_u32 s{S_T1}, s2, {216 - 32 if cls == "R" else 192 - 72}')
        mod_unit_setup(p, S_T1, S_COL2, S_OUT2)
        roles.append(lambda: clear_rows(p, S_OUT2, 2048, 128))
    if cls == 'O':
        p.e(f's_and_b32 s{S_COL}, s2, 7\ns_lshl_b32 s{S_OUT}, s{S_COL}, 13\ns_lshl_b32 s{S_T0}, s{S_W8}, 8')
        p.e(f's_add_u32 s{S_OUT}, s{S_OUT}, s{S_T0}\ns_add_u32 s{S_OUT}, s{S_OUT}, {WS_AP}')
        roles.append(lambda: clear_rows(p, S_OUT, 2048, 256))
    if cls == 'M':
        p.e(f's_sub_u32 s{S_COL}, s2, 64\ns_lshl_b32 s{S_OUT}, s{S_COL}, 13\ns_lshl_b32 s{S_T0}, s{S_WV}, 10')
        p.e(f's_add_u32 s{S_OUT}, s{S_OUT}, s{S_T0}\ns_add_u32 s{S_OUT}, s{S_OUT}, {WS_FP}')

        def fp_clear():
            for k in range(8):
                if k % 4 == 0:
                    p.e(f's_add_u32 s{S_T0}, s{S_OUT}, {1024 * k}')
                p.e(f'buffer_store_dwordx4 v[4:7], v0, {sr(SRD_WS, 4)}, s{S_T0} offen offset:{1024 * (k % 4)} sc1')
        roles.append(fp_clear)
    clears(p, lambda: [r() for r in roles])

    def role_setup():
        if cls == 'O':
            p.srd(SRD_W, P_WO, 4096 * 2048)
            p.lane(12, [(4, 2, 8 * 2048), (0, 4, 16)], tmp=13)
            p.e(f's_lshl_b32 s{S_WB}, s{S_COL}, 3\ns_add_u32 s{S_WB}, s{S_WB}, s{S_WV}\ns_lshl_b32 s{S_WB}, s{S_WB}, 17')
            p.e(f's_lshl_b32 s{S_T0}, s{S_W8}, 8\ns_add_u32 s{S_WB}, s{S_WB}, s{S_T0}')
        if cls in ('PR', 'PM', 'R'):
            p.srd(SRD_W, P_WMOD, 1024 * 12288)
            p.srd(SRD_A, P_C, 8192)
            narrow_setup(p, 12288, 12, S_WB, S_COL2, 13)
            p.lane(13, AL_TERMS, tmp=14)
            p.e(f's_lshl_b32 s{S_U + 6}, s{S_WV}, 8')
        if cls == 'M':
            p.srd(SRD_W, P_W2, 3584 * 2048)
            p.srd(SRD_A, P_X, 8192)
            p.e(f's_mov_b32 s{S_MASK}, 0xff00ff00\ns_mov_b32 s{S_MASK + 1}, 0xff00ff00')
            p.e(f'v_mov_b32 v12, s{P_W1}\nv_mov_b32 v13, s{P_W1 + 1}\nv_mov_b32 v14, s{P_W3}\nv_mov_b32 v15, s{P_W3 + 1}')
            p.e(f'v_cndmask_b32 v12, v12, v14, {sr(S_MASK)}\nv_cndmask_b32 v13, v13, v15, {sr(S_MASK)}')
            p.e(f's_mul_i32 s{S_T0}, s{S_WV}, {128 * 7168}\ns_lshl_b32 s{S_T1}, s{S_COL}, 7\ns_add_u32 s{S_T0}, s{S_T0}, s{S_T1}')
            p.lane(14, [(4, 2, 8 * 7168), (0, 3, 16)], sadd=S_T0, tmp=15)
            p.e('v_mov_b32 v15, 0\nv_lshl_add_u64 v[12:13], v[14:15], 0, v[12:13]')
            p.e(f's_mov_b32 s{S_C64}, 7168\ns_mov_b32 s{S_C64 + 1}, 0\ns_mov_b32 s{S_C64B}, {25 * 7168}\ns_mov_b32 s{S_C64B + 1}, 0')
            p.lane(14, [(4, 2, 8 * 2048), (0, 4, 16)], tmp=15)
            p.e(f's_lshl_b32 s{S_WB}, s{S_COL}, 17\ns_lshl_b32 s{S_T0}, s{S_WV}, 8\ns_add_u32 s{S_WB}, s{S_WB}, s{S_T0}')
            p.e(f's_lshl_b32 s5, s{S_WV}, 13\ns_add_u32 s5, s5, {L_STASH}')

    def sc_issue(model):
        for k, chunk in ((0, 0), (1, 1)):
            for q in range(2):
                p.e(f's_add_u32 s{S_T3}, s{S_U + 6}, {WS_MOD + chunk * 8192 + 4096 * q}')
                s = f'buffer_load_dwordx2 {vr(24 + 4 * k + 2 * q, 2)}, v11, {sr(SRD_WS, 4)}, s{S_T3} offen sc1'
                p.vmem(s, 'SC') if model else p.e(s)

    def w13(u, raw, nd):
        def mk(jj):
            def fn(t):
                p.vmem(f'global_load_dwordx4 {vr(raw + 4 * jj)}, v[12:13], off nt', t)
                p.e(f'v_lshl_add_u64 v[12:13], {sr(S_C64B if jj == 7 else S_C64)}, 0, v[12:13]')
            return fn
        return [(f'WM{u}', mk(jj), nd) for jj in range(8)]

    if CFG['C3Q'] and cls == 'M':
        push_c3(p, 'c3', P_WQ, 1024 * 8192, 64, 2)
    if CFG['C3Q'] and cls == 'R':
        push_c3(p, 'c3', P_WQ, 1024 * 8192, 216, 1, 896)
    for t in range(0 if pre else 1, 8):
        if t == 4 and CFG['C3']:
            if cls == 'O':
                push_c3(p, 'c3', P_WO, 4096 * 2048, 0, 2)
            if cls == 'P':
                push_c3(p, 'c3', P_W3, 1024 * 7168, 184, 6)
            if cls == 'PR':
                push_c3(p, 'c3', P_W3, 1024 * 7168, 200, 4, 384)
            if cls == 'Q':
                push_c3mod(p)
        if t == 6 and CFG['C3'] and cls == 'O':
            push_c3(p, 'c3', P_W1, 1024 * 7168, 0, 2)
        if t == 5 and CFG['HPR'] and cls in ('Q', 'P', 'PR', 'R'):
            push_hpr(p)
        if pre == 'q' and t == 0:
            push_cnt(p, 14, 'CNTA', 128)
        if pre == 'q' and t == CFG['SC_AT']:
            p.push('SC', lambda tg: sc_issue(True), 'cnta')
        if pre and t == 6:
            push_cnt(p, 10)
        push_page(p, SRD_K, f'K{t}', t, R_K + 16 * t, 'pre' if (pre == 'mod' and t == 0 and CFG['P_HOLD']) else None)
    v0 = capture(p, lambda: push_v(p, 0, 'pre' if pre else None))
    v1 = capture(p, lambda: push_v(p, 1, 'pre' if pre else None))
    qi = capture(p, lambda: push_q(p, 11))
    vv = v0 + v1
    if cls == 'M' and CFG['M_DMA']:
        def dma(jj):
            def fn(t):
                p.e(f's_add_u32 m0, s5, {1024 * jj}\ns_add_u32 s{S_T3}, s{S_WB}, {2048 * jj}')
                p.vmem(f'buffer_load_dwordx4 v14, {sr(SRD_W, 4)}, s{S_T3} offen nt lds', t)
            return fn
        vv += [('WM4', dma(jj), None) for jj in range(8)]
    if pre:
        p.stream += qi + vv
    else:
        k = CFG['Q_AT_M' if (cls == 'M' and CFG['M_DMA']) else 'Q_AT']
        p.stream += vv[:k - 6] + capture(p, lambda: push_cnt(p, 10)) + vv[k - 6:k] + qi + vv[k:]
    v2 = capture(p, lambda: push_v(p, 2, 'K01'))
    v3 = capture(p, lambda: push_v(p, 3, 'pv0'))
    ml = capture(p, lambda: push_ml(p))
    mid0 = mid1 = post = []
    if cls == 'O':
        mid0 = capture(p, lambda: push_wide_rows(p, 'WO0', 192, 12, S_WB, 0, 'K47'))
        mid1 = capture(p, lambda: push_wide_rows(p, 'WO1', 224, 12, S_WB, 32, 'K47'))
    if cls in ('R', 'PR', 'PM'):
        wb = capture(p, lambda: push_narrow_weights(p, 'WB', 12288, 192, 224, 12, S_WB, need=['K47', 'K47']))
        act2 = capture(p, lambda: push_al_loads(p, 'ACT2', SRD_A, 96 if cls == 'PR' else 80, 13, S_U + 6))
        act2 = [(t, f, 'pv0') for t, f, _ in act2]
        if cls == 'PR':
            k = CFG['PR_EARLY']
            post = wb[:k] + [(t, f, 'ost') for t, f, _ in act2 + wb[k:]]
    if cls == 'M':
        mid0, mid1 = w13(0, 192, 'K47'), w13(1, 224, 'K47')
        w2b = capture(p, lambda: push_wide_rows(p, 'WM5', 160, 14, S_WB, 32, 'ost'))
        if CFG['M_DMA']:
            wm3 = w13(3, 128, 'pv2')
            post = w13(2, 96, 'pv1') + wm3[:2] + weave(wm3[2:], w2b)
        else:
            w2a = capture(p, lambda: push_wide_rows(p, 'WM4', 64, 14, S_WB, 0, 'ost'))
            wm2 = w13(2, 96, 'pv1' if CFG['M_EARLY'] else 'ost')
            post = wm2[:4] + weave(wm2[4:], w2a) + weave(w2b, w13(3, 128, 'ost'))
        post.insert(len(post) - CFG['MOD_AT'], ('MOD', lambda t: m_mod_issue(p, True), 'ost'))
    if cls in ('R', 'PM'):
        p.stream += v2[:2] + weave(v2[2:], wb[:8]) + act2 + wb[8:] + v3[:3] + ml + v3[3:]
    elif mid0:
        p.stream += v2[:2] + weave(v2[2:], mid0)
        tail = weave(v3, mid1, 3)
        p.stream += tail[:-5] + ml + tail[-5:]
    else:
        p.stream += v2 + v3[:3] + ml + v3[3:]
    p.stream += post

    p.W = CFG['W_PRE'] if pre == 'mod' else CFG['W_PREQ'] if pre else CFG['W_INIT']
    while p.can_pump() and len(p.vm) < p.W and p.stream[0][0] not in ('CNTA', 'K0'):
        p.pump(1)
    common_setup2(p)
    k_setup(p)
    arrive(p, {'mod': [128, 0], 'q': [0], None: []}[pre])
    p.W = Wattn if pre else CFG['W_LOW']
    if not pre:
        k_trans(p, 0)
    if pre == 'mod':
        p.need('ACT')
        silu_to_xa(p, 16, list(range(20, 28)), 12)
        p.need('WA0')
        p.perm_chunk(64, 32)
        p.need('WA1')
        p.stamp('w_landed')
        p.perm_chunk(96, 64)
        narrow_gemv(p, 32, 64, 96, 112, [12, 13, 14], (S_OUT, 2048))
        p.release('pre')
        p.stamp('pre_done')
    if pre == 'q':
        p.need('ACT')
        X = list(range(40, 48))
        for d in range(4):
            p.unpack(16 + d, X[2 * d], X[2 * d + 1])
        layernorm(p, X, list(range(48, 60)), True)
        for d in range(4):
            p.e(f'v_cvt_pk_bf16_f32 v{16 + d}, v{X[2 * d]}, v{X[2 * d + 1]}')
        p.need('WA0')
        p.perm_chunk(64, 32)
        p.need('WA1')
        p.stamp('w_landed')
        p.perm_chunk(96, 64)
        check_cnt(p, 14, 'CNTA', 128, 32)
    for t in range(0 if pre else 1, 8):
        if not pre and t == CFG['T_LOW_M' if cls == 'M' else 'T_LOW']:
            p.W = Wattn
        k_trans(p, t)
        if not pre and t == 1:
            count_b(p)
        if pre == 'q' and t == CFG['SC_AT'] - 1:
            p.need('SC')
            p.stamp('sc_landed')
            p.check_retry(lambda: sc_issue(False), list(range(24, 32)), 12)
            p.stamp('sc_ok')
            X = list(range(96, 104))
            for d in range(4):
                p.unpack(16 + d, X[2 * d], X[2 * d + 1])
            one_plus(p, [28, 29, 30, 31], [104, 105])
            modulate(p, X, [28, 29, 30, 31], [24, 25, 26, 27], [104, 105], [16, 17, 18, 19])
            xa_base(p, S_T0)
            p.lane(12, XA_TERMS, sadd=S_T0, tmp=13)
            p.e('ds_write_b64 v12, v[16:17]\nds_write_b64 v12, v[18:19] offset:512')
            narrow_gemv(p, 32, 64, 96, 112, [12, 13, 14], (S_OUT, 8192))
            p.release('pre')
            p.stamp('pre_done')
        if pre and t == 6:
            check_cnt(p, 10)
    role_setup()
    p.stamp('k_done')
    if not pre:
        check_cnt(p, 10)
    qk_softmax(p, 11)
    p.release('sm')
    if CFG['W2'] and cls not in ('M', 'PM'):
        p.W = CFG['W2']
    pv_chunk(p, 0, 160)
    p.release('pv0')
    pv_chunk(p, 1, 64)
    p.release('pv1')
    if CFG['W_END']:
        p.W = max(p.W, CFG['W_END'])
    pv_chunk(p, 2, 64)
    p.release('pv2')
    p.stamp('v2')
    rewarm(p, f'L_tail_{cls}', 1, 92)
    if cls == 'O':
        p.need('WO0')
        p.perm_chunk(192, 96)
    if cls in ('R', 'PM'):
        p.need('WB0')
        p.perm_chunk(192, 96)
        p.need('ACT2')
        silu_to_xa(p, 80, list(range(84, 92)), 10)
        p.need('WB1')
        p.burst(CFG['R_BURST'])
        p.perm_chunk(224, 192)
        narrow_gemv(p, 96, 192, 128, 144, [12, 13, 14], (S_OUT2, 2048))
        p.stamp('post_done')
    p.e(f'L_tail_{cls}:')
    ml_scale(p)
    p.stamp('ml_ok')
    if cls == 'O':
        p.need('WO1')
        p.perm_chunk(224, 192)
        o_setup(p, S_COL, S_OUT)
    pv_chunk(p, 3, 64)
    p.stamp('pv_done')
    if cls == 'M':
        p.burst(CFG['M_BURST'])
    attn_epilogue(p)
    p.release('ost')
    p.W = CFG['W_POST']
    if cls == 'O':
        o_tail(p, S_OUT)
    if cls == 'PR':
        p.need('ACT2')
        silu_to_xa(p, 96, list(range(100, 108)), 10)
        p.need('WB0')
        p.perm_chunk(192, 32)
        p.need('WB1')
        p.perm_chunk(224, 64)
        narrow_gemv(p, 32, 64, 96, 112, [12, 13, 14], (S_OUT2, 2048))
        p.stamp('post_done')
    if cls == 'M':
        m_tail(p, S_COL, S_OUT)
    if cls in ('Q', 'R', 'P') and CFG['H5']:
        h5_prefetch(p, {'Q': 120, 'R': 216 - 64, 'P': 184 - 104}[cls])
    assert not p.stream, [t[0] for t in p.stream]
    finish(p)
    return p


O_SEL, O_E3, O_B, O_F0, O_F1 = 224, 128, 232, 96, 192


def o_setup(p, S_KS, S_OUT):
    selectors(p, O_SEL, 10)
    p.lane(13, [(3, 1, 4 * 16 * 2048), (4, 2, 2048), (0, 3, 16)], tmp=10)
    p.e(f's_lshr_b32 s{S_T0}, s{S_KS}, 1\ns_lshl_b32 s{S_T0}, s{S_T0}, 15\ns_and_b32 s{S_T1}, s{S_KS}, 1\ns_lshl_b32 s{S_T1}, s{S_T1}, 10')
    p.e(f's_add_u32 s{S_T0}, s{S_T0}, s{S_T1}\ns_lshl_b32 s{S_T1}, s{S_WV}, 7\ns_add_u32 s{S_T0}, s{S_T0}, s{S_T1}\ns_add_u32 s{S_U + 7}, s{S_T0}, {WS_OP}')
    xa_base(p, S_T0)
    p.lane(14, [(5, 1, 256), (3, 1, 128), (0, 3, 16), (4, 1, 8)], sadd=S_T0, tmp=10)
    wide_b_addrs(p, O_B, [(2, 2, 128), (4, 2, 16)], S_T0, 0, 10)
    p.e(f's_mul_i32 s{S_T0}, s{S_WV}, 2816\ns_add_u32 s{S_T0}, s{S_T0}, {L_RED}')
    p.lane(15, RED_W, sadd=S_T0, tmp=10)
    p.e(f's_mul_i32 s{S_T0}, s{S_WV}, 656\ns_add_u32 s{S_T0}, s{S_T0}, {L_RED}')
    p.lane(O_B + 4, [(4, 2, 144), (0, 2, 32), (2, 2, 4)], sadd=S_T0, tmp=10)
    p.e(f'v_add_u32 v{O_B + 5}, 16, v{O_B + 4}')
    p.e(f's_lshl_b32 s{S_T0}, s{S_WV}, 11\ns_add_u32 s{S_OUT}, s{S_OUT}, s{S_T0}')


def o_tail(p, S_OUT):
    iss, regs = [], []
    for t in range(8):
        h, sh = t >> 2, t & 3

        def f(t=t, h=h, sh=sh):
            p.e(f's_add_u32 s{S_T3}, s{S_U + 7}, {h * 2 * 4 * 16 * 2048 + sh * 4 * 2048}')
            p.e(f'buffer_load_dwordx4 {vr(O_E3 + 4 * t)}, v13, {sr(SRD_WS, 4)}, s{S_T3} offen sc1')
        iss.append(f)
        regs.append(list(range(O_E3 + 4 * t, O_E3 + 4 * t + 4)))
    p.vm = []
    p.poll_masked(iss, regs, 10)
    p.stamp('e3_ok')
    D = 32
    for t in range(8):
        p.e(f'v_mfma_f32_16x16x32_bf16 {vr(D)}, {vr(O_SEL + 4 * (t >> 2))}, {vr(O_E3 + 4 * t)}, {"0" if t == 0 else vr(D)}')
    p.e(f'v_cvt_pk_bf16_f32 v{D}, v{D}, v{D + 1}\nv_cvt_pk_bf16_f32 v{D + 1}, v{D + 2}, v{D + 3}')
    p.e(f'ds_write_b64 v14, {vr(D, 2)}')
    B = 160
    for u in range(2):
        for j in range(4):
            p.e(f'ds_read_b128 {vr(B + 16 * u + 4 * j)}, v{O_B + j} offset:{64 * u}')
    A = 40
    for u, F in ((0, O_F0), (1, O_F1)):
        for e in range(8):
            if e % 2 == 0:
                p.e(f's_waitcnt lgkmcnt({7 - 4 * u - e // 2})')
            acc = vr(A + 4 * (e & 1))
            p.e(f'v_mfma_f32_16x16x32_bf16 {acc}, {vr(F + 4 * e)}, {vr(B + 16 * u + 4 * (e >> 1))}, {"0" if (u == 0 and e < 2) else acc}')
    for a in range(2):
        p.e(f'ds_write_b128 v15, {vr(A + 4 * a)} offset:{16 * a}')
    sk = p.lab('ofin')
    p.e(f's_waitcnt lgkmcnt(0)\ns_barrier\ns_cmp_ge_u32 s{S_WV}, 4\ns_cbranch_scc1 {sk}')
    for k in range(4):
        p.e(f'ds_read2st64_b32 {vr(B + 2 * k, 2)}, v{O_B + 4} offset0:{22 * k} offset1:{22 * k + 11}')
        p.e(f'ds_read2st64_b32 {vr(B + 8 + 2 * k, 2)}, v{O_B + 5} offset0:{22 * k} offset1:{22 * k + 11}')
    p.e('s_waitcnt lgkmcnt(0)')
    for w in (4, 2, 1):
        for h in (0, 8):
            for k in range(w):
                p.e(f'v_add_f32 v{B + h + k}, v{B + h + k}, v{B + h + k + w}')
    p.e(f'v_cvt_pk_bf16_f32 v{B + 4}, v{B}, v{B + 8}')
    quad_pack_store(p, B + 4, 9, S_OUT)
    p.e(f'{sk}:')
    p.stamp('a_stored')


def m_mod_issue(p, model):
    if model:
        p.lane(10, AL_TERMS, tmp=2)
        p.e(f's_lshl_b32 s{S_U + 6}, s{S_WV}, 8')
        push_al_loads(p, None, SRD_A, 16, 10, S_U + 6)(False)
    for k, chunk in enumerate((2, 4, 3)):
        for q in range(2):
            p.e(f's_add_u32 s{S_T3}, s{S_U + 6}, {WS_MOD + chunk * 8192 + 4096 * q}')
            s = f'buffer_load_dwordx2 {vr(20 + 4 * k + 2 * q, 2)}, v10, {sr(SRD_WS, 4)}, s{S_T3} offen sc1'
            p.vmem(s, 'MOD') if model else p.e(s)


def m_tail(p, S_MI, S_OUT):
    F = [32, 192, 224, 64, 96, 128]
    raw = [192, 224, 96, 128, 64, 160]
    SP, SEL, D = 160, 16, 24
    p.fill()
    if CFG['M_DMA']:
        p.e('v_add_u32 v11, s5, v0')
        for jj in range(8):
            p.e(f'ds_read_b128 {vr(64 + 4 * jj)}, v11 offset:{1024 * jj}')
    rewarm(p, 'L_mtail', 2, 4)
    for u in (0, 1, 2, 4):
        p.need(f'WM{u}')
        p.stamp(f'wm{u}')
        if u == 4:
            p.e('s_waitcnt lgkmcnt(0)')
        p.perm_chunk(raw[u], F[u])
    p.need('MOD')
    while p.can_pump():
        p.pump(1)
    p.stamp('mod_landed')
    p.check_retry(lambda: m_mod_issue(p, False), list(range(20, 32)), 2)
    p.e('L_mtail:')
    p.e(f's_lshl_b32 s{S_T0}, s{S_WV}, 13\ns_add_u32 s{S_T0}, s{S_T0}, {L_STASH}\nv_add_u32 v12, s{S_T0}, v0')
    one_plus(p, list(range(24, 28)), [2, 3])
    for k in range(8):
        p.unpack(16 + 2 * k, 4, 5)
        p.unpack(17 + 2 * k, 6, 7)
        p.e(f'ds_write_b128 v12, v[4:7] offset:{1024 * k}')
    selectors(p, SEL, 2)
    p.lane(11, [(4, 2, 8192), (0, 4, 16)], tmp=2)
    p.e(f's_add_u32 s{S_U + 7}, s{S_U + 6}, {WS_AP}')
    xa_base(p, S_T0)
    p.lane(13, XA_TERMS, sadd=S_T0, tmp=2)
    wide_b_addrs(p, 4, [(2, 2, 256), (4, 2, 16)], S_T0, 0, 2)
    p.e(f's_add_u32 s{S_T0}, s{S_U + 6}, {L_X1}')
    p.lane(14, AL_TERMS, sadd=S_T0, tmp=2)
    p.e(f's_mul_i32 s{S_T0}, s{S_WV}, 2816\ns_add_u32 s{S_T0}, s{S_T0}, {L_RED}')
    p.lane(15, RED_W, sadd=S_T0, tmp=2)
    p.e(f's_lshr_b32 s{S_T0}, s{S_WV}, 1\ns_mul_i32 s{S_T0}, s{S_T0}, 656\ns_and_b32 s{S_T1}, s{S_WV}, 1\ns_mul_i32 s{S_T1}, s{S_T1}, 144')
    p.e(f's_add_u32 s{S_T0}, s{S_T0}, s{S_T1}\ns_add_u32 s{S_T0}, s{S_T0}, {L_RED}')
    p.lane(8, [(5, 1, 288), (1, 2, 32), (0, 1, 16), (3, 2, 4)], sadd=S_T0, tmp=2)
    p.e(f's_lshl_b32 s{S_T0}, s{S_WV}, 6\ns_add_u32 s{S_T0}, s{S_T0}, {L_X2}')
    p.lane(9, [(0, 5, 2)], sadd=S_T0)
    p.e(f's_lshl_b32 s{S_T0}, s{S_WV}, 5\ns_add_u32 s{S_T0}, s{S_T0}, {L_STATS}')
    p.lane(10, [(5, 1, 8)], sadd=S_T0)
    p.lane(3, [(0, 3, 32), (5, 1, 8)], const=L_STATS, tmp=2)
    p.stamp('mod_ok')
    for u in (3, 5):
        p.need(f'WM{u}')
        p.stamp(f'wm{u}')
        p.perm_chunk(raw[u], F[u])
    p.e('s_waitcnt lgkmcnt(0)')
    p.stamp('w_ready')
    iss, regs = [], []
    for t in range(8):
        ksh, b = t & 1, t >> 1

        def f(t=t, ksh=ksh, b=b):
            p.e(f's_add_u32 s{S_T3}, s{S_U + 7}, {ksh * 4 * 8192 + b * 2048}')
            p.e(f'buffer_load_dwordx4 {vr(SP + 4 * t)}, v11, {sr(SRD_WS, 4)}, s{S_T3} offen sc1')
        iss.append(f)
        regs.append(list(range(SP + 4 * t, SP + 4 * t + 4)))
    p.poll_masked(iss, regs, 2)
    p.stamp('e4_ok')
    order = [0, 4, 1, 5, 2, 6, 3, 7]
    for k, t in enumerate(order):
        b = t >> 1
        d = vr(D + 4 * (b >> 1))
        p.e(f'v_mfma_f32_16x16x32_bf16 {d}, {vr(SEL + 4 * (b & 1))}, {vr(SP + 4 * t)}, {"0" if t in (0, 4) else d}')
        if k == 3:
            p.e(f'ds_read_b128 {vr(SP)}, v12\nds_read_b128 {vr(SP + 4)}, v12 offset:1024')
            p.e(f'ds_read_b128 {vr(SP + 16)}, v12 offset:2048\nds_read_b128 {vr(SP + 20)}, v12 offset:3072')
    p.e(f'ds_read_b128 {vr(SP + 8)}, v12 offset:4096\nds_read_b128 {vr(SP + 12)}, v12 offset:5120')
    p.e(f'ds_read_b128 {vr(SP + 24)}, v12 offset:6144\nds_read_b128 {vr(SP + 28)}, v12 offset:7168')
    X = list(range(D, D + 8))
    p.e('s_waitcnt lgkmcnt(4)')
    for k in range(8):
        p.e(f'v_fmac_f32 v{SP + k}, v{X[k]}, v{SP + 16 + k}')
    PK = SP + 16
    for d in range(4):
        p.e(f'v_cvt_pk_bf16_f32 v{PK + d}, v{SP + 2 * d}, v{SP + 2 * d + 1}')
    for d in range(4):
        p.unpack(PK + d, X[2 * d], X[2 * d + 1])
    p.e(f'ds_write_b64 v14, {vr(PK, 2)}\nds_write_b64 v14, {vr(PK + 2, 2)} offset:4096')
    for q in range(2):
        x = X[4 * q:4 * q + 4]
        p.e(f'v_add_f32 v{SP + 2 * q}, v{x[0]}, v{x[1]}\nv_mul_f32 v{SP + 2 * q + 1}, v{x[0]}, v{x[0]}\nv_add_f32 v{SP + 4 + q}, v{x[2]}, v{x[3]}')
    for r in (1, 2, 3):
        for q in range(2):
            p.e(f'v_fmac_f32 v{SP + 2 * q + 1}, v{X[4 * q + r]}, v{X[4 * q + r]}')
    p.e(f'v_add_f32 v{SP}, v{SP}, v{SP + 4}\nv_add_f32 v{SP + 2}, v{SP + 2}, v{SP + 5}')
    R4 = [SP, SP + 2, SP + 1, SP + 3]
    p.rowsum(R4, (8, 4, 2, 1))
    p.swapred('v_add_f32', 16, R4, [SP + 4, SP + 5, SP + 6, SP + 7])
    p.exec_set(0x0000000100000001)
    p.e(f'ds_write_b64 v10, {vr(SP, 2)}\nds_write_b64 v10, {vr(SP + 2, 2)} offset:16')
    p.exec_all()
    p.e('s_waitcnt lgkmcnt(0)\ns_barrier')
    p.e(f'ds_read_b64 {vr(SP, 2)}, v3\nds_read_b64 {vr(SP + 2, 2)}, v3 offset:16\ns_waitcnt lgkmcnt(0)')
    p.rowsum(R4, (4, 2, 1))
    for q in range(2):
        p.e(f'v_mul_f32 v{SP + 2 * q}, 0x3a800000, v{SP + 2 * q}\nv_mul_f32 v{SP + 2 * q + 1}, 0x3a800000, v{SP + 2 * q + 1}')
    for q in range(2):
        p.e(f'v_fma_f32 v{SP + 2 * q + 1}, -v{SP + 2 * q}, v{SP + 2 * q}, v{SP + 2 * q + 1}')
    for q in range(2):
        p.e(f'v_max_f32 v{SP + 2 * q + 1}, 0, v{SP + 2 * q + 1}')
    for q in range(2):
        p.e(f'v_add_f32 v{SP + 2 * q + 1}, 0x3727c5ac, v{SP + 2 * q + 1}')
    for q in range(2):
        p.e(f'v_rsq_f32 v{SP + 2 * q + 1}, v{SP + 2 * q + 1}')
    for k in range(8):
        p.e(f'v_sub_f32 v{X[k]}, v{X[k]}, v{SP + 2 * (k >> 2)}')
    for k in range(8):
        p.e(f'v_mul_f32 v{SP + 8 + k}, v{SP + 8 + k}, v{SP + 2 * (k >> 2) + 1}')
    for k in range(8):
        p.e(f'v_fmac_f32 v{SP + 24 + k}, v{X[k]}, v{SP + 8 + k}')
    for d in range(4):
        p.e(f'v_cvt_pk_bf16_f32 v{SP + d}, v{SP + 24 + 2 * d}, v{SP + 24 + 2 * d + 1}')
    p.e(f'ds_write_b64 v13, {vr(SP, 2)}\nds_write_b64 v13, {vr(SP + 2, 2)} offset:512')
    p.stamp('h2')
    A = D

    def breads(u):
        for j in range(4):
            p.e(f'ds_read_b128 {vr(SP + 16 * (u & 1) + 4 * j)}, v{4 + j} offset:{64 * u}')
    breads(0)
    breads(1)
    for u in range(4):
        for e in range(8):
            if e % 2 == 0:
                rem = (3 - e // 2) + (4 if u < 3 else 0)
                p.e(f's_waitcnt lgkmcnt({rem})')
            acc = vr(A + 4 * (e & 1))
            p.e(f'v_mfma_f32_16x16x32_bf16 {acc}, {vr(F[u] + 4 * e)}, {vr(SP + 16 * (u & 1) + 4 * (e >> 1))}, {"0" if (u == 0 and e < 2) else acc}')
        if u < 2:
            breads(u + 2)
    for a_ in range(2):
        p.e(f'ds_write_b128 v15, {vr(A + 4 * a_)} offset:{16 * a_}')
    GB, X1 = 40, 44
    p.lane(10, [(2, 2, 2048), (0, 2, 4)], tmp=3)
    p.e(f's_lshl_b32 s{S_U + 6}, s{S_MI}, 6\ns_add_u32 s{S_T2}, s{S_U + 6}, {WS_MOD + 5 * 8192}')

    def gb_issue():
        for r in range(4):
            p.e(f'buffer_load_dword v{GB + r}, v10, {sr(SRD_WS, 4)}, s{S_T2} offen offset:{16 * r} sc1')
    sk = p.lab('gb')
    p.e(f's_cmp_lg_u32 s{S_WV}, 0\ns_cbranch_scc1 {sk}\ns_cmp_ge_u32 s{S_MI}, 32\ns_cbranch_scc1 {sk}')
    gb_issue()
    p.e(f'{sk}:')
    wide_b_addrs(p, 4, [(2, 2, 128), (4, 2, 16)], None, L_X2, 2)
    p.e('s_waitcnt lgkmcnt(0)\ns_barrier')
    G = 32
    for k in range(4):
        p.e(f'ds_read2st64_b32 {vr(G + 2 * k, 2)}, v8 offset0:{22 * k} offset1:{22 * k + 11}')
    p.e('s_waitcnt lgkmcnt(0)')
    for w in (4, 2, 1):
        for k in range(w):
            p.e(f'v_add_f32 v{G + k}, v{G + k}, v{G + k + w}')
    p.e(f'v_cvt_pk_bf16_f32 v{G}, v{G}, v{G}\nv_and_b32 v{G}, 0xffff0000, v{G}\nv_mov_b32 v{G + 1}, v{G}')
    p.e(f'v_permlane32_swap_b32 v{G}, v{G + 1}')
    p.e(f'''v_mul_f32 v{G + 2}, {hex(LOG2E | 0x80000000)}, v{G}
    v_exp_f32 v{G + 2}, v{G + 2}
    v_add_f32 v{G + 2}, 1.0, v{G + 2}
    v_rcp_f32 v{G + 2}, v{G + 2}
    v_mul_f32 v{G}, v{G}, v{G + 2}
    v_cvt_pk_bf16_f32 v{G}, v{G}, v{G}
    v_and_b32 v{G}, 0xffff0000, v{G}
    v_mul_f32 v{G}, v{G}, v{G + 1}
    v_cvt_pk_bf16_f32 v{G}, v{G}, v{G}''')
    p.exec_set(0xffffffff)
    p.e(f'ds_write_b16 v9, v{G}')
    p.exec_all()
    p.e('s_waitcnt lgkmcnt(0)\ns_barrier')
    breads(0)
    breads(1)
    for u in range(2):
        for e in range(8):
            if e % 2 == 0:
                p.e(f's_waitcnt lgkmcnt({7 - 4 * u - e // 2})')
            acc = vr(A + 4 * (e & 1))
            p.e(f'v_mfma_f32_16x16x32_bf16 {acc}, {vr(F[4 + u] + 4 * e)}, {vr(SP + 16 * u + 4 * (e >> 1))}, {"0" if (u == 0 and e < 2) else acc}')
    for d in range(4):
        p.e(f'v_cvt_pk_bf16_f32 v{G + d}, v{A + 2 * d}, v{A + 2 * d + 1}')
    p.e(f'buffer_store_dwordx4 {vr(G)}, v0, {sr(SRD_WS, 4)}, s{S_OUT} offen sc1')
    p.stamp('f_stored')
    end = p.lab('mend')
    p.e(f's_cmp_lg_u32 s{S_WV}, 0\ns_cbranch_scc1 {end}\ns_cmp_ge_u32 s{S_MI}, 32\ns_cbranch_scc1 {end}')
    p.srd(SRD_A, P_OUT, 8192)
    p.e(f'v_add_u32 v2, s{S_U + 6}, v10')
    for r in range(4):
        p.e(f'ds_read_b32 v{X1 + r}, v2 offset:{L_X1 + 16 * r}')
    p.lane(11, [(4, 2, 8192), (0, 4, 16)], tmp=3)
    p.e(f's_lshl_b32 s{S_U + 7}, s{S_MI}, 8\ns_add_u32 s{S_U + 7}, s{S_U + 7}, {WS_FP}')
    p.e(f's_mov_b32 s{S_MASK}, 0xffff0000\ns_mov_b32 s{S_MASK + 1}, 0xffff0000\ns_waitcnt vmcnt(1) lgkmcnt(0)')
    p.check_retry(gb_issue, list(range(GB, GB + 4)), 3)
    for k in range(8):
        p.unpack(GB + k, 4, 5)
        p.e(f'v_cndmask_b32 v{GB + k}, v4, v5, {sr(S_MASK)}')
    E = 64
    iss, regs = [], []
    for t in range(14):
        def f(t=t):
            p.e(f's_add_u32 s{S_T3}, s{S_U + 7}, {t * 4 * 8192}')
            p.e(f'buffer_load_dwordx4 {vr(E + 4 * t)}, v11, {sr(SRD_WS, 4)}, s{S_T3} offen sc1')
        iss.append(f)
        regs.append(list(range(E + 4 * t, E + 4 * t + 4)))
    p.poll_masked(iss, regs, 3)
    p.stamp('e5_ok')
    for t in range(14):
        d = vr(D + 4 * (t & 1))
        p.e(f'v_mfma_f32_16x16x32_bf16 {d}, {vr(SEL)}, {vr(E + 4 * t)}, {"0" if t < 2 else d}')
    for r in range(4):
        p.e(f'v_add_f32 v{D + r}, v{D + r}, v{D + 4 + r}')
    for h in (0, 2):
        p.rnd2(D + h, D + h + 1, 4)
    for r in range(4):
        p.e(f'v_mul_f32 v{D + r}, v{GB + r}, v{D + r}')
    for h in (0, 2):
        p.rnd2(D + h, D + h + 1, 4)
    for r in range(4):
        p.e(f'v_add_f32 v{D + r}, v{X1 + r}, v{D + r}\nv_mov_b32 v{D + 4 + r}, v{D + r}')
    for r in range(4):
        p.e(f'v_permlane16_swap_b32 v{D + r}, v{D + 4 + r}')
    for r in range(4):
        p.e(f'v_cvt_pk_bf16_f32 v{D + r}, v{D + r}, v{D + 4 + r}')
    p.exec_set(0xffff)
    for r in range(4):
        p.e(f'buffer_store_dword v{D + r}, v2, {sr(SRD_A, 4)}, 0 offen offset:{16 * r}')
    p.exec_all()
    p.e(f'{end}:')


def generate():
    hdr = open('cdna_kernels/' + NAME + '.s.ref').read().split('\n')
    out = [l for l in hdr if l.startswith(';') and '@launch' not in l]
    out.append(f'; @launch grid=(256,1,1) block=(512,1,1) lds={L_TOTAL}')
    out += ['.amdgcn_target "amdgcn-amd-amdhsa--gfx950"', '.text', f'.globl {NAME}_kernel', '.p2align 8',
            f'.type {NAME}_kernel,@function', f'{NAME}_kernel:']
    e = Prog('E')
    entry(e)
    body = list(e.L)
    names = {}
    for cls in ('O', 'M', 'Q', 'P', 'PM', 'PR', 'R'):
        p = build_class(cls, e)
        body.append('.p2align 6')
        body += p.L
        names[cls] = p.stamp_names
    body += ['L_end:', 's_endpgm']
    out += pad_hazards(body)
    out += ['.fill 64, 4, 0xbf800000', '.p2align 8', 'L_code_end:']
    out += ['.section .rodata,"a"', '.p2align 6', f'.amdhsa_kernel {NAME}_kernel',
            '  .amdhsa_next_free_vgpr 256', '  .amdhsa_next_free_sgpr 102', '  .amdhsa_accum_offset 256',
            '  .amdhsa_group_segment_fixed_size 0', '  .amdhsa_kernarg_size 112', '  .amdhsa_user_sgpr_count 2',
            '  .amdhsa_user_sgpr_kernarg_segment_ptr 1', '  .amdhsa_system_sgpr_workgroup_id_x 1',
            '  .amdhsa_float_denorm_mode_32 3', '.end_amdhsa_kernel']
    return '\n'.join(out) + '\n', names


if __name__ == '__main__':
    path = sys.argv[1]
    for kv in sys.argv[2:]:
        k, v = kv.split('=')
        CFG[k] = eval(v)
    txt, names = generate()
    open(path, 'w').write(txt)
    import json
    json.dump(names, open(path + '.stamps.json', 'w'))
```

```python
import sys
from collections import deque
from asmlib import pad_hazards

NAME = 'adaLN_cond__gqa_block_cached__glu_gated_swiglu__decode'

CFG = dict(
    W=4,
    W_PRE=24,
    SC_AT=2,
    W_LOW=2,
    T_LOW=3,
    W_PREQ=8,
    P_HOLD=True,
    Q_AT=12,
    HP3=True,
    H5=0,
    BURST=5,
    C3Q=False,
    C3=True,
    HPR=False,
    M_EARLY=True,
    W2=None,
    W_PR=4,
    W_PM=6,
    PR_EARLY=0,
    R_BURST=6,
    M_BURST=4,
    M_DMA=True,
    Q_AT_M=18,
    DBGOUT=False,
    W_END=None,
    W_Q=None,
    T_LOW_M=2,
    REWARM=True,
    MOD_AT=8,
    W_M=5,
    W_POST=8,
    W_INIT=5,
    STAMPS=False,
    SPIN=1 << 18,
)

WS_MOD = 0x00000
WS_Q = 0x10000
WS_ML = 0x20000
WS_AP = 0x30000
WS_OP = 0x40000
WS_FP = 0xC0000
WS_STAMP = 0x200000
WS_BYTES = 268435456

L_KT = 0
L_OPART = 0
L_XA = 40960
L_ZERO = 49152
L_MLW = 49664
L_CNT = 50176
L_STATS = 50432
L_X2 = 50688
L_FINB = 51200
L_X1 = 52224
L_RED = 60416
L_STASH = 83968
L_TOTAL = 149504

SENT_MASKS = {}


def vr(a, n=4):
    return f'v[{a}:{a + n - 1}]' if n > 1 else f'v{a}'


def sr(a, n=2):
    return f's[{a}:{a + n - 1}]' if n > 1 else f's{a}'


S_WV, S_W8, S_ROT, S_KV = 3, 4, 6, 7
SRD_K, SRD_V, SRD_WS, SRD_W, SRD_A, SRD_D = 8, 12, 16, 20, 24, 28
P_X, P_K, P_V, P_WQ, P_WO, P_W1, P_W3, P_W2, P_C, P_WMOD, P_OUT, P_DBG, P_WS = 32, 34, 36, 38, 40, 44, 46, 48, 50, 52, 54, 56, 58
S_T0, S_T1, S_T2, S_T3 = 60, 61, 62, 63
S_PLO, S_PHI = 64, 65
S_MASK = 66
S_SAVE = 68
S_SPIN = 70
S_VALID = 71
S_U = 72
S_C64 = 80
S_C64B = 82
S_STAMP = 84


class Prog:
    def __init__(self, name):
        self.name = name
        self.L = []
        self.vm = []
        self.stream = deque()
        self.released = set()
        self.W = CFG['W']
        self.nlab = 0
        self.nstamp = 0
        self.stamp_names = []

    def e(self, s):
        for line in s.split('\n'):
            line = line.strip()
            if line:
                self.L.append(line)

    def lab(self, base):
        self.nlab += 1
        return f'L_{self.name}_{base}{self.nlab}'

    def vmem(self, s, tag):
        self.e(s)
        self.vm.append(tag)
        assert len(self.vm) <= 56, 'too many outstanding'

    def waitn(self, n):
        if len(self.vm) > n:
            self.e(f's_waitcnt vmcnt({n})')
            self.vm = self.vm[len(self.vm) - n:] if n else []

    def wait(self, tag):
        if tag in self.vm:
            idx = len(self.vm) - 1 - self.vm[::-1].index(tag)
            self.waitn(len(self.vm) - 1 - idx)

    def push(self, tag, fn, need=None):
        self.stream.append((tag, fn, need))

    def can_pump(self):
        return self.stream and (self.stream[0][2] is None or self.stream[0][2] in self.released)

    def pump(self, k=1):
        for _ in range(k):
            if not self.can_pump():
                return
            tag, fn, _n = self.stream.popleft()
            self.waitn(self.W - 1)
            fn(tag)

    def fill(self):
        while self.can_pump() and len(self.vm) < self.W:
            self.pump(1)

    def burst(self, k):
        self.W += k
        self.fill()
        self.W -= k

    def need(self, tag):
        while any(t[0] == tag for t in self.stream):
            assert self.can_pump(), f'{self.name}: stream blocked before {tag} at {self.stream[0][0]}'
            self.pump(1)
        while tag in self.vm:
            if self.can_pump() and self.vm[::-1].index(tag) <= self.W - 1:
                self.pump(1)
            else:
                self.wait(tag)

    def release(self, x):
        self.released.add(x)

    def stamp(self, name):
        if CFG['STAMPS'] == 'lite' and name not in ('start', 'pre_done', 'q_ok', 'k_done', 'o_stored', 'post_done', 'e3_ok', 'a_stored', 'w_ready', 'e4_ok', 'f_stored', 'end'):
            return
        if CFG['STAMPS'] == 'm' and name not in ('start', 'q_ok', 'softmax', 'v2', 'pv_done', 'o_stored', 'wm0', 'wm1', 'wm2', 'wm4', 'wm3', 'wm5', 'mod_landed', 'mod_ok', 'e4_ok', 'end'):
            return
        if CFG['STAMPS'] is True and name in ('v2', 'wm0', 'wm1', 'wm2', 'wm4', 'wm3', 'wm5'):
            return
        if CFG['STAMPS']:
            k = S_STAMP + self.nstamp
            assert k < 100
            self.e(f's_memrealtime s[100:101]\ns_waitcnt lgkmcnt(0)\ns_mov_b32 s{k}, s100')
            self.nstamp += 1
            self.stamp_names.append(name)

    def srd(self, d, p, nbytes):
        self.e(f's_mov_b32 s{d}, s{p}\ns_mov_b32 s{d + 1}, s{p + 1}\ns_mov_b32 s{d + 2}, {hex(nbytes)}\ns_mov_b32 s{d + 3}, 0x20000')

    def lane(self, dst, terms, const=0, sadd=None, tmp=None):
        first = True
        for sh, bits, mul in terms:
            t = dst if first else tmp
            assert t is not None
            if sh == 0 and bits >= 6:
                src = 'v1'
            elif sh == 0:
                self.e(f'v_and_b32 v{t}, {(1 << bits) - 1}, v1')
                src = f'v{t}'
            elif sh + bits >= 6:
                self.e(f'v_lshrrev_b32 v{t}, {sh}, v1')
                src = f'v{t}'
            else:
                self.e(f'v_bfe_u32 v{t}, v1, {sh}, {bits}')
                src = f'v{t}'
            if first:
                if mul & (mul - 1) == 0:
                    self.e(f'v_lshlrev_b32 v{dst}, {mul.bit_length() - 1}, {src}')
                else:
                    self.e(f'v_mul_u32_u24 v{dst}, {mul}, {src}')
            else:
                if mul & (mul - 1) == 0:
                    self.e(f'v_lshl_add_u32 v{dst}, {src}, {mul.bit_length() - 1}, v{dst}')
                else:
                    self.e(f'v_mul_u32_u24 v{t}, {mul}, {src}\nv_add_u32 v{dst}, v{t}, v{dst}')
            first = False
        if const:
            self.e(f'v_add_u32 v{dst}, {const}, v{dst}')
        if sadd is not None:
            self.e(f'v_add_u32 v{dst}, s{sadd}, v{dst}')

    def exec_set(self, mask):
        lo, hi = mask & 0xffffffff, mask >> 32
        self.e(f's_mov_b32 exec_lo, {hex(lo)}\ns_mov_b32 exec_hi, {hex(hi)}')

    def exec_all(self):
        self.e('s_mov_b64 exec, -1')

    def maxu(self, dst, regs):
        regs = list(regs)
        if len(regs) % 2 == 0:
            self.e(f'v_max_u32 v{dst}, v{regs[0]}, v{regs[1]}')
            regs = regs[2:]
        else:
            self.e(f'v_max3_u32 v{dst}, v{regs[0]}, v{regs[1]}, v{regs[2]}')
            regs = regs[3:]
        while regs:
            self.e(f'v_max3_u32 v{dst}, v{dst}, v{regs[0]}, v{regs[1]}')
            regs = regs[2:]

    def check_retry(self, issue, regs, tmp):
        ok, lp = self.lab('ok'), self.lab('retry')
        if len(regs) > 1:
            self.maxu(tmp, regs)
        else:
            tmp = regs[0]
        self.e(f'v_cmp_eq_u32 vcc, -1, v{tmp}\ns_cbranch_vccz {ok}\ns_mov_b32 s{S_SPIN}, 0\n{lp}:')
        issue()
        self.e('s_waitcnt vmcnt(0)')
        if len(regs) > 1:
            self.maxu(tmp, regs)
        self.e(f's_add_u32 s{S_SPIN}, s{S_SPIN}, 1\ns_cmp_ge_u32 s{S_SPIN}, {CFG["SPIN"]}\ns_cbranch_scc1 {ok}')
        self.e(f'v_cmp_eq_u32 vcc, -1, v{tmp}\ns_cbranch_vccnz {lp}\n{ok}:')

    def poll_masked(self, issuers, regs, tmp):
        n = len(issuers)
        lp, done = self.lab('poll'), self.lab('polldone')
        self.waitn(0)
        self.e(f's_mov_b32 s{S_VALID}, 0\ns_mov_b32 s{S_SPIN}, 0\n{lp}:')
        for t in range(n):
            sk = self.lab('pi')
            self.e(f's_bitcmp1_b32 s{S_VALID}, {t}\ns_cbranch_scc1 {sk}')
            issuers[t]()
            self.e(f'{sk}:')
        self.e('s_waitcnt vmcnt(0)')
        for t in range(n):
            sk = self.lab('pc')
            self.e(f's_bitcmp1_b32 s{S_VALID}, {t}\ns_cbranch_scc1 {sk}')
            self.maxu(tmp, regs[t])
            self.e(f'v_cmp_eq_u32 vcc, -1, v{tmp}\ns_cbranch_vccnz {sk}\ns_bitset1_b32 s{S_VALID}, {t}\n{sk}:')
        self.e(f's_add_u32 s{S_SPIN}, s{S_SPIN}, 1\ns_cmp_ge_u32 s{S_SPIN}, {CFG["SPIN"]}\ns_cbranch_scc1 {done}')
        self.e(f's_cmp_lg_u32 s{S_VALID}, {hex((1 << n) - 1)}\ns_cbranch_scc1 {lp}\n{done}:')

    def perm_chunk(self, raw, dst, pump_every=0):
        k = 0
        for c in range(4):
            for hi in range(2):
                for jj in range(4):
                    a, b = raw + 4 * (2 * jj) + c, raw + 4 * (2 * jj + 1) + c
                    sel = S_PHI if hi else S_PLO
                    self.e(f'v_perm_b32 v{dst + 4 * (2 * c + hi) + jj}, v{b}, v{a}, s{sel}')
                    k += 1
                    if pump_every and k % pump_every == 0:
                        self.fill()

    def unpack(self, src, d0, d1):
        self.e(f'v_lshlrev_b32 v{d0}, 16, v{src}\nv_and_b32 v{d1}, 0xffff0000, v{src}')

    def rnd2(self, a, b, t):
        self.e(f'v_cvt_pk_bf16_f32 v{t}, v{a}, v{b}')
        self.unpack(t, a, b)

    def rowsum(self, regs, steps):
        for st in steps:
            for r in regs:
                self.e(f'v_add_f32_dpp v{r}, v{r}, v{r} row_ror:{st} row_mask:0xf bank_mask:0xf')

    def swapred(self, op, which, regs, tmps):
        for r, t in zip(regs, tmps):
            self.e(f'v_mov_b32 v{t}, v{r}')
        for r, t in zip(regs, tmps):
            self.e(f'v_permlane{which}_swap_b32 v{r}, v{t}')
        for r, t in zip(regs, tmps):
            self.e(f'{op} v{r}, v{r}, v{t}')


LOG2E = 0x3fb8aa3b
AL_TERMS = [(5, 1, 2048), (0, 4, 16), (4, 1, 8)]
XA_TERMS = [(5, 1, 256), (0, 4, 16), (4, 1, 8)]


def layernorm(p, X, T, fix):
    s0, s1, t0, t1, m0, m1, ad = T[0], T[1], T[2], T[3], T[4], T[5], T[6]
    for q, s in ((0, s0), (1, s1)):
        x = X[4 * q:4 * q + 4]
        p.e(f'v_add_f32 v{s}, v{x[0]}, v{x[1]}\nv_add_f32 v{T[2 + q]}, v{x[2]}, v{x[3]}')
    p.e(f'v_add_f32 v{s0}, v{s0}, v{t0}\nv_add_f32 v{s1}, v{s1}, v{t1}')
    p.rowsum([s0, s1], (8, 4, 2, 1))
    p.swapred('v_add_f32', 16, [s0, s1], [t0, t1])
    A, B = T[8], T[10]
    assert A % 2 == 0 and B % 2 == 0 and T[9] == A + 1 and T[11] == B + 1
    p.e(f'v_mul_f32 v{A}, 0x3c000000, v{s0}\nv_mul_f32 v{B}, 0x3c000000, v{s1}')
    for q, mean in ((0, A), (1, B)):
        x = X[4 * q:4 * q + 4]
        p.e(f'v_sub_f32 v{t0}, v{x[0]}, v{mean}\nv_sub_f32 v{t1}, v{x[1]}, v{mean}')
        p.e(f'v_mul_f32 v{mean + 1}, v{t0}, v{t0}\nv_fmac_f32 v{mean + 1}, v{t1}, v{t1}')
        p.e(f'v_sub_f32 v{t0}, v{x[2]}, v{mean}\nv_sub_f32 v{t1}, v{x[3]}, v{mean}')
        p.e(f'v_fmac_f32 v{mean + 1}, v{t0}, v{t0}\nv_fmac_f32 v{mean + 1}, v{t1}, v{t1}')
    p.rowsum([A + 1, B + 1], (8, 4, 2, 1))
    p.swapred('v_add_f32', 16, [A + 1, B + 1], [t0, t1])
    p.e(f's_lshl_b32 s{S_T0}, s{S_WV}, 5\ns_add_u32 s{S_T0}, s{S_T0}, {L_STATS}')
    p.lane(ad, [(5, 1, 8)], sadd=S_T0)
    p.exec_set(0x0000000100000001)
    p.e(f'ds_write_b64 v{ad}, {vr(A, 2)}\nds_write_b64 v{ad}, {vr(B, 2)} offset:16')
    p.exec_all()
    p.lane(ad, [(0, 3, 32), (5, 1, 8)], const=L_STATS, tmp=t0)
    p.e('s_waitcnt lgkmcnt(0)\ns_barrier')
    p.e(f'ds_read_b64 {vr(A, 2)}, v{ad}\nds_read_b64 {vr(B, 2)}, v{ad} offset:16\ns_waitcnt lgkmcnt(0)')
    p.e(f'v_mov_b32 v{m0}, v{A}\nv_mov_b32 v{m1}, v{B}')
    p.rowsum([m0, m1], (4, 2, 1))
    p.e(f'v_mul_f32 v{m0}, 0x3e000000, v{m0}\nv_mul_f32 v{m1}, 0x3e000000, v{m1}')
    p.e(f'v_sub_f32 v{t0}, v{A}, v{m0}\nv_sub_f32 v{t1}, v{B}, v{m1}')
    p.e(f'v_mul_f32 v{s0}, 0x43000000, v{t0}\nv_mul_f32 v{s1}, 0x43000000, v{t1}')
    p.e(f'v_fmac_f32 v{A + 1}, v{s0}, v{t0}\nv_fmac_f32 v{B + 1}, v{s1}, v{t1}')
    p.rowsum([A + 1, B + 1], (4, 2, 1))
    p.rnd2(m0, m1, t0)
    p.e(f'v_mul_f32 v{s0}, 0x3a800000, v{A + 1}\nv_mul_f32 v{s1}, 0x3a800000, v{B + 1}')
    p.rnd2(s0, s1, t0)
    p.e(f'v_add_f32 v{s0}, 0x3727c5ac, v{s0}\nv_add_f32 v{s1}, 0x3727c5ac, v{s1}')
    p.rnd2(s0, s1, t0)
    p.e(f'v_sqrt_f32 v{s0}, v{s0}\nv_sqrt_f32 v{s1}, v{s1}')
    p.rnd2(s0, s1, t0)
    p.e(f'v_rcp_f32 v{A}, v{s0}\nv_rcp_f32 v{B}, v{s1}')
    for q, m, sd, ri in ((0, m0, s0, A), (1, m1, s1, B)):
        x = X[4 * q:4 * q + 4]
        for r in range(4):
            p.e(f'v_sub_f32 v{x[r]}, v{x[r]}, v{m}')
        p.rnd2(x[0], x[1], t0)
        p.rnd2(x[2], x[3], t1)
        for r in range(4):
            if fix:
                p.e(f'v_mul_f32 v{t0}, v{x[r]}, v{ri}\nv_fma_f32 v{x[r]}, -v{t0}, v{sd}, v{x[r]}\nv_fma_f32 v{x[r]}, v{x[r]}, v{ri}, v{t0}')
            else:
                p.e(f'v_mul_f32 v{x[r]}, v{x[r]}, v{ri}')
        p.rnd2(x[0], x[1], t0)
        p.rnd2(x[2], x[3], t1)


def modulate(p, X, C1, SH, T, out):
    a, b = T[0], T[1]
    for d in range(4):
        x0, x1 = X[2 * d], X[2 * d + 1]
        p.unpack(C1[d], a, b)
        p.e(f'v_mul_f32 v{x0}, v{x0}, v{a}\nv_mul_f32 v{x1}, v{x1}, v{b}')
        p.rnd2(x0, x1, a)
        p.unpack(SH[d], a, b)
        p.e(f'v_add_f32 v{x0}, v{x0}, v{a}\nv_add_f32 v{x1}, v{x1}, v{b}')
        p.e(f'v_cvt_pk_bf16_f32 v{out[d]}, v{x0}, v{x1}')


def one_plus(p, C, T):
    a, b = T[0], T[1]
    for c in C:
        p.unpack(c, a, b)
        p.e(f'v_add_f32 v{a}, 1.0, v{a}\nv_add_f32 v{b}, 1.0, v{b}\nv_cvt_pk_bf16_f32 v{c}, v{a}, v{b}')


def xa_base(p, s):
    p.e(f's_lshl_b32 s{s}, s{S_WV}, 10\ns_add_u32 s{s}, s{s}, {L_XA}')


def push_narrow_weights(p, tag0, pitch, raw0, raw1, vo, s_base, need=None):
    for u, raw in ((0, raw0), (1, raw1)):
        for jj in range(8):
            def fn(tag, u=u, raw=raw, jj=jj):
                p.e(f's_add_u32 s{S_T3}, s{s_base}, {(64 * u + jj) * pitch}')
                p.vmem(f'buffer_load_dwordx4 {vr(raw + 4 * jj)}, v{vo}, {sr(SRD_W, 4)}, s{S_T3} offen nt', tag)
            p.push(f'{tag0}{u}', fn, need[u] if need else None)


def narrow_setup(p, pitch, vo, s_base, s_col, tmp):
    p.lane(vo, [(3, 3, 8 * pitch), (0, 3, 16)], tmp=tmp)
    p.e(f's_mul_i32 s{s_base}, s{S_WV}, {128 * pitch}\ns_add_u32 s{s_base}, s{s_base}, s{s_col}')


def narrow_gemv(p, F0, F1, B, ACC, T, s_out):
    a0, a1, t0 = T[0], T[1], T[2]
    xa_base(p, S_T0)
    p.lane(a0, [(0, 2, 256), (4, 2, 32), (3, 1, 16)], sadd=S_T0, tmp=t0)
    p.e(f's_mov_b32 s{S_MASK}, 0x0f0f0f0f\ns_mov_b32 s{S_MASK + 1}, 0x0f0f0f0f\nv_mov_b32 v{t0}, {L_ZERO}')
    p.e(f'v_cndmask_b32 v{a1}, v{a0}, v{t0}, {sr(S_MASK)}\nv_cndmask_b32 v{a0}, v{t0}, v{a0}, {sr(S_MASK)}')
    for u in range(2):
        p.e(f'ds_read_b128 {vr(B + 8 * u)}, v{a0} offset:{128 * u}\nds_read_b128 {vr(B + 8 * u + 4)}, v{a1} offset:{128 * u}')
    p.e(f's_lshl_b32 s{S_T0}, s{S_WV}, 11\ns_add_u32 s{S_T0}, s{S_T0}, {L_RED}')
    p.lane(a0, [(5, 1, 1024), (0, 2, 256), (2, 1, 128), (4, 1, 16)], sadd=S_T0, tmp=t0)
    p.e('s_waitcnt lgkmcnt(0)')
    for u, F in ((0, F0), (1, F1)):
        for e in range(8):
            acc = vr(ACC + 4 * (e & 3))
            c = '0' if (u == 0 and e < 4) else acc
            p.e(f'v_mfma_f32_16x16x32_bf16 {acc}, {vr(F + 4 * e)}, {vr(B + 8 * u + 4 * (e >> 2))}, {c}')
        p.fill()
    p.exec_set(0xff00ff0000ff00ff)
    for a in range(4):
        p.e(f'ds_write_b128 v{a0}, {vr(ACC + 4 * a)} offset:{32 * a}')
    p.exec_all()
    p.e(f's_lshl_b32 s{S_T0}, s{S_WV}, 8\ns_add_u32 s{S_T0}, s{S_T0}, {L_RED}')
    p.lane(a1, [(2, 1, 128), (0, 2, 32), (5, 1, 16), (3, 2, 4)], sadd=S_T0, tmp=t0)
    p.fill()
    p.e('s_waitcnt lgkmcnt(0)\ns_barrier')
    sk = p.lab('fin')
    p.e(f's_cmp_ge_u32 s{S_WV}, 4\ns_cbranch_scc1 {sk}')
    for k in range(8):
        p.e(f'ds_read2st64_b32 {vr(B + 2 * k, 2)}, v{a1} offset0:{8 * k} offset1:{8 * k + 4}')
    so, stride = s_out
    p.e(f's_mul_i32 s{S_T0}, s{S_WV}, {stride}\ns_add_u32 s{S_T0}, s{S_T0}, s{so}\nv_lshlrev_b32 v{a0}, 1, v1\ns_waitcnt lgkmcnt(0)')
    for w in (8, 4, 2, 1):
        for k in range(w):
            p.e(f'v_add_f32 v{B + k}, v{B + k}, v{B + k + w}')
    p.e(f'v_mov_b32_dpp v{B + 1}, v{B} quad_perm:[1,1,3,3] row_mask:0xf bank_mask:0xf')
    p.e(f'v_cvt_pk_bf16_f32 v{ACC}, v{B}, v{B + 1}')
    for k in (1, 2, 3):
        p.e(f'v_mov_b32_dpp v{ACC + k}, v{ACC} row_shl:{2 * k} row_mask:0xf bank_mask:0xf')
    p.exec_set(0x0101010101010101)
    p.e(f'buffer_store_dwordx4 {vr(ACC)}, v{a0}, {sr(SRD_WS, 4)}, s{S_T0} offen sc1')
    p.exec_all()
    p.e(f'{sk}:')


def push_al_loads(p, tag, srd, dst, vo, s_base, flags=''):
    def issue(model=True):
        for q in range(2):
            p.e(f's_add_u32 s{S_T3}, s{s_base}, {4096 * q}')
            s = f'buffer_load_dwordx2 {vr(dst + 2 * q, 2)}, v{vo}, {sr(srd, 4)}, s{S_T3} offen {flags}'
            p.vmem(s, tag) if model else p.e(s)
    if tag is not None:
        p.push(tag, lambda t: issue())
    return issue


def silu_to_xa(p, C, T, wa):
    a, b, ea, eb = T[0], T[1], T[2], T[3]
    xa_base(p, S_T0)
    p.lane(wa, XA_TERMS, sadd=S_T0, tmp=a)
    for d in range(4):
        p.unpack(C + d, a, b)
        p.e(f'v_mul_f32 v{ea}, {hex(LOG2E | 0x80000000)}, v{a}\nv_mul_f32 v{eb}, {hex(LOG2E | 0x80000000)}, v{b}')
        p.e(f'v_exp_f32 v{ea}, v{ea}\nv_exp_f32 v{eb}, v{eb}')
        p.e(f'v_add_f32 v{ea}, 1.0, v{ea}\nv_add_f32 v{eb}, 1.0, v{eb}')
        p.e(f'v_rcp_f32 v{T[4]}, v{ea}\nv_rcp_f32 v{T[5]}, v{eb}')
        p.e(f'v_mul_f32 v{T[6]}, v{a}, v{T[4]}\nv_mul_f32 v{T[7]}, v{b}, v{T[5]}')
        p.e(f'v_cvt_pk_bf16_f32 v{C + d}, v{T[6]}, v{T[7]}')
    p.e(f'ds_write_b64 v{wa}, {vr(C, 2)}\nds_write_b64 v{wa}, {vr(C + 2, 2)} offset:512')


R_Q, R_S, R_V01, R_K = 16, 32, 64, 128
R_P0, R_P1, R_ACC = 16, 32, 48
VCH = [64, 96, 128, 160]


def entry(p):
    p.e(f'''
    s_cmp_ge_u32 s2, 256
    s_cbranch_scc1 L_end
    s_load_dwordx16 s[32:47], s[0:1], 0
    s_load_dwordx8 s[48:55], s[0:1], 64
    s_load_dwordx4 s[56:59], s[0:1], 96
    v_lshrrev_b32 v2, 6, v0
    v_and_b32 v1, 63, v0
    s_lshr_b32 s{S_W8}, s2, 3
    v_readfirstlane_b32 s{S_WV}, v2
    v_lshlrev_b32 v0, 4, v1
    s_getpc_b64 s[60:61]
    L_pc:
    s_lshl_b32 s62, s{S_W8}, 3
    s_add_u32 s62, s62, s{S_WV}
    s_lshl_b32 s62, s62, 10
    s_min_u32 s62, s62, L_code_end-{NAME}_kernel-1024
    s_sub_u32 s60, s60, L_pc-{NAME}_kernel
    s_subb_u32 s61, s61, 0
    s_add_u32 s60, s60, s62
    s_addc_u32 s61, s61, 0''')
    p.vmem('global_load_dwordx4 v[252:255], v0, s[60:61]', 'code')
    p.e(f'''
    s_add_u32 s{S_ROT}, s{S_W8}, s{S_WV}
    s_and_b32 s{S_ROT}, s{S_ROT}, 7
    s_lshl_b32 s{S_ROT}, s{S_ROT}, 12
    s_lshl_b32 s{S_KV}, s2, 18
    s_add_u32 s{S_KV}, s{S_KV}, s{S_ROT}
    s_mov_b32 s{SRD_K + 2}, 0x4000000
    s_mov_b32 s{SRD_K + 3}, 0x20000
    s_sub_u32 s62, s2, 120
    s_cmp_lt_u32 s62, 64
    s_cbranch_scc1 L_class_Q
    s_cmp_lt_u32 s62, 72
    s_cbranch_scc1 L_class_P
    s_cmp_lt_u32 s62, 80
    s_cbranch_scc1 L_class_PM
    s_cmp_lt_u32 s62, 96
    s_cbranch_scc1 L_class_PR''')
    p.vm_pre = list(p.vm)
    got_args(p)
    for j in range(4):
        p.vmem(f'buffer_load_dwordx4 {vr(R_K + 4 * j)}, v0, {sr(SRD_K, 4)}, s{S_KV} offen offset:{1024 * j} nt', 'K0')
    p.e(f'''
    s_cmp_lt_u32 s2, 64
    s_cbranch_scc1 L_class_O
    s_cmp_lt_u32 s2, 120
    s_cbranch_scc1 L_class_M
    s_branch L_class_R''')


def got_args(p):
    p.e(f's_waitcnt lgkmcnt(0)\ns_mov_b32 s{SRD_K}, s{P_K}\ns_mov_b32 s{SRD_K + 1}, s{P_K + 1}')


def common_setup(p):
    p.stamp('start')
    if CFG['DBGOUT']:
        p.e('s_memtime s[100:101]\ns_waitcnt lgkmcnt(0)\ns_mov_b32 s99, s100')
    p.srd(SRD_WS, P_WS, WS_BYTES)
    p.e('v_mov_b32 v4, -1\nv_mov_b32 v5, -1\nv_mov_b32 v6, -1\nv_mov_b32 v7, -1')


def common_setup2(p):
    p.srd(SRD_V, P_V, 0x4000000)
    p.srd(SRD_D, P_DBG, 256)
    p.e(f's_mov_b32 s{S_PLO}, 0x05040100\ns_mov_b32 s{S_PHI}, 0x07060302')


def clear_rows(p, s_off, stride, nb):
    lanes = nb // 16
    sh = lanes.bit_length() - 1
    p.lane(2, [(sh, 2, stride), (0, sh, 16)], tmp=3)
    if lanes * 4 < 64:
        p.exec_set((1 << (lanes * 4)) - 1)
    p.e(f'buffer_store_dwordx4 v[4:7], v2, {sr(SRD_WS, 4)}, s{s_off} offen sc1')
    p.exec_all()


def clears(p, role):
    sk = p.lab('clr')
    p.e(f's_cmp_lg_u32 s{S_WV}, 0\ns_cbranch_scc1 {sk}\ns_setprio 3')
    role()
    p.e(f's_lshl_b32 s{S_T0}, s2, 11\ns_add_u32 s{S_T0}, s{S_T0}, {WS_OP}')
    p.e(f'buffer_store_dwordx4 v[4:7], v0, {sr(SRD_WS, 4)}, s{S_T0} offen sc1')
    p.e(f'buffer_store_dwordx4 v[4:7], v0, {sr(SRD_WS, 4)}, s{S_T0} offen offset:1024 sc1')
    p.e(f's_lshl_b32 s{S_T0}, s2, 7\ns_add_u32 s{S_T0}, s{S_T0}, {WS_ML}')
    p.exec_set(0xff)
    p.e(f'buffer_store_dwordx4 v[4:7], v0, {sr(SRD_WS, 4)}, s{S_T0} offen sc1')
    p.exec_all()
    p.e(f'v_mov_b32 v8, 0\nv_mov_b32 v9, 0\nv_lshlrev_b32 v2, 3, v1\nds_write_b64 v2, v[8:9] offset:{L_ZERO}\nds_write_b32 v8, v8 offset:{L_CNT}')
    p.e(f's_setprio 0\n{sk}:')
    p.nclear = len(p.vm)


def count_b(p):
    sk = p.lab('arr')
    p.e(f's_cmp_lg_u32 s{S_WV}, 0\ns_cbranch_scc1 {sk}\ns_mov_b32 s{S_T0}, 1')
    p.e(f's_atomic_add s{S_T0}, {sr(P_DBG)}, 0\n{sk}:')


def arrive(p, off):
    sk = p.lab('arr')
    p.e(f's_cmp_lg_u32 s{S_WV}, 0\ns_cbranch_scc1 {sk}')
    p.e(f's_waitcnt vmcnt({len(p.vm) - p.nclear}) lgkmcnt(0)')
    p.stamp('arrived')
    for o in off:
        p.e(f's_mov_b32 s{S_T0}, 1\ns_atomic_add s{S_T0}, {sr(P_DBG)}, {o}')
    p.e(f'{sk}:\ns_barrier')


def push_cnt(p, dst, tag='CNT', off=0):
    p.push(tag, lambda t: p.vmem(f'buffer_load_dword v{dst}, off, {sr(SRD_D, 4)}, 0 offset:{off} sc1', t))


def check_cnt(p, dst, tag='CNT', off=0, total=256):
    p.need(tag)
    ok, lp = p.lab('cok'), p.lab('cretry')
    p.e(f'v_readfirstlane_b32 s{S_T0}, v{dst}\ns_mov_b32 s{S_SPIN}, 0\ns_cmp_ge_u32 s{S_T0}, {total}\ns_cbranch_scc1 {ok}\n{lp}:')
    p.e(f'buffer_load_dword v{dst}, off, {sr(SRD_D, 4)}, 0 offset:{off} sc1\ns_waitcnt vmcnt(0)\nv_readfirstlane_b32 s{S_T0}, v{dst}')
    p.e(f's_add_u32 s{S_SPIN}, s{S_SPIN}, 1\ns_cmp_ge_u32 s{S_SPIN}, {CFG["SPIN"]}\ns_cbranch_scc1 {ok}')
    p.e(f's_cmp_lt_u32 s{S_T0}, {total}\ns_cbranch_scc1 {lp}\n{ok}:')
    p.release(tag.lower())


def push_page(p, srd, tag, page, dst, need=None):
    for j in range(4):
        def fn(t, j=j):
            if j == 0 or True:
                p.e(f's_add_u32 s{S_T3}, s{S_KV}, {page * 32768}')
            p.vmem(f'buffer_load_dwordx4 {vr(dst + 4 * j)}, v0, {sr(srd, 4)}, s{S_T3} offen offset:{1024 * j} nt', t)
        p.push(tag, fn, need)


def push_k(p, t):
    push_page(p, SRD_K, f'K{t}', t, R_K + 16 * t)


def push_v(p, u, need=None):
    push_page(p, SRD_V, f'V{u}', 2 * u, VCH[u], need)
    push_page(p, SRD_V, f'V{u}', 2 * u + 1, VCH[u] + 16, need)


def k_setup(p):
    p.e(f's_lshl_b32 s{S_T0}, s{S_WV}, 12')
    p.e(f'v_lshrrev_b32 v6, 4, v1\nv_lshlrev_b32 v7, 2, v6\nv_xor_b32 v7, v7, v1\nv_and_b32 v7, 15, v7\nv_lshlrev_b32 v7, 4, v7')
    p.e(f'v_lshl_add_u32 v2, v6, 8, v7\nv_add_u32 v2, s{S_T0}, v2')
    for j in (1, 2, 3):
        p.e(f'v_xor_b32 v{2 + j}, {16 * j}, v2')
    p.e(f'v_xor_b32 v7, v6, v1\nv_and_b32 v7, 15, v7\nv_lshlrev_b32 v7, 4, v7')
    p.e(f'v_and_b32 v8, 3, v1\nv_lshl_add_u32 v7, v8, 10, v7\nv_bfe_u32 v8, v1, 2, 2\nv_lshl_add_u32 v7, v8, 8, v7\nv_add_u32 v6, s{S_T0}, v7')
    for m in (1, 2, 3):
        p.e(f'v_xor_b32 v{6 + m}, {64 * m}, v6')


def k_trans(p, t):
    p.need(f'K{t}')
    for j in range(4):
        p.e(f'ds_write_b128 v{2 + j}, {vr(R_K + 16 * t + 4 * j)} offset:{1024 * j}')
    for m in range(4):
        p.e(f'ds_read_b128 {vr(R_K + 16 * t + 4 * m)}, v{6 + m}')


def q_loads(p, vo):
    def issue(model):
        for m in range(4):
            s = f'buffer_load_dwordx4 {vr(R_Q + 4 * m)}, v{vo}, {sr(SRD_WS, 4)}, s{S_U + 3} offen offset:{64 * m} sc1'
            p.vmem(s, 'Q') if model else p.e(s)
    return issue


def push_q(p, vo):
    def fn(t):
        p.e(f's_lshr_b32 s{S_U + 3}, s2, 4\ns_lshl_b32 s{S_U + 3}, s{S_U + 3}, 11\ns_add_u32 s{S_U + 3}, s{S_U + 3}, {WS_Q}')
        p.lane(vo, [(0, 3, 256), (4, 2, 16)], tmp=R_Q)
        q_loads(p, vo)(True)
    p.push('Q', fn, 'cnt')


def qk_softmax(p, vo_q):
    p.need('Q')
    p.check_retry(lambda: q_loads(p, vo_q)(False), list(range(R_Q, R_Q + 16)), 10)
    p.e('s_waitcnt lgkmcnt(0)')
    p.stamp('q_ok')
    for t in range(8):
        for m in range(4):
            s = vr(R_S + 4 * t)
            p.e(f'v_mfma_f32_16x16x32_bf16 {s}, {vr(R_K + 16 * t + 4 * m)}, {vr(R_Q + 4 * m)}, {"0" if m == 0 else s}')
        if t == 1:
            p.release('K01')
            p.burst(2)
        if t == 7:
            p.release('K47')
            p.burst(CFG['BURST'])
    T = 2
    for t in range(8):
        x = R_S + 4 * t
        for h in (0, 2):
            p.rnd2(x + h, x + h + 1, T + h // 2)
        for r in range(4):
            p.e(f'v_mul_f32 v{x + r}, 0x3db504f3, v{x + r}')
        for h in (0, 2):
            p.rnd2(x + h, x + h + 1, T + h // 2)
        if t == 0:
            p.e(f'v_max_f32 v4, v{x}, v{x + 1}')
        else:
            p.e(f'v_max3_f32 v4, v4, v{x}, v{x + 1}')
        p.e(f'v_max3_f32 v4, v4, v{x + 2}, v{x + 3}')
        if t % 2:
            p.fill()
    p.W += CFG['BURST'] - 2
    p.pump(2)
    p.W -= CFG['BURST'] - 2
    p.swapred('v_max_f32', 16, [4], [5])
    p.swapred('v_max_f32', 32, [4], [5])
    p.e(f'v_mul_f32 v6, {hex(LOG2E | 0x80000000)}, v4\ns_mov_b32 s{S_T0}, {hex(LOG2E)}')
    p.e(f's_mov_b32 s{S_MASK}, 0x00ff00ff\ns_mov_b32 s{S_MASK + 1}, 0x00ff00ff\nv_mov_b32 v5, 0')
    for t in range(8):
        x = R_S + 4 * t
        for r in range(4):
            p.e(f'v_fma_f32 v{x + r}, v{x + r}, s{S_T0}, v6')
        for r in range(4):
            p.e(f'v_exp_f32 v{x + r}, v{x + r}')
        p.e(f'v_add_f32 v7, v{x}, v{x + 1}\nv_add_f32 v8, v{x + 2}, v{x + 3}')
        p.e(f'v_cvt_pk_bf16_f32 v2, v{x}, v{x + 1}\nv_cvt_pk_bf16_f32 v3, v{x + 2}, v{x + 3}')
        p.e(f'v_add_f32 v5, v5, v7\nv_add_f32 v5, v5, v8')
        for d in range(2):
            p.e(f'v_cndmask_b32 v{R_P0 + 2 * t + d}, 0, v{2 + d}, {sr(S_MASK)}')
            p.e(f'v_cndmask_b32 v{R_P1 + 2 * t + d}, v{2 + d}, 0, {sr(S_MASK)}')
        if t % 2:
            p.fill()
    p.swapred('v_add_f32', 16, [5], [6])
    p.swapred('v_add_f32', 32, [5], [6])
    p.e(f's_lshl_b32 s{S_T0}, s{S_WV}, 6\ns_add_u32 s{S_T0}, s{S_T0}, {L_MLW}\nv_lshlrev_b32 v6, 3, v1\nv_add_u32 v7, s{S_T0}, v6')
    p.e(f'v_mov_b32 v8, 1\nv_mov_b32 v9, {L_CNT}')
    p.exec_set(0xff)
    p.e('ds_write_b64 v7, v[4:5]\ns_mov_b64 exec, 1\nds_add_rtn_u32 v8, v9, v8')
    p.exec_all()
    sk = p.lab('ml')
    p.e(f's_waitcnt lgkmcnt(0)\nv_readfirstlane_b32 s{S_T0}, v8\ns_cmp_lg_u32 s{S_T0}, 7\ns_cbranch_scc1 {sk}')
    p.e(f'ds_read_b64 v[8:9], v6 offset:{L_MLW}\ns_waitcnt lgkmcnt(0)')
    ml_combine(p, 8, 9, 2, 3, 7)
    p.e(f's_lshl_b32 s{S_T0}, s2, 7\ns_add_u32 s{S_T0}, s{S_T0}, {WS_ML}')
    p.exec_set(0xff)
    p.e(f'buffer_store_dwordx2 v[2:3], v6, {sr(SRD_WS, 4)}, s{S_T0} offen sc1')
    p.exec_all()
    p.e(f'{sk}:')
    p.stamp('softmax')


def ml_combine(p, m, l, M, L, t):
    p.e(f'v_max_f32_dpp v{M}, v{m}, v{m} row_ror:8 row_mask:0xf bank_mask:0xf')
    p.swapred('v_max_f32', 16, [M], [t])
    p.swapred('v_max_f32', 32, [M], [t])
    p.e(f'v_sub_f32 v{t}, v{m}, v{M}\nv_mul_f32 v{t}, {hex(LOG2E)}, v{t}\nv_exp_f32 v{t}, v{t}\nv_mul_f32 v{L}, v{l}, v{t}')
    p.e(f'v_add_f32_dpp v{L}, v{L}, v{L} row_ror:8 row_mask:0xf bank_mask:0xf')
    p.swapred('v_add_f32', 16, [L], [t])
    p.swapred('v_add_f32', 32, [L], [t])


def pv_chunk(p, u, T):
    p.need(f'V{u}')
    raw = VCH[u]
    for c in range(4):
        tb = T + 8 * (c & 1)
        for hi in range(2):
            for jj in range(4):
                a, b = raw + 4 * (2 * jj) + c, raw + 4 * (2 * jj + 1) + c
                p.e(f'v_perm_b32 v{tb + 4 * hi + jj}, v{b}, v{a}, s{S_PHI if hi else S_PLO}')
        for hi in range(2):
            e = 2 * c + hi
            acc = vr(R_ACC + 4 * (e & 3))
            cc = '0' if (u == 0 and e < 4) else acc
            pb = (R_P0 if e < 4 else R_P1) + 4 * u
            p.e(f'v_mfma_f32_16x16x32_bf16 {acc}, {vr(tb + 4 * hi)}, {vr(pb)}, {cc}')
        p.fill()


def ml_loads(p):
    def issue(model):
        for k in range(2):
            s = f'buffer_load_dwordx2 {vr(6 + 2 * k, 2)}, v2, {sr(SRD_WS, 4)}, s{S_U + 3} offen offset:{1024 * k} sc1'
            p.vmem(s, 'ML') if model else p.e(s)
    return issue


def push_ml(p):
    def fn(t):
        p.e(f's_lshr_b32 s{S_U + 3}, s2, 4\ns_lshl_b32 s{S_U + 3}, s{S_U + 3}, 11\ns_add_u32 s{S_U + 3}, s{S_U + 3}, {WS_ML}')
        p.lane(2, [(3, 3, 128), (0, 3, 8)], tmp=3)
        ml_loads(p)(True)
    p.push('ML', fn, 'sm')


def ml_scale(p):
    p.need('ML')
    p.check_retry(lambda: ml_loads(p)(False), [6, 7, 8, 9], 3)
    p.e(f'''v_max_f32 v3, v6, v8
    v_sub_f32 v6, v6, v3
    v_sub_f32 v8, v8, v3
    v_mul_f32 v6, {hex(LOG2E)}, v6
    v_mul_f32 v8, {hex(LOG2E)}, v8
    v_exp_f32 v6, v6
    v_exp_f32 v8, v8
    v_mul_f32 v7, v7, v6
    v_fmac_f32 v7, v9, v8''')
    ml_combine(p, 3, 7, 6, 8, 9)
    p.e(f'v_sub_f32 v4, v4, v6\nv_mul_f32 v4, {hex(LOG2E)}, v4\nv_exp_f32 v4, v4\nv_rcp_f32 v8, v8\nv_mul_f32 v5, v4, v8')
    p.e(f's_mul_i32 s{S_T0}, s{S_WV}, 4864\ns_add_u32 s{S_T0}, s{S_T0}, {L_OPART}')
    p.lane(6, [(0, 3, 592), (4, 2, 144), (3, 1, 64)], sadd=S_T0, tmp=3)
    p.e(f's_mul_i32 s{S_T0}, s{S_WV}, 592\ns_add_u32 s{S_T0}, s{S_T0}, {L_OPART}')
    p.lane(7, [(4, 2, 144), (1, 1, 64), (0, 1, 32), (2, 2, 4)], sadd=S_T0, tmp=3)
    p.e('v_add_u32 v8, 16, v7\nv_lshlrev_b32 v9, 2, v1')
    p.e(f's_lshl_b32 s{S_U + 3}, s2, 11\ns_lshl_b32 s{S_T1}, s{S_WV}, 8\ns_add_u32 s{S_U + 3}, s{S_U + 3}, s{S_T1}\ns_add_u32 s{S_U + 3}, s{S_U + 3}, {WS_OP}')


def quad_pack_store(p, D, vo, s_off):
    for k in (1, 2, 3):
        p.e(f'v_mov_b32_dpp v{D + k}, v{D} quad_perm:[{k},{k},{k},{k}] row_mask:0xf bank_mask:0xf')
    p.exec_set(0x1111111111111111)
    p.vmem(f'buffer_store_dwordx4 {vr(D)}, v{vo}, {sr(SRD_WS, 4)}, s{s_off} offen sc1', 'st')
    p.exec_all()


def attn_epilogue(p):
    for k in range(16):
        p.e(f'v_mul_f32 v{R_ACC + k}, v5, v{R_ACC + k}')
        if k % 4 == 3:
            p.e(f'ds_write_b128 v6, {vr(R_ACC + k - 3)} offset:{16 * (k // 4)}')
    p.e('s_waitcnt lgkmcnt(0)\ns_barrier')
    B = R_P0
    for k in range(4):
        p.e(f'ds_read2st64_b32 {vr(B + 2 * k, 2)}, v7 offset0:{38 * k} offset1:{38 * k + 19}')
        p.e(f'ds_read2st64_b32 {vr(B + 8 + 2 * k, 2)}, v8 offset0:{38 * k} offset1:{38 * k + 19}')
    p.e('s_waitcnt lgkmcnt(0)')
    for w in (4, 2, 1):
        for h in (0, 8):
            for k in range(w):
                p.e(f'v_add_f32 v{B + h + k}, v{B + h + k}, v{B + h + k + w}')
    p.e(f'v_cvt_pk_bf16_f32 v{B + 4}, v{B}, v{B + 8}')
    quad_pack_store(p, B + 4, 9, S_U + 3)
    p.stamp('o_stored')


def selectors(p, SA, t):
    p.e(f'v_and_b32 v{t}, 1, v1\nv_cmp_eq_u32 vcc, 1, v{t}\nv_mov_b32 v{t}, 0x3f80\nv_mov_b32 v{t + 1}, 1.0')
    p.e(f'v_cndmask_b32 v{t}, v{t}, v{t + 1}, vcc\nv_bfe_u32 v{t + 1}, v1, 1, 3')
    for d in range(8):
        p.e(f'v_cmp_eq_u32 vcc, {d}, v{t + 1}\nv_cndmask_b32 v{SA + d}, 0, v{t}, vcc')


def wide_b_addrs(p, A, base_terms, s_base, const, t):
    p.lane(t, base_terms, const=const, sadd=s_base, tmp=A)
    p.e(f'v_mov_b32 v{t + 1}, {L_ZERO}')
    for j in range(4):
        m = 0x11111111 << j
        p.e(f's_mov_b32 s{S_MASK}, {hex(m)}\ns_mov_b32 s{S_MASK + 1}, {hex(m)}')
        p.e(f'v_cndmask_b32 v{A + j}, v{t + 1}, v{t}, {sr(S_MASK)}')


def push_wide_rows(p, tag, raw, vo, s_base, row0, need=None):
    for jj in range(8):
        def fn(t, jj=jj):
            p.e(f's_add_u32 s{S_T3}, s{s_base}, {(row0 + (jj & ~1)) * 2048}')
            p.vmem(f'buffer_load_dwordx4 {vr(raw + 4 * jj)}, v{vo}, {sr(SRD_W, 4)}, s{S_T3} offen offset:{2048 * (jj & 1)} nt', t)
        p.push(tag, fn, need)


RED_W = [(2, 2, 656), (4, 2, 144), (0, 2, 32)]


def finish(p):
    if CFG['DBGOUT']:
        p.stamp('end')
        sk = p.lab('dbg')
        p.e(f's_cmp_lg_u32 s{S_WV}, 0\ns_cbranch_scc1 {sk}')
        sk2 = p.lab('dbg')
        p.e(f's_cmp_lg_u32 s2, 64\ns_cbranch_scc1 {sk2}\ns_memtime s[100:101]\ns_waitcnt lgkmcnt(0)\ns_sub_u32 s100, s100, s99')
        p.e(f's_atomic_umax s100, {sr(P_DBG)}, 56\ns_sub_u32 s{S_T0}, s{S_STAMP + p.nstamp - 1}, s{S_STAMP}\ns_atomic_umax s{S_T0}, {sr(P_DBG)}, 60\n{sk2}:')
        slots = ['start', 'pre_done', 'k_done', 'q_ok', 'o_stored', 'e3_ok', 'a_stored', 'w_ready', 'e4_ok', 'f_stored', 'end']
        p.e(f's_not_b32 s{S_T0}, s{S_STAMP}\ns_atomic_umax s{S_T0}, {sr(P_DBG)}, 4')
        for k, n in enumerate(p.stamp_names):
            if n in slots:
                p.e(f's_atomic_umax s{S_STAMP + k}, {sr(P_DBG)}, {8 + 4 * slots.index(n)}')
        p.e(f'{sk}:')
    elif CFG['STAMPS']:
        p.e(f's_lshl_b32 s{S_T0}, s2, 3\ns_add_u32 s{S_T0}, s{S_T0}, s{S_WV}\ns_lshl_b32 s{S_T0}, s{S_T0}, 7\ns_add_u32 s{S_T0}, s{S_T0}, {WS_STAMP}')
        p.stamp('end')
        p.e('s_mov_b64 exec, 1\nv_mov_b32 v2, 0')
        for k in range(p.nstamp):
            p.e(f'v_mov_b32 v3, s{S_STAMP + k}\nbuffer_store_dword v3, v2, {sr(SRD_WS, 4)}, s{S_T0} offen offset:{4 * k}')
    p.e('s_endpgm')


def mod_unit_setup(p, s_unit, s_col, s_out):
    p.e(f's_lshl_b32 s{s_col}, s{s_unit}, 7')
    p.e(f's_lshr_b32 s{s_out}, s{s_unit}, 4\ns_lshl_b32 s{s_out}, s{s_out}, 13\ns_and_b32 s{S_T0}, s{s_unit}, 15')
    p.e(f's_lshl_b32 s{S_T0}, s{S_T0}, 7\ns_add_u32 s{s_out}, s{s_out}, s{S_T0}')
    if WS_MOD:
        p.e(f's_add_u32 s{s_out}, s{s_out}, {WS_MOD}')


def capture(p, fn):
    old, p.stream = p.stream, deque()
    fn()
    items, p.stream = list(p.stream), old
    return items


def weave(a, b, lead=0):
    out, a, b = [], list(a), list(b)
    out += b[:lead]
    b = b[lead:]
    while a or b:
        if b:
            out.append(b.pop(0))
        if a:
            out.append(a.pop(0))
    return out


def push_c3(p, tag, ptr, nbytes, wbase, n, first=0, dst=252):
    def setup(t):
        p.srd(SRD_A, ptr, nbytes)
        p.e(f's_sub_u32 s{S_T2}, s2, {wbase}\ns_lshl_b32 s{S_T2}, s{S_T2}, 3\ns_add_u32 s{S_T2}, s{S_T2}, s{S_WV}')
        p.e(f's_mul_i32 s{S_T2}, s{S_T2}, {n * 8192}\ns_add_u32 s{S_T2}, s{S_T2}, {first * 8192 + 384}')
        p.lane(15, [(3, 3, 1024), (0, 3, 16)], tmp=dst)
        for k in range(n):
            if k:
                p.e(f's_add_u32 s{S_T2}, s{S_T2}, 8192')
            p.vmem(f'buffer_load_dwordx4 {vr(dst)}, v15, {sr(SRD_A, 4)}, s{S_T2} offen', t)
    p.push(tag, setup)


def push_c3mod(p, dst=252):
    def fn(t):
        p.srd(SRD_A, P_WMOD, 1024 * 12288)
        p.e(f's_sub_u32 s{S_T2}, s2, 120\ns_lshl_b32 s{S_T2}, s{S_T2}, 3\ns_add_u32 s{S_T2}, s{S_T2}, s{S_WV}')
        p.e(f's_lshr_b32 s{S_T3}, s{S_T2}, 7\ns_lshl_b32 s{S_T3}, s{S_T3}, 10\ns_and_b32 s{S_T2}, s{S_T2}, 127')
        p.e(f's_mul_i32 s{S_T2}, s{S_T2}, {8 * 12288}\ns_add_u32 s{S_T2}, s{S_T2}, s{S_T3}\ns_add_u32 s{S_T2}, s{S_T2}, 4096')
        p.lane(15, [(3, 3, 12288), (0, 3, 16)], tmp=dst)
        p.vmem(f'buffer_load_dwordx4 {vr(dst)}, v15, {sr(SRD_A, 4)}, s{S_T2} offen offset:384', t)
        p.e(f's_add_u32 s{S_T2}, s{S_T2}, 4096')
        p.vmem(f'buffer_load_dwordx4 {vr(dst)}, v15, {sr(SRD_A, 4)}, s{S_T2} offen offset:384', t)
    p.push('c3', fn)


def push_hpr(p, dst=252):
    def fn(t):
        p.srd(SRD_A, P_WMOD, 1024 * 12288)
        p.e(f's_sub_u32 s{S_T2}, s2, 120\ns_lshl_b32 s{S_T2}, s{S_T2}, 3\ns_add_u32 s{S_T2}, s{S_T2}, s{S_WV}')
        p.e(f's_mul_i32 s{S_T2}, s{S_T2}, 12288\ns_add_u32 s{S_T2}, s{S_T2}, 9216')
        for k in range(3):
            p.vmem(f'buffer_load_dwordx4 {vr(dst)}, v0, {sr(SRD_A, 4)}, s{S_T2} offen offset:{1024 * k}', t)
    p.push('hpr', fn)


def rewarm(p, label, n, dst):
    if not CFG['REWARM']:
        return
    here = p.lab('pc')
    p.e(f's_getpc_b64 s[{S_T0}:{S_T1}]\n{here}:\ns_lshl_b32 s{S_T2}, s{S_WV}, 10\ns_add_u32 s{S_T2}, s{S_T2}, ({label}-{here})&0xfffffff0')
    p.e(f's_min_u32 s{S_T2}, s{S_T2}, (L_code_end-{here}-{1024 + 8192 * (n - 1)})&0xfffffff0')
    p.e(f's_and_b32 s{S_T0}, s{S_T0}, 0xfffffff0\ns_add_u32 s{S_T0}, s{S_T0}, s{S_T2}\ns_addc_u32 s{S_T1}, s{S_T1}, 0')
    for k in range(n):
        if k:
            p.e(f's_add_u32 s{S_T0}, s{S_T0}, 8192\ns_addc_u32 s{S_T1}, s{S_T1}, 0')
        p.vmem(f'global_load_dwordx4 {vr(dst)}, v0, s[{S_T0}:{S_T1}]', 'code')


def h5_prefetch(p, hbase):
    D = 252
    p.e(f's_sub_u32 s{S_T0}, s2, {hbase}')
    p.e(f's_cmp_ge_u32 s{S_T0}, 56\ns_cselect_b32 s{SRD_W}, s{P_W3}, s{P_W1}\ns_cselect_b32 s{SRD_W + 1}, s{P_W3 + 1}, s{P_W1 + 1}')
    p.e(f's_cselect_b32 s{S_T1}, 56, 0\ns_sub_u32 s{S_T1}, s{S_T0}, s{S_T1}')
    p.e(f's_mov_b32 s{SRD_W + 2}, {1024 * 7168}\ns_mov_b32 s{SRD_W + 3}, 0x20000')
    p.srd(SRD_A, P_W2, 3584 * 2048)
    p.e(f's_mul_i32 s{S_T2}, s{S_T1}, 37\ns_lshr_b32 s{S_T2}, s{S_T2}, 8')
    p.e(f's_mul_i32 s{S_T3}, s{S_T2}, 7\ns_sub_u32 s{S_T1}, s{S_T1}, s{S_T3}\ns_lshl_b32 s{S_T1}, s{S_T1}, 15')
    p.e(f's_mul_i32 s{S_T2}, s{S_T2}, {128 * 7168}\ns_add_u32 s{S_T1}, s{S_T1}, s{S_T2}\ns_add_u32 s{S_T1}, s{S_T1}, s{S_ROT}')
    p.e(f's_lshr_b32 s{S_T2}, s{S_T0}, 1\ns_lshl_b32 s{S_T2}, s{S_T2}, 17\ns_and_b32 s{S_T0}, s{S_T0}, 1\ns_lshl_b32 s{S_T0}, s{S_T0}, 15')
    p.e(f's_add_u32 s{S_T2}, s{S_T2}, s{S_T0}\ns_add_u32 s{S_T2}, s{S_T2}, s{S_ROT}')
    order = [(SRD_W, S_T1, 96 * 7168), (SRD_A, S_T2, 65536), (SRD_W, S_T1, 64 * 7168), (SRD_A, S_T2, 0)]
    for srd, sb, off in order[:CFG['H5']]:
        p.e(f's_add_u32 s{S_T3}, s{sb}, {off}')
        for j in range(4):
            p.e(f'buffer_load_dwordx4 {vr(D)}, v0, {sr(srd, 4)}, s{S_T3} offen offset:{1024 * j}')


def build_class(cls, ent):
    p = Prog(cls)
    pre = {'P': 'mod', 'PR': 'mod', 'PM': 'mod', 'Q': 'q'}.get(cls)
    p.vm = list(ent.vm_pre if pre else ent.vm)
    p.e(f'L_class_{cls}:')
    if pre:
        got_args(p)
    common_setup(p)
    Wattn = CFG['W_M'] if cls == 'M' else CFG['W_PR'] if cls == 'PR' else CFG['W_PM'] if cls == 'PM' else CFG['W_Q'] if (cls == 'Q' and CFG['W_Q']) else CFG['W']
    S_COL, S_OUT, S_WB = S_U, S_U + 1, S_U + 2
    S_OUT2, S_COL2 = S_U + 4, S_U + 5
    roles = []
    if pre == 'mod':
        p.srd(SRD_W, P_WMOD, 1024 * 12288)
        p.srd(SRD_A, P_C, 8192)
        p.e(f's_sub_u32 s{S_T1}, s2, 184')
        mod_unit_setup(p, S_T1, S_COL, S_OUT)
        narrow_setup(p, 12288, 10, S_WB, S_COL, 3)
    if pre == 'q':
        p.srd(SRD_W, P_WQ, 1024 * 8192)
        p.srd(SRD_A, P_X, 8192)
        p.e(f's_sub_u32 s{S_COL}, s2, 120\ns_lshl_b32 s{S_COL}, s{S_COL}, 7\ns_add_u32 s{S_OUT}, s{S_COL}, {WS_Q}')
        narrow_setup(p, 8192, 10, S_WB, S_COL, 3)
    if pre:
        p.lane(11, AL_TERMS, tmp=3)
        p.e(f's_lshl_b32 s{S_U + 6}, s{S_WV}, 8')
        push_al_loads(p, 'ACT', SRD_A, 16, 11, S_U + 6)
        push_narrow_weights(p, 'WA', 12288 if pre == 'mod' else 8192, 64, 96, 10, S_WB)
        roles.append(lambda: clear_rows(p, S_OUT, 2048 if pre == 'mod' else 8192, 128))
    if cls == 'O' and CFG['HP3']:
        p.srd(SRD_W, P_WMOD, 1024 * 12288)
        p.e(f's_lshl_b32 s{S_T0}, s2, 3\ns_add_u32 s{S_T0}, s{S_T0}, s{S_WV}\ns_lshr_b32 s{S_T1}, s{S_T0}, 7\ns_lshl_b32 s{S_T1}, s{S_T1}, 10')
        p.e(f's_and_b32 s{S_T0}, s{S_T0}, 127\ns_mul_i32 s{S_T0}, s{S_T0}, {8 * 12288}\ns_add_u32 s{S_T0}, s{S_T0}, s{S_T1}')
        p.lane(10, [(3, 3, 12288), (0, 3, 16)], tmp=3)
        p.vmem(f'buffer_load_dwordx4 v[252:255], v10, {sr(SRD_W, 4)}, s{S_T0} offen offset:384', 'hp3')
    if cls in ('PR', 'PM', 'R'):
        p.e(f's_sub_u32 s{S_T1}, s2, {216 - 32 if cls == "R" else 192 - 72}')
        mod_unit_setup(p, S_T1, S_COL2, S_OUT2)
        roles.append(lambda: clear_rows(p, S_OUT2, 2048, 128))
    if cls == 'O':
        p.e(f's_and_b32 s{S_COL}, s2, 7\ns_lshl_b32 s{S_OUT}, s{S_COL}, 13\ns_lshl_b32 s{S_T0}, s{S_W8}, 8')
        p.e(f's_add_u32 s{S_OUT}, s{S_OUT}, s{S_T0}\ns_add_u32 s{S_OUT}, s{S_OUT}, {WS_AP}')
        roles.append(lambda: clear_rows(p, S_OUT, 2048, 256))
    if cls == 'M':
        p.e(f's_sub_u32 s{S_COL}, s2, 64\ns_lshl_b32 s{S_OUT}, s{S_COL}, 13\ns_lshl_b32 s{S_T0}, s{S_WV}, 10')
        p.e(f's_add_u32 s{S_OUT}, s{S_OUT}, s{S_T0}\ns_add_u32 s{S_OUT}, s{S_OUT}, {WS_FP}')

        def fp_clear():
            for k in range(8):
                if k % 4 == 0:
                    p.e(f's_add_u32 s{S_T0}, s{S_OUT}, {1024 * k}')
                p.e(f'buffer_store_dwordx4 v[4:7], v0, {sr(SRD_WS, 4)}, s{S_T0} offen offset:{1024 * (k % 4)} sc1')
        roles.append(fp_clear)
    clears(p, lambda: [r() for r in roles])

    def role_setup():
        if cls == 'O':
            p.srd(SRD_W, P_WO, 4096 * 2048)
            p.lane(12, [(4, 2, 8 * 2048), (0, 4, 16)], tmp=13)
            p.e(f's_lshl_b32 s{S_WB}, s{S_COL}, 3\ns_add_u32 s{S_WB}, s{S_WB}, s{S_WV}\ns_lshl_b32 s{S_WB}, s{S_WB}, 17')
            p.e(f's_lshl_b32 s{S_T0}, s{S_W8}, 8\ns_add_u32 s{S_WB}, s{S_WB}, s{S_T0}')
        if cls in ('PR', 'PM', 'R'):
            p.srd(SRD_W, P_WMOD, 1024 * 12288)
            p.srd(SRD_A, P_C, 8192)
            narrow_setup(p, 12288, 12, S_WB, S_COL2, 13)
            p.lane(13, AL_TERMS, tmp=14)
            p.e(f's_lshl_b32 s{S_U + 6}, s{S_WV}, 8')
        if cls == 'M':
            p.srd(SRD_W, P_W2, 3584 * 2048)
            p.srd(SRD_A, P_X, 8192)
            p.e(f's_mov_b32 s{S_MASK}, 0xff00ff00\ns_mov_b32 s{S_MASK + 1}, 0xff00ff00')
            p.e(f'v_mov_b32 v12, s{P_W1}\nv_mov_b32 v13, s{P_W1 + 1}\nv_mov_b32 v14, s{P_W3}\nv_mov_b32 v15, s{P_W3 + 1}')
            p.e(f'v_cndmask_b32 v12, v12, v14, {sr(S_MASK)}\nv_cndmask_b32 v13, v13, v15, {sr(S_MASK)}')
            p.e(f's_mul_i32 s{S_T0}, s{S_WV}, {128 * 7168}\ns_lshl_b32 s{S_T1}, s{S_COL}, 7\ns_add_u32 s{S_T0}, s{S_T0}, s{S_T1}')
            p.lane(14, [(4, 2, 8 * 7168), (0, 3, 16)], sadd=S_T0, tmp=15)
            p.e('v_mov_b32 v15, 0\nv_lshl_add_u64 v[12:13], v[14:15], 0, v[12:13]')
            p.e(f's_mov_b32 s{S_C64}, 7168\ns_mov_b32 s{S_C64 + 1}, 0\ns_mov_b32 s{S_C64B}, {25 * 7168}\ns_mov_b32 s{S_C64B + 1}, 0')
            p.lane(14, [(4, 2, 8 * 2048), (0, 4, 16)], tmp=15)
            p.e(f's_lshl_b32 s{S_WB}, s{S_COL}, 17\ns_lshl_b32 s{S_T0}, s{S_WV}, 8\ns_add_u32 s{S_WB}, s{S_WB}, s{S_T0}')
            p.e(f's_lshl_b32 s5, s{S_WV}, 13\ns_add_u32 s5, s5, {L_STASH}')

    def sc_issue(model):
        for k, chunk in ((0, 0), (1, 1)):
            for q in range(2):
                p.e(f's_add_u32 s{S_T3}, s{S_U + 6}, {WS_MOD + chunk * 8192 + 4096 * q}')
                s = f'buffer_load_dwordx2 {vr(24 + 4 * k + 2 * q, 2)}, v11, {sr(SRD_WS, 4)}, s{S_T3} offen sc1'
                p.vmem(s, 'SC') if model else p.e(s)

    def w13(u, raw, nd):
        def mk(jj):
            def fn(t):
                p.vmem(f'global_load_dwordx4 {vr(raw + 4 * jj)}, v[12:13], off nt', t)
                p.e(f'v_lshl_add_u64 v[12:13], {sr(S_C64B if jj == 7 else S_C64)}, 0, v[12:13]')
            return fn
        return [(f'WM{u}', mk(jj), nd) for jj in range(8)]

    if CFG['C3Q'] and cls == 'M':
        push_c3(p, 'c3', P_WQ, 1024 * 8192, 64, 2)
    if CFG['C3Q'] and cls == 'R':
        push_c3(p, 'c3', P_WQ, 1024 * 8192, 216, 1, 896)
    for t in range(0 if pre else 1, 8):
        if t == 4 and CFG['C3']:
            if cls == 'O':
                push_c3(p, 'c3', P_WO, 4096 * 2048, 0, 2)
            if cls == 'P':
                push_c3(p, 'c3', P_W3, 1024 * 7168, 184, 6)
            if cls == 'PR':
                push_c3(p, 'c3', P_W3, 1024 * 7168, 200, 4, 384)
            if cls == 'Q':
                push_c3mod(p)
        if t == 6 and CFG['C3'] and cls == 'O':
            push_c3(p, 'c3', P_W1, 1024 * 7168, 0, 2)
        if t == 5 and CFG['HPR'] and cls in ('Q', 'P', 'PR', 'R'):
            push_hpr(p)
        if pre == 'q' and t == 0:
            push_cnt(p, 14, 'CNTA', 128)
        if pre == 'q' and t == CFG['SC_AT']:
            p.push('SC', lambda tg: sc_issue(True), 'cnta')
        if pre and t == 6:
            push_cnt(p, 10)
        push_page(p, SRD_K, f'K{t}', t, R_K + 16 * t, 'pre' if (pre == 'mod' and t == 0 and CFG['P_HOLD']) else None)
    v0 = capture(p, lambda: push_v(p, 0, 'pre' if pre else None))
    v1 = capture(p, lambda: push_v(p, 1, 'pre' if pre else None))
    qi = capture(p, lambda: push_q(p, 11))
    vv = v0 + v1
    if cls == 'M' and CFG['M_DMA']:
        def dma(jj):
            def fn(t):
                p.e(f's_add_u32 m0, s5, {1024 * jj}\ns_add_u32 s{S_T3}, s{S_WB}, {2048 * jj}')
                p.vmem(f'buffer_load_dwordx4 v14, {sr(SRD_W, 4)}, s{S_T3} offen nt lds', t)
            return fn
        vv += [('WM4', dma(jj), None) for jj in range(8)]
    if pre:
        p.stream += qi + vv
    else:
        k = CFG['Q_AT_M' if (cls == 'M' and CFG['M_DMA']) else 'Q_AT']
        p.stream += vv[:k - 6] + capture(p, lambda: push_cnt(p, 10)) + vv[k - 6:k] + qi + vv[k:]
    v2 = capture(p, lambda: push_v(p, 2, 'K01'))
    v3 = capture(p, lambda: push_v(p, 3, 'pv0'))
    ml = capture(p, lambda: push_ml(p))
    mid0 = mid1 = post = []
    if cls == 'O':
        mid0 = capture(p, lambda: push_wide_rows(p, 'WO0', 192, 12, S_WB, 0, 'K47'))
        mid1 = capture(p, lambda: push_wide_rows(p, 'WO1', 224, 12, S_WB, 32, 'K47'))
    if cls in ('R', 'PR', 'PM'):
        wb = capture(p, lambda: push_narrow_weights(p, 'WB', 12288, 192, 224, 12, S_WB, need=['K47', 'K47']))
        act2 = capture(p, lambda: push_al_loads(p, 'ACT2', SRD_A, 96 if cls == 'PR' else 80, 13, S_U + 6))
        act2 = [(t, f, 'pv0') for t, f, _ in act2]
        if cls == 'PR':
            k = CFG['PR_EARLY']
            post = wb[:k] + [(t, f, 'ost') for t, f, _ in act2 + wb[k:]]
    if cls == 'M':
        mid0, mid1 = w13(0, 192, 'K47'), w13(1, 224, 'K47')
        w2b = capture(p, lambda: push_wide_rows(p, 'WM5', 160, 14, S_WB, 32, 'ost'))
        if CFG['M_DMA']:
            wm3 = w13(3, 128, 'pv2')
            post = w13(2, 96, 'pv1') + wm3[:2] + weave(wm3[2:], w2b)
        else:
            w2a = capture(p, lambda: push_wide_rows(p, 'WM4', 64, 14, S_WB, 0, 'ost'))
            wm2 = w13(2, 96, 'pv1' if CFG['M_EARLY'] else 'ost')
            post = wm2[:4] + weave(wm2[4:], w2a) + weave(w2b, w13(3, 128, 'ost'))
        post.insert(len(post) - CFG['MOD_AT'], ('MOD', lambda t: m_mod_issue(p, True), 'ost'))
    if cls in ('R', 'PM'):
        p.stream += v2[:2] + weave(v2[2:], wb[:8]) + act2 + wb[8:] + v3[:3] + ml + v3[3:]
    elif mid0:
        p.stream += v2[:2] + weave(v2[2:], mid0)
        tail = weave(v3, mid1, 3)
        p.stream += tail[:-5] + ml + tail[-5:]
    else:
        p.stream += v2 + v3[:3] + ml + v3[3:]
    p.stream += post

    p.W = CFG['W_PRE'] if pre == 'mod' else CFG['W_PREQ'] if pre else CFG['W_INIT']
    while p.can_pump() and len(p.vm) < p.W and p.stream[0][0] not in ('CNTA', 'K0'):
        p.pump(1)
    common_setup2(p)
    k_setup(p)
    arrive(p, {'mod': [128, 0], 'q': [0], None: []}[pre])
    p.W = Wattn if pre else CFG['W_LOW']
    if not pre:
        k_trans(p, 0)
    if pre == 'mod':
        p.need('ACT')
        silu_to_xa(p, 16, list(range(20, 28)), 12)
        p.need('WA0')
        p.perm_chunk(64, 32)
        p.need('WA1')
        p.stamp('w_landed')
        p.perm_chunk(96, 64)
        narrow_gemv(p, 32, 64, 96, 112, [12, 13, 14], (S_OUT, 2048))
        p.release('pre')
        p.stamp('pre_done')
    if pre == 'q':
        p.need('ACT')
        X = list(range(40, 48))
        for d in range(4):
            p.unpack(16 + d, X[2 * d], X[2 * d + 1])
        layernorm(p, X, list(range(48, 60)), True)
        for d in range(4):
            p.e(f'v_cvt_pk_bf16_f32 v{16 + d}, v{X[2 * d]}, v{X[2 * d + 1]}')
        p.need('WA0')
        p.perm_chunk(64, 32)
        p.need('WA1')
        p.stamp('w_landed')
        p.perm_chunk(96, 64)
        check_cnt(p, 14, 'CNTA', 128, 32)
    for t in range(0 if pre else 1, 8):
        if not pre and t == CFG['T_LOW_M' if cls == 'M' else 'T_LOW']:
            p.W = Wattn
        k_trans(p, t)
        if not pre and t == 1:
            count_b(p)
        if pre == 'q' and t == CFG['SC_AT'] - 1:
            p.need('SC')
            p.stamp('sc_landed')
            p.check_retry(lambda: sc_issue(False), list(range(24, 32)), 12)
            p.stamp('sc_ok')
            X = list(range(96, 104))
            for d in range(4):
                p.unpack(16 + d, X[2 * d], X[2 * d + 1])
            one_plus(p, [28, 29, 30, 31], [104, 105])
            modulate(p, X, [28, 29, 30, 31], [24, 25, 26, 27], [104, 105], [16, 17, 18, 19])
            xa_base(p, S_T0)
            p.lane(12, XA_TERMS, sadd=S_T0, tmp=13)
            p.e('ds_write_b64 v12, v[16:17]\nds_write_b64 v12, v[18:19] offset:512')
            narrow_gemv(p, 32, 64, 96, 112, [12, 13, 14], (S_OUT, 8192))
            p.release('pre')
            p.stamp('pre_done')
        if pre and t == 6:
            check_cnt(p, 10)
    role_setup()
    p.stamp('k_done')
    if not pre:
        check_cnt(p, 10)
    qk_softmax(p, 11)
    p.release('sm')
    if CFG['W2'] and cls not in ('M', 'PM'):
        p.W = CFG['W2']
    pv_chunk(p, 0, 160)
    p.release('pv0')
    pv_chunk(p, 1, 64)
    p.release('pv1')
    if CFG['W_END']:
        p.W = max(p.W, CFG['W_END'])
    pv_chunk(p, 2, 64)
    p.release('pv2')
    p.stamp('v2')
    rewarm(p, f'L_tail_{cls}', 1, 92)
    if cls == 'O':
        p.need('WO0')
        p.perm_chunk(192, 96)
    if cls in ('R', 'PM'):
        p.need('WB0')
        p.perm_chunk(192, 96)
        p.need('ACT2')
        silu_to_xa(p, 80, list(range(84, 92)), 10)
        p.need('WB1')
        p.burst(CFG['R_BURST'])
        p.perm_chunk(224, 192)
        narrow_gemv(p, 96, 192, 128, 144, [12, 13, 14], (S_OUT2, 2048))
        p.stamp('post_done')
    p.e(f'L_tail_{cls}:')
    ml_scale(p)
    p.stamp('ml_ok')
    if cls == 'O':
        p.need('WO1')
        p.perm_chunk(224, 192)
        o_setup(p, S_COL, S_OUT)
    pv_chunk(p, 3, 64)
    p.stamp('pv_done')
    if cls == 'M':
        p.burst(CFG['M_BURST'])
    attn_epilogue(p)
    p.release('ost')
    p.W = CFG['W_POST']
    if cls == 'O':
        o_tail(p, S_OUT)
    if cls == 'PR':
        p.need('ACT2')
        silu_to_xa(p, 96, list(range(100, 108)), 10)
        p.need('WB0')
        p.perm_chunk(192, 32)
        p.need('WB1')
        p.perm_chunk(224, 64)
        narrow_gemv(p, 32, 64, 96, 112, [12, 13, 14], (S_OUT2, 2048))
        p.stamp('post_done')
    if cls == 'M':
        m_tail(p, S_COL, S_OUT)
    if cls in ('Q', 'R', 'P') and CFG['H5']:
        h5_prefetch(p, {'Q': 120, 'R': 216 - 64, 'P': 184 - 104}[cls])
    assert not p.stream, [t[0] for t in p.stream]
    finish(p)
    return p


O_SEL, O_E3, O_B, O_F0, O_F1 = 224, 128, 232, 96, 192


def o_setup(p, S_KS, S_OUT):
    selectors(p, O_SEL, 10)
    p.lane(13, [(3, 1, 4 * 16 * 2048), (4, 2, 2048), (0, 3, 16)], tmp=10)
    p.e(f's_lshr_b32 s{S_T0}, s{S_KS}, 1\ns_lshl_b32 s{S_T0}, s{S_T0}, 15\ns_and_b32 s{S_T1}, s{S_KS}, 1\ns_lshl_b32 s{S_T1}, s{S_T1}, 10')
    p.e(f's_add_u32 s{S_T0}, s{S_T0}, s{S_T1}\ns_lshl_b32 s{S_T1}, s{S_WV}, 7\ns_add_u32 s{S_T0}, s{S_T0}, s{S_T1}\ns_add_u32 s{S_U + 7}, s{S_T0}, {WS_OP}')
    xa_base(p, S_T0)
    p.lane(14, [(5, 1, 256), (3, 1, 128), (0, 3, 16), (4, 1, 8)], sadd=S_T0, tmp=10)
    wide_b_addrs(p, O_B, [(2, 2, 128), (4, 2, 16)], S_T0, 0, 10)
    p.e(f's_mul_i32 s{S_T0}, s{S_WV}, 2816\ns_add_u32 s{S_T0}, s{S_T0}, {L_RED}')
    p.lane(15, RED_W, sadd=S_T0, tmp=10)
    p.e(f's_mul_i32 s{S_T0}, s{S_WV}, 656\ns_add_u32 s{S_T0}, s{S_T0}, {L_RED}')
    p.lane(O_B + 4, [(4, 2, 144), (0, 2, 32), (2, 2, 4)], sadd=S_T0, tmp=10)
    p.e(f'v_add_u32 v{O_B + 5}, 16, v{O_B + 4}')
    p.e(f's_lshl_b32 s{S_T0}, s{S_WV}, 11\ns_add_u32 s{S_OUT}, s{S_OUT}, s{S_T0}')


def o_tail(p, S_OUT):
    iss, regs = [], []
    for t in range(8):
        h, sh = t >> 2, t & 3

        def f(t=t, h=h, sh=sh):
            p.e(f's_add_u32 s{S_T3}, s{S_U + 7}, {h * 2 * 4 * 16 * 2048 + sh * 4 * 2048}')
            p.e(f'buffer_load_dwordx4 {vr(O_E3 + 4 * t)}, v13, {sr(SRD_WS, 4)}, s{S_T3} offen sc1')
        iss.append(f)
        regs.append(list(range(O_E3 + 4 * t, O_E3 + 4 * t + 4)))
    p.vm = []
    p.poll_masked(iss, regs, 10)
    p.stamp('e3_ok')
    D = 32
    for t in range(8):
        p.e(f'v_mfma_f32_16x16x32_bf16 {vr(D)}, {vr(O_SEL + 4 * (t >> 2))}, {vr(O_E3 + 4 * t)}, {"0" if t == 0 else vr(D)}')
    p.e(f'v_cvt_pk_bf16_f32 v{D}, v{D}, v{D + 1}\nv_cvt_pk_bf16_f32 v{D + 1}, v{D + 2}, v{D + 3}')
    p.e(f'ds_write_b64 v14, {vr(D, 2)}')
    B = 160
    for u in range(2):
        for j in range(4):
            p.e(f'ds_read_b128 {vr(B + 16 * u + 4 * j)}, v{O_B + j} offset:{64 * u}')
    A = 40
    for u, F in ((0, O_F0), (1, O_F1)):
        for e in range(8):
            if e % 2 == 0:
                p.e(f's_waitcnt lgkmcnt({7 - 4 * u - e // 2})')
            acc = vr(A + 4 * (e & 1))
            p.e(f'v_mfma_f32_16x16x32_bf16 {acc}, {vr(F + 4 * e)}, {vr(B + 16 * u + 4 * (e >> 1))}, {"0" if (u == 0 and e < 2) else acc}')
    for a in range(2):
        p.e(f'ds_write_b128 v15, {vr(A + 4 * a)} offset:{16 * a}')
    sk = p.lab('ofin')
    p.e(f's_waitcnt lgkmcnt(0)\ns_barrier\ns_cmp_ge_u32 s{S_WV}, 4\ns_cbranch_scc1 {sk}')
    for k in range(4):
        p.e(f'ds_read2st64_b32 {vr(B + 2 * k, 2)}, v{O_B + 4} offset0:{22 * k} offset1:{22 * k + 11}')
        p.e(f'ds_read2st64_b32 {vr(B + 8 + 2 * k, 2)}, v{O_B + 5} offset0:{22 * k} offset1:{22 * k + 11}')
    p.e('s_waitcnt lgkmcnt(0)')
    for w in (4, 2, 1):
        for h in (0, 8):
            for k in range(w):
                p.e(f'v_add_f32 v{B + h + k}, v{B + h + k}, v{B + h + k + w}')
    p.e(f'v_cvt_pk_bf16_f32 v{B + 4}, v{B}, v{B + 8}')
    quad_pack_store(p, B + 4, 9, S_OUT)
    p.e(f'{sk}:')
    p.stamp('a_stored')


def m_mod_issue(p, model):
    if model:
        p.lane(10, AL_TERMS, tmp=2)
        p.e(f's_lshl_b32 s{S_U + 6}, s{S_WV}, 8')
        push_al_loads(p, None, SRD_A, 16, 10, S_U + 6)(False)
    for k, chunk in enumerate((2, 4, 3)):
        for q in range(2):
            p.e(f's_add_u32 s{S_T3}, s{S_U + 6}, {WS_MOD + chunk * 8192 + 4096 * q}')
            s = f'buffer_load_dwordx2 {vr(20 + 4 * k + 2 * q, 2)}, v10, {sr(SRD_WS, 4)}, s{S_T3} offen sc1'
            p.vmem(s, 'MOD') if model else p.e(s)


def m_tail(p, S_MI, S_OUT):
    F = [32, 192, 224, 64, 96, 128]
    raw = [192, 224, 96, 128, 64, 160]
    SP, SEL, D = 160, 16, 24
    p.fill()
    if CFG['M_DMA']:
        p.e('v_add_u32 v11, s5, v0')
        for jj in range(8):
            p.e(f'ds_read_b128 {vr(64 + 4 * jj)}, v11 offset:{1024 * jj}')
    rewarm(p, 'L_mtail', 2, 4)
    for u in (0, 1, 2, 4):
        p.need(f'WM{u}')
        p.stamp(f'wm{u}')
        if u == 4:
            p.e('s_waitcnt lgkmcnt(0)')
        p.perm_chunk(raw[u], F[u])
    p.need('MOD')
    while p.can_pump():
        p.pump(1)
    p.stamp('mod_landed')
    p.check_retry(lambda: m_mod_issue(p, False), list(range(20, 32)), 2)
    p.e('L_mtail:')
    p.e(f's_lshl_b32 s{S_T0}, s{S_WV}, 13\ns_add_u32 s{S_T0}, s{S_T0}, {L_STASH}\nv_add_u32 v12, s{S_T0}, v0')
    one_plus(p, list(range(24, 28)), [2, 3])
    for k in range(8):
        p.unpack(16 + 2 * k, 4, 5)
        p.unpack(17 + 2 * k, 6, 7)
        p.e(f'ds_write_b128 v12, v[4:7] offset:{1024 * k}')
    selectors(p, SEL, 2)
    p.lane(11, [(4, 2, 8192), (0, 4, 16)], tmp=2)
    p.e(f's_add_u32 s{S_U + 7}, s{S_U + 6}, {WS_AP}')
    xa_base(p, S_T0)
    p.lane(13, XA_TERMS, sadd=S_T0, tmp=2)
    wide_b_addrs(p, 4, [(2, 2, 256), (4, 2, 16)], S_T0, 0, 2)
    p.e(f's_add_u32 s{S_T0}, s{S_U + 6}, {L_X1}')
    p.lane(14, AL_TERMS, sadd=S_T0, tmp=2)
    p.e(f's_mul_i32 s{S_T0}, s{S_WV}, 2816\ns_add_u32 s{S_T0}, s{S_T0}, {L_RED}')
    p.lane(15, RED_W, sadd=S_T0, tmp=2)
    p.e(f's_lshr_b32 s{S_T0}, s{S_WV}, 1\ns_mul_i32 s{S_T0}, s{S_T0}, 656\ns_and_b32 s{S_T1}, s{S_WV}, 1\ns_mul_i32 s{S_T1}, s{S_T1}, 144')
    p.e(f's_add_u32 s{S_T0}, s{S_T0}, s{S_T1}\ns_add_u32 s{S_T0}, s{S_T0}, {L_RED}')
    p.lane(8, [(5, 1, 288), (1, 2, 32), (0, 1, 16), (3, 2, 4)], sadd=S_T0, tmp=2)
    p.e(f's_lshl_b32 s{S_T0}, s{S_WV}, 6\ns_add_u32 s{S_T0}, s{S_T0}, {L_X2}')
    p.lane(9, [(0, 5, 2)], sadd=S_T0)
    p.e(f's_lshl_b32 s{S_T0}, s{S_WV}, 5\ns_add_u32 s{S_T0}, s{S_T0}, {L_STATS}')
    p.lane(10, [(5, 1, 8)], sadd=S_T0)
    p.lane(3, [(0, 3, 32), (5, 1, 8)], const=L_STATS, tmp=2)
    p.stamp('mod_ok')
    for u in (3, 5):
        p.need(f'WM{u}')
        p.stamp(f'wm{u}')
        p.perm_chunk(raw[u], F[u])
    p.e('s_waitcnt lgkmcnt(0)')
    p.stamp('w_ready')
    iss, regs = [], []
    for t in range(8):
        ksh, b = t & 1, t >> 1

        def f(t=t, ksh=ksh, b=b):
            p.e(f's_add_u32 s{S_T3}, s{S_U + 7}, {ksh * 4 * 8192 + b * 2048}')
            p.e(f'buffer_load_dwordx4 {vr(SP + 4 * t)}, v11, {sr(SRD_WS, 4)}, s{S_T3} offen sc1')
        iss.append(f)
        regs.append(list(range(SP + 4 * t, SP + 4 * t + 4)))
    p.poll_masked(iss, regs, 2)
    p.stamp('e4_ok')
    order = [0, 4, 1, 5, 2, 6, 3, 7]
    for k, t in enumerate(order):
        b = t >> 1
        d = vr(D + 4 * (b >> 1))
        p.e(f'v_mfma_f32_16x16x32_bf16 {d}, {vr(SEL + 4 * (b & 1))}, {vr(SP + 4 * t)}, {"0" if t in (0, 4) else d}')
        if k == 3:
            p.e(f'ds_read_b128 {vr(SP)}, v12\nds_read_b128 {vr(SP + 4)}, v12 offset:1024')
            p.e(f'ds_read_b128 {vr(SP + 16)}, v12 offset:2048\nds_read_b128 {vr(SP + 20)}, v12 offset:3072')
    p.e(f'ds_read_b128 {vr(SP + 8)}, v12 offset:4096\nds_read_b128 {vr(SP + 12)}, v12 offset:5120')
    p.e(f'ds_read_b128 {vr(SP + 24)}, v12 offset:6144\nds_read_b128 {vr(SP + 28)}, v12 offset:7168')
    X = list(range(D, D + 8))
    p.e('s_waitcnt lgkmcnt(4)')
    for k in range(8):
        p.e(f'v_fmac_f32 v{SP + k}, v{X[k]}, v{SP + 16 + k}')
    PK = SP + 16
    for d in range(4):
        p.e(f'v_cvt_pk_bf16_f32 v{PK + d}, v{SP + 2 * d}, v{SP + 2 * d + 1}')
    for d in range(4):
        p.unpack(PK + d, X[2 * d], X[2 * d + 1])
    p.e(f'ds_write_b64 v14, {vr(PK, 2)}\nds_write_b64 v14, {vr(PK + 2, 2)} offset:4096')
    for q in range(2):
        x = X[4 * q:4 * q + 4]
        p.e(f'v_add_f32 v{SP + 2 * q}, v{x[0]}, v{x[1]}\nv_mul_f32 v{SP + 2 * q + 1}, v{x[0]}, v{x[0]}\nv_add_f32 v{SP + 4 + q}, v{x[2]}, v{x[3]}')
    for r in (1, 2, 3):
        for q in range(2):
            p.e(f'v_fmac_f32 v{SP + 2 * q + 1}, v{X[4 * q + r]}, v{X[4 * q + r]}')
    p.e(f'v_add_f32 v{SP}, v{SP}, v{SP + 4}\nv_add_f32 v{SP + 2}, v{SP + 2}, v{SP + 5}')
    R4 = [SP, SP + 2, SP + 1, SP + 3]
    p.rowsum(R4, (8, 4, 2, 1))
    p.swapred('v_add_f32', 16, R4, [SP + 4, SP + 5, SP + 6, SP + 7])
    p.exec_set(0x0000000100000001)
    p.e(f'ds_write_b64 v10, {vr(SP, 2)}\nds_write_b64 v10, {vr(SP + 2, 2)} offset:16')
    p.exec_all()
    p.e('s_waitcnt lgkmcnt(0)\ns_barrier')
    p.e(f'ds_read_b64 {vr(SP, 2)}, v3\nds_read_b64 {vr(SP + 2, 2)}, v3 offset:16\ns_waitcnt lgkmcnt(0)')
    p.rowsum(R4, (4, 2, 1))
    for q in range(2):
        p.e(f'v_mul_f32 v{SP + 2 * q}, 0x3a800000, v{SP + 2 * q}\nv_mul_f32 v{SP + 2 * q + 1}, 0x3a800000, v{SP + 2 * q + 1}')
    for q in range(2):
        p.e(f'v_fma_f32 v{SP + 2 * q + 1}, -v{SP + 2 * q}, v{SP + 2 * q}, v{SP + 2 * q + 1}')
    for q in range(2):
        p.e(f'v_max_f32 v{SP + 2 * q + 1}, 0, v{SP + 2 * q + 1}')
    for q in range(2):
        p.e(f'v_add_f32 v{SP + 2 * q + 1}, 0x3727c5ac, v{SP + 2 * q + 1}')
    for q in range(2):
        p.e(f'v_rsq_f32 v{SP + 2 * q + 1}, v{SP + 2 * q + 1}')
    for k in range(8):
        p.e(f'v_sub_f32 v{X[k]}, v{X[k]}, v{SP + 2 * (k >> 2)}')
    for k in range(8):
        p.e(f'v_mul_f32 v{SP + 8 + k}, v{SP + 8 + k}, v{SP + 2 * (k >> 2) + 1}')
    for k in range(8):
        p.e(f'v_fmac_f32 v{SP + 24 + k}, v{X[k]}, v{SP + 8 + k}')
    for d in range(4):
        p.e(f'v_cvt_pk_bf16_f32 v{SP + d}, v{SP + 24 + 2 * d}, v{SP + 24 + 2 * d + 1}')
    p.e(f'ds_write_b64 v13, {vr(SP, 2)}\nds_write_b64 v13, {vr(SP + 2, 2)} offset:512')
    p.stamp('h2')
    A = D

    def breads(u):
        for j in range(4):
            p.e(f'ds_read_b128 {vr(SP + 16 * (u & 1) + 4 * j)}, v{4 + j} offset:{64 * u}')
    breads(0)
    breads(1)
    for u in range(4):
        for e in range(8):
            if e % 2 == 0:
                rem = (3 - e // 2) + (4 if u < 3 else 0)
                p.e(f's_waitcnt lgkmcnt({rem})')
            acc = vr(A + 4 * (e & 1))
            p.e(f'v_mfma_f32_16x16x32_bf16 {acc}, {vr(F[u] + 4 * e)}, {vr(SP + 16 * (u & 1) + 4 * (e >> 1))}, {"0" if (u == 0 and e < 2) else acc}')
        if u < 2:
            breads(u + 2)
    for a_ in range(2):
        p.e(f'ds_write_b128 v15, {vr(A + 4 * a_)} offset:{16 * a_}')
    GB, X1 = 40, 44
    p.lane(10, [(2, 2, 2048), (0, 2, 4)], tmp=3)
    p.e(f's_lshl_b32 s{S_U + 6}, s{S_MI}, 6\ns_add_u32 s{S_T2}, s{S_U + 6}, {WS_MOD + 5 * 8192}')

    def gb_issue():
        for r in range(4):
            p.e(f'buffer_load_dword v{GB + r}, v10, {sr(SRD_WS, 4)}, s{S_T2} offen offset:{16 * r} sc1')
    sk = p.lab('gb')
    p.e(f's_cmp_lg_u32 s{S_WV}, 0\ns_cbranch_scc1 {sk}\ns_cmp_ge_u32 s{S_MI}, 32\ns_cbranch_scc1 {sk}')
    gb_issue()
    p.e(f'{sk}:')
    wide_b_addrs(p, 4, [(2, 2, 128), (4, 2, 16)], None, L_X2, 2)
    p.e('s_waitcnt lgkmcnt(0)\ns_barrier')
    G = 32
    for k in range(4):
        p.e(f'ds_read2st64_b32 {vr(G + 2 * k, 2)}, v8 offset0:{22 * k} offset1:{22 * k + 11}')
    p.e('s_waitcnt lgkmcnt(0)')
    for w in (4, 2, 1):
        for k in range(w):
            p.e(f'v_add_f32 v{G + k}, v{G + k}, v{G + k + w}')
    p.e(f'v_cvt_pk_bf16_f32 v{G}, v{G}, v{G}\nv_and_b32 v{G}, 0xffff0000, v{G}\nv_mov_b32 v{G + 1}, v{G}')
    p.e(f'v_permlane32_swap_b32 v{G}, v{G + 1}')
    p.e(f'''v_mul_f32 v{G + 2}, {hex(LOG2E | 0x80000000)}, v{G}
    v_exp_f32 v{G + 2}, v{G + 2}
    v_add_f32 v{G + 2}, 1.0, v{G + 2}
    v_rcp_f32 v{G + 2}, v{G + 2}
    v_mul_f32 v{G}, v{G}, v{G + 2}
    v_cvt_pk_bf16_f32 v{G}, v{G}, v{G}
    v_and_b32 v{G}, 0xffff0000, v{G}
    v_mul_f32 v{G}, v{G}, v{G + 1}
    v_cvt_pk_bf16_f32 v{G}, v{G}, v{G}''')
    p.exec_set(0xffffffff)
    p.e(f'ds_write_b16 v9, v{G}')
    p.exec_all()
    p.e('s_waitcnt lgkmcnt(0)\ns_barrier')
    breads(0)
    breads(1)
    for u in range(2):
        for e in range(8):
            if e % 2 == 0:
                p.e(f's_waitcnt lgkmcnt({7 - 4 * u - e // 2})')
            acc = vr(A + 4 * (e & 1))
            p.e(f'v_mfma_f32_16x16x32_bf16 {acc}, {vr(F[4 + u] + 4 * e)}, {vr(SP + 16 * u + 4 * (e >> 1))}, {"0" if (u == 0 and e < 2) else acc}')
    for d in range(4):
        p.e(f'v_cvt_pk_bf16_f32 v{G + d}, v{A + 2 * d}, v{A + 2 * d + 1}')
    p.e(f'buffer_store_dwordx4 {vr(G)}, v0, {sr(SRD_WS, 4)}, s{S_OUT} offen sc1')
    p.stamp('f_stored')
    end = p.lab('mend')
    p.e(f's_cmp_lg_u32 s{S_WV}, 0\ns_cbranch_scc1 {end}\ns_cmp_ge_u32 s{S_MI}, 32\ns_cbranch_scc1 {end}')
    p.srd(SRD_A, P_OUT, 8192)
    p.e(f'v_add_u32 v2, s{S_U + 6}, v10')
    for r in range(4):
        p.e(f'ds_read_b32 v{X1 + r}, v2 offset:{L_X1 + 16 * r}')
    p.lane(11, [(4, 2, 8192), (0, 4, 16)], tmp=3)
    p.e(f's_lshl_b32 s{S_U + 7}, s{S_MI}, 8\ns_add_u32 s{S_U + 7}, s{S_U + 7}, {WS_FP}')
    p.e(f's_mov_b32 s{S_MASK}, 0xffff0000\ns_mov_b32 s{S_MASK + 1}, 0xffff0000\ns_waitcnt vmcnt(1) lgkmcnt(0)')
    p.check_retry(gb_issue, list(range(GB, GB + 4)), 3)
    for k in range(8):
        p.unpack(GB + k, 4, 5)
        p.e(f'v_cndmask_b32 v{GB + k}, v4, v5, {sr(S_MASK)}')
    E = 64
    iss, regs = [], []
    for t in range(14):
        def f(t=t):
            p.e(f's_add_u32 s{S_T3}, s{S_U + 7}, {t * 4 * 8192}')
            p.e(f'buffer_load_dwordx4 {vr(E + 4 * t)}, v11, {sr(SRD_WS, 4)}, s{S_T3} offen sc1')
        iss.append(f)
        regs.append(list(range(E + 4 * t, E + 4 * t + 4)))
    p.poll_masked(iss, regs, 3)
    p.stamp('e5_ok')
    for t in range(14):
        d = vr(D + 4 * (t & 1))
        p.e(f'v_mfma_f32_16x16x32_bf16 {d}, {vr(SEL)}, {vr(E + 4 * t)}, {"0" if t < 2 else d}')
    for r in range(4):
        p.e(f'v_add_f32 v{D + r}, v{D + r}, v{D + 4 + r}')
    for h in (0, 2):
        p.rnd2(D + h, D + h + 1, 4)
    for r in range(4):
        p.e(f'v_mul_f32 v{D + r}, v{GB + r}, v{D + r}')
    for h in (0, 2):
        p.rnd2(D + h, D + h + 1, 4)
    for r in range(4):
        p.e(f'v_add_f32 v{D + r}, v{X1 + r}, v{D + r}\nv_mov_b32 v{D + 4 + r}, v{D + r}')
    for r in range(4):
        p.e(f'v_permlane16_swap_b32 v{D + r}, v{D + 4 + r}')
    for r in range(4):
        p.e(f'v_cvt_pk_bf16_f32 v{D + r}, v{D + r}, v{D + 4 + r}')
    p.exec_set(0xffff)
    for r in range(4):
        p.e(f'buffer_store_dword v{D + r}, v2, {sr(SRD_A, 4)}, 0 offen offset:{16 * r}')
    p.exec_all()
    p.e(f'{end}:')


def generate():
    hdr = open('cdna_kernels/' + NAME + '.s.ref').read().split('\n')
    out = [l for l in hdr if l.startswith(';') and '@launch' not in l]
    out.append(f'; @launch grid=(256,1,1) block=(512,1,1) lds={L_TOTAL}')
    out += ['.amdgcn_target "amdgcn-amd-amdhsa--gfx950"', '.text', f'.globl {NAME}_kernel', '.p2align 8',
            f'.type {NAME}_kernel,@function', f'{NAME}_kernel:']
    e = Prog('E')
    entry(e)
    body = list(e.L)
    names = {}
    for cls in ('O', 'M', 'Q', 'P', 'PM', 'PR', 'R'):
        p = build_class(cls, e)
        body.append('.p2align 6')
        body += p.L
        names[cls] = p.stamp_names
    body += ['L_end:', 's_endpgm']
    out += pad_hazards(body)
    out += ['.fill 64, 4, 0xbf800000', '.p2align 8', 'L_code_end:']
    out += ['.section .rodata,"a"', '.p2align 6', f'.amdhsa_kernel {NAME}_kernel',
            '  .amdhsa_next_free_vgpr 256', '  .amdhsa_next_free_sgpr 102', '  .amdhsa_accum_offset 256',
            '  .amdhsa_group_segment_fixed_size 0', '  .amdhsa_kernarg_size 112', '  .amdhsa_user_sgpr_count 2',
            '  .amdhsa_user_sgpr_kernarg_segment_ptr 1', '  .amdhsa_system_sgpr_workgroup_id_x 1',
            '  .amdhsa_float_denorm_mode_32 3', '.end_amdhsa_kernel']
    return '\n'.join(out) + '\n', names


if __name__ == '__main__':
    path = sys.argv[1]
    for kv in sys.argv[2:]:
        k, v = kv.split('=')
        CFG[k] = eval(v)
    txt, names = generate()
    open(path, 'w').write(txt)
    import json
    json.dump(names, open(path + '.stamps.json', 'w'))
```

```python
import sys
from collections import deque
from asmlib import pad_hazards

NAME = 'adaLN_cond__gqa_block_cached__glu_gated_swiglu__decode'

CFG = dict(
    W=4,
    W_O=4, W_M=6, W_R=5, W_Q=4, W_P=4, W_PR=4,
    C3O=0, C3Q='', C3W1='M', C3W3='R', C3MOD='O', T_LOW_R=2,
    W_PRE=24, W_PREQ=8, W_INIT=5, W_LOW=2, T_LOW=3, T_LOW_M=2,
    W_POST=6, W_END=None,
    SC_AT=2, Q_AT=12, BURST=5, E_BURST=4, P_EARLY=0, MOD_AT=0, P3='rr', P4='rr', P5='rr', E5W=7, ML_AT=4,
    HP3=True, C3=True, H5=2, REWARM=False,
    STAMPS=False, DBGOUT=False,
    SPIN=1 << 18,
)

WS_MOD = 0x00000
WS_CBP = 0x18000
WS_Q = 0x10000
WS_ML = 0x20000
WS_AP = 0x30000
WS_OP = 0x40000
WS_FP = 0xC0000
WS_STAMP = 0x200000
WS_BYTES = 268435456

L_KT = 0
L_OPART = 0
L_XA = 40960
L_ZERO = 49152
L_MLW = 49664
L_CNT = 50176
L_STATS = 50432
L_X2 = 50688
L_FINB = 51200
L_X1 = 52224
L_RED = 60416
L_STASH = 83968
L_TOTAL = 149504

CLASS_RANGES = dict(O=(0, 64), M=(64, 120), Q=(120, 184), P=(184, 200), PR=(200, 216), R=(216, 256))


def vr(a, n=4):
    return f'v[{a}:{a + n - 1}]' if n > 1 else f'v{a}'


def sr(a, n=2):
    return f's[{a}:{a + n - 1}]' if n > 1 else f's{a}'


S_WV, S_W8, S_ROT, S_KV = 3, 4, 6, 7
SRD_K, SRD_V, SRD_WS, SRD_W, SRD_A, SRD_D = 8, 12, 16, 20, 24, 28
P_X, P_K, P_V, P_WQ, P_WO, P_W1, P_W3, P_W2, P_C, P_WMOD, P_OUT, P_DBG, P_WS = 32, 34, 36, 38, 40, 44, 46, 48, 50, 52, 54, 56, 58
S_T0, S_T1, S_T2, S_T3 = 60, 61, 62, 63
S_PLO, S_PHI = 64, 65
S_MASK = 66
S_SAVE = 68
S_SPIN = 70
S_VALID = 71
S_U = 72
S_C64 = 80
S_C64B = 82
S_STAMP = 84


class Prog:
    def __init__(self, name):
        self.name = name
        self.L = []
        self.vm = []
        self.stream = deque()
        self.released = set()
        self.W = CFG['W']
        self.nlab = 0
        self.nstamp = 0
        self.stamp_names = []

    def e(self, s):
        for line in s.split('\n'):
            line = line.strip()
            if line:
                self.L.append(line)

    def lab(self, base):
        self.nlab += 1
        return f'L_{self.name}_{base}{self.nlab}'

    def vmem(self, s, tag):
        self.e(s)
        self.vm.append(tag)
        assert len(self.vm) <= 56, 'too many outstanding'

    def waitn(self, n):
        if len(self.vm) > n:
            self.e(f's_waitcnt vmcnt({n})')
            self.vm = self.vm[len(self.vm) - n:] if n else []

    def wait(self, tag):
        if tag in self.vm:
            idx = len(self.vm) - 1 - self.vm[::-1].index(tag)
            self.waitn(len(self.vm) - 1 - idx)

    def push(self, tag, fn, need=None):
        self.stream.append((tag, fn, need))

    def can_pump(self):
        return self.stream and (self.stream[0][2] is None or self.stream[0][2] in self.released)

    def pump(self, k=1):
        for _ in range(k):
            if not self.can_pump():
                return
            tag, fn, _n = self.stream.popleft()
            self.waitn(self.W - 1)
            fn(tag)

    def fill(self):
        while self.can_pump() and len(self.vm) < self.W:
            self.pump(1)

    def burst(self, k):
        self.W += k
        self.fill()
        self.W -= k

    def need(self, tag):
        while any(t[0] == tag for t in self.stream):
            assert self.can_pump(), f'{self.name}: stream blocked before {tag} at {self.stream[0][0]}'
            self.pump(1)
        while tag in self.vm:
            if self.can_pump() and self.vm[::-1].index(tag) <= self.W - 1:
                self.pump(1)
            else:
                self.wait(tag)

    def release(self, x):
        self.released.add(x)

    def stamp(self, name):
        if CFG['STAMPS'] == 'lite' and name not in ('start', 'pre_done', 'q_ok', 'k_done', 'o_stored', 'post_done', 'q_done', 'e3_ok', 'a_stored', 'w_ready', 'e4_ok', 'f_stored', 'end'):
            return
        if CFG['STAMPS'] == 't' and name not in ('start', 'e3_ok', 'o1', 'o2', 'o3', 'a_stored', 'e4_ok', 't1', 't2', 'h2', 't3', 't4', 't5', 't6', 'wm5', 't7', 'f_stored', 't8', 'e5_ok', 'end'):
            return
        if CFG['STAMPS'] != 't' and name[0] in 'to' and name[1:].isdigit():
            return
        if CFG['STAMPS'] == 'e' and name not in ('start', 'first', 'arrived', 'k0', 'w_landed', 'pre_done', 'end'):
            return
        if CFG['STAMPS'] != 'e' and name in ('first', 'k0'):
            return
        if CFG['STAMPS'] == 'm' and name not in ('start', 'q_ok', 'softmax', 'v2', 'pv_done', 'o_stored', 'wm0', 'wm1', 'wm2', 'wm4', 'wm3', 'wm5', 'mod_landed', 'mod_ok', 'e4_ok', 'end'):
            return
        if CFG['STAMPS'] is True and name in ('arrived', 'v2', 'wm0', 'wm1', 'wm2', 'wm4', 'wm3', 'wm5'):
            return
        if CFG['STAMPS']:
            k = S_STAMP + self.nstamp
            assert k < 100
            self.e(f's_memrealtime s[100:101]\ns_waitcnt lgkmcnt(0)\ns_mov_b32 s{k}, s100')
            self.nstamp += 1
            self.stamp_names.append(name)

    def srd(self, d, p, nbytes):
        self.e(f's_mov_b32 s{d}, s{p}\ns_mov_b32 s{d + 1}, s{p + 1}\ns_mov_b32 s{d + 2}, {hex(nbytes)}\ns_mov_b32 s{d + 3}, 0x20000')

    def lane(self, dst, terms, const=0, sadd=None, tmp=None):
        first = True
        for sh, bits, mul in terms:
            t = dst if first else tmp
            assert t is not None
            if sh == 0 and bits >= 6:
                src = 'v1'
            elif sh == 0:
                self.e(f'v_and_b32 v{t}, {(1 << bits) - 1}, v1')
                src = f'v{t}'
            elif sh + bits >= 6:
                self.e(f'v_lshrrev_b32 v{t}, {sh}, v1')
                src = f'v{t}'
            else:
                self.e(f'v_bfe_u32 v{t}, v1, {sh}, {bits}')
                src = f'v{t}'
            if first:
                if mul & (mul - 1) == 0:
                    self.e(f'v_lshlrev_b32 v{dst}, {mul.bit_length() - 1}, {src}')
                else:
                    self.e(f'v_mul_u32_u24 v{dst}, {mul}, {src}')
            else:
                if mul & (mul - 1) == 0:
                    self.e(f'v_lshl_add_u32 v{dst}, {src}, {mul.bit_length() - 1}, v{dst}')
                else:
                    self.e(f'v_mul_u32_u24 v{t}, {mul}, {src}\nv_add_u32 v{dst}, v{t}, v{dst}')
            first = False
        if const:
            self.e(f'v_add_u32 v{dst}, {const}, v{dst}')
        if sadd is not None:
            self.e(f'v_add_u32 v{dst}, s{sadd}, v{dst}')

    def exec_set(self, mask):
        lo, hi = mask & 0xffffffff, mask >> 32
        self.e(f's_mov_b32 exec_lo, {hex(lo)}\ns_mov_b32 exec_hi, {hex(hi)}')

    def exec_all(self):
        self.e('s_mov_b64 exec, -1')

    def maxu(self, dst, regs):
        regs = list(regs)
        if len(regs) % 2 == 0:
            self.e(f'v_max_u32 v{dst}, v{regs[0]}, v{regs[1]}')
            regs = regs[2:]
        else:
            self.e(f'v_max3_u32 v{dst}, v{regs[0]}, v{regs[1]}, v{regs[2]}')
            regs = regs[3:]
        while regs:
            self.e(f'v_max3_u32 v{dst}, v{dst}, v{regs[0]}, v{regs[1]}')
            regs = regs[2:]

    def check_retry(self, issue, regs, tmp):
        ok, lp = self.lab('ok'), self.lab('retry')
        if len(regs) > 1:
            self.maxu(tmp, regs)
        else:
            tmp = regs[0]
        self.e(f'v_cmp_eq_u32 vcc, -1, v{tmp}\ns_cbranch_vccz {ok}\ns_mov_b32 s{S_SPIN}, 0\n{lp}:')
        issue()
        self.e('s_waitcnt vmcnt(0)')
        if len(regs) > 1:
            self.maxu(tmp, regs)
        self.e(f's_add_u32 s{S_SPIN}, s{S_SPIN}, 1\ns_cmp_ge_u32 s{S_SPIN}, {CFG["SPIN"]}\ns_cbranch_scc1 {ok}')
        self.e(f'v_cmp_eq_u32 vcc, -1, v{tmp}\ns_cbranch_vccnz {lp}\n{ok}:')

    def poll_masked(self, issuers, regs, tmp):
        n = len(issuers)
        lp, done = self.lab('poll'), self.lab('polldone')
        self.waitn(0)
        self.e(f's_mov_b32 s{S_VALID}, 0\ns_mov_b32 s{S_SPIN}, 0\n{lp}:')
        for t in range(n):
            sk = self.lab('pi')
            self.e(f's_bitcmp1_b32 s{S_VALID}, {t}\ns_cbranch_scc1 {sk}')
            issuers[t]()
            self.e(f'{sk}:')
        self.e('s_waitcnt vmcnt(0)')
        for t in range(n):
            sk = self.lab('pc')
            self.e(f's_bitcmp1_b32 s{S_VALID}, {t}\ns_cbranch_scc1 {sk}')
            self.maxu(tmp, regs[t])
            self.e(f'v_cmp_eq_u32 vcc, -1, v{tmp}\ns_cbranch_vccnz {sk}\ns_bitset1_b32 s{S_VALID}, {t}\n{sk}:')
        self.e(f's_add_u32 s{S_SPIN}, s{S_SPIN}, 1\ns_cmp_ge_u32 s{S_SPIN}, {CFG["SPIN"]}\ns_cbranch_scc1 {done}')
        self.e(f's_cmp_lg_u32 s{S_VALID}, {hex((1 << n) - 1)}\ns_cbranch_scc1 {lp}\n{done}:')

    def poll_pipe(self, offs, s_base, vo, sets, tmp, accum, mode='pipe'):
        n = len(offs)
        done = self.lab('ppdone')
        if mode == 'rr':
            return self.poll_rr(offs, s_base, vo, sets[0], tmp, accum)

        def issue(base):
            for t in range(n):
                self.e(f's_bitcmp1_b32 s{S_VALID}, {t}\ns_cselect_b64 exec, 0, -1\ns_add_u32 s{S_T3}, s{s_base}, {offs[t]}')
                self.e(f'buffer_load_dwordx4 {vr(base + 4 * t)}, v{vo}, {sr(SRD_WS, 4)}, s{S_T3} offen sc1')
            self.exec_all()

        def check(base):
            self.e(f's_waitcnt vmcnt({n})')
            for t in range(n):
                sk = self.lab('pc')
                self.e(f's_bitcmp1_b32 s{S_VALID}, {t}\ns_cbranch_scc1 {sk}')
                self.maxu(tmp, range(base + 4 * t, base + 4 * t + 4))
                self.e(f'v_cmp_ne_u32 vcc, -1, v{tmp}\ns_or_b64 vcc, vcc, {sr(S_SAVE)}\ns_cmp_eq_u64 vcc, -1\ns_cbranch_scc0 {sk}')
                accum(t, base + 4 * t)
                self.e(f's_bitset1_b32 s{S_VALID}, {t}\n{sk}:')
            self.e(f's_cmp_eq_u32 s{S_VALID}, {hex((1 << n) - 1)}\ns_cbranch_scc1 {done}')
        lp = self.lab('pp')
        self.e(f's_mov_b32 s{S_VALID}, 0\ns_mov_b32 s{S_SPIN}, 0\ns_mov_b64 {sr(S_SAVE)}, 0')
        issue(sets[0])
        self.e(f'{lp}:')
        issue(sets[1])
        check(sets[0])
        issue(sets[0])
        check(sets[1])
        self.e(f's_add_u32 s{S_SPIN}, s{S_SPIN}, 1\ns_cmp_ge_u32 s{S_SPIN}, {CFG["SPIN"]}\ns_cselect_b64 {sr(S_SAVE)}, -1, 0\ns_branch {lp}\n{done}:')
        self.vm = ['stale'] * n

    def poll_rr(self, offs, s_base, vo, base, tmp, accum):
        n = len(offs)
        lp, done = self.lab('pr'), self.lab('prdone')
        self.e(f's_mov_b32 s{S_VALID}, 0\ns_mov_b32 s{S_SPIN}, 0\ns_mov_b64 {sr(S_SAVE)}, 0\n{lp}:')
        for t in range(n):
            sk = self.lab('pi')
            self.e(f's_bitcmp1_b32 s{S_VALID}, {t}\ns_cbranch_scc1 {sk}\ns_add_u32 s{S_T3}, s{s_base}, {offs[t]}')
            self.e(f'buffer_load_dwordx4 {vr(base + 4 * t)}, v{vo}, {sr(SRD_WS, 4)}, s{S_T3} offen sc1\n{sk}:')
        self.e(f's_add_u32 s{S_SPIN}, s{S_SPIN}, 1\ns_cmp_ge_u32 s{S_SPIN}, {CFG["SPIN"]}\ns_cselect_b64 {sr(S_SAVE)}, -1, 0\ns_waitcnt vmcnt(0)')
        for t in range(n):
            sk = self.lab('pc')
            self.e(f's_bitcmp1_b32 s{S_VALID}, {t}\ns_cbranch_scc1 {sk}')
            self.maxu(tmp, range(base + 4 * t, base + 4 * t + 4))
            self.e(f'v_cmp_ne_u32 vcc, -1, v{tmp}\ns_or_b64 vcc, vcc, {sr(S_SAVE)}\ns_cmp_eq_u64 vcc, -1\ns_cbranch_scc0 {sk}')
            accum(t, base + 4 * t)
            self.e(f's_bitset1_b32 s{S_VALID}, {t}\n{sk}:')
        self.e(f's_cmp_lg_u32 s{S_VALID}, {hex((1 << n) - 1)}\ns_cbranch_scc1 {lp}\n{done}:')
        self.vm = []

    def perm_chunk(self, raw, dst, pump_every=0):
        k = 0
        for c in range(4):
            for hi in range(2):
                for jj in range(4):
                    a, b = raw + 4 * (2 * jj) + c, raw + 4 * (2 * jj + 1) + c
                    sel = S_PHI if hi else S_PLO
                    self.e(f'v_perm_b32 v{dst + 4 * (2 * c + hi) + jj}, v{b}, v{a}, s{sel}')
                    k += 1
                    if pump_every and k % pump_every == 0:
                        self.fill()

    def unpack(self, src, d0, d1):
        self.e(f'v_lshlrev_b32 v{d0}, 16, v{src}\nv_and_b32 v{d1}, 0xffff0000, v{src}')

    def rnd2(self, a, b, t):
        self.e(f'v_cvt_pk_bf16_f32 v{t}, v{a}, v{b}')
        self.unpack(t, a, b)

    def rowsum(self, regs, steps):
        for st in steps:
            for r in regs:
                self.e(f'v_add_f32_dpp v{r}, v{r}, v{r} row_ror:{st} row_mask:0xf bank_mask:0xf')

    def swapred(self, op, which, regs, tmps):
        for r, t in zip(regs, tmps):
            self.e(f'v_mov_b32 v{t}, v{r}')
        for r, t in zip(regs, tmps):
            self.e(f'v_permlane{which}_swap_b32 v{r}, v{t}')
        for r, t in zip(regs, tmps):
            self.e(f'{op} v{r}, v{r}, v{t}')


LOG2E = 0x3fb8aa3b
AL_TERMS = [(5, 1, 2048), (0, 4, 16), (4, 1, 8)]
XA_TERMS = [(5, 1, 256), (0, 4, 16), (4, 1, 8)]


def layernorm(p, X, T, fix):
    s0, s1, t0, t1, m0, m1, ad = T[0], T[1], T[2], T[3], T[4], T[5], T[6]
    for q, s in ((0, s0), (1, s1)):
        x = X[4 * q:4 * q + 4]
        p.e(f'v_add_f32 v{s}, v{x[0]}, v{x[1]}\nv_add_f32 v{T[2 + q]}, v{x[2]}, v{x[3]}')
    p.e(f'v_add_f32 v{s0}, v{s0}, v{t0}\nv_add_f32 v{s1}, v{s1}, v{t1}')
    p.rowsum([s0, s1], (8, 4, 2, 1))
    p.swapred('v_add_f32', 16, [s0, s1], [t0, t1])
    A, B = T[8], T[10]
    assert A % 2 == 0 and B % 2 == 0 and T[9] == A + 1 and T[11] == B + 1
    p.e(f'v_mul_f32 v{A}, 0x3c000000, v{s0}\nv_mul_f32 v{B}, 0x3c000000, v{s1}')
    for q, mean in ((0, A), (1, B)):
        x = X[4 * q:4 * q + 4]
        p.e(f'v_sub_f32 v{t0}, v{x[0]}, v{mean}\nv_sub_f32 v{t1}, v{x[1]}, v{mean}')
        p.e(f'v_mul_f32 v{mean + 1}, v{t0}, v{t0}\nv_fmac_f32 v{mean + 1}, v{t1}, v{t1}')
        p.e(f'v_sub_f32 v{t0}, v{x[2]}, v{mean}\nv_sub_f32 v{t1}, v{x[3]}, v{mean}')
        p.e(f'v_fmac_f32 v{mean + 1}, v{t0}, v{t0}\nv_fmac_f32 v{mean + 1}, v{t1}, v{t1}')
    p.rowsum([A + 1, B + 1], (8, 4, 2, 1))
    p.swapred('v_add_f32', 16, [A + 1, B + 1], [t0, t1])
    p.e(f's_lshl_b32 s{S_T0}, s{S_WV}, 5\ns_add_u32 s{S_T0}, s{S_T0}, {L_STATS}')
    p.lane(ad, [(5, 1, 8)], sadd=S_T0)
    p.exec_set(0x0000000100000001)
    p.e(f'ds_write_b64 v{ad}, {vr(A, 2)}\nds_write_b64 v{ad}, {vr(B, 2)} offset:16')
    p.exec_all()
    p.lane(ad, [(0, 3, 32), (5, 1, 8)], const=L_STATS, tmp=t0)
    p.e('s_waitcnt lgkmcnt(0)\ns_barrier')
    p.e(f'ds_read_b64 {vr(A, 2)}, v{ad}\nds_read_b64 {vr(B, 2)}, v{ad} offset:16\ns_waitcnt lgkmcnt(0)')
    p.e(f'v_mov_b32 v{m0}, v{A}\nv_mov_b32 v{m1}, v{B}')
    p.rowsum([m0, m1], (4, 2, 1))
    p.e(f'v_mul_f32 v{m0}, 0x3e000000, v{m0}\nv_mul_f32 v{m1}, 0x3e000000, v{m1}')
    p.e(f'v_sub_f32 v{t0}, v{A}, v{m0}\nv_sub_f32 v{t1}, v{B}, v{m1}')
    p.e(f'v_mul_f32 v{s0}, 0x43000000, v{t0}\nv_mul_f32 v{s1}, 0x43000000, v{t1}')
    p.e(f'v_fmac_f32 v{A + 1}, v{s0}, v{t0}\nv_fmac_f32 v{B + 1}, v{s1}, v{t1}')
    p.rowsum([A + 1, B + 1], (4, 2, 1))
    p.rnd2(m0, m1, t0)
    p.e(f'v_mul_f32 v{s0}, 0x3a800000, v{A + 1}\nv_mul_f32 v{s1}, 0x3a800000, v{B + 1}')
    p.rnd2(s0, s1, t0)
    p.e(f'v_add_f32 v{s0}, 0x3727c5ac, v{s0}\nv_add_f32 v{s1}, 0x3727c5ac, v{s1}')
    p.rnd2(s0, s1, t0)
    p.e(f'v_sqrt_f32 v{s0}, v{s0}\nv_sqrt_f32 v{s1}, v{s1}')
    p.rnd2(s0, s1, t0)
    p.e(f'v_rcp_f32 v{A}, v{s0}\nv_rcp_f32 v{B}, v{s1}')
    for q, m, sd, ri in ((0, m0, s0, A), (1, m1, s1, B)):
        x = X[4 * q:4 * q + 4]
        for r in range(4):
            p.e(f'v_sub_f32 v{x[r]}, v{x[r]}, v{m}')
        p.rnd2(x[0], x[1], t0)
        p.rnd2(x[2], x[3], t1)
        for r in range(4):
            if fix:
                p.e(f'v_mul_f32 v{t0}, v{x[r]}, v{ri}\nv_fma_f32 v{x[r]}, -v{t0}, v{sd}, v{x[r]}\nv_fma_f32 v{x[r]}, v{x[r]}, v{ri}, v{t0}')
            else:
                p.e(f'v_mul_f32 v{x[r]}, v{x[r]}, v{ri}')
        p.rnd2(x[0], x[1], t0)
        p.rnd2(x[2], x[3], t1)


def modulate(p, X, C1, SH, T, out):
    a, b = T[0], T[1]
    for d in range(4):
        x0, x1 = X[2 * d], X[2 * d + 1]
        p.unpack(C1[d], a, b)
        p.e(f'v_mul_f32 v{x0}, v{x0}, v{a}\nv_mul_f32 v{x1}, v{x1}, v{b}')
        p.rnd2(x0, x1, a)
        p.unpack(SH[d], a, b)
        p.e(f'v_add_f32 v{x0}, v{x0}, v{a}\nv_add_f32 v{x1}, v{x1}, v{b}')
        p.e(f'v_cvt_pk_bf16_f32 v{out[d]}, v{x0}, v{x1}')


def one_plus(p, C, T):
    a, b = T[0], T[1]
    for c in C:
        p.unpack(c, a, b)
        p.e(f'v_add_f32 v{a}, 1.0, v{a}\nv_add_f32 v{b}, 1.0, v{b}\nv_cvt_pk_bf16_f32 v{c}, v{a}, v{b}')


def xa_base(p, s):
    p.e(f's_lshl_b32 s{s}, s{S_WV}, 10\ns_add_u32 s{s}, s{s}, {L_XA}')


def push_narrow_weights(p, tag0, pitch, raw0, raw1, vo, s_base, need=None):
    for u, raw in ((0, raw0), (1, raw1)):
        for jj in range(8):
            def fn(tag, u=u, raw=raw, jj=jj):
                p.e(f's_add_u32 s{S_T3}, s{s_base}, {(64 * u + jj) * pitch}')
                p.vmem(f'buffer_load_dwordx4 {vr(raw + 4 * jj)}, v{vo}, {sr(SRD_W, 4)}, s{S_T3} offen nt', tag)
            p.push(f'{tag0}{u}', fn, need[u] if need else None)


def narrow_setup(p, pitch, vo, s_base, s_col, tmp, rows=128):
    p.lane(vo, [(3, 3, 8 * pitch), (0, 3, 16)], tmp=tmp)
    p.e(f's_mul_i32 s{s_base}, s{S_WV}, {rows * pitch}\ns_add_u32 s{s_base}, s{s_base}, s{s_col}')


def narrow_gemv(p, F0, F1, B, ACC, T, s_out, f32=False):
    a0, a1, t0 = T[0], T[1], T[2]
    xa_base(p, S_T0)
    p.lane(a0, [(0, 2, 256), (4, 2, 32), (3, 1, 16)], sadd=S_T0, tmp=t0)
    p.e(f's_mov_b32 s{S_MASK}, 0x0f0f0f0f\ns_mov_b32 s{S_MASK + 1}, 0x0f0f0f0f\nv_mov_b32 v{t0}, {L_ZERO}')
    p.e(f'v_cndmask_b32 v{a1}, v{a0}, v{t0}, {sr(S_MASK)}\nv_cndmask_b32 v{a0}, v{t0}, v{a0}, {sr(S_MASK)}')
    FF = [F0] if F1 is None else [F0, F1]
    for u in range(len(FF)):
        p.e(f'ds_read_b128 {vr(B + 8 * u)}, v{a0} offset:{128 * u}\nds_read_b128 {vr(B + 8 * u + 4)}, v{a1} offset:{128 * u}')
    p.e(f's_lshl_b32 s{S_T0}, s{S_WV}, 11\ns_add_u32 s{S_T0}, s{S_T0}, {L_RED}')
    p.lane(a0, [(5, 1, 1024), (0, 2, 256), (2, 1, 128), (4, 1, 16)], sadd=S_T0, tmp=t0)
    p.e('s_waitcnt lgkmcnt(0)')
    for u, F in enumerate(FF):
        for e in range(8):
            acc = vr(ACC + 4 * (e & 3))
            c = '0' if (u == 0 and e < 4) else acc
            p.e(f'v_mfma_f32_16x16x32_bf16 {acc}, {vr(F + 4 * e)}, {vr(B + 8 * u + 4 * (e >> 2))}, {c}')
        p.fill()
    p.exec_set(0xff00ff0000ff00ff)
    for a in range(4):
        p.e(f'ds_write_b128 v{a0}, {vr(ACC + 4 * a)} offset:{32 * a}')
    p.exec_all()
    p.e(f's_lshl_b32 s{S_T0}, s{S_WV}, 8\ns_add_u32 s{S_T0}, s{S_T0}, {L_RED}')
    p.lane(a1, [(2, 1, 128), (0, 2, 32), (5, 1, 16), (3, 2, 4)], sadd=S_T0, tmp=t0)
    p.fill()
    p.e('s_waitcnt lgkmcnt(0)\ns_barrier')
    sk = p.lab('fin')
    p.e(f's_cmp_ge_u32 s{S_WV}, 4\ns_cbranch_scc1 {sk}')
    for k in range(8):
        p.e(f'ds_read2st64_b32 {vr(B + 2 * k, 2)}, v{a1} offset0:{8 * k} offset1:{8 * k + 4}')
    so, stride = s_out
    p.e(f's_mul_i32 s{S_T0}, s{S_WV}, {stride}\ns_add_u32 s{S_T0}, s{S_T0}, s{so}\nv_lshlrev_b32 v{a0}, {2 if f32 else 1}, v1\ns_waitcnt lgkmcnt(0)')
    for w in (8, 4, 2, 1):
        for k in range(w):
            p.e(f'v_add_f32 v{B + k}, v{B + k}, v{B + k + w}')
    if f32:
        for k in (1, 2, 3):
            p.e(f'v_mov_b32_dpp v{B + k}, v{B} quad_perm:[{k},{k},{k},{k}] row_mask:0xf bank_mask:0xf')
        p.exec_set(0x1111111111111111)
        ACC = B
    else:
        p.e(f'v_mov_b32_dpp v{B + 1}, v{B} quad_perm:[1,1,3,3] row_mask:0xf bank_mask:0xf')
        p.e(f'v_cvt_pk_bf16_f32 v{ACC}, v{B}, v{B + 1}')
        for k in (1, 2, 3):
            p.e(f'v_mov_b32_dpp v{ACC + k}, v{ACC} row_shl:{2 * k} row_mask:0xf bank_mask:0xf')
        p.exec_set(0x0101010101010101)
    p.e(f'buffer_store_dwordx4 {vr(ACC)}, v{a0}, {sr(SRD_WS, 4)}, s{S_T0} offen sc1')
    p.exec_all()
    p.e(f'{sk}:')


def push_al_loads(p, tag, srd, dst, vo, s_base, flags=''):
    def issue(model=True):
        for q in range(2):
            p.e(f's_add_u32 s{S_T3}, s{s_base}, {4096 * q}')
            s = f'buffer_load_dwordx2 {vr(dst + 2 * q, 2)}, v{vo}, {sr(srd, 4)}, s{S_T3} offen {flags}'
            p.vmem(s, tag) if model else p.e(s)
    if tag is not None:
        p.push(tag, lambda t: issue())
    return issue


def silu_to_xa(p, C, T, wa):
    a, b, ea, eb = T[0], T[1], T[2], T[3]
    xa_base(p, S_T0)
    p.lane(wa, XA_TERMS, sadd=S_T0, tmp=a)
    for d in range(4):
        p.unpack(C + d, a, b)
        p.e(f'v_mul_f32 v{ea}, {hex(LOG2E | 0x80000000)}, v{a}\nv_mul_f32 v{eb}, {hex(LOG2E | 0x80000000)}, v{b}')
        p.e(f'v_exp_f32 v{ea}, v{ea}\nv_exp_f32 v{eb}, v{eb}')
        p.e(f'v_add_f32 v{ea}, 1.0, v{ea}\nv_add_f32 v{eb}, 1.0, v{eb}')
        p.e(f'v_rcp_f32 v{T[4]}, v{ea}\nv_rcp_f32 v{T[5]}, v{eb}')
        p.e(f'v_mul_f32 v{T[6]}, v{a}, v{T[4]}\nv_mul_f32 v{T[7]}, v{b}, v{T[5]}')
        p.e(f'v_cvt_pk_bf16_f32 v{C + d}, v{T[6]}, v{T[7]}')
    p.e(f'ds_write_b64 v{wa}, {vr(C, 2)}\nds_write_b64 v{wa}, {vr(C + 2, 2)} offset:512')


R_Q, R_S, R_V01, R_K = 16, 32, 64, 128
R_P0, R_P1, R_ACC = 16, 32, 48
VCH = [64, 96, 128, 160]


def entry(p):
    if CFG['STAMPS'] == 'e':
        p.e('s_memrealtime s[98:99]')
    p.e(f'''
    s_cmp_ge_u32 s2, 256
    s_cbranch_scc1 L_end
    s_load_dwordx16 s[32:47], s[0:1], 0
    s_load_dwordx8 s[48:55], s[0:1], 64
    s_load_dwordx4 s[56:59], s[0:1], 96
    v_lshrrev_b32 v2, 6, v0
    v_and_b32 v1, 63, v0
    s_lshr_b32 s{S_W8}, s2, 3
    v_readfirstlane_b32 s{S_WV}, v2
    v_lshlrev_b32 v0, 4, v1
    s_getpc_b64 s[60:61]
    L_pc:
    s_lshl_b32 s62, s{S_W8}, 3
    s_add_u32 s62, s62, s{S_WV}
    s_lshl_b32 s62, s62, 10
    s_min_u32 s62, s62, L_code_end-{NAME}_kernel-1024
    s_sub_u32 s60, s60, L_pc-{NAME}_kernel
    s_subb_u32 s61, s61, 0
    s_add_u32 s60, s60, s62
    s_addc_u32 s61, s61, 0''')
    p.vmem('global_load_dwordx4 v[252:255], v0, s[60:61]', 'code')
    p.e(f'''
    s_add_u32 s{S_ROT}, s{S_W8}, s{S_WV}
    s_and_b32 s{S_ROT}, s{S_ROT}, 7
    s_lshl_b32 s{S_ROT}, s{S_ROT}, 12
    s_cmp_ge_u32 s2, 120
    s_cselect_b32 s5, 40, 0
    s_cmp_ge_u32 s2, 216
    s_cselect_b32 s5, 0xffffffa0, s5
    s_add_u32 s5, s5, s2
    s_lshl_b32 s{S_KV}, s5, 18
    s_add_u32 s{S_KV}, s{S_KV}, s{S_ROT}
    s_mov_b32 s{SRD_K + 2}, 0x4000000
    s_mov_b32 s{SRD_K + 3}, 0x20000
    s_sub_u32 s62, s2, 120
    s_cmp_lt_u32 s62, 64
    s_cbranch_scc1 L_class_Q
    s_cmp_lt_u32 s62, 80
    s_cbranch_scc1 L_class_P
    s_cmp_lt_u32 s62, 96
    s_cbranch_scc1 L_class_PR''')
    p.vm_pre = list(p.vm)
    got_args(p)
    for j in range(4):
        p.vmem(f'buffer_load_dwordx4 {vr(R_K + 4 * j)}, v0, {sr(SRD_K, 4)}, s{S_KV} offen offset:{1024 * j} nt', 'K0')
    p.e(f'''
    s_cmp_lt_u32 s2, 64
    s_cbranch_scc1 L_class_O
    s_cmp_lt_u32 s2, 120
    s_cbranch_scc1 L_class_M
    s_branch L_class_R''')


def got_args(p):
    p.e(f's_waitcnt lgkmcnt(0)\ns_mov_b32 s{SRD_K}, s{P_K}\ns_mov_b32 s{SRD_K + 1}, s{P_K + 1}')


def common_setup(p):
    if CFG['STAMPS'] == 'e':
        p.e(f's_waitcnt lgkmcnt(0)\ns_mov_b32 s{S_STAMP}, s98')
        p.nstamp = 1
        p.stamp_names = ['entry']
    p.stamp('start')
    if CFG['DBGOUT']:
        p.e('s_memtime s[100:101]\ns_waitcnt lgkmcnt(0)\ns_mov_b32 s99, s100')
    p.srd(SRD_WS, P_WS, WS_BYTES)
    p.e('v_mov_b32 v4, -1\nv_mov_b32 v5, -1\nv_mov_b32 v6, -1\nv_mov_b32 v7, -1')


def common_setup2(p):
    p.srd(SRD_V, P_V, 0x4000000)
    p.srd(SRD_D, P_DBG, 256)
    p.e(f's_mov_b32 s{S_PLO}, 0x05040100\ns_mov_b32 s{S_PHI}, 0x07060302')


def clear_rows(p, s_off, stride, nb):
    lanes = nb // 16
    sh = lanes.bit_length() - 1
    p.lane(2, [(sh, 2, stride), (0, sh, 16)], tmp=3)
    if lanes * 4 < 64:
        p.exec_set((1 << (lanes * 4)) - 1)
    p.e(f'buffer_store_dwordx4 v[4:7], v2, {sr(SRD_WS, 4)}, s{s_off} offen sc1')
    p.exec_all()


def clears(p, role):
    sk = p.lab('clr')
    p.e(f's_cmp_lg_u32 s{S_WV}, 0\ns_cbranch_scc1 {sk}\ns_setprio 3')
    role()
    p.e(f's_lshl_b32 s{S_T0}, s5, 11\ns_add_u32 s{S_T0}, s{S_T0}, {WS_OP}')
    p.e(f'buffer_store_dwordx4 v[4:7], v0, {sr(SRD_WS, 4)}, s{S_T0} offen sc1')
    p.e(f'buffer_store_dwordx4 v[4:7], v0, {sr(SRD_WS, 4)}, s{S_T0} offen offset:1024 sc1')
    p.e(f's_lshl_b32 s{S_T0}, s5, 7\ns_add_u32 s{S_T0}, s{S_T0}, {WS_ML}')
    p.exec_set(0xff)
    p.e(f'buffer_store_dwordx4 v[4:7], v0, {sr(SRD_WS, 4)}, s{S_T0} offen sc1')
    p.exec_all()
    p.e(f'v_mov_b32 v8, 0\nv_mov_b32 v9, 0\nv_lshlrev_b32 v2, 3, v1\nds_write_b64 v2, v[8:9] offset:{L_ZERO}\nds_write_b32 v8, v8 offset:{L_CNT}')
    p.e(f's_setprio 0\n{sk}:')
    p.nclear = len(p.vm)


def count_b(p):
    sk = p.lab('arr')
    p.e(f's_cmp_lg_u32 s{S_WV}, 0\ns_cbranch_scc1 {sk}\ns_mov_b32 s{S_T0}, 1')
    p.e(f's_atomic_add s{S_T0}, {sr(P_DBG)}, 0\n{sk}:')


def arrive(p, off):
    sk = p.lab('arr')
    p.e(f's_cmp_lg_u32 s{S_WV}, 0\ns_cbranch_scc1 {sk}')
    p.e(f's_waitcnt vmcnt({len(p.vm) - p.nclear}) lgkmcnt(0)')
    p.stamp('arrived')
    for o in off:
        p.e(f's_mov_b32 s{S_T0}, 1\ns_atomic_add s{S_T0}, {sr(P_DBG)}, {o}')
    p.e(f'{sk}:\ns_barrier')


def push_cnt(p, dst, tag='CNT', off=0):
    p.push(tag, lambda t: p.vmem(f'buffer_load_dword v{dst}, off, {sr(SRD_D, 4)}, 0 offset:{off} sc1', t))


def check_cnt(p, dst, tag='CNT', off=0, total=256):
    p.need(tag)
    ok, lp = p.lab('cok'), p.lab('cretry')
    p.e(f'v_readfirstlane_b32 s{S_T0}, v{dst}\ns_mov_b32 s{S_SPIN}, 0\ns_cmp_ge_u32 s{S_T0}, {total}\ns_cbranch_scc1 {ok}\n{lp}:')
    p.e(f'buffer_load_dword v{dst}, off, {sr(SRD_D, 4)}, 0 offset:{off} sc1\ns_waitcnt vmcnt(0)\nv_readfirstlane_b32 s{S_T0}, v{dst}')
    p.e(f's_add_u32 s{S_SPIN}, s{S_SPIN}, 1\ns_cmp_ge_u32 s{S_SPIN}, {CFG["SPIN"]}\ns_cbranch_scc1 {ok}')
    p.e(f's_cmp_lt_u32 s{S_T0}, {total}\ns_cbranch_scc1 {lp}\n{ok}:')
    p.release(tag.lower())


def push_page(p, srd, tag, page, dst, need=None):
    for j in range(4):
        def fn(t, j=j):
            if j == 0 or True:
                p.e(f's_add_u32 s{S_T3}, s{S_KV}, {page * 32768}')
            p.vmem(f'buffer_load_dwordx4 {vr(dst + 4 * j)}, v0, {sr(srd, 4)}, s{S_T3} offen offset:{1024 * j} nt', t)
        p.push(tag, fn, need)


def push_k(p, t):
    push_page(p, SRD_K, f'K{t}', t, R_K + 16 * t)


def push_v(p, u, need=None):
    push_page(p, SRD_V, f'V{u}', 2 * u, VCH[u], need)
    push_page(p, SRD_V, f'V{u}', 2 * u + 1, VCH[u] + 16, need)


def k_setup(p):
    p.e(f's_lshl_b32 s{S_T0}, s{S_WV}, 12')
    p.e(f'v_lshrrev_b32 v6, 4, v1\nv_lshlrev_b32 v7, 2, v6\nv_xor_b32 v7, v7, v1\nv_and_b32 v7, 15, v7\nv_lshlrev_b32 v7, 4, v7')
    p.e(f'v_lshl_add_u32 v2, v6, 8, v7\nv_add_u32 v2, s{S_T0}, v2')
    for j in (1, 2, 3):
        p.e(f'v_xor_b32 v{2 + j}, {16 * j}, v2')
    p.e(f'v_xor_b32 v7, v6, v1\nv_and_b32 v7, 15, v7\nv_lshlrev_b32 v7, 4, v7')
    p.e(f'v_and_b32 v8, 3, v1\nv_lshl_add_u32 v7, v8, 10, v7\nv_bfe_u32 v8, v1, 2, 2\nv_lshl_add_u32 v7, v8, 8, v7\nv_add_u32 v6, s{S_T0}, v7')
    for m in (1, 2, 3):
        p.e(f'v_xor_b32 v{6 + m}, {64 * m}, v6')


def k_trans(p, t):
    p.need(f'K{t}')
    for j in range(4):
        p.e(f'ds_write_b128 v{2 + j}, {vr(R_K + 16 * t + 4 * j)} offset:{1024 * j}')
    for m in range(4):
        p.e(f'ds_read_b128 {vr(R_K + 16 * t + 4 * m)}, v{6 + m}')


def q_loads(p, vo):
    def issue(model):
        for m in range(4):
            s = f'buffer_load_dwordx4 {vr(R_Q + 4 * m)}, v{vo}, {sr(SRD_WS, 4)}, s{S_U + 3} offen offset:{64 * m} sc1'
            p.vmem(s, 'Q') if model else p.e(s)
    return issue


def push_q(p, vo):
    def fn(t):
        p.e(f's_lshr_b32 s{S_U + 3}, s5, 4\ns_lshl_b32 s{S_U + 3}, s{S_U + 3}, 11\ns_add_u32 s{S_U + 3}, s{S_U + 3}, {WS_Q}')
        p.lane(vo, [(0, 3, 256), (4, 2, 16)], tmp=R_Q)
        q_loads(p, vo)(True)
    p.push('Q', fn, 'cnt')


def qk_softmax(p, vo_q):
    p.need('Q')
    p.check_retry(lambda: q_loads(p, vo_q)(False), list(range(R_Q, R_Q + 16)), 10)
    p.e('s_waitcnt lgkmcnt(0)')
    p.stamp('q_ok')
    for t in range(8):
        for m in range(4):
            s = vr(R_S + 4 * t)
            p.e(f'v_mfma_f32_16x16x32_bf16 {s}, {vr(R_K + 16 * t + 4 * m)}, {vr(R_Q + 4 * m)}, {"0" if m == 0 else s}')
        if t == 1:
            p.release('K01')
            p.burst(2)
        if t == 7:
            p.release('K47')
            p.burst(CFG['BURST'])
    T = 2
    for t in range(8):
        x = R_S + 4 * t
        for h in (0, 2):
            p.rnd2(x + h, x + h + 1, T + h // 2)
        for r in range(4):
            p.e(f'v_mul_f32 v{x + r}, 0x3db504f3, v{x + r}')
        for h in (0, 2):
            p.rnd2(x + h, x + h + 1, T + h // 2)
        if t == 0:
            p.e(f'v_max_f32 v4, v{x}, v{x + 1}')
        else:
            p.e(f'v_max3_f32 v4, v4, v{x}, v{x + 1}')
        p.e(f'v_max3_f32 v4, v4, v{x + 2}, v{x + 3}')
        if t % 2:
            p.fill()
    p.W += CFG['BURST'] - 2
    p.pump(2)
    p.W -= CFG['BURST'] - 2
    p.swapred('v_max_f32', 16, [4], [5])
    p.swapred('v_max_f32', 32, [4], [5])
    p.e(f'v_mul_f32 v6, {hex(LOG2E | 0x80000000)}, v4\ns_mov_b32 s{S_T0}, {hex(LOG2E)}')
    p.e(f's_mov_b32 s{S_MASK}, 0x00ff00ff\ns_mov_b32 s{S_MASK + 1}, 0x00ff00ff\nv_mov_b32 v5, 0')
    for t in range(8):
        x = R_S + 4 * t
        for r in range(4):
            p.e(f'v_fma_f32 v{x + r}, v{x + r}, s{S_T0}, v6')
        for r in range(4):
            p.e(f'v_exp_f32 v{x + r}, v{x + r}')
        p.e(f'v_add_f32 v7, v{x}, v{x + 1}\nv_add_f32 v8, v{x + 2}, v{x + 3}')
        p.e(f'v_cvt_pk_bf16_f32 v2, v{x}, v{x + 1}\nv_cvt_pk_bf16_f32 v3, v{x + 2}, v{x + 3}')
        p.e(f'v_add_f32 v5, v5, v7\nv_add_f32 v5, v5, v8')
        for d in range(2):
            p.e(f'v_cndmask_b32 v{R_P0 + 2 * t + d}, 0, v{2 + d}, {sr(S_MASK)}')
            p.e(f'v_cndmask_b32 v{R_P1 + 2 * t + d}, v{2 + d}, 0, {sr(S_MASK)}')
        if t % 2:
            p.fill()
    p.swapred('v_add_f32', 16, [5], [6])
    p.swapred('v_add_f32', 32, [5], [6])
    p.e(f's_lshl_b32 s{S_T0}, s{S_WV}, 6\ns_add_u32 s{S_T0}, s{S_T0}, {L_MLW}\nv_lshlrev_b32 v6, 3, v1\nv_add_u32 v7, s{S_T0}, v6')
    p.e(f'v_mov_b32 v8, 1\nv_mov_b32 v9, {L_CNT}')
    p.exec_set(0xff)
    p.e('ds_write_b64 v7, v[4:5]\ns_mov_b64 exec, 1\nds_add_rtn_u32 v8, v9, v8')
    p.exec_all()
    sk = p.lab('ml')
    p.e(f's_waitcnt lgkmcnt(0)\nv_readfirstlane_b32 s{S_T0}, v8\ns_cmp_lg_u32 s{S_T0}, 7\ns_cbranch_scc1 {sk}')
    p.e(f'ds_read_b64 v[8:9], v6 offset:{L_MLW}\ns_waitcnt lgkmcnt(0)')
    ml_combine(p, 8, 9, 2, 3, 7)
    p.e(f's_lshl_b32 s{S_T0}, s5, 7\ns_add_u32 s{S_T0}, s{S_T0}, {WS_ML}')
    p.exec_set(0xff)
    p.e(f'buffer_store_dwordx2 v[2:3], v6, {sr(SRD_WS, 4)}, s{S_T0} offen sc1')
    p.exec_all()
    p.e(f'{sk}:')
    p.stamp('softmax')


def ml_combine(p, m, l, M, L, t):
    p.e(f'v_max_f32_dpp v{M}, v{m}, v{m} row_ror:8 row_mask:0xf bank_mask:0xf')
    p.swapred('v_max_f32', 16, [M], [t])
    p.swapred('v_max_f32', 32, [M], [t])
    p.e(f'v_sub_f32 v{t}, v{m}, v{M}\nv_mul_f32 v{t}, {hex(LOG2E)}, v{t}\nv_exp_f32 v{t}, v{t}\nv_mul_f32 v{L}, v{l}, v{t}')
    p.e(f'v_add_f32_dpp v{L}, v{L}, v{L} row_ror:8 row_mask:0xf bank_mask:0xf')
    p.swapred('v_add_f32', 16, [L], [t])
    p.swapred('v_add_f32', 32, [L], [t])


def pv_chunk(p, u, T):
    p.need(f'V{u}')
    raw = VCH[u]
    for c in range(4):
        tb = T + 8 * (c & 1)
        for hi in range(2):
            for jj in range(4):
                a, b = raw + 4 * (2 * jj) + c, raw + 4 * (2 * jj + 1) + c
                p.e(f'v_perm_b32 v{tb + 4 * hi + jj}, v{b}, v{a}, s{S_PHI if hi else S_PLO}')
        for hi in range(2):
            e = 2 * c + hi
            acc = vr(R_ACC + 4 * (e & 3))
            cc = '0' if (u == 0 and e < 4) else acc
            pb = (R_P0 if e < 4 else R_P1) + 4 * u
            p.e(f'v_mfma_f32_16x16x32_bf16 {acc}, {vr(tb + 4 * hi)}, {vr(pb)}, {cc}')
        p.fill()


def ml_loads(p):
    def issue(model):
        for k in range(2):
            s = f'buffer_load_dwordx2 {vr(6 + 2 * k, 2)}, v2, {sr(SRD_WS, 4)}, s{S_U + 3} offen offset:{1024 * k} sc1'
            p.vmem(s, 'ML') if model else p.e(s)
    return issue


def push_ml(p):
    def fn(t):
        p.e(f's_lshr_b32 s{S_U + 3}, s5, 4\ns_lshl_b32 s{S_U + 3}, s{S_U + 3}, 11\ns_add_u32 s{S_U + 3}, s{S_U + 3}, {WS_ML}')
        p.lane(2, [(3, 3, 128), (0, 3, 8)], tmp=3)
        ml_loads(p)(True)
    p.push('ML', fn, 'sm')


def ml_scale(p):
    p.need('ML')
    p.stamp('ml_landed')
    p.check_retry(lambda: ml_loads(p)(False), [6, 7, 8, 9], 3)
    p.e(f'''v_max_f32 v3, v6, v8
    v_sub_f32 v6, v6, v3
    v_sub_f32 v8, v8, v3
    v_mul_f32 v6, {hex(LOG2E)}, v6
    v_mul_f32 v8, {hex(LOG2E)}, v8
    v_exp_f32 v6, v6
    v_exp_f32 v8, v8
    v_mul_f32 v7, v7, v6
    v_fmac_f32 v7, v9, v8''')
    ml_combine(p, 3, 7, 6, 8, 9)
    p.e(f'v_sub_f32 v4, v4, v6\nv_mul_f32 v4, {hex(LOG2E)}, v4\nv_exp_f32 v4, v4\nv_rcp_f32 v8, v8\nv_mul_f32 v5, v4, v8')
    p.e(f's_mul_i32 s{S_T0}, s{S_WV}, 4864\ns_add_u32 s{S_T0}, s{S_T0}, {L_OPART}')
    p.lane(6, [(0, 3, 592), (4, 2, 144), (3, 1, 64)], sadd=S_T0, tmp=3)
    p.e(f's_mul_i32 s{S_T0}, s{S_WV}, 592\ns_add_u32 s{S_T0}, s{S_T0}, {L_OPART}')
    p.lane(7, [(4, 2, 144), (1, 1, 64), (0, 1, 32), (2, 2, 4)], sadd=S_T0, tmp=3)
    p.e('v_add_u32 v8, 16, v7\nv_lshlrev_b32 v9, 2, v1')
    p.e(f's_lshl_b32 s{S_U + 3}, s5, 11\ns_lshl_b32 s{S_T1}, s{S_WV}, 8\ns_add_u32 s{S_U + 3}, s{S_U + 3}, s{S_T1}\ns_add_u32 s{S_U + 3}, s{S_U + 3}, {WS_OP}')


def quad_pack_store(p, D, vo, s_off):
    for k in (1, 2, 3):
        p.e(f'v_mov_b32_dpp v{D + k}, v{D} quad_perm:[{k},{k},{k},{k}] row_mask:0xf bank_mask:0xf')
    p.exec_set(0x1111111111111111)
    p.vmem(f'buffer_store_dwordx4 {vr(D)}, v{vo}, {sr(SRD_WS, 4)}, s{s_off} offen sc1', 'st')
    p.exec_all()


def attn_epilogue(p):
    for k in range(16):
        p.e(f'v_mul_f32 v{R_ACC + k}, v5, v{R_ACC + k}')
        if k % 4 == 3:
            p.e(f'ds_write_b128 v6, {vr(R_ACC + k - 3)} offset:{16 * (k // 4)}')
    p.e('s_waitcnt lgkmcnt(0)\ns_barrier')
    B = R_P0
    for k in range(4):
        p.e(f'ds_read2st64_b32 {vr(B + 2 * k, 2)}, v7 offset0:{38 * k} offset1:{38 * k + 19}')
        p.e(f'ds_read2st64_b32 {vr(B + 8 + 2 * k, 2)}, v8 offset0:{38 * k} offset1:{38 * k + 19}')
    p.e('s_waitcnt lgkmcnt(0)')
    for w in (4, 2, 1):
        for h in (0, 8):
            for k in range(w):
                p.e(f'v_add_f32 v{B + h + k}, v{B + h + k}, v{B + h + k + w}')
    p.e(f'v_cvt_pk_bf16_f32 v{B + 4}, v{B}, v{B + 8}')
    quad_pack_store(p, B + 4, 9, S_U + 3)
    p.stamp('o_stored')


def selectors(p, SA, t):
    p.e(f'v_and_b32 v{t}, 1, v1\nv_cmp_eq_u32 vcc, 1, v{t}\nv_mov_b32 v{t}, 0x3f80\nv_mov_b32 v{t + 1}, 1.0')
    p.e(f'v_cndmask_b32 v{t}, v{t}, v{t + 1}, vcc\nv_bfe_u32 v{t + 1}, v1, 1, 3')
    for d in range(8):
        p.e(f'v_cmp_eq_u32 vcc, {d}, v{t + 1}\nv_cndmask_b32 v{SA + d}, 0, v{t}, vcc')


def wide_b_addrs(p, A, base_terms, s_base, const, t):
    p.lane(t, base_terms, const=const, sadd=s_base, tmp=A)
    p.e(f'v_mov_b32 v{t + 1}, {L_ZERO}')
    for j in range(4):
        m = 0x11111111 << j
        p.e(f's_mov_b32 s{S_MASK}, {hex(m)}\ns_mov_b32 s{S_MASK + 1}, {hex(m)}')
        p.e(f'v_cndmask_b32 v{A + j}, v{t + 1}, v{t}, {sr(S_MASK)}')


def push_wide_rows(p, tag, raw, vo, s_base, row0, need=None):
    for jj in range(8):
        def fn(t, jj=jj):
            p.e(f's_add_u32 s{S_T3}, s{s_base}, {(row0 + (jj & ~1)) * 2048}')
            p.vmem(f'buffer_load_dwordx4 {vr(raw + 4 * jj)}, v{vo}, {sr(SRD_W, 4)}, s{S_T3} offen offset:{2048 * (jj & 1)} nt', t)
        p.push(tag, fn, need)


RED_W = [(2, 2, 656), (4, 2, 144), (0, 2, 32)]


def finish(p):
    if CFG['DBGOUT']:
        p.stamp('end')
        sk = p.lab('dbg')
        p.e(f's_cmp_lg_u32 s{S_WV}, 0\ns_cbranch_scc1 {sk}')
        sk2 = p.lab('dbg')
        p.e(f's_cmp_lg_u32 s2, 64\ns_cbranch_scc1 {sk2}\ns_memtime s[100:101]\ns_waitcnt lgkmcnt(0)\ns_sub_u32 s100, s100, s99')
        p.e(f's_atomic_umax s100, {sr(P_DBG)}, 56\ns_sub_u32 s{S_T0}, s{S_STAMP + p.nstamp - 1}, s{S_STAMP}\ns_atomic_umax s{S_T0}, {sr(P_DBG)}, 60\n{sk2}:')
        slots = ['start', 'pre_done', 'k_done', 'q_ok', 'o_stored', 'e3_ok', 'a_stored', 'w_ready', 'e4_ok', 'f_stored', 'end']
        p.e(f's_not_b32 s{S_T0}, s{S_STAMP}\ns_atomic_umax s{S_T0}, {sr(P_DBG)}, 4')
        for k, n in enumerate(p.stamp_names):
            if n in slots:
                p.e(f's_atomic_umax s{S_STAMP + k}, {sr(P_DBG)}, {8 + 4 * slots.index(n)}')
        p.e(f'{sk}:')
    elif CFG['STAMPS']:
        p.e(f's_lshl_b32 s{S_T0}, s2, 3\ns_add_u32 s{S_T0}, s{S_T0}, s{S_WV}\ns_lshl_b32 s{S_T0}, s{S_T0}, 7\ns_add_u32 s{S_T0}, s{S_T0}, {WS_STAMP}')
        p.stamp('end')
        p.e('s_mov_b64 exec, 1\nv_mov_b32 v2, 0')
        for k in range(p.nstamp):
            p.e(f'v_mov_b32 v3, s{S_STAMP + k}\nbuffer_store_dword v3, v2, {sr(SRD_WS, 4)}, s{S_T0} offen offset:{4 * k}')
    p.e('s_endpgm')


def mod_unit_setup(p, s_unit, s_col, s_out):
    p.e(f's_lshl_b32 s{s_col}, s{s_unit}, 7')
    p.e(f's_lshr_b32 s{s_out}, s{s_unit}, 4\ns_lshl_b32 s{s_out}, s{s_out}, 13\ns_and_b32 s{S_T0}, s{s_unit}, 15')
    p.e(f's_lshl_b32 s{S_T0}, s{S_T0}, 7\ns_add_u32 s{s_out}, s{s_out}, s{S_T0}')
    if WS_MOD:
        p.e(f's_add_u32 s{s_out}, s{s_out}, {WS_MOD}')


def quarter_loads(p, s_col):
    p.lane(15, [(3, 3, 4 * 12288), (0, 3, 16)], tmp=128)
    p.e(f's_mul_i32 s{S_T2}, s{S_WV}, {32 * 12288}\ns_add_u32 s{S_T2}, s{S_T2}, s{s_col}')
    for jj in range(4):
        p.e(f's_add_u32 s{S_T3}, s{S_T2}, {jj * 12288}')
        p.waitn(p.W - 1)
        p.vmem(f'buffer_load_dwordx4 {vr(128 + 4 * jj)}, v15, {sr(SRD_W, 4)}, s{S_T3} offen nt', 'WQ')


def quarter_gemv(p, s_out):
    end = p.lab('qend')
    raw, F, B, ACC, a0, a1, t0 = 128, 144, 160, 176, 12, 13, 14
    RED2 = L_STASH
    p.e(f's_cmp_ge_u32 s2, 248\ns_cbranch_scc1 {end}')
    p.e(f's_and_b32 s{S_T0}, s2, 3\ns_lshl_b32 s{S_T0}, s{S_T0}, 1\ns_lshr_b32 s{S_T1}, s{S_WV}, 2\ns_add_u32 s{S_T0}, s{S_T0}, s{S_T1}')
    p.e(f's_lshl_b32 s{S_T0}, s{S_T0}, 10\ns_and_b32 s{S_T1}, s{S_WV}, 3\ns_lshl_b32 s{S_T1}, s{S_T1}, 6\ns_add_u32 s{S_T0}, s{S_T0}, s{S_T1}\ns_add_u32 s{S_T0}, s{S_T0}, {L_XA}')
    p.lane(a0, [(0, 2, 256), (4, 2, 16), (3, 1, 8)], sadd=S_T0, tmp=t0)
    p.e(f's_mov_b32 s{S_MASK}, 0x0f0f0f0f\ns_mov_b32 s{S_MASK + 1}, 0x0f0f0f0f\nv_mov_b32 v{t0}, {L_ZERO}')
    p.e(f'v_cndmask_b32 v{a1}, v{a0}, v{t0}, {sr(S_MASK)}\nv_cndmask_b32 v{a0}, v{t0}, v{a0}, {sr(S_MASK)}')
    p.e(f'ds_read_b64 {vr(B, 2)}, v{a0}\nds_read_b64 {vr(B + 2, 2)}, v{a1}')
    p.e(f's_lshl_b32 s{S_T0}, s{S_WV}, 11\ns_add_u32 s{S_T0}, s{S_T0}, {RED2}')
    p.lane(a0, [(5, 1, 1024), (0, 2, 256), (2, 1, 128), (4, 1, 16)], sadd=S_T0, tmp=t0)
    p.e('s_waitcnt vmcnt(0)')
    for c in range(4):
        for hi in range(2):
            for jj in range(2):
                p.e(f'v_perm_b32 v{F + 2 * (2 * c + hi) + jj}, v{raw + 4 * (2 * jj + 1) + c}, v{raw + 4 * (2 * jj) + c}, s{S_PHI if hi else S_PLO}')
    p.e('s_waitcnt lgkmcnt(0)')
    for e in range(8):
        acc = vr(ACC + 4 * (e & 3))
        p.e(f'v_mfma_f32_16x16x16_bf16 {acc}, {vr(F + 2 * e, 2)}, {vr(B + 2 * (e >> 2), 2)}, {"0" if e < 4 else acc}')
    p.exec_set(0xff00ff0000ff00ff)
    for a in range(4):
        p.e(f'ds_write_b128 v{a0}, {vr(ACC + 4 * a)} offset:{32 * a}')
    p.exec_all()
    p.e(f's_lshl_b32 s{S_T0}, s{S_WV}, 8\ns_add_u32 s{S_T0}, s{S_T0}, {RED2}')
    p.lane(a1, [(2, 1, 128), (0, 2, 32), (5, 1, 16), (3, 2, 4)], sadd=S_T0, tmp=t0)
    p.e(f's_waitcnt lgkmcnt(0)\ns_barrier\ns_cmp_ge_u32 s{S_WV}, 4\ns_cbranch_scc1 {end}')
    for k in range(8):
        p.e(f'ds_read2st64_b32 {vr(B + 2 * k, 2)}, v{a1} offset0:{8 * k} offset1:{8 * k + 4}')
    p.e(f's_lshl_b32 s{S_T0}, s{S_WV}, 11\ns_add_u32 s{S_T0}, s{S_T0}, s{s_out}\nv_lshlrev_b32 v{a0}, 2, v1\ns_waitcnt lgkmcnt(0)')
    for w in (8, 4, 2, 1):
        for k in range(w):
            p.e(f'v_add_f32 v{B + k}, v{B + k}, v{B + k + w}')
    for k in (1, 2, 3):
        p.e(f'v_mov_b32_dpp v{B + k}, v{B} quad_perm:[{k},{k},{k},{k}] row_mask:0xf bank_mask:0xf')
    p.exec_set(0x1111111111111111)
    p.e(f'buffer_store_dwordx4 {vr(B)}, v{a0}, {sr(SRD_WS, 4)}, s{S_T0} offen sc1')
    p.exec_all()
    p.e(f'{end}:')


def capture(p, fn):
    old, p.stream = p.stream, deque()
    fn()
    items, p.stream = list(p.stream), old
    return items


def weave(a, b, lead=0):
    out, a, b = [], list(a), list(b)
    out += b[:lead]
    b = b[lead:]
    while a or b:
        if b:
            out.append(b.pop(0))
        if a:
            out.append(a.pop(0))
    return out


def push_c3(p, tag, ptr, nbytes, wbase, n, first=0, dst=252, stride=None):
    def setup(t):
        p.srd(SRD_A, ptr, nbytes)
        p.e(f's_sub_u32 s{S_T2}, s2, {wbase}\ns_lshl_b32 s{S_T2}, s{S_T2}, 3\ns_add_u32 s{S_T2}, s{S_T2}, s{S_WV}')
        p.e(f's_mul_i32 s{S_T2}, s{S_T2}, {(stride or n) * 8192}\ns_add_u32 s{S_T2}, s{S_T2}, {first * 8192 + 384}')
        p.lane(15, [(3, 3, 1024), (0, 3, 16)], tmp=dst)
        for k in range(n):
            if k:
                p.e(f's_add_u32 s{S_T2}, s{S_T2}, 8192')
            p.vmem(f'buffer_load_dwordx4 {vr(dst)}, v15, {sr(SRD_A, 4)}, s{S_T2} offen', t)
    p.push(tag, setup)


def push_c3mod(p, wbase, dst=252):
    def fn(t):
        p.srd(SRD_A, P_WMOD, 1024 * 12288)
        p.e(f's_sub_u32 s{S_T2}, s2, {wbase}\ns_lshl_b32 s{S_T2}, s{S_T2}, 3\ns_add_u32 s{S_T2}, s{S_T2}, s{S_WV}')
        p.e(f's_lshr_b32 s{S_T3}, s{S_T2}, 7\ns_lshl_b32 s{S_T3}, s{S_T3}, 10\ns_and_b32 s{S_T2}, s{S_T2}, 127')
        p.e(f's_mul_i32 s{S_T2}, s{S_T2}, {8 * 12288}\ns_add_u32 s{S_T2}, s{S_T2}, s{S_T3}\ns_add_u32 s{S_T2}, s{S_T2}, 4096')
        p.lane(15, [(3, 3, 12288), (0, 3, 16)], tmp=dst)
        p.vmem(f'buffer_load_dwordx4 {vr(dst)}, v15, {sr(SRD_A, 4)}, s{S_T2} offen offset:384', t)
        sk = p.lab('c3')
        p.e(f's_cmp_ge_u32 s{S_T3}, 2048\ns_cbranch_scc1 {sk}\ns_add_u32 s{S_T2}, s{S_T2}, 4096')
        p.e(f'buffer_load_dwordx4 {vr(dst)}, v15, {sr(SRD_A, 4)}, s{S_T2} offen offset:384\n{sk}:')
    p.push('c3', fn)


def rewarm(p, label, n, dst):
    if not CFG['REWARM']:
        return
    here = p.lab('pc')
    p.e(f's_getpc_b64 s[{S_T0}:{S_T1}]\n{here}:\ns_lshl_b32 s{S_T2}, s{S_WV}, 10\ns_add_u32 s{S_T2}, s{S_T2}, ({label}-{here})&0xfffffff0')
    p.e(f's_min_u32 s{S_T2}, s{S_T2}, (L_code_end-{here}-{1024 + 8192 * (n - 1)})&0xfffffff0')
    p.e(f's_and_b32 s{S_T0}, s{S_T0}, 0xfffffff0\ns_add_u32 s{S_T0}, s{S_T0}, s{S_T2}\ns_addc_u32 s{S_T1}, s{S_T1}, 0')
    for k in range(n):
        if k:
            p.e(f's_add_u32 s{S_T0}, s{S_T0}, 8192\ns_addc_u32 s{S_T1}, s{S_T1}, 0')
        p.vmem(f'global_load_dwordx4 {vr(dst)}, v0, s[{S_T0}:{S_T1}]', 'code')


def h5_prefetch(p, cls):
    p.e(f's_sub_u32 s{S_T0}, s2, {dict(Q=120 - 16, R=216 - 80, P=184)[cls]}')
    p.srd(SRD_A, P_W2, 3584 * 2048)
    p.e(f's_lshr_b32 s{S_T2}, s{S_T0}, 1\ns_lshl_b32 s{S_T2}, s{S_T2}, 17\ns_and_b32 s{S_T0}, s{S_T0}, 1\ns_lshl_b32 s{S_T0}, s{S_T0}, 15')
    p.e(f's_add_u32 s{S_T2}, s{S_T2}, s{S_T0}\ns_add_u32 s{S_T2}, s{S_T2}, s{S_ROT}')
    for off in (0, 65536)[:CFG['H5']]:
        p.e(f's_add_u32 s{S_T3}, s{S_T2}, {off}')
        for j in range(4):
            p.e(f'buffer_load_dwordx4 v[252:255], v0, {sr(SRD_A, 4)}, s{S_T3} offen offset:{1024 * j}')


def build_class(cls, ent):
    p = Prog(cls)
    pre = {'P': 'mod', 'PR': 'mod', 'Q': 'q'}.get(cls)
    p.vm = list(ent.vm_pre if pre else ent.vm)
    p.e(f'L_class_{cls}:')
    if pre:
        got_args(p)
    common_setup(p)
    Wattn = CFG['W_' + cls]
    S_COL, S_OUT, S_WB = S_U, S_U + 1, S_U + 2
    S_OUT2, S_COL2 = S_U + 4, S_U + 5
    roles = []
    if pre == 'mod':
        p.srd(SRD_W, P_WMOD, 1024 * 12288)
        p.srd(SRD_A, P_C, 8192)
        p.e(f's_sub_u32 s{S_T1}, s2, 184')
        mod_unit_setup(p, S_T1, S_COL, S_OUT)
        narrow_setup(p, 12288, 10, S_WB, S_COL, 3)
    if pre == 'q':
        p.srd(SRD_W, P_WQ, 1024 * 8192)
        p.srd(SRD_A, P_X, 8192)
        p.e(f's_sub_u32 s{S_COL}, s2, 120\ns_lshl_b32 s{S_COL}, s{S_COL}, 7\ns_add_u32 s{S_OUT}, s{S_COL}, {WS_Q}')
        narrow_setup(p, 8192, 10, S_WB, S_COL, 3)
    if pre:
        p.lane(11, AL_TERMS, tmp=3)
        p.e(f's_lshl_b32 s{S_U + 6}, s{S_WV}, 8')
        push_al_loads(p, 'ACT', SRD_A, 16, 11, S_U + 6)
        push_narrow_weights(p, 'WA', 12288 if pre == 'mod' else 8192, 64, 96, 10, S_WB)
        roles.append(lambda: clear_rows(p, S_OUT, 2048 if pre == 'mod' else 8192, 128))
    if cls == 'O' and CFG['HP3']:
        p.srd(SRD_W, P_WMOD, 1024 * 12288)
        p.e(f's_lshl_b32 s{S_T0}, s2, 3\ns_add_u32 s{S_T0}, s{S_T0}, s{S_WV}\ns_lshr_b32 s{S_T1}, s{S_T0}, 7\ns_lshl_b32 s{S_T1}, s{S_T1}, 10')
        p.e(f's_and_b32 s{S_T0}, s{S_T0}, 127\ns_mul_i32 s{S_T0}, s{S_T0}, {8 * 12288}\ns_add_u32 s{S_T0}, s{S_T0}, s{S_T1}')
        p.lane(10, [(3, 3, 12288), (0, 3, 16)], tmp=3)
        p.vmem(f'buffer_load_dwordx4 v[252:255], v10, {sr(SRD_W, 4)}, s{S_T0} offen offset:384', 'hp3')
    if cls in ('PR', 'R'):
        p.e(f's_sub_u32 s{S_T1}, s2, {216 - 32 if cls == "R" else 200 - 80}')
        mod_unit_setup(p, S_T1, S_COL2, S_OUT2)
        roles.append(lambda: clear_rows(p, S_OUT2, 2048, 128))
    if cls == 'R':
        p.e(f's_sub_u32 s{S_T1}, s2, 216\ns_and_b32 s{S_T0}, s{S_T1}, 3\ns_lshr_b32 s{S_T1}, s{S_T1}, 2')
        p.e(f's_lshl_b32 s{S_OUT}, s{S_T0}, 13\ns_lshl_b32 s{S_COL}, s{S_T1}, 8\ns_add_u32 s{S_OUT}, s{S_OUT}, s{S_COL}\ns_add_u32 s{S_OUT}, s{S_OUT}, {WS_CBP}')
        p.e(f's_mul_i32 s{S_T0}, s{S_T0}, {256 * 12288}\ns_lshl_b32 s{S_COL}, s{S_T1}, 7\ns_add_u32 s{S_COL}, s{S_COL}, s{S_T0}\ns_add_u32 s{S_COL}, s{S_COL}, {72 * 128}')

        def q_clear():
            sk = p.lab('qclr')
            p.e(f's_cmp_ge_u32 s2, 248\ns_cbranch_scc1 {sk}')
            clear_rows(p, S_OUT, 2048, 256)
            p.e(f'{sk}:')
        roles.append(q_clear)
    if cls == 'O':
        p.e(f's_and_b32 s{S_COL}, s2, 7\ns_lshl_b32 s{S_OUT}, s{S_COL}, 13\ns_lshl_b32 s{S_T0}, s{S_W8}, 8')
        p.e(f's_add_u32 s{S_OUT}, s{S_OUT}, s{S_T0}\ns_add_u32 s{S_OUT}, s{S_OUT}, {WS_AP}')
        roles.append(lambda: clear_rows(p, S_OUT, 2048, 256))
    if cls == 'M':
        p.e(f's_sub_u32 s{S_COL}, s2, 64\ns_lshl_b32 s{S_OUT}, s{S_COL}, 13\ns_lshl_b32 s{S_T0}, s{S_WV}, 10')
        p.e(f's_add_u32 s{S_OUT}, s{S_OUT}, s{S_T0}\ns_add_u32 s{S_OUT}, s{S_OUT}, {WS_FP}')

        def fp_clear():
            for k in range(8):
                if k % 4 == 0:
                    p.e(f's_add_u32 s{S_T0}, s{S_OUT}, {1024 * k}')
                p.e(f'buffer_store_dwordx4 v[4:7], v0, {sr(SRD_WS, 4)}, s{S_T0} offen offset:{1024 * (k % 4)} sc1')
        roles.append(fp_clear)
    clears(p, lambda: [r() for r in roles])

    def role_setup():
        if cls == 'O':
            p.srd(SRD_W, P_WO, 4096 * 2048)
            p.lane(12, [(4, 2, 8 * 2048), (0, 4, 16)], tmp=13)
            p.e(f's_lshl_b32 s{S_WB}, s{S_COL}, 3\ns_add_u32 s{S_WB}, s{S_WB}, s{S_WV}\ns_lshl_b32 s{S_WB}, s{S_WB}, 17')
            p.e(f's_lshl_b32 s{S_T0}, s{S_W8}, 8\ns_add_u32 s{S_WB}, s{S_WB}, s{S_T0}')
        if cls in ('PR', 'R'):
            p.srd(SRD_W, P_WMOD, 1024 * 12288)
            p.srd(SRD_A, P_C, 8192)
            narrow_setup(p, 12288, 12, S_WB, S_COL2, 13)
            p.lane(13, AL_TERMS, tmp=14)
            p.e(f's_lshl_b32 s{S_U + 6}, s{S_WV}, 8')
        if cls == 'M':
            p.srd(SRD_W, P_W2, 3584 * 2048)
            p.srd(SRD_A, P_X, 8192)
            p.e(f's_mov_b32 s{S_MASK}, 0xff00ff00\ns_mov_b32 s{S_MASK + 1}, 0xff00ff00')
            p.e(f'v_mov_b32 v12, s{P_W1}\nv_mov_b32 v13, s{P_W1 + 1}\nv_mov_b32 v14, s{P_W3}\nv_mov_b32 v15, s{P_W3 + 1}')
            p.e(f'v_cndmask_b32 v12, v12, v14, {sr(S_MASK)}\nv_cndmask_b32 v13, v13, v15, {sr(S_MASK)}')
            p.e(f's_mul_i32 s{S_T0}, s{S_WV}, {128 * 7168}\ns_lshl_b32 s{S_T1}, s{S_COL}, 7\ns_add_u32 s{S_T0}, s{S_T0}, s{S_T1}')
            p.lane(14, [(4, 2, 8 * 7168), (0, 3, 16)], sadd=S_T0, tmp=15)
            p.e('v_mov_b32 v15, 0\nv_lshl_add_u64 v[12:13], v[14:15], 0, v[12:13]')
            p.e(f's_mov_b32 s{S_C64}, 7168\ns_mov_b32 s{S_C64 + 1}, 0\ns_mov_b32 s{S_C64B}, {25 * 7168}\ns_mov_b32 s{S_C64B + 1}, 0')
            p.lane(14, [(4, 2, 8 * 2048), (0, 4, 16)], tmp=15)
            p.e(f's_lshl_b32 s{S_WB}, s{S_COL}, 17\ns_lshl_b32 s{S_T0}, s{S_WV}, 8\ns_add_u32 s{S_WB}, s{S_WB}, s{S_T0}')

    def sc_issue(model):
        for k, chunk in ((0, 0), (1, 1)):
            for q in range(2):
                p.e(f's_add_u32 s{S_T3}, s{S_U + 6}, {WS_MOD + chunk * 8192 + 4096 * q}')
                s = f'buffer_load_dwordx2 {vr(24 + 4 * k + 2 * q, 2)}, v11, {sr(SRD_WS, 4)}, s{S_T3} offen sc1'
                p.vmem(s, 'SC') if model else p.e(s)

    def w13(u, raw, nd):
        def mk(jj):
            def fn(t):
                p.vmem(f'global_load_dwordx4 {vr(raw + 4 * jj)}, v[12:13], off nt', t)
                p.e(f'v_lshl_add_u64 v[12:13], {sr(S_C64B if jj == 7 else S_C64)}, 0, v[12:13]')
            return fn
        return [(f'WM{u}', mk(jj), nd) for jj in range(8)]

    for t in range(0 if pre else 1, 8):
        if t == 4 and CFG['C3']:
            base = dict(O=(0, 2), Q=(120, 2), R=(216, 3), M=(64, 2), P=(184, 4), PR=(184, 4))
            if cls == CFG['C3W1']:
                push_c3(p, 'c3', P_W1, 1024 * 7168, *base[cls])
        if t == 5 and CFG['C3']:
            if cls == CFG['C3W3'] or (CFG['C3W3'] == 'P' and cls == 'PR'):
                push_c3(p, 'c3', P_W3, 1024 * 7168, *base[cls])
        if t == 5 and CFG['C3O'] and cls in ('P', 'PR'):
            push_c3(p, 'c3', P_WO, 4096 * 2048, 184, CFG['C3O'], stride=4)
        if t == 1 and CFG['C3Q'] and cls in CFG['C3Q']:
            wb, n, first = dict(O=(0, 1, 0), R=(216, 1, 512), M=(64, 1, 512))[cls]
            push_c3(p, 'c3', P_WQ, 1024 * 8192, wb, n, first)
        if t == 6 and cls == CFG['C3MOD']:
            push_c3mod(p, dict(O=0, Q=120, M=64)[cls])
        if pre == 'q' and t == 0:
            push_cnt(p, 14, 'CNTA', 128)
        if pre == 'q' and t == CFG['SC_AT']:
            p.push('SC', lambda tg: sc_issue(True), 'cnta')
        if pre and t == 6:
            push_cnt(p, 10)
        push_page(p, SRD_K, f'K{t}', t, R_K + 16 * t, 'pre' if (pre == 'mod' and t == 0) else None)
    vv = capture(p, lambda: push_v(p, 0, 'pre' if pre else None)) + capture(p, lambda: push_v(p, 1, 'pre' if pre else None))
    qi = capture(p, lambda: push_q(p, 11))
    if pre:
        p.stream += qi + vv
    else:
        k = CFG['Q_AT']
        p.stream += vv[:k - 6] + capture(p, lambda: push_cnt(p, 10)) + vv[k - 6:k] + qi + vv[k:]
    v3 = capture(p, lambda: push_v(p, 3, 'pv0'))
    ml = capture(p, lambda: push_ml(p))
    p.stream += capture(p, lambda: push_v(p, 2, 'K01')) + (v3[:3] + ml + v3[3:] if pre else v3)
    mark = len(p.stream)
    if cls == 'O':
        push_wide_rows(p, 'WO0', 192, 12, S_WB, 0)
        push_wide_rows(p, 'WO1', 224, 12, S_WB, 32)
    if cls in ('R', 'PR'):
        wb = capture(p, lambda: push_narrow_weights(p, 'WB', 12288, 192, 224, 12, S_WB))
        wb = capture(p, lambda: push_al_loads(p, 'ACT2', SRD_A, 96, 13, S_U + 6)) + wb
        k = 99 if cls == 'R' else CFG['P_EARLY']
        p.stream += wb[:k] + [(t, f, 'ost') for t, f, _ in wb[k:]]
    if cls == 'M':
        post = w13(0, 192, None) + w13(1, 224, None) + w13(2, 96, None) + w13(3, 128, None)
        post.insert(len(post) - CFG['MOD_AT'], ('MOD', lambda t: m_mod_issue(p, True), 'p2'))
        p.stream += post
        p.w2late = capture(p, lambda: push_wide_rows(p, 'WM4', 96, 14, S_WB, 0)) + capture(p, lambda: push_wide_rows(p, 'WM5', 128, 14, S_WB, 32))
    if not pre:
        p.stream.insert(mark + CFG['ML_AT'], ml[0])

    p.W = CFG['W_PRE'] if pre == 'mod' else CFG['W_PREQ'] if pre else CFG['W_INIT']
    while p.can_pump() and len(p.vm) < p.W and p.stream[0][0] not in ('CNTA', 'K0'):
        p.pump(1)
    p.stamp('first')
    common_setup2(p)
    k_setup(p)
    arrive(p, {'mod': [128, 0], 'q': [0], None: []}[pre])
    p.W = Wattn if pre else CFG['W_LOW']
    if not pre:
        k_trans(p, 0)
        p.stamp('k0')
    if pre == 'mod':
        p.need('ACT')
        silu_to_xa(p, 16, list(range(20, 28)), 12)
        p.need('WA0')
        p.perm_chunk(64, 32)
        p.need('WA1')
        p.stamp('w_landed')
        p.perm_chunk(96, 64)
        narrow_gemv(p, 32, 64, 96, 112, [12, 13, 14], (S_OUT, 2048))
        p.release('pre')
        p.stamp('pre_done')
    if pre == 'q':
        p.need('ACT')
        X = list(range(40, 48))
        for d in range(4):
            p.unpack(16 + d, X[2 * d], X[2 * d + 1])
        layernorm(p, X, list(range(48, 60)), True)
        for d in range(4):
            p.e(f'v_cvt_pk_bf16_f32 v{16 + d}, v{X[2 * d]}, v{X[2 * d + 1]}')
        p.need('WA0')
        p.perm_chunk(64, 32)
        p.need('WA1')
        p.stamp('w_landed')
        p.perm_chunk(96, 64)
        check_cnt(p, 14, 'CNTA', 128, 32)
    for t in range(0 if pre else 1, 8):
        if not pre and t == CFG[dict(M='T_LOW_M', R='T_LOW_R').get(cls, 'T_LOW')]:
            p.W = Wattn
        k_trans(p, t)
        if not pre and t == 1:
            count_b(p)
        if pre == 'q' and t == CFG['SC_AT'] - 1:
            p.need('SC')
            p.stamp('sc_landed')
            p.check_retry(lambda: sc_issue(False), list(range(24, 32)), 12)
            p.stamp('sc_ok')
            X = list(range(96, 104))
            for d in range(4):
                p.unpack(16 + d, X[2 * d], X[2 * d + 1])
            one_plus(p, [28, 29, 30, 31], [104, 105])
            modulate(p, X, [28, 29, 30, 31], [24, 25, 26, 27], [104, 105], [16, 17, 18, 19])
            xa_base(p, S_T0)
            p.lane(12, XA_TERMS, sadd=S_T0, tmp=13)
            p.e('ds_write_b64 v12, v[16:17]\nds_write_b64 v12, v[18:19] offset:512')
            narrow_gemv(p, 32, 64, 96, 112, [12, 13, 14], (S_OUT, 8192))
            p.release('pre')
            p.stamp('pre_done')
        if pre and t == 6:
            check_cnt(p, 10)
    role_setup()
    p.stamp('k_done')
    if not pre:
        check_cnt(p, 10)
    qk_softmax(p, 11)
    p.release('sm')
    pv_chunk(p, 0, 160)
    p.release('pv0')
    pv_chunk(p, 1, 64)
    if CFG['W_END'] and pre:
        p.W = max(p.W, CFG['W_END'])
    pv_chunk(p, 2, 64)
    p.stamp('v2')
    if pre:
        ml_scale(p)
        p.stamp('ml_ok')
    pv_chunk(p, 3, 64)
    p.stamp('pv_done')
    if not pre:
        ml_scale(p)
        p.stamp('ml_ok')
        p.burst(CFG['E_BURST'])
    attn_epilogue(p)
    p.release('ost')
    if pre or cls == 'M':
        p.W = max(p.W, CFG['W_POST'])
    if cls == 'O':
        p.need('WO0')
        p.perm_chunk(192, O_F0)
        while p.can_pump():
            p.pump(1)
        o_setup(p, S_COL, S_OUT)
        p.need('WO1')
        p.perm_chunk(224, O_F1)
        p.stamp('w_ready')
        p.e('L_otail:')
        o_tail(p, S_OUT)
    if cls in ('R', 'PR'):
        p.need('ACT2')
        silu_to_xa(p, 96, list(range(100, 108)), 10)
        p.need('WB0')
        while p.can_pump():
            p.pump(1)
        if cls == 'R':
            quarter_loads(p, S_COL)
        p.perm_chunk(192, 32)
        p.need('WB1')
        p.perm_chunk(224, 64)
        narrow_gemv(p, 32, 64, 96, 112, [12, 13, 14], (S_OUT2, 2048))
        p.stamp('post_done')
        if cls == 'R':
            quarter_gemv(p, S_OUT)
            p.stamp('q_done')
    if cls == 'M':
        m_tail(p, S_COL, S_OUT)
    if cls in ('Q', 'R', 'P') and CFG['H5']:
        h5_prefetch(p, cls)
    assert not p.stream, [t[0] for t in p.stream]
    finish(p)
    return p


O_SEL, O_E3, O_B, O_F0, O_F1 = 16, 128, 24, 96, 192


def o_setup(p, S_KS, S_OUT):
    selectors(p, O_SEL, 10)
    p.lane(13, [(3, 1, 4 * 16 * 2048), (4, 2, 2048), (0, 3, 16)], tmp=10)
    p.e(f's_lshr_b32 s{S_T0}, s{S_KS}, 1\ns_lshl_b32 s{S_T0}, s{S_T0}, 15\ns_and_b32 s{S_T1}, s{S_KS}, 1\ns_lshl_b32 s{S_T1}, s{S_T1}, 10')
    p.e(f's_add_u32 s{S_T0}, s{S_T0}, s{S_T1}\ns_lshl_b32 s{S_T1}, s{S_WV}, 7\ns_add_u32 s{S_T0}, s{S_T0}, s{S_T1}\ns_add_u32 s{S_U + 7}, s{S_T0}, {WS_OP}')
    xa_base(p, S_T0)
    p.lane(14, [(5, 1, 256), (3, 1, 128), (0, 3, 16), (4, 1, 8)], sadd=S_T0, tmp=10)
    wide_b_addrs(p, O_B, [(2, 2, 128), (4, 2, 16)], S_T0, 0, 10)
    p.e(f's_mul_i32 s{S_T0}, s{S_WV}, 2816\ns_add_u32 s{S_T0}, s{S_T0}, {L_RED}')
    p.lane(15, RED_W, sadd=S_T0, tmp=10)
    p.e(f's_mul_i32 s{S_T0}, s{S_WV}, 656\ns_add_u32 s{S_T0}, s{S_T0}, {L_RED}')
    p.lane(O_B + 4, [(4, 2, 144), (0, 2, 32), (2, 2, 4)], sadd=S_T0, tmp=10)
    p.e(f'v_add_u32 v{O_B + 5}, 16, v{O_B + 4}')
    p.e(f's_lshl_b32 s{S_T0}, s{S_WV}, 11\ns_add_u32 s{S_OUT}, s{S_OUT}, s{S_T0}')


def o_tail(p, S_OUT):
    D = 32
    for k in range(4):
        p.e(f'v_mov_b32 v{D + k}, 0')
    offs = [(t >> 2) * 2 * 4 * 16 * 2048 + (t & 3) * 4 * 2048 for t in range(8)]
    p.poll_pipe(offs, S_U + 7, 13, (O_E3, 64), 10,
                lambda t, r: p.e(f'v_mfma_f32_16x16x32_bf16 {vr(D)}, {vr(O_SEL + 4 * (t >> 2))}, {vr(r)}, {vr(D)}'), CFG['P3'])
    p.stamp('e3_ok')
    p.e(f'v_cvt_pk_bf16_f32 v{D}, v{D}, v{D + 1}\nv_cvt_pk_bf16_f32 v{D + 1}, v{D + 2}, v{D + 3}')
    p.e(f'ds_write_b64 v14, {vr(D, 2)}')
    p.stamp('o1')
    B = 160
    for u in range(2):
        for j in range(4):
            p.e(f'ds_read_b128 {vr(B + 16 * u + 4 * j)}, v{O_B + j} offset:{64 * u}')
    A = 40
    for u, F in ((0, O_F0), (1, O_F1)):
        for e in range(8):
            if e % 2 == 0:
                p.e(f's_waitcnt lgkmcnt({7 - 4 * u - e // 2})')
            acc = vr(A + 4 * (e & 1))
            p.e(f'v_mfma_f32_16x16x32_bf16 {acc}, {vr(F + 4 * e)}, {vr(B + 16 * u + 4 * (e >> 1))}, {"0" if (u == 0 and e < 2) else acc}')
    for a in range(2):
        p.e(f'ds_write_b128 v15, {vr(A + 4 * a)} offset:{16 * a}')
    sk = p.lab('ofin')
    p.stamp('o2')
    p.e(f's_waitcnt lgkmcnt(0)\ns_barrier')
    p.stamp('o3')
    p.e(f's_cmp_ge_u32 s{S_WV}, 4\ns_cbranch_scc1 {sk}')
    for k in range(4):
        p.e(f'ds_read2st64_b32 {vr(B + 2 * k, 2)}, v{O_B + 4} offset0:{22 * k} offset1:{22 * k + 11}')
        p.e(f'ds_read2st64_b32 {vr(B + 8 + 2 * k, 2)}, v{O_B + 5} offset0:{22 * k} offset1:{22 * k + 11}')
    p.e('s_waitcnt lgkmcnt(0)')
    for w in (4, 2, 1):
        for h in (0, 8):
            for k in range(w):
                p.e(f'v_add_f32 v{B + h + k}, v{B + h + k}, v{B + h + k + w}')
    p.e(f'v_cvt_pk_bf16_f32 v{B + 4}, v{B}, v{B + 8}')
    quad_pack_store(p, B + 4, 9, S_OUT)
    p.e(f'{sk}:')
    p.stamp('a_stored')


def m_mod_issue(p, model):
    if model:
        p.lane(112, AL_TERMS, tmp=2)
        p.lane(113, [(5, 1, 2048), (0, 4, 32), (4, 1, 16)], tmp=2)
        p.e(f's_lshl_b32 s{S_U + 6}, s{S_WV}, 8')
        for k in list(range(104, 108)) + list(range(160, 192)):
            p.e(f'v_mov_b32 v{k}, 0')
        push_al_loads(p, None, SRD_A, 96, 112, S_U + 6)(False)
    hi, jn = p.lab('cbhi'), p.lab('cbj')
    p.e(f's_cmp_ge_u32 s{S_WV}, 4\ns_cbranch_scc1 {hi}')
    for q in range(2):
        p.e(f's_add_u32 s{S_T3}, s{S_U + 6}, {WS_MOD + 4 * 8192 + 4096 * q}')
        p.e(f'buffer_load_dwordx2 {vr(104 + 2 * q, 2)}, v112, {sr(SRD_WS, 4)}, s{S_T3} offen sc1')
    p.e(f's_branch {jn}\n{hi}:\ns_lshl_b32 s{S_T2}, s{S_WV}, 9')
    for kh in range(4):
        for q in range(2):
            p.e(f's_add_u32 s{S_T3}, s{S_T2}, {WS_CBP - 2048 + 8192 * kh + 4096 * q}')
            p.e(f'buffer_load_dwordx4 {vr(160 + 8 * kh + 4 * q)}, v113, {sr(SRD_WS, 4)}, s{S_T3} offen sc1')
    p.e(f'{jn}:')
    for k, chunk in ((0, 2), (2, 3)):
        for q in range(2):
            p.e(f's_add_u32 s{S_T3}, s{S_U + 6}, {WS_MOD + chunk * 8192 + 4096 * q}')
            s = f'buffer_load_dwordx2 {vr(100 + 4 * k + 2 * q, 2)}, v112, {sr(SRD_WS, 4)}, s{S_T3} offen sc1'
            p.vmem(s, 'MOD') if model else p.e(s)


def m_tail(p, S_MI, S_OUT):
    F = [32, 192, 224, 64, 96, 128]
    raw = [192, 224, 96, 128, 64, 160]
    late = True
    if late:
        F = [32, 192, 224, 64, 32, 192]

    def w2_issue(k):
        if late:
            for t, f, _ in p.w2late[4 * k:4 * k + 4]:
                f(t)
    SP, SEL, D = 160, 16, 24
    p.fill()
    rewarm(p, 'L_mtail', 2, 4)
    for u in (0, 1, 2) if late else (0, 1, 2, 4):
        p.need(f'WM{u}')
        p.stamp(f'wm{u}')
        if u == 4:
            p.e('s_waitcnt lgkmcnt(0)')
        p.perm_chunk(raw[u], F[u])
    p.release('p2')
    while p.can_pump():
        p.pump(1)
    selectors(p, SEL, 2)
    p.lane(11, [(4, 2, 8192), (0, 4, 16)], tmp=2)
    p.e(f's_add_u32 s{S_U + 7}, s{S_U + 6}, {WS_AP}')
    xa_base(p, S_T0)
    p.lane(13, XA_TERMS, sadd=S_T0, tmp=2)
    wide_b_addrs(p, 4, [(2, 2, 256), (4, 2, 16)], S_T0, 0, 2)
    VX1 = 12
    p.e(f's_mul_i32 s{S_T0}, s{S_WV}, 2816\ns_add_u32 s{S_T0}, s{S_T0}, {L_RED}')
    p.lane(15, RED_W, sadd=S_T0, tmp=2)
    p.e(f's_lshr_b32 s{S_T0}, s{S_WV}, 1\ns_mul_i32 s{S_T0}, s{S_T0}, 656\ns_and_b32 s{S_T1}, s{S_WV}, 1\ns_mul_i32 s{S_T1}, s{S_T1}, 144')
    p.e(f's_add_u32 s{S_T0}, s{S_T0}, s{S_T1}\ns_add_u32 s{S_T0}, s{S_T0}, {L_RED}')
    p.lane(8, [(5, 1, 288), (1, 2, 32), (0, 1, 16), (3, 2, 4)], sadd=S_T0, tmp=2)
    p.e(f's_lshl_b32 s{S_T0}, s{S_WV}, 6\ns_add_u32 s{S_T0}, s{S_T0}, {L_X2}')
    p.lane(9, [(0, 5, 2)], sadd=S_T0)
    p.e(f's_lshl_b32 s{S_T0}, s{S_WV}, 5\ns_add_u32 s{S_T0}, s{S_T0}, {L_STATS}')
    p.lane(10, [(5, 1, 8)], sadd=S_T0)
    p.lane(3, [(0, 3, 32), (5, 1, 8)], const=L_STATS, tmp=2)
    for u in (3,) if late else (3, 5):
        p.need(f'WM{u}')
        p.stamp(f'wm{u}')
        p.perm_chunk(raw[u], F[u])
    if late:
        p.e(f's_add_u32 s{S_T0}, s{S_U + 6}, {L_X1}')
        p.lane(VX1, AL_TERMS, sadd=S_T0, tmp=2)
    for k in range(8):
        p.e(f'v_mov_b32 v{D + k}, 0')
    p.need('MOD')
    p.stamp('mod_landed')
    p.check_retry(lambda: m_mod_issue(p, False), list(range(100, 112)) + list(range(160, 192)), 2)
    sk = p.lab('cbs')
    p.e(f's_cmp_lt_u32 s{S_WV}, 4\ns_cbranch_scc1 {sk}')
    for k in range(16):
        p.e(f'v_add_f32 v{160 + k}, v{160 + k}, v{176 + k}')
    for k in range(8):
        p.e(f'v_add_f32 v{160 + k}, v{160 + k}, v{168 + k}')
    for d in range(4):
        p.e(f'v_cvt_pk_bf16_f32 v{104 + d}, v{160 + 2 * d}, v{161 + 2 * d}')
    p.e(f'{sk}:')
    p.e('L_mtail:')
    one_plus(p, list(range(104, 108)), [2, 114])
    for k, dst in enumerate((SP, SP + 16, SP + 8, SP + 24)):
        for d in range(4):
            p.unpack(96 + 4 * k + d, dst + 2 * d, dst + 2 * d + 1)
    p.stamp('w_ready')
    p.waitn(0)
    offs = [(t & 1) * 4 * 8192 + (t >> 1) * 2048 for t in range(8)]
    p.poll_pipe(offs, S_U + 7, 11, (96, 128), 2,
                lambda t, r: p.e(f'v_mfma_f32_16x16x32_bf16 {vr(D + 4 * (t >> 2))}, {vr(SEL + 4 * ((t >> 1) & 1))}, {vr(r)}, {vr(D + 4 * (t >> 2))}'), CFG['P4'])
    p.stamp('e4_ok')
    X = list(range(D, D + 8))
    w2_issue(0)
    for k in range(8):
        p.e(f'v_fmac_f32 v{SP + k}, v{X[k]}, v{SP + 16 + k}')
    PK = SP + 16
    for d in range(4):
        p.e(f'v_cvt_pk_bf16_f32 v{PK + d}, v{SP + 2 * d}, v{SP + 2 * d + 1}')
    for d in range(4):
        p.unpack(PK + d, X[2 * d], X[2 * d + 1])
    p.e(f'ds_write_b64 v{VX1}, {vr(PK, 2)}\nds_write_b64 v{VX1}, {vr(PK + 2, 2)} offset:4096')
    for q in range(2):
        x = X[4 * q:4 * q + 4]
        p.e(f'v_add_f32 v{SP + 2 * q}, v{x[0]}, v{x[1]}\nv_mul_f32 v{SP + 2 * q + 1}, v{x[0]}, v{x[0]}\nv_add_f32 v{SP + 4 + q}, v{x[2]}, v{x[3]}')
    for r in (1, 2, 3):
        for q in range(2):
            p.e(f'v_fmac_f32 v{SP + 2 * q + 1}, v{X[4 * q + r]}, v{X[4 * q + r]}')
    p.e(f'v_add_f32 v{SP}, v{SP}, v{SP + 4}\nv_add_f32 v{SP + 2}, v{SP + 2}, v{SP + 5}')
    R4 = [SP, SP + 2, SP + 1, SP + 3]
    p.rowsum(R4, (8, 4, 2, 1))
    p.swapred('v_add_f32', 16, R4, [SP + 4, SP + 5, SP + 6, SP + 7])
    p.stamp('t1')
    p.exec_set(0x0000000100000001)
    p.e(f'ds_write_b64 v10, {vr(SP, 2)}\nds_write_b64 v10, {vr(SP + 2, 2)} offset:16')
    p.exec_all()
    p.e('s_waitcnt lgkmcnt(0)\ns_barrier')
    p.e(f'ds_read_b64 {vr(SP, 2)}, v3\nds_read_b64 {vr(SP + 2, 2)}, v3 offset:16')
    w2_issue(1)
    p.e('s_waitcnt lgkmcnt(0)')
    p.stamp('t2')
    p.rowsum(R4, (4, 2, 1))
    for q in range(2):
        p.e(f'v_mul_f32 v{SP + 2 * q}, 0x3a800000, v{SP + 2 * q}\nv_mul_f32 v{SP + 2 * q + 1}, 0x3a800000, v{SP + 2 * q + 1}')
    for q in range(2):
        p.e(f'v_fma_f32 v{SP + 2 * q + 1}, -v{SP + 2 * q}, v{SP + 2 * q}, v{SP + 2 * q + 1}')
    for q in range(2):
        p.e(f'v_max_f32 v{SP + 2 * q + 1}, 0, v{SP + 2 * q + 1}')
    for q in range(2):
        p.e(f'v_add_f32 v{SP + 2 * q + 1}, 0x3727c5ac, v{SP + 2 * q + 1}')
    for q in range(2):
        p.e(f'v_rsq_f32 v{SP + 2 * q + 1}, v{SP + 2 * q + 1}')
    for k in range(8):
        p.e(f'v_sub_f32 v{X[k]}, v{X[k]}, v{SP + 2 * (k >> 2)}')
    for k in range(8):
        p.e(f'v_mul_f32 v{SP + 8 + k}, v{SP + 8 + k}, v{SP + 2 * (k >> 2) + 1}')
    for k in range(8):
        p.e(f'v_fmac_f32 v{SP + 24 + k}, v{X[k]}, v{SP + 8 + k}')
    for d in range(4):
        p.e(f'v_cvt_pk_bf16_f32 v{SP + d}, v{SP + 24 + 2 * d}, v{SP + 24 + 2 * d + 1}')
    p.e(f'ds_write_b64 v13, {vr(SP, 2)}\nds_write_b64 v13, {vr(SP + 2, 2)} offset:512')
    p.stamp('h2')
    A = D

    def breads(u):
        for j in range(4):
            p.e(f'ds_read_b128 {vr(SP + 16 * (u & 1) + 4 * j)}, v{4 + j} offset:{64 * u}')
    breads(0)
    breads(1)
    w2_issue(2)
    for u in range(4):
        for e in range(8):
            if e % 2 == 0:
                rem = (3 - e // 2) + (4 if u < 3 else 0)
                p.e(f's_waitcnt lgkmcnt({rem})')
            acc = vr(A + 4 * (e & 1))
            p.e(f'v_mfma_f32_16x16x32_bf16 {acc}, {vr(F[u] + 4 * e)}, {vr(SP + 16 * (u & 1) + 4 * (e >> 1))}, {"0" if (u == 0 and e < 2) else acc}')
        if u < 2:
            breads(u + 2)
        if u == 0:
            w2_issue(3)
    for a_ in range(2):
        p.e(f'ds_write_b128 v15, {vr(A + 4 * a_)} offset:{16 * a_}')
    p.stamp('t3')
    GB, X1 = (232, 236) if late else (40, 44)
    p.lane(10, [(2, 2, 2048), (0, 2, 4)], tmp=3)
    p.e(f's_lshl_b32 s{S_U + 6}, s{S_MI}, 6\ns_add_u32 s{S_T2}, s{S_U + 6}, {WS_MOD + 5 * 8192}')

    def gb_issue():
        for r in range(4):
            p.e(f'buffer_load_dword v{GB + r}, v10, {sr(SRD_WS, 4)}, s{S_T2} offen offset:{16 * r} sc1')
    sk = p.lab('gb')
    p.e(f's_cmp_lg_u32 s{S_WV}, 0\ns_cbranch_scc1 {sk}\ns_cmp_ge_u32 s{S_MI}, 32\ns_cbranch_scc1 {sk}')
    gb_issue()
    p.e(f'{sk}:')
    wide_b_addrs(p, 4, [(2, 2, 128), (4, 2, 16)], None, L_X2, 2)
    if late:
        p.wait('WM4')
        p.stamp('t4')
        p.perm_chunk(96, F[4])
    p.e('s_waitcnt lgkmcnt(0)\ns_barrier')
    p.stamp('t5')
    G = 224 if late else 32
    for k in range(4):
        p.e(f'ds_read2st64_b32 {vr(G + 2 * k, 2)}, v8 offset0:{22 * k} offset1:{22 * k + 11}')
    p.e('s_waitcnt lgkmcnt(0)')
    for w in (4, 2, 1):
        for k in range(w):
            p.e(f'v_add_f32 v{G + k}, v{G + k}, v{G + k + w}')
    p.e(f'v_cvt_pk_bf16_f32 v{G}, v{G}, v{G}\nv_and_b32 v{G}, 0xffff0000, v{G}\nv_mov_b32 v{G + 1}, v{G}')
    p.e(f'v_permlane32_swap_b32 v{G}, v{G + 1}')
    p.e(f'''v_mul_f32 v{G + 2}, {hex(LOG2E | 0x80000000)}, v{G}
    v_exp_f32 v{G + 2}, v{G + 2}
    v_add_f32 v{G + 2}, 1.0, v{G + 2}
    v_rcp_f32 v{G + 2}, v{G + 2}
    v_mul_f32 v{G}, v{G}, v{G + 2}
    v_cvt_pk_bf16_f32 v{G}, v{G}, v{G}
    v_and_b32 v{G}, 0xffff0000, v{G}
    v_mul_f32 v{G}, v{G}, v{G + 1}
    v_cvt_pk_bf16_f32 v{G}, v{G}, v{G}''')
    p.exec_set(0xffffffff)
    p.e(f'ds_write_b16 v9, v{G}')
    p.exec_all()
    p.stamp('t6')
    if late:
        p.wait('WM5')
        p.stamp('wm5')
        p.perm_chunk(128, F[5])
    p.e('s_waitcnt lgkmcnt(0)\ns_barrier')
    p.stamp('t7')
    breads(0)
    breads(1)
    for u in range(2):
        for e in range(8):
            if e % 2 == 0:
                p.e(f's_waitcnt lgkmcnt({7 - 4 * u - e // 2})')
            acc = vr(A + 4 * (e & 1))
            p.e(f'v_mfma_f32_16x16x32_bf16 {acc}, {vr(F[4 + u] + 4 * e)}, {vr(SP + 16 * u + 4 * (e >> 1))}, {"0" if (u == 0 and e < 2) else acc}')
    for d in range(4):
        p.e(f'v_cvt_pk_bf16_f32 v{G + d}, v{A + 2 * d}, v{A + 2 * d + 1}')
    p.e(f'buffer_store_dwordx4 {vr(G)}, v0, {sr(SRD_WS, 4)}, s{S_OUT} offen sc1')
    p.stamp('f_stored')
    end = p.lab('mend')
    multi = CFG['E5W'] > 1
    p.e(f's_cmp_ge_u32 s{S_MI}, 32\ns_cbranch_scc1 {end}')
    if not multi:
        p.e(f's_cmp_lg_u32 s{S_WV}, 0\ns_cbranch_scc1 {end}')
    p.lane(11, [(4, 2, 8192), (0, 4, 16)], tmp=3)
    p.e(f's_lshl_b32 s{S_U + 7}, s{S_MI}, 8\ns_add_u32 s{S_U + 7}, s{S_U + 7}, {WS_FP}')
    for k in range(4):
        p.e(f'v_mov_b32 v{D + k}, 0')

    def consts():
        p.srd(SRD_A, P_OUT, 8192)
        p.e(f'v_add_u32 v2, s{S_U + 6}, v10')
        for r in range(4):
            p.e(f'ds_read_b32 v{X1 + r}, v2 offset:{L_X1 + 16 * r}')
        p.e(f's_mov_b32 s{S_MASK}, 0xffff0000\ns_mov_b32 s{S_MASK + 1}, 0xffff0000\ns_waitcnt vmcnt(1) lgkmcnt(0)')
        p.check_retry(gb_issue, list(range(GB, GB + 4)), 3)
        for k in range(8):
            p.unpack(GB + k, 4, 5)
            p.e(f'v_cndmask_b32 v{GB + k}, v4, v5, {sr(S_MASK)}')
    acc5 = lambda t, r: p.e(f'v_mfma_f32_16x16x32_bf16 {vr(D)}, {vr(SEL)}, {vr(r)}, {vr(D)}')
    if not multi:
        consts()
        p.stamp('t8')
        p.poll_pipe([t * 4 * 8192 for t in range(14)], S_U + 7, 11, (64, 120), 3, acc5, CFG['P5'])
        p.stamp('e5_ok')
    else:
        w0, jn = p.lab('w0'), p.lab('jn')
        p.e(f's_cmp_eq_u32 s{S_WV}, 0\ns_cbranch_scc1 {w0}')
        p.e(f's_lshl_b32 s{S_T0}, s{S_WV}, 16\ns_add_u32 s{S_U + 7}, s{S_U + 7}, s{S_T0}\ns_sub_u32 s{S_U + 7}, s{S_U + 7}, 65536')
        p.e(f's_lshl_b32 s{S_T0}, s{S_WV}, 10\nv_add_u32 v4, s{S_T0}, v0')
        p.poll_pipe([0, 4 * 8192], S_U + 7, 11, (64, 120), 3, acc5, CFG['P5'])
        p.e(f'ds_write_b128 v4, {vr(D)}\ns_waitcnt lgkmcnt(0)\ns_branch {jn}\n{w0}:')
        consts()
        p.stamp('t8')
        p.e(f'{jn}:\ns_barrier\ns_cmp_lg_u32 s{S_WV}, 0\ns_cbranch_scc1 {end}')
        for k in range(7):
            p.e(f'ds_read_b128 {vr(64 + 4 * k)}, v0 offset:{1024 + 1024 * k}')
        p.stamp('e5_ok')
        p.e('s_waitcnt lgkmcnt(0)')
        for r in range(4):
            p.e(f'v_add_f32 v{64 + r}, v{64 + r}, v{68 + r}\nv_add_f32 v{72 + r}, v{72 + r}, v{76 + r}\nv_add_f32 v{80 + r}, v{80 + r}, v{84 + r}')
        for r in range(4):
            p.e(f'v_add_f32 v{64 + r}, v{64 + r}, v{72 + r}\nv_add_f32 v{80 + r}, v{80 + r}, v{88 + r}')
        for r in range(4):
            p.e(f'v_add_f32 v{D + r}, v{64 + r}, v{80 + r}')
    for h in (0, 2):
        p.rnd2(D + h, D + h + 1, 4)
    for r in range(4):
        p.e(f'v_mul_f32 v{D + r}, v{GB + r}, v{D + r}')
    for h in (0, 2):
        p.rnd2(D + h, D + h + 1, 4)
    for r in range(4):
        p.e(f'v_add_f32 v{D + r}, v{X1 + r}, v{D + r}\nv_mov_b32 v{D + 4 + r}, v{D + r}')
    for r in range(4):
        p.e(f'v_permlane16_swap_b32 v{D + r}, v{D + 4 + r}')
    for r in range(4):
        p.e(f'v_cvt_pk_bf16_f32 v{D + r}, v{D + r}, v{D + 4 + r}')
    p.exec_set(0xffff)
    for r in range(4):
        p.e(f'buffer_store_dword v{D + r}, v2, {sr(SRD_A, 4)}, 0 offen offset:{16 * r}')
    p.exec_all()
    p.e(f'{end}:')


def generate():
    hdr = open('cdna_kernels/' + NAME + '.s.ref').read().split('\n')
    out = [l for l in hdr if l.startswith(';') and '@launch' not in l]
    out.append(f'; @launch grid=(256,1,1) block=(512,1,1) lds={L_TOTAL}')
    out += ['.amdgcn_target "amdgcn-amd-amdhsa--gfx950"', '.text', f'.globl {NAME}_kernel', '.p2align 8',
            f'.type {NAME}_kernel,@function', f'{NAME}_kernel:']
    e = Prog('E')
    entry(e)
    body = list(e.L)
    names = {}
    for cls in ('O', 'M', 'Q', 'P', 'PR', 'R'):
        p = build_class(cls, e)
        body.append('.p2align 6')
        body += p.L
        names[cls] = p.stamp_names
    body += ['L_end:', 's_endpgm']
    out += pad_hazards(body)
    out += ['.fill 64, 4, 0xbf800000', '.p2align 8', 'L_code_end:']
    out += ['.section .rodata,"a"', '.p2align 6', f'.amdhsa_kernel {NAME}_kernel',
            '  .amdhsa_next_free_vgpr 256', '  .amdhsa_next_free_sgpr 102', '  .amdhsa_accum_offset 256',
            '  .amdhsa_group_segment_fixed_size 0', '  .amdhsa_kernarg_size 112', '  .amdhsa_user_sgpr_count 2',
            '  .amdhsa_user_sgpr_kernarg_segment_ptr 1', '  .amdhsa_system_sgpr_workgroup_id_x 1',
            '  .amdhsa_float_denorm_mode_32 3', '.end_amdhsa_kernel']
    return '\n'.join(out) + '\n', names


if __name__ == '__main__':
    path = sys.argv[1]
    for kv in sys.argv[2:]:
        k, v = kv.split('=')
        CFG[k] = eval(v)
    txt, names = generate()
    open(path, 'w').write(txt)
    import json
    json.dump(names, open(path + '.stamps.json', 'w'))
```

```python
import sys
from collections import deque
from asmlib import pad_hazards

NAME = 'adaLN_cond__gqa_block_cached__glu_gated_swiglu__decode'

CFG = dict(
    W=4,
    W_O=4, W_M=6, W_R=5, W_Q=4, W_P=4, W_PR=4,
    C3O=0, C3Q='', C3W1='M', C3W3='O', C3MOD='O', T_LOW_R=2,
    W_PRE=24, W_PREQ=8, W_INIT=5, W_LOW=2, T_LOW=2, T_LOW_M=2,
    W_POST=6, W_POSTP=4, H5W=1, W_END=8,
    SC_AT=2, Q_AT=12, BURST=5, E_BURST=4, P_EARLY=0, MOD_AT=0, P5='rr', E5W=7, STAGE=7, SL3=0, SL4=0, EARLY3=True, W2PRE=4, H5X=True, ML_AT=12, ML_AT_M=16, C3H=False,
    HP3=True, C3=True, H5=2, REWARM=False,
    STAMPS=False, DBGOUT=False,
    SPIN=1 << 18,
)

WS_MOD = 0x00000
WS_CBP = 0x18000
WS_Q = 0x10000
WS_ML = 0x20000
WS_AP = 0x30000
WS_OP = 0x40000
WS_FP = 0xC0000
WS_STAMP = 0x200000
WS_BYTES = 268435456

L_KT = 0
L_OPART = 0
L_XA = 40960
L_ZERO = 49152
L_MLW = 49664
L_CNT = 50176
L_STATS = 50432
L_X2 = 50688
L_FINB = 51200
L_X1 = 52224
L_RED = 60416
L_STASH = 83968
L_TOTAL = 149504

CLASS_RANGES = dict(O=(0, 64), M=(64, 120), Q=(120, 184), P=(184, 200), PR=(200, 216), R=(216, 256))


def vr(a, n=4):
    return f'v[{a}:{a + n - 1}]' if n > 1 else f'v{a}'


def sr(a, n=2):
    return f's[{a}:{a + n - 1}]' if n > 1 else f's{a}'


S_WV, S_W8, S_ROT, S_KV = 3, 4, 6, 7
SRD_K, SRD_V, SRD_WS, SRD_W, SRD_A, SRD_D = 8, 12, 16, 20, 24, 28
P_X, P_K, P_V, P_WQ, P_WO, P_W1, P_W3, P_W2, P_C, P_WMOD, P_OUT, P_DBG, P_WS = 32, 34, 36, 38, 40, 44, 46, 48, 50, 52, 54, 56, 58
S_T0, S_T1, S_T2, S_T3 = 60, 61, 62, 63
S_PLO, S_PHI = 64, 65
S_MASK = 66
S_SAVE = 68
S_SPIN = 70
S_VALID = 71
S_U = 72
S_STG = 42
S_C64 = 80
S_C64B = 82
S_STAMP = 84


class Prog:
    def __init__(self, name):
        self.name = name
        self.L = []
        self.vm = []
        self.stream = deque()
        self.released = set()
        self.W = CFG['W']
        self.nlab = 0
        self.nstamp = 0
        self.stamp_names = []

    def e(self, s):
        for line in s.split('\n'):
            line = line.strip()
            if line:
                self.L.append(line)

    def lab(self, base):
        self.nlab += 1
        return f'L_{self.name}_{base}{self.nlab}'

    def vmem(self, s, tag):
        self.e(s)
        self.vm.append(tag)
        assert len(self.vm) <= 56, 'too many outstanding'

    def waitn(self, n):
        if len(self.vm) > n:
            self.e(f's_waitcnt vmcnt({n})')
            self.vm = self.vm[len(self.vm) - n:] if n else []

    def wait(self, tag):
        if tag in self.vm:
            idx = len(self.vm) - 1 - self.vm[::-1].index(tag)
            self.waitn(len(self.vm) - 1 - idx)

    def push(self, tag, fn, need=None):
        self.stream.append((tag, fn, need))

    def can_pump(self):
        return self.stream and (self.stream[0][2] is None or self.stream[0][2] in self.released)

    def pump(self, k=1):
        for _ in range(k):
            if not self.can_pump():
                return
            tag, fn, _n = self.stream.popleft()
            self.waitn(self.W - 1)
            fn(tag)

    def fill(self):
        while self.can_pump() and len(self.vm) < self.W:
            self.pump(1)

    def burst(self, k):
        self.W += k
        self.fill()
        self.W -= k

    def need(self, tag):
        while any(t[0] == tag for t in self.stream):
            assert self.can_pump(), f'{self.name}: stream blocked before {tag} at {self.stream[0][0]}'
            self.pump(1)
        while tag in self.vm:
            if self.can_pump() and self.vm[::-1].index(tag) <= self.W - 1:
                self.pump(1)
            else:
                self.wait(tag)

    def release(self, x):
        self.released.add(x)

    def stamp(self, name):
        if CFG['STAMPS'] == 'lite' and name not in ('start', 'pre_done', 'q_ok', 'k_done', 'o_stored', 'post_done', 'q_done', 'e3_ok', 'a_stored', 'w_ready', 'e4_ok', 'f_stored', 'end'):
            return
        if CFG['STAMPS'] == 't' and name not in ('start', 'e3_ok', 'o1', 'o2', 'o3', 'a_stored', 'e4_ok', 't1', 't2', 'h2', 't3', 't4', 't5', 't6', 'wm5', 't7', 'f_stored', 't8', 'e5_ok', 'end'):
            return
        if CFG['STAMPS'] != 't' and name[0] in 'to' and name[1:].isdigit():
            return
        if CFG['STAMPS'] == 'e' and name not in ('start', 'first', 'arrived', 'k0', 'w_landed', 'pre_done', 'end'):
            return
        if CFG['STAMPS'] != 'e' and name in ('first', 'k0'):
            return
        if CFG['STAMPS'] == 'm' and name not in ('start', 'q_ok', 'softmax', 'v2', 'pv_done', 'o_stored', 'wm0', 'wm1', 'wm2', 'wm4', 'wm3', 'wm5', 'mod_landed', 'mod_ok', 'e4_ok', 'end'):
            return
        if CFG['STAMPS'] is True and name in ('arrived', 'v2', 'wm0', 'wm1', 'wm2', 'wm4', 'wm3', 'wm5'):
            return
        if CFG['STAMPS']:
            k = S_STAMP + self.nstamp
            assert k < 100
            self.e(f's_memrealtime s[100:101]\ns_waitcnt lgkmcnt(0)\ns_mov_b32 s{k}, s100')
            self.nstamp += 1
            self.stamp_names.append(name)

    def srd(self, d, p, nbytes):
        self.e(f's_mov_b32 s{d}, s{p}\ns_mov_b32 s{d + 1}, s{p + 1}\ns_mov_b32 s{d + 2}, {hex(nbytes)}\ns_mov_b32 s{d + 3}, 0x20000')

    def lane(self, dst, terms, const=0, sadd=None, tmp=None):
        first = True
        for sh, bits, mul in terms:
            t = dst if first else tmp
            assert t is not None
            if sh == 0 and bits >= 6:
                src = 'v1'
            elif sh == 0:
                self.e(f'v_and_b32 v{t}, {(1 << bits) - 1}, v1')
                src = f'v{t}'
            elif sh + bits >= 6:
                self.e(f'v_lshrrev_b32 v{t}, {sh}, v1')
                src = f'v{t}'
            else:
                self.e(f'v_bfe_u32 v{t}, v1, {sh}, {bits}')
                src = f'v{t}'
            if first:
                if mul & (mul - 1) == 0:
                    self.e(f'v_lshlrev_b32 v{dst}, {mul.bit_length() - 1}, {src}')
                else:
                    self.e(f'v_mul_u32_u24 v{dst}, {mul}, {src}')
            else:
                if mul & (mul - 1) == 0:
                    self.e(f'v_lshl_add_u32 v{dst}, {src}, {mul.bit_length() - 1}, v{dst}')
                else:
                    self.e(f'v_mul_u32_u24 v{t}, {mul}, {src}\nv_add_u32 v{dst}, v{t}, v{dst}')
            first = False
        if const:
            self.e(f'v_add_u32 v{dst}, {const}, v{dst}')
        if sadd is not None:
            self.e(f'v_add_u32 v{dst}, s{sadd}, v{dst}')

    def exec_set(self, mask):
        lo, hi = mask & 0xffffffff, mask >> 32
        self.e(f's_mov_b32 exec_lo, {hex(lo)}\ns_mov_b32 exec_hi, {hex(hi)}')

    def exec_all(self):
        self.e('s_mov_b64 exec, -1')

    def maxu(self, dst, regs):
        regs = list(regs)
        if len(regs) % 2 == 0:
            self.e(f'v_max_u32 v{dst}, v{regs[0]}, v{regs[1]}')
            regs = regs[2:]
        else:
            self.e(f'v_max3_u32 v{dst}, v{regs[0]}, v{regs[1]}, v{regs[2]}')
            regs = regs[3:]
        while regs:
            self.e(f'v_max3_u32 v{dst}, v{dst}, v{regs[0]}, v{regs[1]}')
            regs = regs[2:]

    def check_retry(self, issue, regs, tmp):
        ok, lp = self.lab('ok'), self.lab('retry')
        if len(regs) > 1:
            self.maxu(tmp, regs)
        else:
            tmp = regs[0]
        self.e(f'v_cmp_eq_u32 vcc, -1, v{tmp}\ns_cbranch_vccz {ok}\ns_mov_b32 s{S_SPIN}, 0\n{lp}:')
        issue()
        self.e('s_waitcnt vmcnt(0)')
        if len(regs) > 1:
            self.maxu(tmp, regs)
        self.e(f's_add_u32 s{S_SPIN}, s{S_SPIN}, 1\ns_cmp_ge_u32 s{S_SPIN}, {CFG["SPIN"]}\ns_cbranch_scc1 {ok}')
        self.e(f'v_cmp_eq_u32 vcc, -1, v{tmp}\ns_cbranch_vccnz {lp}\n{ok}:')

    def poll_masked(self, issuers, regs, tmp):
        n = len(issuers)
        lp, done = self.lab('poll'), self.lab('polldone')
        self.waitn(0)
        self.e(f's_mov_b32 s{S_VALID}, 0\ns_mov_b32 s{S_SPIN}, 0\n{lp}:')
        for t in range(n):
            sk = self.lab('pi')
            self.e(f's_bitcmp1_b32 s{S_VALID}, {t}\ns_cbranch_scc1 {sk}')
            issuers[t]()
            self.e(f'{sk}:')
        self.e('s_waitcnt vmcnt(0)')
        for t in range(n):
            sk = self.lab('pc')
            self.e(f's_bitcmp1_b32 s{S_VALID}, {t}\ns_cbranch_scc1 {sk}')
            self.maxu(tmp, regs[t])
            self.e(f'v_cmp_eq_u32 vcc, -1, v{tmp}\ns_cbranch_vccnz {sk}\ns_bitset1_b32 s{S_VALID}, {t}\n{sk}:')
        self.e(f's_add_u32 s{S_SPIN}, s{S_SPIN}, 1\ns_cmp_ge_u32 s{S_SPIN}, {CFG["SPIN"]}\ns_cbranch_scc1 {done}')
        self.e(f's_cmp_lg_u32 s{S_VALID}, {hex((1 << n) - 1)}\ns_cbranch_scc1 {lp}\n{done}:')

    def poll_pipe(self, offs, s_base, vo, sets, tmp, accum, mode='pipe'):
        n = len(offs)
        done = self.lab('ppdone')
        if mode == 'rr':
            return self.poll_rr(offs, s_base, vo, sets[0], tmp, accum)

        def issue(base):
            for t in range(n):
                self.e(f's_bitcmp1_b32 s{S_VALID}, {t}\ns_cselect_b64 exec, 0, -1\ns_add_u32 s{S_T3}, s{s_base}, {offs[t]}')
                self.e(f'buffer_load_dwordx4 {vr(base + 4 * t)}, v{vo}, {sr(SRD_WS, 4)}, s{S_T3} offen sc1')
            self.exec_all()

        def check(base):
            self.e(f's_waitcnt vmcnt({n})')
            for t in range(n):
                sk = self.lab('pc')
                self.e(f's_bitcmp1_b32 s{S_VALID}, {t}\ns_cbranch_scc1 {sk}')
                self.maxu(tmp, range(base + 4 * t, base + 4 * t + 4))
                self.e(f'v_cmp_ne_u32 vcc, -1, v{tmp}\ns_or_b64 vcc, vcc, {sr(S_SAVE)}\ns_cmp_eq_u64 vcc, -1\ns_cbranch_scc0 {sk}')
                accum(t, base + 4 * t)
                self.e(f's_bitset1_b32 s{S_VALID}, {t}\n{sk}:')
            self.e(f's_cmp_eq_u32 s{S_VALID}, {hex((1 << n) - 1)}\ns_cbranch_scc1 {done}')
        lp = self.lab('pp')
        self.e(f's_mov_b32 s{S_VALID}, 0\ns_mov_b32 s{S_SPIN}, 0\ns_mov_b64 {sr(S_SAVE)}, 0')
        issue(sets[0])
        self.e(f'{lp}:')
        issue(sets[1])
        check(sets[0])
        issue(sets[0])
        check(sets[1])
        self.e(f's_add_u32 s{S_SPIN}, s{S_SPIN}, 1\ns_cmp_ge_u32 s{S_SPIN}, {CFG["SPIN"]}\ns_cselect_b64 {sr(S_SAVE)}, -1, 0\ns_branch {lp}\n{done}:')
        self.vm = ['stale'] * n

    def poll_first(self, offs, s_base, vo, base):
        for t, off in enumerate(offs):
            self.e(f's_add_u32 s{S_T3}, s{s_base}, {off}')
            self.vmem(f'buffer_load_dwordx4 {vr(base + 4 * t)}, v{vo}, {sr(SRD_WS, 4)}, s{S_T3} offen sc1', 'poll')

    def poll_rr(self, offs, s_base, vo, base, tmp, accum, landed=False, sleep=0):
        n = len(offs)
        lp, done = self.lab('pr'), self.lab('prdone')
        chk = self.lab('prchk')
        self.e(f's_mov_b32 s{S_VALID}, 0\ns_mov_b32 s{S_SPIN}, 0\ns_mov_b64 {sr(S_SAVE)}, 0')
        if landed:
            self.e(f's_branch {chk}')
        self.e(f'{lp}:')
        if sleep:
            self.e(f's_sleep {sleep}')
        for t in range(n):
            sk = self.lab('pi')
            self.e(f's_bitcmp1_b32 s{S_VALID}, {t}\ns_cbranch_scc1 {sk}\ns_add_u32 s{S_T3}, s{s_base}, {offs[t]}')
            self.e(f'buffer_load_dwordx4 {vr(base + 4 * t)}, v{vo}, {sr(SRD_WS, 4)}, s{S_T3} offen sc1\n{sk}:')
        self.e(f's_add_u32 s{S_SPIN}, s{S_SPIN}, 1\ns_cmp_ge_u32 s{S_SPIN}, {CFG["SPIN"]}\ns_cselect_b64 {sr(S_SAVE)}, -1, 0\ns_waitcnt vmcnt(0)\n{chk}:')
        for t in range(n):
            sk = self.lab('pc')
            self.e(f's_bitcmp1_b32 s{S_VALID}, {t}\ns_cbranch_scc1 {sk}')
            self.maxu(tmp, range(base + 4 * t, base + 4 * t + 4))
            self.e(f'v_cmp_ne_u32 vcc, -1, v{tmp}\ns_or_b64 vcc, vcc, {sr(S_SAVE)}\ns_cmp_eq_u64 vcc, -1\ns_cbranch_scc0 {sk}')
            accum(t, base + 4 * t)
            self.e(f's_bitset1_b32 s{S_VALID}, {t}\n{sk}:')
        self.e(f's_cmp_lg_u32 s{S_VALID}, {hex((1 << n) - 1)}\ns_cbranch_scc1 {lp}\n{done}:')
        self.vm = []

    def perm_chunk(self, raw, dst, pump_every=0, fs=4):
        k = 0
        for c in range(4):
            for hi in range(2):
                for jj in range(4):
                    a, b = raw + 4 * (2 * jj) + c, raw + 4 * (2 * jj + 1) + c
                    sel = S_PHI if hi else S_PLO
                    self.e(f'v_perm_b32 v{dst + fs * (2 * c + hi) + jj}, v{b}, v{a}, s{sel}')
                    k += 1
                    if pump_every and k % pump_every == 0:
                        self.fill()

    def unpack(self, src, d0, d1):
        self.e(f'v_lshlrev_b32 v{d0}, 16, v{src}\nv_and_b32 v{d1}, 0xffff0000, v{src}')

    def rnd2(self, a, b, t):
        self.e(f'v_cvt_pk_bf16_f32 v{t}, v{a}, v{b}')
        self.unpack(t, a, b)

    def rowsum(self, regs, steps):
        for st in steps:
            for r in regs:
                self.e(f'v_add_f32_dpp v{r}, v{r}, v{r} row_ror:{st} row_mask:0xf bank_mask:0xf')

    def swapred(self, op, which, regs, tmps):
        for r, t in zip(regs, tmps):
            self.e(f'v_mov_b32 v{t}, v{r}')
        for r, t in zip(regs, tmps):
            self.e(f'v_permlane{which}_swap_b32 v{r}, v{t}')
        for r, t in zip(regs, tmps):
            self.e(f'{op} v{r}, v{r}, v{t}')


LOG2E = 0x3fb8aa3b
AL_TERMS = [(5, 1, 2048), (0, 4, 16), (4, 1, 8)]
XA_TERMS = [(5, 1, 256), (0, 4, 16), (4, 1, 8)]


def layernorm(p, X, T, fix):
    s0, s1, t0, t1, m0, m1, ad = T[0], T[1], T[2], T[3], T[4], T[5], T[6]
    for q, s in ((0, s0), (1, s1)):
        x = X[4 * q:4 * q + 4]
        p.e(f'v_add_f32 v{s}, v{x[0]}, v{x[1]}\nv_add_f32 v{T[2 + q]}, v{x[2]}, v{x[3]}')
    p.e(f'v_add_f32 v{s0}, v{s0}, v{t0}\nv_add_f32 v{s1}, v{s1}, v{t1}')
    p.rowsum([s0, s1], (8, 4, 2, 1))
    p.swapred('v_add_f32', 16, [s0, s1], [t0, t1])
    A, B = T[8], T[10]
    assert A % 2 == 0 and B % 2 == 0 and T[9] == A + 1 and T[11] == B + 1
    p.e(f'v_mul_f32 v{A}, 0x3c000000, v{s0}\nv_mul_f32 v{B}, 0x3c000000, v{s1}')
    for q, mean in ((0, A), (1, B)):
        x = X[4 * q:4 * q + 4]
        p.e(f'v_sub_f32 v{t0}, v{x[0]}, v{mean}\nv_sub_f32 v{t1}, v{x[1]}, v{mean}')
        p.e(f'v_mul_f32 v{mean + 1}, v{t0}, v{t0}\nv_fmac_f32 v{mean + 1}, v{t1}, v{t1}')
        p.e(f'v_sub_f32 v{t0}, v{x[2]}, v{mean}\nv_sub_f32 v{t1}, v{x[3]}, v{mean}')
        p.e(f'v_fmac_f32 v{mean + 1}, v{t0}, v{t0}\nv_fmac_f32 v{mean + 1}, v{t1}, v{t1}')
    p.rowsum([A + 1, B + 1], (8, 4, 2, 1))
    p.swapred('v_add_f32', 16, [A + 1, B + 1], [t0, t1])
    p.e(f's_lshl_b32 s{S_T0}, s{S_WV}, 5\ns_add_u32 s{S_T0}, s{S_T0}, {L_STATS}')
    p.lane(ad, [(5, 1, 8)], sadd=S_T0)
    p.exec_set(0x0000000100000001)
    p.e(f'ds_write_b64 v{ad}, {vr(A, 2)}\nds_write_b64 v{ad}, {vr(B, 2)} offset:16')
    p.exec_all()
    p.lane(ad, [(0, 3, 32), (5, 1, 8)], const=L_STATS, tmp=t0)
    p.e('s_waitcnt lgkmcnt(0)\ns_barrier')
    p.e(f'ds_read_b64 {vr(A, 2)}, v{ad}\nds_read_b64 {vr(B, 2)}, v{ad} offset:16\ns_waitcnt lgkmcnt(0)')
    p.e(f'v_mov_b32 v{m0}, v{A}\nv_mov_b32 v{m1}, v{B}')
    p.rowsum([m0, m1], (4, 2, 1))
    p.e(f'v_mul_f32 v{m0}, 0x3e000000, v{m0}\nv_mul_f32 v{m1}, 0x3e000000, v{m1}')
    p.e(f'v_sub_f32 v{t0}, v{A}, v{m0}\nv_sub_f32 v{t1}, v{B}, v{m1}')
    p.e(f'v_mul_f32 v{s0}, 0x43000000, v{t0}\nv_mul_f32 v{s1}, 0x43000000, v{t1}')
    p.e(f'v_fmac_f32 v{A + 1}, v{s0}, v{t0}\nv_fmac_f32 v{B + 1}, v{s1}, v{t1}')
    p.rowsum([A + 1, B + 1], (4, 2, 1))
    p.rnd2(m0, m1, t0)
    p.e(f'v_mul_f32 v{s0}, 0x3a800000, v{A + 1}\nv_mul_f32 v{s1}, 0x3a800000, v{B + 1}')
    p.rnd2(s0, s1, t0)
    p.e(f'v_add_f32 v{s0}, 0x3727c5ac, v{s0}\nv_add_f32 v{s1}, 0x3727c5ac, v{s1}')
    p.rnd2(s0, s1, t0)
    p.e(f'v_sqrt_f32 v{s0}, v{s0}\nv_sqrt_f32 v{s1}, v{s1}')
    p.rnd2(s0, s1, t0)
    p.e(f'v_rcp_f32 v{A}, v{s0}\nv_rcp_f32 v{B}, v{s1}')
    for q, m, sd, ri in ((0, m0, s0, A), (1, m1, s1, B)):
        x = X[4 * q:4 * q + 4]
        for r in range(4):
            p.e(f'v_sub_f32 v{x[r]}, v{x[r]}, v{m}')
        p.rnd2(x[0], x[1], t0)
        p.rnd2(x[2], x[3], t1)
        for r in range(4):
            if fix:
                p.e(f'v_mul_f32 v{t0}, v{x[r]}, v{ri}\nv_fma_f32 v{x[r]}, -v{t0}, v{sd}, v{x[r]}\nv_fma_f32 v{x[r]}, v{x[r]}, v{ri}, v{t0}')
            else:
                p.e(f'v_mul_f32 v{x[r]}, v{x[r]}, v{ri}')
        p.rnd2(x[0], x[1], t0)
        p.rnd2(x[2], x[3], t1)


def modulate(p, X, C1, SH, T, out):
    a, b = T[0], T[1]
    for d in range(4):
        x0, x1 = X[2 * d], X[2 * d + 1]
        p.unpack(C1[d], a, b)
        p.e(f'v_mul_f32 v{x0}, v{x0}, v{a}\nv_mul_f32 v{x1}, v{x1}, v{b}')
        p.rnd2(x0, x1, a)
        p.unpack(SH[d], a, b)
        p.e(f'v_add_f32 v{x0}, v{x0}, v{a}\nv_add_f32 v{x1}, v{x1}, v{b}')
        p.e(f'v_cvt_pk_bf16_f32 v{out[d]}, v{x0}, v{x1}')


def one_plus(p, C, T):
    a, b = T[0], T[1]
    for c in C:
        p.unpack(c, a, b)
        p.e(f'v_add_f32 v{a}, 1.0, v{a}\nv_add_f32 v{b}, 1.0, v{b}\nv_cvt_pk_bf16_f32 v{c}, v{a}, v{b}')


def xa_base(p, s):
    p.e(f's_lshl_b32 s{s}, s{S_WV}, 10\ns_add_u32 s{s}, s{s}, {L_XA}')


def push_narrow_weights(p, tag0, pitch, raw0, raw1, vo, s_base, need=None):
    for u, raw in ((0, raw0), (1, raw1)):
        for jj in range(8):
            def fn(tag, u=u, raw=raw, jj=jj):
                p.e(f's_add_u32 s{S_T3}, s{s_base}, {(64 * u + jj) * pitch}')
                p.vmem(f'buffer_load_dwordx4 {vr(raw + 4 * jj)}, v{vo}, {sr(SRD_W, 4)}, s{S_T3} offen nt', tag)
            p.push(f'{tag0}{u}', fn, need[u] if need else None)


def narrow_setup(p, pitch, vo, s_base, s_col, tmp, rows=128):
    p.lane(vo, [(3, 3, 8 * pitch), (0, 3, 16)], tmp=tmp)
    p.e(f's_mul_i32 s{s_base}, s{S_WV}, {rows * pitch}\ns_add_u32 s{s_base}, s{s_base}, s{s_col}')


def narrow_gemv(p, F0, F1, B, ACC, T, s_out, f32=False):
    a0, a1, t0 = T[0], T[1], T[2]
    xa_base(p, S_T0)
    p.lane(a0, [(0, 2, 256), (4, 2, 32), (3, 1, 16)], sadd=S_T0, tmp=t0)
    p.e(f's_mov_b32 s{S_MASK}, 0x0f0f0f0f\ns_mov_b32 s{S_MASK + 1}, 0x0f0f0f0f\nv_mov_b32 v{t0}, {L_ZERO}')
    p.e(f'v_cndmask_b32 v{a1}, v{a0}, v{t0}, {sr(S_MASK)}\nv_cndmask_b32 v{a0}, v{t0}, v{a0}, {sr(S_MASK)}')
    FF = [F0] if F1 is None else [F0, F1]
    for u in range(len(FF)):
        p.e(f'ds_read_b128 {vr(B + 8 * u)}, v{a0} offset:{128 * u}\nds_read_b128 {vr(B + 8 * u + 4)}, v{a1} offset:{128 * u}')
    p.e(f's_lshl_b32 s{S_T0}, s{S_WV}, 11\ns_add_u32 s{S_T0}, s{S_T0}, {L_RED}')
    p.lane(a0, [(5, 1, 1024), (0, 2, 256), (2, 1, 128), (4, 1, 16)], sadd=S_T0, tmp=t0)
    p.e('s_waitcnt lgkmcnt(0)')
    for u, F in enumerate(FF):
        for e in range(8):
            acc = vr(ACC + 4 * (e & 3))
            c = '0' if (u == 0 and e < 4) else acc
            p.e(f'v_mfma_f32_16x16x32_bf16 {acc}, {vr(F + 4 * e)}, {vr(B + 8 * u + 4 * (e >> 2))}, {c}')
        p.fill()
    p.exec_set(0xff00ff0000ff00ff)
    for a in range(4):
        p.e(f'ds_write_b128 v{a0}, {vr(ACC + 4 * a)} offset:{32 * a}')
    p.exec_all()
    p.e(f's_lshl_b32 s{S_T0}, s{S_WV}, 8\ns_add_u32 s{S_T0}, s{S_T0}, {L_RED}')
    p.lane(a1, [(2, 1, 128), (0, 2, 32), (5, 1, 16), (3, 2, 4)], sadd=S_T0, tmp=t0)
    p.fill()
    p.e('s_waitcnt lgkmcnt(0)\ns_barrier')
    sk = p.lab('fin')
    p.e(f's_cmp_ge_u32 s{S_WV}, 4\ns_cbranch_scc1 {sk}')
    for k in range(8):
        p.e(f'ds_read2st64_b32 {vr(B + 2 * k, 2)}, v{a1} offset0:{8 * k} offset1:{8 * k + 4}')
    so, stride = s_out
    p.e(f's_mul_i32 s{S_T0}, s{S_WV}, {stride}\ns_add_u32 s{S_T0}, s{S_T0}, s{so}\nv_lshlrev_b32 v{a0}, {2 if f32 else 1}, v1\ns_waitcnt lgkmcnt(0)')
    for w in (8, 4, 2, 1):
        for k in range(w):
            p.e(f'v_add_f32 v{B + k}, v{B + k}, v{B + k + w}')
    if f32:
        for k in (1, 2, 3):
            p.e(f'v_mov_b32_dpp v{B + k}, v{B} quad_perm:[{k},{k},{k},{k}] row_mask:0xf bank_mask:0xf')
        p.exec_set(0x1111111111111111)
        ACC = B
    else:
        p.e(f'v_mov_b32_dpp v{B + 1}, v{B} quad_perm:[1,1,3,3] row_mask:0xf bank_mask:0xf')
        p.e(f'v_cvt_pk_bf16_f32 v{ACC}, v{B}, v{B + 1}')
        for k in (1, 2, 3):
            p.e(f'v_mov_b32_dpp v{ACC + k}, v{ACC} row_shl:{2 * k} row_mask:0xf bank_mask:0xf')
        p.exec_set(0x0101010101010101)
    p.e(f'buffer_store_dwordx4 {vr(ACC)}, v{a0}, {sr(SRD_WS, 4)}, s{S_T0} offen sc1')
    p.exec_all()
    p.e(f'{sk}:')


def push_al_loads(p, tag, srd, dst, vo, s_base, flags=''):
    def issue(model=True):
        for q in range(2):
            p.e(f's_add_u32 s{S_T3}, s{s_base}, {4096 * q}')
            s = f'buffer_load_dwordx2 {vr(dst + 2 * q, 2)}, v{vo}, {sr(srd, 4)}, s{S_T3} offen {flags}'
            p.vmem(s, tag) if model else p.e(s)
    if tag is not None:
        p.push(tag, lambda t: issue())
    return issue


def silu_to_xa(p, C, T, wa):
    a, b, ea, eb = T[0], T[1], T[2], T[3]
    xa_base(p, S_T0)
    p.lane(wa, XA_TERMS, sadd=S_T0, tmp=a)
    for d in range(4):
        p.unpack(C + d, a, b)
        p.e(f'v_mul_f32 v{ea}, {hex(LOG2E | 0x80000000)}, v{a}\nv_mul_f32 v{eb}, {hex(LOG2E | 0x80000000)}, v{b}')
        p.e(f'v_exp_f32 v{ea}, v{ea}\nv_exp_f32 v{eb}, v{eb}')
        p.e(f'v_add_f32 v{ea}, 1.0, v{ea}\nv_add_f32 v{eb}, 1.0, v{eb}')
        p.e(f'v_rcp_f32 v{T[4]}, v{ea}\nv_rcp_f32 v{T[5]}, v{eb}')
        p.e(f'v_mul_f32 v{T[6]}, v{a}, v{T[4]}\nv_mul_f32 v{T[7]}, v{b}, v{T[5]}')
        p.e(f'v_cvt_pk_bf16_f32 v{C + d}, v{T[6]}, v{T[7]}')
    p.e(f'ds_write_b64 v{wa}, {vr(C, 2)}\nds_write_b64 v{wa}, {vr(C + 2, 2)} offset:512')


R_Q, R_S, R_V01, R_K = 16, 32, 64, 128
R_P0, R_P1, R_ACC = 16, 32, 48
VCH = [64, 96, 128, 160]


def entry(p):
    if CFG['STAMPS'] == 'e':
        p.e('s_memrealtime s[98:99]')
    p.e(f'''
    s_cmp_ge_u32 s2, 256
    s_cbranch_scc1 L_end
    s_load_dwordx16 s[32:47], s[0:1], 0
    s_load_dwordx8 s[48:55], s[0:1], 64
    s_load_dwordx4 s[56:59], s[0:1], 96
    v_lshrrev_b32 v2, 6, v0
    v_and_b32 v1, 63, v0
    s_lshr_b32 s{S_W8}, s2, 3
    v_readfirstlane_b32 s{S_WV}, v2
    v_lshlrev_b32 v0, 4, v1
    s_getpc_b64 s[60:61]
    L_pc:
    s_lshl_b32 s62, s{S_W8}, 3
    s_add_u32 s62, s62, s{S_WV}
    s_lshl_b32 s62, s62, 10
    s_min_u32 s62, s62, L_code_end-{NAME}_kernel-1024
    s_sub_u32 s60, s60, L_pc-{NAME}_kernel
    s_subb_u32 s61, s61, 0
    s_add_u32 s60, s60, s62
    s_addc_u32 s61, s61, 0''')
    p.vmem('global_load_dwordx4 v[252:255], v0, s[60:61]', 'code')
    p.e(f'''
    s_add_u32 s{S_ROT}, s{S_W8}, s{S_WV}
    s_and_b32 s{S_ROT}, s{S_ROT}, 7
    s_lshl_b32 s{S_ROT}, s{S_ROT}, 12
    s_cmp_ge_u32 s2, 120
    s_cselect_b32 s5, 40, 0
    s_cmp_ge_u32 s2, 216
    s_cselect_b32 s5, 0xffffffa0, s5
    s_add_u32 s5, s5, s2
    s_lshl_b32 s{S_KV}, s5, 18
    s_add_u32 s{S_KV}, s{S_KV}, s{S_ROT}
    s_mov_b32 s{SRD_K + 2}, 0x4000000
    s_mov_b32 s{SRD_K + 3}, 0x20000
    s_sub_u32 s62, s2, 120
    s_cmp_lt_u32 s62, 64
    s_cbranch_scc1 L_class_Q
    s_cmp_lt_u32 s62, 80
    s_cbranch_scc1 L_class_P
    s_cmp_lt_u32 s62, 96
    s_cbranch_scc1 L_class_PR''')
    p.vm_pre = list(p.vm)
    got_args(p)
    for j in range(4):
        p.vmem(f'buffer_load_dwordx4 {vr(R_K + 4 * j)}, v0, {sr(SRD_K, 4)}, s{S_KV} offen offset:{1024 * j} nt', 'K0')
    p.e(f'''
    s_cmp_lt_u32 s2, 64
    s_cbranch_scc1 L_class_O
    s_cmp_lt_u32 s2, 120
    s_cbranch_scc1 L_class_M
    s_branch L_class_R''')


def got_args(p):
    p.e(f's_waitcnt lgkmcnt(0)\ns_mov_b32 s{SRD_K}, s{P_K}\ns_mov_b32 s{SRD_K + 1}, s{P_K + 1}')


def common_setup(p):
    if CFG['STAMPS'] == 'e':
        p.e(f's_waitcnt lgkmcnt(0)\ns_mov_b32 s{S_STAMP}, s98')
        p.nstamp = 1
        p.stamp_names = ['entry']
    p.stamp('start')
    if CFG['DBGOUT']:
        p.e('s_memtime s[100:101]\ns_waitcnt lgkmcnt(0)\ns_mov_b32 s99, s100')
    p.srd(SRD_WS, P_WS, WS_BYTES)
    p.e('v_mov_b32 v4, -1\nv_mov_b32 v5, -1\nv_mov_b32 v6, -1\nv_mov_b32 v7, -1')


def common_setup2(p):
    p.srd(SRD_V, P_V, 0x4000000)
    p.srd(SRD_D, P_DBG, 256)
    p.e(f's_mov_b32 s{S_PLO}, 0x05040100\ns_mov_b32 s{S_PHI}, 0x07060302')


def clear_rows(p, s_off, stride, nb):
    lanes = nb // 16
    sh = lanes.bit_length() - 1
    p.lane(2, [(sh, 2, stride), (0, sh, 16)], tmp=3)
    if lanes * 4 < 64:
        p.exec_set((1 << (lanes * 4)) - 1)
    p.e(f'buffer_store_dwordx4 v[4:7], v2, {sr(SRD_WS, 4)}, s{s_off} offen sc1')
    p.exec_all()


def clears(p, role):
    sk = p.lab('clr')
    p.e(f's_cmp_lg_u32 s{S_WV}, 0\ns_cbranch_scc1 {sk}\ns_setprio 3')
    role()
    p.e(f's_lshl_b32 s{S_T0}, s5, 11\ns_add_u32 s{S_T0}, s{S_T0}, {WS_OP}')
    p.e(f'buffer_store_dwordx4 v[4:7], v0, {sr(SRD_WS, 4)}, s{S_T0} offen sc1')
    p.e(f'buffer_store_dwordx4 v[4:7], v0, {sr(SRD_WS, 4)}, s{S_T0} offen offset:1024 sc1')
    p.e(f's_lshl_b32 s{S_T0}, s5, 7\ns_add_u32 s{S_T0}, s{S_T0}, {WS_ML}')
    p.exec_set(0xff)
    p.e(f'buffer_store_dwordx4 v[4:7], v0, {sr(SRD_WS, 4)}, s{S_T0} offen sc1')
    p.exec_all()
    p.e(f'v_mov_b32 v8, 0\nv_mov_b32 v9, 0\nv_lshlrev_b32 v2, 3, v1\nds_write_b64 v2, v[8:9] offset:{L_ZERO}\nds_write_b32 v8, v8 offset:{L_CNT}')
    p.e(f's_setprio 0\n{sk}:')
    p.nclear = len(p.vm)


def count_b(p):
    sk = p.lab('arr')
    p.e(f's_cmp_lg_u32 s{S_WV}, 0\ns_cbranch_scc1 {sk}\ns_mov_b32 s{S_T0}, 1')
    p.e(f's_atomic_add s{S_T0}, {sr(P_DBG)}, 0\n{sk}:')


def arrive(p, off):
    sk = p.lab('arr')
    p.e(f's_cmp_lg_u32 s{S_WV}, 0\ns_cbranch_scc1 {sk}')
    p.e(f's_waitcnt vmcnt({len(p.vm) - p.nclear}) lgkmcnt(0)')
    p.stamp('arrived')
    for o in off:
        p.e(f's_mov_b32 s{S_T0}, 1\ns_atomic_add s{S_T0}, {sr(P_DBG)}, {o}')
    p.e(f'{sk}:\ns_barrier')


def push_cnt(p, dst, tag='CNT', off=0):
    p.push(tag, lambda t: p.vmem(f'buffer_load_dword v{dst}, off, {sr(SRD_D, 4)}, 0 offset:{off} sc1', t))


def check_cnt(p, dst, tag='CNT', off=0, total=256):
    p.need(tag)
    ok, lp = p.lab('cok'), p.lab('cretry')
    p.e(f'v_readfirstlane_b32 s{S_T0}, v{dst}\ns_mov_b32 s{S_SPIN}, 0\ns_cmp_ge_u32 s{S_T0}, {total}\ns_cbranch_scc1 {ok}\n{lp}:')
    p.e(f'buffer_load_dword v{dst}, off, {sr(SRD_D, 4)}, 0 offset:{off} sc1\ns_waitcnt vmcnt(0)\nv_readfirstlane_b32 s{S_T0}, v{dst}')
    p.e(f's_add_u32 s{S_SPIN}, s{S_SPIN}, 1\ns_cmp_ge_u32 s{S_SPIN}, {CFG["SPIN"]}\ns_cbranch_scc1 {ok}')
    p.e(f's_cmp_lt_u32 s{S_T0}, {total}\ns_cbranch_scc1 {lp}\n{ok}:')
    p.release(tag.lower())


def push_page(p, srd, tag, page, dst, need=None):
    for j in range(4):
        def fn(t, j=j):
            if j == 0 or True:
                p.e(f's_add_u32 s{S_T3}, s{S_KV}, {page * 32768}')
            p.vmem(f'buffer_load_dwordx4 {vr(dst + 4 * j)}, v0, {sr(srd, 4)}, s{S_T3} offen offset:{1024 * j} nt', t)
        p.push(tag, fn, need)


def push_k(p, t):
    push_page(p, SRD_K, f'K{t}', t, R_K + 16 * t)


def push_v(p, u, need=None):
    push_page(p, SRD_V, f'V{u}', 2 * u, p.vch[u], need)
    push_page(p, SRD_V, f'V{u}', 2 * u + 1, p.vch[u] + 16, need)


def push_v_lds(p, u):
    for k in range(8):
        def fn(t, k=k):
            if k == 0:
                p.e(f's_lshl_b32 s{S_STG}, s{S_WV}, 13\ns_add_u32 s{S_STG}, s{S_STG}, {L_STASH}')
            p.e(f's_add_u32 m0, s{S_STG}, {1024 * k}\ns_add_u32 s{S_T3}, s{S_KV}, {(2 * u + (k >> 2)) * 32768 + 1024 * (k & 3)}')
            p.vmem(f'buffer_load_dwordx4 v0, {sr(SRD_V, 4)}, s{S_T3} offen nt lds', t)
        p.push(f'V{u}', fn)


def v_from_lds(p, u, tmp):
    p.need(f'V{u}')
    p.e(f'v_add_u32 v{tmp}, s{S_STG}, v0')
    for k in range(8):
        p.e(f'ds_read_b128 {vr(p.vch[u] + 4 * k)}, v{tmp} offset:{1024 * k}')


def k_setup(p):
    p.e(f's_lshl_b32 s{S_T0}, s{S_WV}, 12')
    p.e(f'v_lshrrev_b32 v6, 4, v1\nv_lshlrev_b32 v7, 2, v6\nv_xor_b32 v7, v7, v1\nv_and_b32 v7, 15, v7\nv_lshlrev_b32 v7, 4, v7')
    p.e(f'v_lshl_add_u32 v2, v6, 8, v7\nv_add_u32 v2, s{S_T0}, v2')
    for j in (1, 2, 3):
        p.e(f'v_xor_b32 v{2 + j}, {16 * j}, v2')
    p.e(f'v_xor_b32 v7, v6, v1\nv_and_b32 v7, 15, v7\nv_lshlrev_b32 v7, 4, v7')
    p.e(f'v_and_b32 v8, 3, v1\nv_lshl_add_u32 v7, v8, 10, v7\nv_bfe_u32 v8, v1, 2, 2\nv_lshl_add_u32 v7, v8, 8, v7\nv_add_u32 v6, s{S_T0}, v7')
    for m in (1, 2, 3):
        p.e(f'v_xor_b32 v{6 + m}, {64 * m}, v6')


def k_trans(p, t):
    p.need(f'K{t}')
    for j in range(4):
        p.e(f'ds_write_b128 v{2 + j}, {vr(R_K + 16 * t + 4 * j)} offset:{1024 * j}')
    for m in range(4):
        p.e(f'ds_read_b128 {vr(R_K + 16 * t + 4 * m)}, v{6 + m}')


def q_loads(p, vo):
    def issue(model):
        for m in range(4):
            s = f'buffer_load_dwordx4 {vr(R_Q + 4 * m)}, v{vo}, {sr(SRD_WS, 4)}, s{S_U + 3} offen offset:{64 * m} sc1'
            p.vmem(s, 'Q') if model else p.e(s)
    return issue


def push_q(p, vo):
    def fn(t):
        p.e(f's_lshr_b32 s{S_U + 3}, s5, 4\ns_lshl_b32 s{S_U + 3}, s{S_U + 3}, 11\ns_add_u32 s{S_U + 3}, s{S_U + 3}, {WS_Q}')
        p.lane(vo, [(0, 3, 256), (4, 2, 16)], tmp=R_Q)
        q_loads(p, vo)(True)
    p.push('Q', fn, 'cnt')


def qk_softmax(p, vo_q):
    p.need('Q')
    p.check_retry(lambda: q_loads(p, vo_q)(False), list(range(R_Q, R_Q + 16)), 10)
    p.e('s_waitcnt lgkmcnt(0)')
    p.stamp('q_ok')
    for t in range(8):
        for m in range(4):
            s = vr(R_S + 4 * t)
            p.e(f'v_mfma_f32_16x16x32_bf16 {s}, {vr(R_K + 16 * t + 4 * m)}, {vr(R_Q + 4 * m)}, {"0" if m == 0 else s}')
        if t == 1:
            p.release('K01')
            p.burst(2)
        if t == 7:
            p.release('K47')
            p.burst(CFG['BURST'])
    T = 2
    for t in range(8):
        x = R_S + 4 * t
        for h in (0, 2):
            p.rnd2(x + h, x + h + 1, T + h // 2)
        for r in range(4):
            p.e(f'v_mul_f32 v{x + r}, 0x3db504f3, v{x + r}')
        for h in (0, 2):
            p.rnd2(x + h, x + h + 1, T + h // 2)
        if t == 0:
            p.e(f'v_max_f32 v4, v{x}, v{x + 1}')
        else:
            p.e(f'v_max3_f32 v4, v4, v{x}, v{x + 1}')
        p.e(f'v_max3_f32 v4, v4, v{x + 2}, v{x + 3}')
        if t % 2:
            p.fill()
    p.W += CFG['BURST'] - 2
    p.pump(2)
    p.W -= CFG['BURST'] - 2
    p.swapred('v_max_f32', 16, [4], [5])
    p.swapred('v_max_f32', 32, [4], [5])
    p.e(f'v_mul_f32 v6, {hex(LOG2E | 0x80000000)}, v4\ns_mov_b32 s{S_T0}, {hex(LOG2E)}')
    p.e(f's_mov_b32 s{S_MASK}, 0x00ff00ff\ns_mov_b32 s{S_MASK + 1}, 0x00ff00ff\nv_mov_b32 v5, 0')
    for t in range(8):
        x = R_S + 4 * t
        for r in range(4):
            p.e(f'v_fma_f32 v{x + r}, v{x + r}, s{S_T0}, v6')
        for r in range(4):
            p.e(f'v_exp_f32 v{x + r}, v{x + r}')
        p.e(f'v_add_f32 v7, v{x}, v{x + 1}\nv_add_f32 v8, v{x + 2}, v{x + 3}')
        p.e(f'v_cvt_pk_bf16_f32 v2, v{x}, v{x + 1}\nv_cvt_pk_bf16_f32 v3, v{x + 2}, v{x + 3}')
        p.e(f'v_add_f32 v5, v5, v7\nv_add_f32 v5, v5, v8')
        for d in range(2):
            p.e(f'v_cndmask_b32 v{R_P0 + 2 * t + d}, 0, v{2 + d}, {sr(S_MASK)}')
            p.e(f'v_cndmask_b32 v{R_P1 + 2 * t + d}, v{2 + d}, 0, {sr(S_MASK)}')
        if t % 2:
            p.fill()
    p.swapred('v_add_f32', 16, [5], [6])
    p.swapred('v_add_f32', 32, [5], [6])
    p.e(f's_lshl_b32 s{S_T0}, s{S_WV}, 6\ns_add_u32 s{S_T0}, s{S_T0}, {L_MLW}\nv_lshlrev_b32 v6, 3, v1\nv_add_u32 v7, s{S_T0}, v6')
    p.e(f'v_mov_b32 v8, 1\nv_mov_b32 v9, {L_CNT}')
    p.exec_set(0xff)
    p.e('ds_write_b64 v7, v[4:5]\ns_mov_b64 exec, 1\nds_add_rtn_u32 v8, v9, v8')
    p.exec_all()
    sk = p.lab('ml')
    p.e(f's_waitcnt lgkmcnt(0)\nv_readfirstlane_b32 s{S_T0}, v8\ns_cmp_lg_u32 s{S_T0}, 7\ns_cbranch_scc1 {sk}')
    p.e(f'ds_read_b64 v[8:9], v6 offset:{L_MLW}\ns_waitcnt lgkmcnt(0)')
    ml_combine(p, 8, 9, 2, 3, 7)
    p.e(f's_lshl_b32 s{S_T0}, s5, 7\ns_add_u32 s{S_T0}, s{S_T0}, {WS_ML}')
    p.exec_set(0xff)
    p.e(f'buffer_store_dwordx2 v[2:3], v6, {sr(SRD_WS, 4)}, s{S_T0} offen sc1')
    p.exec_all()
    p.e(f'{sk}:')
    p.stamp('softmax')


def ml_combine(p, m, l, M, L, t):
    p.e(f'v_max_f32_dpp v{M}, v{m}, v{m} row_ror:8 row_mask:0xf bank_mask:0xf')
    p.swapred('v_max_f32', 16, [M], [t])
    p.swapred('v_max_f32', 32, [M], [t])
    p.e(f'v_sub_f32 v{t}, v{m}, v{M}\nv_mul_f32 v{t}, {hex(LOG2E)}, v{t}\nv_exp_f32 v{t}, v{t}\nv_mul_f32 v{L}, v{l}, v{t}')
    p.e(f'v_add_f32_dpp v{L}, v{L}, v{L} row_ror:8 row_mask:0xf bank_mask:0xf')
    p.swapred('v_add_f32', 16, [L], [t])
    p.swapred('v_add_f32', 32, [L], [t])


def pv_chunk(p, u, T):
    p.need(f'V{u}')
    raw = p.vch[u]
    for c in range(4):
        tb = T + 8 * (c & 1)
        for hi in range(2):
            for jj in range(4):
                a, b = raw + 4 * (2 * jj) + c, raw + 4 * (2 * jj + 1) + c
                p.e(f'v_perm_b32 v{tb + 4 * hi + jj}, v{b}, v{a}, s{S_PHI if hi else S_PLO}')
        for hi in range(2):
            e = 2 * c + hi
            acc = vr(R_ACC + 4 * (e & 3))
            cc = '0' if (u == 0 and e < 4) else acc
            pb = (R_P0 if e < 4 else R_P1) + 4 * u
            p.e(f'v_mfma_f32_16x16x32_bf16 {acc}, {vr(tb + 4 * hi)}, {vr(pb)}, {cc}')
        p.fill()


def ml_loads(p):
    def issue(model):
        for k in range(2):
            s = f'buffer_load_dwordx2 {vr(6 + 2 * k, 2)}, v2, {sr(SRD_WS, 4)}, s{S_U + 3} offen offset:{1024 * k} sc1'
            p.vmem(s, 'ML') if model else p.e(s)
    return issue


def push_ml(p):
    def fn(t):
        p.e(f's_lshr_b32 s{S_U + 3}, s5, 4\ns_lshl_b32 s{S_U + 3}, s{S_U + 3}, 11\ns_add_u32 s{S_U + 3}, s{S_U + 3}, {WS_ML}')
        p.lane(2, [(3, 3, 128), (0, 3, 8)], tmp=3)
        ml_loads(p)(True)
    p.push('ML', fn, 'sm')


def ml_scale(p):
    p.need('ML')
    p.stamp('ml_landed')
    p.check_retry(lambda: ml_loads(p)(False), [6, 7, 8, 9], 3)
    p.e(f'''v_max_f32 v3, v6, v8
    v_sub_f32 v6, v6, v3
    v_sub_f32 v8, v8, v3
    v_mul_f32 v6, {hex(LOG2E)}, v6
    v_mul_f32 v8, {hex(LOG2E)}, v8
    v_exp_f32 v6, v6
    v_exp_f32 v8, v8
    v_mul_f32 v7, v7, v6
    v_fmac_f32 v7, v9, v8''')
    ml_combine(p, 3, 7, 6, 8, 9)
    p.e(f'v_sub_f32 v4, v4, v6\nv_mul_f32 v4, {hex(LOG2E)}, v4\nv_exp_f32 v4, v4\nv_rcp_f32 v8, v8\nv_mul_f32 v5, v4, v8')
    p.e(f's_mul_i32 s{S_T0}, s{S_WV}, 4864\ns_add_u32 s{S_T0}, s{S_T0}, {L_OPART}')
    p.lane(6, [(0, 3, 592), (4, 2, 144), (3, 1, 64)], sadd=S_T0, tmp=3)
    p.e(f's_mul_i32 s{S_T0}, s{S_WV}, 592\ns_add_u32 s{S_T0}, s{S_T0}, {L_OPART}')
    p.lane(7, [(4, 2, 144), (1, 1, 64), (0, 1, 32), (2, 2, 4)], sadd=S_T0, tmp=3)
    p.e('v_add_u32 v8, 16, v7\nv_lshlrev_b32 v9, 2, v1')
    p.e(f's_lshl_b32 s{S_U + 3}, s5, 11\ns_lshl_b32 s{S_T1}, s{S_WV}, 8\ns_add_u32 s{S_U + 3}, s{S_U + 3}, s{S_T1}\ns_add_u32 s{S_U + 3}, s{S_U + 3}, {WS_OP}')


def quad_pack_store(p, D, vo, s_off):
    for k in (1, 2, 3):
        p.e(f'v_mov_b32_dpp v{D + k}, v{D} quad_perm:[{k},{k},{k},{k}] row_mask:0xf bank_mask:0xf')
    p.exec_set(0x1111111111111111)
    p.vmem(f'buffer_store_dwordx4 {vr(D)}, v{vo}, {sr(SRD_WS, 4)}, s{s_off} offen sc1', 'st')
    p.exec_all()


def attn_epilogue(p):
    for k in range(16):
        p.e(f'v_mul_f32 v{R_ACC + k}, v5, v{R_ACC + k}')
        if k % 4 == 3:
            p.e(f'ds_write_b128 v6, {vr(R_ACC + k - 3)} offset:{16 * (k // 4)}')
    p.e('s_waitcnt lgkmcnt(0)\ns_barrier')
    B = R_P0
    for k in range(4):
        p.e(f'ds_read2st64_b32 {vr(B + 2 * k, 2)}, v7 offset0:{38 * k} offset1:{38 * k + 19}')
        p.e(f'ds_read2st64_b32 {vr(B + 8 + 2 * k, 2)}, v8 offset0:{38 * k} offset1:{38 * k + 19}')
    p.e('s_waitcnt lgkmcnt(0)')
    for w in (4, 2, 1):
        for h in (0, 8):
            for k in range(w):
                p.e(f'v_add_f32 v{B + h + k}, v{B + h + k}, v{B + h + k + w}')
    p.e(f'v_cvt_pk_bf16_f32 v{B + 4}, v{B}, v{B + 8}')
    quad_pack_store(p, B + 4, 9, S_U + 3)
    p.stamp('o_stored')


def selectors(p, SA, t):
    p.e(f'v_and_b32 v{t}, 1, v1\nv_cmp_eq_u32 vcc, 1, v{t}\nv_mov_b32 v{t}, 0x3f80\nv_mov_b32 v{t + 1}, 1.0')
    p.e(f'v_cndmask_b32 v{t}, v{t}, v{t + 1}, vcc\nv_bfe_u32 v{t + 1}, v1, 1, 3')
    for d in range(8):
        p.e(f'v_cmp_eq_u32 vcc, {d}, v{t + 1}\nv_cndmask_b32 v{SA + d}, 0, v{t}, vcc')


def wide_b_addrs(p, A, base_terms, s_base, const, t):
    p.lane(t, base_terms, const=const, sadd=s_base, tmp=A)
    p.e(f'v_mov_b32 v{t + 1}, {L_ZERO}')
    for j in range(4):
        m = 0x11111111 << j
        p.e(f's_mov_b32 s{S_MASK}, {hex(m)}\ns_mov_b32 s{S_MASK + 1}, {hex(m)}')
        p.e(f'v_cndmask_b32 v{A + j}, v{t + 1}, v{t}, {sr(S_MASK)}')


def sp_addrs(p, A, bstride, s_base, const, t, idx=None):
    p.lane(t, [(2, 2, bstride), (0, 1, bstride // 2), (4, 2, 16)], const=const, sadd=s_base, tmp=A)
    p.e(f'v_mov_b32 v{t + 1}, {L_ZERO}\ns_mov_b32 s{S_MASK}, 0x33333333\ns_mov_b32 s{S_MASK + 1}, 0x33333333')
    p.e(f'v_cndmask_b32 v{A}, v{t + 1}, v{t}, {sr(S_MASK)}\nv_cndmask_b32 v{A + 1}, v{t}, v{t + 1}, {sr(S_MASK)}')
    if idx is not None:
        p.e(f's_mov_b32 s{S_MASK}, 0x55555555\ns_mov_b32 s{S_MASK + 1}, 0x55555555\nv_mov_b32 v{t}, 0xeeee\nv_mov_b32 v{t + 1}, 0x4444')
        p.e(f'v_cndmask_b32 v{idx}, v{t}, v{t + 1}, {sr(S_MASK)}')


def sp_gemv(p, F, A, ACC, idx):
    for e in range(8):
        p.e(f'v_smfmac_f32_16x16x64_bf16 {vr(ACC + 4 * (e & 3))}, {vr(A + 4 * (e >> 2))}, {vr(F + 8 * e, 8)}, v{idx}')


def lines_of(p, fn):
    old, p.L = p.L, []
    fn()
    out, p.L = p.L, old
    return out


def interleave(p, main, fill, per):
    fill = list(fill)
    for m in main:
        p.L.append(m)
        p.L += fill[:per]
        fill = fill[per:]
    p.L += fill


def sp_fold(p, ACC, OUT):
    for e in range(8):
        r = ACC + 4 * (e & 3) + 2 * (e >> 2)
        p.e(f'v_add_f32 v{OUT + e}, v{r}, v{r + 1}')


def push_wide_rows(p, tag, raw, vo, s_base, row0, need=None):
    for jj in range(8):
        def fn(t, jj=jj):
            p.e(f's_add_u32 s{S_T3}, s{s_base}, {(row0 + (jj & ~1)) * 2048}')
            p.vmem(f'buffer_load_dwordx4 {vr(raw + 4 * jj)}, v{vo}, {sr(SRD_W, 4)}, s{S_T3} offen offset:{2048 * (jj & 1)} nt', t)
        p.push(tag, fn, need)


def finish(p):
    if CFG['DBGOUT']:
        p.stamp('end')
        sk = p.lab('dbg')
        p.e(f's_cmp_lg_u32 s{S_WV}, 0\ns_cbranch_scc1 {sk}')
        sk2 = p.lab('dbg')
        p.e(f's_cmp_lg_u32 s2, 64\ns_cbranch_scc1 {sk2}\ns_memtime s[100:101]\ns_waitcnt lgkmcnt(0)\ns_sub_u32 s100, s100, s99')
        p.e(f's_atomic_umax s100, {sr(P_DBG)}, 56\ns_sub_u32 s{S_T0}, s{S_STAMP + p.nstamp - 1}, s{S_STAMP}\ns_atomic_umax s{S_T0}, {sr(P_DBG)}, 60\n{sk2}:')
        slots = ['start', 'pre_done', 'k_done', 'q_ok', 'o_stored', 'e3_ok', 'a_stored', 'w_ready', 'e4_ok', 'f_stored', 'end']
        p.e(f's_not_b32 s{S_T0}, s{S_STAMP}\ns_atomic_umax s{S_T0}, {sr(P_DBG)}, 4')
        for k, n in enumerate(p.stamp_names):
            if n in slots:
                p.e(f's_atomic_umax s{S_STAMP + k}, {sr(P_DBG)}, {8 + 4 * slots.index(n)}')
        p.e(f'{sk}:')
    elif CFG['STAMPS']:
        p.e(f's_lshl_b32 s{S_T0}, s2, 3\ns_add_u32 s{S_T0}, s{S_T0}, s{S_WV}\ns_lshl_b32 s{S_T0}, s{S_T0}, 7\ns_add_u32 s{S_T0}, s{S_T0}, {WS_STAMP}')
        p.stamp('end')
        p.e('s_mov_b64 exec, 1\nv_mov_b32 v2, 0')
        for k in range(p.nstamp):
            p.e(f'v_mov_b32 v3, s{S_STAMP + k}\nbuffer_store_dword v3, v2, {sr(SRD_WS, 4)}, s{S_T0} offen offset:{4 * k}')
    p.e('s_endpgm')


def mod_unit_setup(p, s_unit, s_col, s_out):
    p.e(f's_lshl_b32 s{s_col}, s{s_unit}, 7')
    p.e(f's_lshr_b32 s{s_out}, s{s_unit}, 4\ns_lshl_b32 s{s_out}, s{s_out}, 13\ns_and_b32 s{S_T0}, s{s_unit}, 15')
    p.e(f's_lshl_b32 s{S_T0}, s{S_T0}, 7\ns_add_u32 s{s_out}, s{s_out}, s{S_T0}')
    if WS_MOD:
        p.e(f's_add_u32 s{s_out}, s{s_out}, {WS_MOD}')


def quarter_loads(p, s_col):
    p.lane(15, [(3, 3, 4 * 12288), (0, 3, 16)], tmp=128)
    p.e(f's_mul_i32 s{S_T2}, s{S_WV}, {32 * 12288}\ns_add_u32 s{S_T2}, s{S_T2}, s{s_col}')
    for jj in range(4):
        p.e(f's_add_u32 s{S_T3}, s{S_T2}, {jj * 12288}')
        p.waitn(p.W - 1)
        p.vmem(f'buffer_load_dwordx4 {vr(128 + 4 * jj)}, v15, {sr(SRD_W, 4)}, s{S_T3} offen nt', 'WQ')


def quarter_gemv(p, s_out):
    end = p.lab('qend')
    raw, F, B, ACC, a0, a1, t0 = 128, 144, 160, 176, 12, 13, 14
    RED2 = L_STASH
    p.e(f's_cmp_ge_u32 s2, 248\ns_cbranch_scc1 {end}')
    p.e(f's_and_b32 s{S_T0}, s2, 3\ns_lshl_b32 s{S_T0}, s{S_T0}, 1\ns_lshr_b32 s{S_T1}, s{S_WV}, 2\ns_add_u32 s{S_T0}, s{S_T0}, s{S_T1}')
    p.e(f's_lshl_b32 s{S_T0}, s{S_T0}, 10\ns_and_b32 s{S_T1}, s{S_WV}, 3\ns_lshl_b32 s{S_T1}, s{S_T1}, 6\ns_add_u32 s{S_T0}, s{S_T0}, s{S_T1}\ns_add_u32 s{S_T0}, s{S_T0}, {L_XA}')
    p.lane(a0, [(0, 2, 256), (4, 2, 16), (3, 1, 8)], sadd=S_T0, tmp=t0)
    p.e(f's_mov_b32 s{S_MASK}, 0x0f0f0f0f\ns_mov_b32 s{S_MASK + 1}, 0x0f0f0f0f\nv_mov_b32 v{t0}, {L_ZERO}')
    p.e(f'v_cndmask_b32 v{a1}, v{a0}, v{t0}, {sr(S_MASK)}\nv_cndmask_b32 v{a0}, v{t0}, v{a0}, {sr(S_MASK)}')
    p.e(f'ds_read_b64 {vr(B, 2)}, v{a0}\nds_read_b64 {vr(B + 2, 2)}, v{a1}')
    p.e(f's_lshl_b32 s{S_T0}, s{S_WV}, 11\ns_add_u32 s{S_T0}, s{S_T0}, {RED2}')
    p.lane(a0, [(5, 1, 1024), (0, 2, 256), (2, 1, 128), (4, 1, 16)], sadd=S_T0, tmp=t0)
    p.e('s_waitcnt vmcnt(0)')
    for c in range(4):
        for hi in range(2):
            for jj in range(2):
                p.e(f'v_perm_b32 v{F + 2 * (2 * c + hi) + jj}, v{raw + 4 * (2 * jj + 1) + c}, v{raw + 4 * (2 * jj) + c}, s{S_PHI if hi else S_PLO}')
    p.e('s_waitcnt lgkmcnt(0)')
    for e in range(8):
        acc = vr(ACC + 4 * (e & 3))
        p.e(f'v_mfma_f32_16x16x16_bf16 {acc}, {vr(F + 2 * e, 2)}, {vr(B + 2 * (e >> 2), 2)}, {"0" if e < 4 else acc}')
    p.exec_set(0xff00ff0000ff00ff)
    for a in range(4):
        p.e(f'ds_write_b128 v{a0}, {vr(ACC + 4 * a)} offset:{32 * a}')
    p.exec_all()
    p.e(f's_lshl_b32 s{S_T0}, s{S_WV}, 8\ns_add_u32 s{S_T0}, s{S_T0}, {RED2}')
    p.lane(a1, [(2, 1, 128), (0, 2, 32), (5, 1, 16), (3, 2, 4)], sadd=S_T0, tmp=t0)
    p.e(f's_waitcnt lgkmcnt(0)\ns_barrier\ns_cmp_ge_u32 s{S_WV}, 4\ns_cbranch_scc1 {end}')
    for k in range(8):
        p.e(f'ds_read2st64_b32 {vr(B + 2 * k, 2)}, v{a1} offset0:{8 * k} offset1:{8 * k + 4}')
    p.e(f's_lshl_b32 s{S_T0}, s{S_WV}, 11\ns_add_u32 s{S_T0}, s{S_T0}, s{s_out}\nv_lshlrev_b32 v{a0}, 2, v1\ns_waitcnt lgkmcnt(0)')
    for w in (8, 4, 2, 1):
        for k in range(w):
            p.e(f'v_add_f32 v{B + k}, v{B + k}, v{B + k + w}')
    for k in (1, 2, 3):
        p.e(f'v_mov_b32_dpp v{B + k}, v{B} quad_perm:[{k},{k},{k},{k}] row_mask:0xf bank_mask:0xf')
    p.exec_set(0x1111111111111111)
    p.e(f'buffer_store_dwordx4 {vr(B)}, v{a0}, {sr(SRD_WS, 4)}, s{S_T0} offen sc1')
    p.exec_all()
    p.e(f'{end}:')


def capture(p, fn):
    old, p.stream = p.stream, deque()
    fn()
    items, p.stream = list(p.stream), old
    return items


def weave(a, b, lead=0):
    out, a, b = [], list(a), list(b)
    out += b[:lead]
    b = b[lead:]
    while a or b:
        if b:
            out.append(b.pop(0))
        if a:
            out.append(a.pop(0))
    return out


def push_c3(p, tag, ptr, nbytes, wbase, n, first=0, dst=252, stride=None):
    def setup(t):
        p.srd(SRD_A, ptr, nbytes)
        p.e(f's_sub_u32 s{S_T2}, s2, {wbase}\ns_lshl_b32 s{S_T2}, s{S_T2}, 3\ns_add_u32 s{S_T2}, s{S_T2}, s{S_WV}')
        p.e(f's_mul_i32 s{S_T2}, s{S_T2}, {(stride or n) * 8192}\ns_add_u32 s{S_T2}, s{S_T2}, {first * 8192 + 384}')
        p.lane(15, [(3, 3, 1024), (0, 3, 16)], tmp=dst)
        for k in range(n):
            if k:
                p.e(f's_add_u32 s{S_T2}, s{S_T2}, 8192')
            p.vmem(f'buffer_load_dwordx4 {vr(dst)}, v15, {sr(SRD_A, 4)}, s{S_T2} offen', t)
    p.push(tag, setup)


def push_c3half(p, ptr, wbase, dst=252):
    def fn(t):
        p.srd(SRD_A, ptr, 1024 * 7168)
        p.e(f's_sub_u32 s{S_T2}, s2, {wbase}\ns_mul_i32 s{S_T3}, s{S_T2}, 37\ns_lshr_b32 s{S_T3}, s{S_T3}, 8\ns_mul_i32 s{S_T3}, s{S_T3}, 7')
        p.e(f's_add_u32 s{S_T2}, s{S_T2}, s{S_T3}\ns_add_u32 s{S_T2}, s{S_T2}, 7\ns_lshl_b32 s{S_T2}, s{S_T2}, 3\ns_add_u32 s{S_T2}, s{S_T2}, s{S_WV}')
        p.e(f's_lshl_b32 s{S_T2}, s{S_T2}, 13')
        p.lane(15, [(3, 3, 1024), (0, 3, 16)], tmp=dst)
        p.vmem(f'buffer_load_dwordx4 {vr(dst)}, v15, {sr(SRD_A, 4)}, s{S_T2} offen offset:384', t)
    p.push('c3', fn)


def push_c3mod(p, wbase, dst=252):
    def fn(t):
        p.srd(SRD_A, P_WMOD, 1024 * 12288)
        p.e(f's_sub_u32 s{S_T2}, s2, {wbase}\ns_lshl_b32 s{S_T2}, s{S_T2}, 3\ns_add_u32 s{S_T2}, s{S_T2}, s{S_WV}')
        p.e(f's_lshr_b32 s{S_T3}, s{S_T2}, 7\ns_lshl_b32 s{S_T3}, s{S_T3}, 10\ns_and_b32 s{S_T2}, s{S_T2}, 127')
        p.e(f's_mul_i32 s{S_T2}, s{S_T2}, {8 * 12288}\ns_add_u32 s{S_T2}, s{S_T2}, s{S_T3}\ns_add_u32 s{S_T2}, s{S_T2}, 4096')
        p.lane(15, [(3, 3, 12288), (0, 3, 16)], tmp=dst)
        p.vmem(f'buffer_load_dwordx4 {vr(dst)}, v15, {sr(SRD_A, 4)}, s{S_T2} offen offset:384', t)
        sk = p.lab('c3')
        p.e(f's_cmp_ge_u32 s{S_T3}, 2048\ns_cbranch_scc1 {sk}\ns_add_u32 s{S_T2}, s{S_T2}, 4096')
        p.e(f'buffer_load_dwordx4 {vr(dst)}, v15, {sr(SRD_A, 4)}, s{S_T2} offen offset:384\n{sk}:')
    p.push('c3', fn)


def rewarm(p, label, n, dst):
    if not CFG['REWARM']:
        return
    here = p.lab('pc')
    p.e(f's_getpc_b64 s[{S_T0}:{S_T1}]\n{here}:\ns_lshl_b32 s{S_T2}, s{S_WV}, 10\ns_add_u32 s{S_T2}, s{S_T2}, ({label}-{here})&0xfffffff0')
    p.e(f's_min_u32 s{S_T2}, s{S_T2}, (L_code_end-{here}-{1024 + 8192 * (n - 1)})&0xfffffff0')
    p.e(f's_and_b32 s{S_T0}, s{S_T0}, 0xfffffff0\ns_add_u32 s{S_T0}, s{S_T0}, s{S_T2}\ns_addc_u32 s{S_T1}, s{S_T1}, 0')
    for k in range(n):
        if k:
            p.e(f's_add_u32 s{S_T0}, s{S_T0}, 8192\ns_addc_u32 s{S_T1}, s{S_T1}, 0')
        p.vmem(f'global_load_dwordx4 {vr(dst)}, v0, s[{S_T0}:{S_T1}]', 'code')


def h5_prefetch(p, cls):
    p.srd(SRD_A, P_W2, 3584 * 2048)
    if CFG['H5X']:
        p.e(f's_sub_u32 s{S_T0}, s{S_W8}, {dict(P=23, Q=15 - 2, R=27 - 10)[cls]}\ns_lshr_b32 s{S_T2}, s{S_T0}, 1\ns_lshl_b32 s{S_T2}, s{S_T2}, 3')
        p.e(f's_and_b32 s{S_T1}, s2, 7\ns_add_u32 s{S_T2}, s{S_T2}, s{S_T1}\ns_lshl_b32 s{S_T2}, s{S_T2}, 17')
    else:
        p.e(f's_sub_u32 s{S_T0}, s2, {dict(Q=120 - 16, R=216 - 80, P=184)[cls]}')
        p.e(f's_lshr_b32 s{S_T2}, s{S_T0}, 1\ns_lshl_b32 s{S_T2}, s{S_T2}, 17')
    p.e(f's_and_b32 s{S_T0}, s{S_T0}, 1\ns_lshl_b32 s{S_T0}, s{S_T0}, 15')
    p.e(f's_add_u32 s{S_T2}, s{S_T2}, s{S_T0}\ns_add_u32 s{S_T2}, s{S_T2}, s{S_ROT}')
    for off in (0, 65536)[:CFG['H5']]:
        p.e(f's_add_u32 s{S_T3}, s{S_T2}, {off}')
        for j in range(4):
            p.waitn(CFG['H5W'] - 1)
            p.vmem(f'buffer_load_dwordx4 v[252:255], v0, {sr(SRD_A, 4)}, s{S_T3} offen offset:{1024 * j}', 'h5')


def build_class(cls, ent):
    p = Prog(cls)
    pre = {'P': 'mod', 'PR': 'mod', 'Q': 'q'}.get(cls)
    p.vm = list(ent.vm_pre if pre else ent.vm)
    p.e(f'L_class_{cls}:')
    if pre:
        got_args(p)
    common_setup(p)
    Wattn = CFG['W_' + cls]
    stage = CFG['STAGE'] and not pre
    p.vch = [64, 96, 160, 128] if stage else VCH
    S_COL, S_OUT, S_WB = S_U, S_U + 1, S_U + 2
    S_OUT2, S_COL2 = S_U + 4, S_U + 5
    roles = []
    if pre == 'mod':
        p.srd(SRD_W, P_WMOD, 1024 * 12288)
        p.srd(SRD_A, P_C, 8192)
        p.e(f's_sub_u32 s{S_T1}, s2, 184')
        mod_unit_setup(p, S_T1, S_COL, S_OUT)
        narrow_setup(p, 12288, 10, S_WB, S_COL, 3)
    if pre == 'q':
        p.srd(SRD_W, P_WQ, 1024 * 8192)
        p.srd(SRD_A, P_X, 8192)
        p.e(f's_sub_u32 s{S_COL}, s2, 120\ns_lshl_b32 s{S_COL}, s{S_COL}, 7\ns_add_u32 s{S_OUT}, s{S_COL}, {WS_Q}')
        narrow_setup(p, 8192, 10, S_WB, S_COL, 3)
    if pre:
        p.lane(11, AL_TERMS, tmp=3)
        p.e(f's_lshl_b32 s{S_U + 6}, s{S_WV}, 8')
        push_al_loads(p, 'ACT', SRD_A, 16, 11, S_U + 6)
        push_narrow_weights(p, 'WA', 12288 if pre == 'mod' else 8192, 64, 96, 10, S_WB)
        roles.append(lambda: clear_rows(p, S_OUT, 2048 if pre == 'mod' else 8192, 128))
    if cls == 'O' and CFG['HP3']:
        p.srd(SRD_W, P_WMOD, 1024 * 12288)
        p.e(f's_lshl_b32 s{S_T0}, s2, 3\ns_add_u32 s{S_T0}, s{S_T0}, s{S_WV}\ns_lshr_b32 s{S_T1}, s{S_T0}, 7\ns_lshl_b32 s{S_T1}, s{S_T1}, 10')
        p.e(f's_and_b32 s{S_T0}, s{S_T0}, 127\ns_mul_i32 s{S_T0}, s{S_T0}, {8 * 12288}\ns_add_u32 s{S_T0}, s{S_T0}, s{S_T1}')
        p.lane(10, [(3, 3, 12288), (0, 3, 16)], tmp=3)
        p.vmem(f'buffer_load_dwordx4 v[252:255], v10, {sr(SRD_W, 4)}, s{S_T0} offen offset:384', 'hp3')
    if cls in ('PR', 'R'):
        p.e(f's_sub_u32 s{S_T1}, s2, {216 - 32 if cls == "R" else 200 - 80}')
        mod_unit_setup(p, S_T1, S_COL2, S_OUT2)
        roles.append(lambda: clear_rows(p, S_OUT2, 2048, 128))
    if cls == 'R':
        p.e(f's_sub_u32 s{S_T1}, s2, 216\ns_and_b32 s{S_T0}, s{S_T1}, 3\ns_lshr_b32 s{S_T1}, s{S_T1}, 2')
        p.e(f's_lshl_b32 s{S_OUT}, s{S_T0}, 13\ns_lshl_b32 s{S_COL}, s{S_T1}, 8\ns_add_u32 s{S_OUT}, s{S_OUT}, s{S_COL}\ns_add_u32 s{S_OUT}, s{S_OUT}, {WS_CBP}')
        p.e(f's_mul_i32 s{S_T0}, s{S_T0}, {256 * 12288}\ns_lshl_b32 s{S_COL}, s{S_T1}, 7\ns_add_u32 s{S_COL}, s{S_COL}, s{S_T0}\ns_add_u32 s{S_COL}, s{S_COL}, {72 * 128}')

        def q_clear():
            sk = p.lab('qclr')
            p.e(f's_cmp_ge_u32 s2, 248\ns_cbranch_scc1 {sk}')
            clear_rows(p, S_OUT, 2048, 256)
            p.e(f'{sk}:')
        roles.append(q_clear)
    if cls == 'O':
        p.e(f's_and_b32 s{S_COL}, s2, 7\ns_lshl_b32 s{S_OUT}, s{S_COL}, 13\ns_lshl_b32 s{S_T0}, s{S_W8}, 8')
        p.e(f's_add_u32 s{S_OUT}, s{S_OUT}, s{S_T0}\ns_add_u32 s{S_OUT}, s{S_OUT}, {WS_AP}')
        roles.append(lambda: clear_rows(p, S_OUT, 2048, 256))
    if cls == 'M':
        p.e(f's_sub_u32 s{S_COL}, s2, 64\ns_lshl_b32 s{S_OUT}, s{S_COL}, 13\ns_lshl_b32 s{S_T0}, s{S_WV}, 10')
        p.e(f's_add_u32 s{S_OUT}, s{S_OUT}, s{S_T0}\ns_add_u32 s{S_OUT}, s{S_OUT}, {WS_FP}')

        def fp_clear():
            for k in range(8):
                if k % 4 == 0:
                    p.e(f's_add_u32 s{S_T0}, s{S_OUT}, {1024 * k}')
                p.e(f'buffer_store_dwordx4 v[4:7], v0, {sr(SRD_WS, 4)}, s{S_T0} offen offset:{1024 * (k % 4)} sc1')
        roles.append(fp_clear)
    clears(p, lambda: [r() for r in roles])

    def role_setup():
        if cls == 'O':
            p.srd(SRD_W, P_WO, 4096 * 2048)
            p.lane(12, [(4, 2, 8 * 2048), (0, 4, 16)], tmp=13)
            p.e(f's_lshl_b32 s{S_WB}, s{S_COL}, 3\ns_add_u32 s{S_WB}, s{S_WB}, s{S_WV}\ns_lshl_b32 s{S_WB}, s{S_WB}, 17')
            p.e(f's_lshl_b32 s{S_T0}, s{S_W8}, 8\ns_add_u32 s{S_WB}, s{S_WB}, s{S_T0}')
        if cls in ('PR', 'R'):
            p.srd(SRD_W, P_WMOD, 1024 * 12288)
            p.srd(SRD_A, P_C, 8192)
            narrow_setup(p, 12288, 12, S_WB, S_COL2, 13)
            p.lane(13, AL_TERMS, tmp=14)
            p.e(f's_lshl_b32 s{S_U + 6}, s{S_WV}, 8')
        if cls == 'M':
            p.srd(SRD_W, P_W2, 3584 * 2048)
            p.srd(SRD_A, P_X, 8192)
            p.e(f's_mov_b32 s{S_MASK}, 0xff00ff00\ns_mov_b32 s{S_MASK + 1}, 0xff00ff00')
            p.e(f'v_mov_b32 v12, s{P_W1}\nv_mov_b32 v13, s{P_W1 + 1}\nv_mov_b32 v14, s{P_W3}\nv_mov_b32 v15, s{P_W3 + 1}')
            p.e(f'v_cndmask_b32 v12, v12, v14, {sr(S_MASK)}\nv_cndmask_b32 v13, v13, v15, {sr(S_MASK)}')
            p.e(f's_mul_i32 s{S_T0}, s{S_WV}, {128 * 7168}\ns_lshl_b32 s{S_T1}, s{S_COL}, 7\ns_add_u32 s{S_T0}, s{S_T0}, s{S_T1}')
            p.lane(14, [(4, 2, 8 * 7168), (0, 3, 16)], sadd=S_T0, tmp=15)
            p.e('v_mov_b32 v15, 0\nv_lshl_add_u64 v[12:13], v[14:15], 0, v[12:13]')
            p.e(f's_mov_b32 s{S_C64}, 7168\ns_mov_b32 s{S_C64 + 1}, 0\ns_mov_b32 s{S_C64B}, {25 * 7168}\ns_mov_b32 s{S_C64B + 1}, 0')
            p.lane(14, [(4, 2, 8 * 2048), (0, 4, 16)], tmp=15)
            p.e(f's_lshl_b32 s{S_WB}, s{S_COL}, 17\ns_lshl_b32 s{S_T0}, s{S_WV}, 8\ns_add_u32 s{S_WB}, s{S_WB}, s{S_T0}')

    def sc_issue(model):
        for k, chunk in ((0, 0), (1, 1)):
            for q in range(2):
                p.e(f's_add_u32 s{S_T3}, s{S_U + 6}, {WS_MOD + chunk * 8192 + 4096 * q}')
                s = f'buffer_load_dwordx2 {vr(24 + 4 * k + 2 * q, 2)}, v11, {sr(SRD_WS, 4)}, s{S_T3} offen sc1'
                p.vmem(s, 'SC') if model else p.e(s)

    def w13(u, raw, nd):
        def mk(jj):
            def fn(t):
                p.vmem(f'global_load_dwordx4 {vr(raw + 4 * jj)}, v[12:13], off nt', t)
                p.e(f'v_lshl_add_u64 v[12:13], {sr(S_C64B if jj == 7 else S_C64)}, 0, v[12:13]')
            return fn
        return [(f'WM{u}', mk(jj), nd) for jj in range(8)]

    for t in range(0 if pre else 1, 8):
        if t == 4 and CFG['C3']:
            base = dict(O=(0, 2), Q=(120, 2), R=(216, 3), M=(64, 2), P=(184, 4), PR=(184, 4))
            if cls == CFG['C3W1'] or (CFG['C3W1'] == 'P' and cls == 'PR'):
                push_c3half(p, P_W1, base[cls][0]) if CFG['C3H'] else push_c3(p, 'c3', P_W1, 1024 * 7168, *base[cls])
        if t == 5 and CFG['C3']:
            if cls == CFG['C3W3'] or (CFG['C3W3'] == 'P' and cls == 'PR'):
                push_c3half(p, P_W3, base[cls][0]) if CFG['C3H'] else push_c3(p, 'c3', P_W3, 1024 * 7168, *base[cls])
        if t == 5 and CFG['C3O'] and cls in ('P', 'PR'):
            push_c3(p, 'c3', P_WO, 4096 * 2048, 184, CFG['C3O'], stride=4)
        if t == 1 and CFG['C3Q'] and cls in CFG['C3Q']:
            wb, n, first = dict(O=(0, 1, 0), R=(216, 1, 512), M=(64, 1, 512))[cls]
            push_c3(p, 'c3', P_WQ, 1024 * 8192, wb, n, first)
        if t == 6 and cls == CFG['C3MOD']:
            push_c3mod(p, dict(O=0, Q=120, M=64)[cls])
        if pre == 'q' and t == 0:
            push_cnt(p, 14, 'CNTA', 128)
        if pre == 'q' and t == CFG['SC_AT']:
            p.push('SC', lambda tg: sc_issue(True), 'cnta')
        if pre and t == 6:
            push_cnt(p, 10)
        push_page(p, SRD_K, f'K{t}', t, R_K + 16 * t, 'pre' if (pre == 'mod' and t == 0) else None)
    vv = capture(p, lambda: push_v(p, 0, 'pre' if pre else None)) + capture(p, lambda: push_v(p, 1, 'pre' if pre else None))
    qi = capture(p, lambda: push_q(p, 11))
    if stage:
        vv += capture(p, lambda: push_v_lds(p, 2))
    if pre:
        p.stream += qi + vv
    else:
        k = CFG['Q_AT'] + (CFG['STAGE'] if stage else 0)
        p.stream += vv[:k - 6] + capture(p, lambda: push_cnt(p, 10)) + vv[k - 6:k] + qi + vv[k:]
    v3 = capture(p, lambda: push_v(p, 3, 'K01' if stage else 'pv0'))
    ml = capture(p, lambda: push_ml(p))
    if not stage:
        push_v(p, 2, 'K01')
    p.stream += v3[:3] + ml + v3[3:] if pre else v3
    mark = len(p.stream)
    if cls == 'O':
        push_wide_rows(p, 'WO0', 192, 12, S_WB, 0, 'K47')
        push_wide_rows(p, 'WO1', 224, 12, S_WB, 32)
    if cls in ('R', 'PR'):
        wb = capture(p, lambda: push_narrow_weights(p, 'WB', 12288, 192, 224, 12, S_WB))
        wb = [(t, f, 'K47') for t, f, _ in wb]
        wb.insert(8, ('ACT2', capture(p, lambda: push_al_loads(p, 'ACT2', SRD_A, 96, 13, S_U + 6))[0][1], 'pv1'))
        k = 99 if cls == 'R' else CFG['P_EARLY']
        p.stream += wb[:k] + [(t, f, 'ost') for t, f, _ in wb[k:]]
    if cls == 'M':
        post = w13(0, 192, 'K47') + w13(1, 224, None) + w13(2, 96, 'pv1') + w13(3, 128, 'pv3')
        post.insert(len(post) - CFG['MOD_AT'], ('MOD', lambda t: m_mod_issue(p, True), 'p2'))
        p.stream += post
        p.w2late = capture(p, lambda: push_wide_rows(p, 'WM4', 96, 14, S_WB, 0)) + capture(p, lambda: push_wide_rows(p, 'WM5', 128, 14, S_WB, 32))
    if not pre:
        p.stream.insert(mark + CFG['ML_AT_M' if cls == 'M' else 'ML_AT'], ml[0])

    p.W = CFG['W_PRE'] if pre == 'mod' else CFG['W_PREQ'] if pre else CFG['W_INIT']
    while p.can_pump() and len(p.vm) < p.W and p.stream[0][0] not in ('CNTA', 'K0'):
        p.pump(1)
    p.stamp('first')
    common_setup2(p)
    k_setup(p)
    arrive(p, {'mod': [128, 0], 'q': [0], None: []}[pre])
    p.W = Wattn if pre else CFG['W_LOW']
    if not pre:
        k_trans(p, 0)
        p.stamp('k0')
    if pre == 'mod':
        p.need('ACT')
        silu_to_xa(p, 16, list(range(20, 28)), 12)
        p.need('WA0')
        p.perm_chunk(64, 32)
        p.need('WA1')
        p.stamp('w_landed')
        p.perm_chunk(96, 64)
        narrow_gemv(p, 32, 64, 96, 112, [12, 13, 14], (S_OUT, 2048))
        p.release('pre')
        p.stamp('pre_done')
    if pre == 'q':
        p.need('ACT')
        X = list(range(40, 48))
        for d in range(4):
            p.unpack(16 + d, X[2 * d], X[2 * d + 1])
        layernorm(p, X, list(range(48, 60)), True)
        for d in range(4):
            p.e(f'v_cvt_pk_bf16_f32 v{16 + d}, v{X[2 * d]}, v{X[2 * d + 1]}')
        p.need('WA0')
        p.perm_chunk(64, 32)
        p.need('WA1')
        p.stamp('w_landed')
        p.perm_chunk(96, 64)
        check_cnt(p, 14, 'CNTA', 128, 32)
    for t in range(0 if pre else 1, 8):
        if not pre and t == CFG[dict(M='T_LOW_M', R='T_LOW_R').get(cls, 'T_LOW')]:
            p.W = Wattn
        k_trans(p, t)
        if not pre and t == 1:
            count_b(p)
        if pre == 'q' and t == CFG['SC_AT'] - 1:
            p.need('SC')
            p.stamp('sc_landed')
            p.check_retry(lambda: sc_issue(False), list(range(24, 32)), 12)
            p.stamp('sc_ok')
            X = list(range(96, 104))
            for d in range(4):
                p.unpack(16 + d, X[2 * d], X[2 * d + 1])
            one_plus(p, [28, 29, 30, 31], [104, 105])
            modulate(p, X, [28, 29, 30, 31], [24, 25, 26, 27], [104, 105], [16, 17, 18, 19])
            xa_base(p, S_T0)
            p.lane(12, XA_TERMS, sadd=S_T0, tmp=13)
            p.e('ds_write_b64 v12, v[16:17]\nds_write_b64 v12, v[18:19] offset:512')
            narrow_gemv(p, 32, 64, 96, 112, [12, 13, 14], (S_OUT, 8192))
            p.release('pre')
            p.stamp('pre_done')
        if pre and t == 6:
            check_cnt(p, 10)
    role_setup()
    p.stamp('k_done')
    if not pre:
        check_cnt(p, 10)
    qk_softmax(p, 11)
    p.release('sm')
    pv_chunk(p, 0, 160)
    p.release('pv0')
    if stage:
        v_from_lds(p, 2, 10)
    pv_chunk(p, 1, 64)
    p.release('pv1')
    if stage:
        p.e('s_waitcnt lgkmcnt(0)')
    if CFG['W_END'] and pre:
        p.W = max(p.W, CFG['W_END'])
    pv_chunk(p, 2, 64)
    p.stamp('v2')
    if pre:
        ml_scale(p)
        p.stamp('ml_ok')
    pv_chunk(p, 3, 64)
    p.release('pv3')
    p.stamp('pv_done')
    if not pre:
        ml_scale(p)
        p.stamp('ml_ok')
        p.burst(CFG['E_BURST'])
    attn_epilogue(p)
    p.release('ost')
    if cls == 'M':
        p.W = max(p.W, CFG['W_POST'])
    if cls == 'PR':
        p.W = CFG['W_POSTP']
    if cls == 'O':
        p.need('WO0')
        p.perm_chunk(192, O_F, fs=8)
        while p.can_pump():
            p.pump(1)
        o_setup(p, S_COL, S_OUT)
        if CFG['EARLY3']:
            p.poll_first(E3_OFFS, S_U + 7, 13, O_E3)
        p.need('WO1')
        p.perm_chunk(224, O_F + 4, fs=8)
        p.stamp('w_ready')
        p.e('L_otail:')
        o_tail(p, S_OUT)
    if cls in ('R', 'PR'):
        p.need('ACT2')
        silu_to_xa(p, 96, list(range(100, 108)), 10)
        while p.can_pump():
            p.pump(1)
        if cls == 'R':
            quarter_loads(p, S_COL)
        p.perm_chunk(192, 32)
        p.need('WB1')
        p.perm_chunk(224, 64)
        narrow_gemv(p, 32, 64, 96, 112, [12, 13, 14], (S_OUT2, 2048))
        p.stamp('post_done')
        if cls == 'R':
            quarter_gemv(p, S_OUT)
            p.stamp('q_done')
    if cls == 'M':
        m_tail(p, S_COL, S_OUT)
    if cls in ('Q', 'R', 'P') and CFG['H5']:
        h5_prefetch(p, cls)
    assert not p.stream, [t[0] for t in p.stream]
    finish(p)
    return p


O_SEL, O_E3, O_B, O_F = 16, 64, 24, 96
E3_OFFS = [(t >> 2) * 2 * 4 * 16 * 2048 + (t & 3) * 4 * 2048 for t in range(8)]
RED_W = [(4, 2, 512), (0, 4, 32)]


def o_setup(p, S_KS, S_OUT):
    selectors(p, O_SEL, 10)
    p.lane(13, [(3, 1, 4 * 16 * 2048), (4, 2, 2048), (0, 3, 16)], tmp=10)
    p.e(f's_lshr_b32 s{S_T0}, s{S_KS}, 1\ns_lshl_b32 s{S_T0}, s{S_T0}, 15\ns_and_b32 s{S_T1}, s{S_KS}, 1\ns_lshl_b32 s{S_T1}, s{S_T1}, 10')
    p.e(f's_add_u32 s{S_T0}, s{S_T0}, s{S_T1}\ns_lshl_b32 s{S_T1}, s{S_WV}, 7\ns_add_u32 s{S_T0}, s{S_T0}, s{S_T1}\ns_add_u32 s{S_U + 7}, s{S_T0}, {WS_OP}')
    xa_base(p, S_T0)
    p.lane(14, [(5, 1, 256), (3, 1, 128), (0, 3, 8), (4, 1, 4)], sadd=S_T0, tmp=10)
    sp_addrs(p, O_B, 128, S_T0, 0, 10, O_B + 2)
    p.e(f's_lshl_b32 s{S_T0}, s{S_WV}, 11\ns_add_u32 s{S_T0}, s{S_T0}, {L_RED}')
    p.lane(15, RED_W, sadd=S_T0, tmp=10)
    p.e(f's_lshl_b32 s{S_T0}, s{S_WV}, 9\ns_add_u32 s{S_T0}, s{S_T0}, {L_RED}')
    p.lane(O_B + 4, [(0, 6, 8)], sadd=S_T0)
    p.e(f's_lshl_b32 s{S_T0}, s{S_WV}, 11\ns_add_u32 s{S_OUT}, s{S_OUT}, s{S_T0}')
    for k in range(20):
        p.e(f'v_mov_b32 v{32 + k}, 0')


def o_tail(p, S_OUT):
    ACC, D, OUT, A = 32, 48, 52, 160
    p.waitn(0)
    p.poll_rr(E3_OFFS, S_U + 7, 13, O_E3, 10,
              lambda t, r: p.e(f'v_mfma_f32_16x16x32_bf16 {vr(D)}, {vr(O_SEL + 4 * (t >> 2))}, {vr(r)}, {vr(D)}'), CFG['EARLY3'], CFG['SL3'])
    p.stamp('e3_ok')
    p.e(f'v_cvt_pk_bf16_f32 v{D}, v{D}, v{D + 1}\nv_cvt_pk_bf16_f32 v{D + 1}, v{D + 2}, v{D + 3}')
    p.e(f'ds_write2_b32 v14, v{D}, v{D + 1} offset0:0 offset1:16')
    p.e(f'ds_read_b128 {vr(A)}, v{O_B}\nds_read_b128 {vr(A + 4)}, v{O_B + 1}\ns_waitcnt lgkmcnt(0)')
    p.stamp('o1')
    sp_gemv(p, O_F, A, ACC, O_B + 2)
    sp_fold(p, ACC, OUT)
    p.e(f'ds_write_b128 v15, {vr(OUT)}\nds_write_b128 v15, {vr(OUT + 4)} offset:16')
    sk = p.lab('ofin')
    p.stamp('o2')
    p.e(f's_waitcnt lgkmcnt(0)\ns_barrier')
    p.stamp('o3')
    p.e(f's_cmp_ge_u32 s{S_WV}, 4\ns_cbranch_scc1 {sk}')
    B = 168
    for k in range(4):
        p.e(f'ds_read2st64_b64 {vr(B + 4 * k)}, v{O_B + 4} offset0:{8 * k} offset1:{8 * k + 4}')
    p.e('s_waitcnt lgkmcnt(0)')
    for w in (8, 4, 2):
        for k in range(w):
            p.e(f'v_add_f32 v{B + k}, v{B + k}, v{B + k + w}')
    p.e(f'v_cvt_pk_bf16_f32 v{B + 4}, v{B}, v{B + 1}')
    quad_pack_store(p, B + 4, 9, S_OUT)
    p.e(f'{sk}:')
    p.stamp('a_stored')


CB_OFFS = [WS_CBP - 2048 + 8192 * kq + 4096 * q for kq in range(4) for q in range(2)]


def m_mod_issue(p, first):
    if first:
        p.lane(112, AL_TERMS, tmp=2)
        p.lane(113, [(5, 1, 2048), (0, 4, 32), (4, 1, 16)], tmp=2)
        p.e(f's_lshl_b32 s{S_U + 6}, s{S_WV}, 8\ns_lshl_b32 s{S_U + 5}, s{S_WV}, 9')
        for k in range(104, 108):
            p.e(f'v_mov_b32 v{k}, 0')
        push_al_loads(p, None, SRD_A, 96, 112, S_U + 6)(False)
    hi, jn = p.lab('cbhi'), p.lab('cbj')
    p.e(f's_cmp_ge_u32 s{S_WV}, 4\ns_cbranch_scc1 {hi}')
    for q in range(2):
        p.e(f's_add_u32 s{S_T3}, s{S_U + 6}, {WS_MOD + 4 * 8192 + 4096 * q}')
        p.e(f'buffer_load_dwordx2 {vr(104 + 2 * q, 2)}, v112, {sr(SRD_WS, 4)}, s{S_T3} offen sc1')
    if first:
        p.e(f's_branch {jn}\n{hi}:')
        for t, off in enumerate(CB_OFFS):
            p.e(f's_add_u32 s{S_T3}, s{S_U + 5}, {off}')
            p.e(f'buffer_load_dwordx4 {vr(160 + 4 * t)}, v113, {sr(SRD_WS, 4)}, s{S_T3} offen sc1')
        p.e(f'{jn}:')
    else:
        p.e(f'{hi}:')
    for k, chunk in ((0, 2), (2, 3)):
        for q in range(2):
            p.e(f's_add_u32 s{S_T3}, s{S_U + 6}, {WS_MOD + chunk * 8192 + 4096 * q}')
            s = f'buffer_load_dwordx2 {vr(100 + 4 * k + 2 * q, 2)}, v112, {sr(SRD_WS, 4)}, s{S_T3} offen sc1'
            p.vmem(s, 'MOD') if first else p.e(s)


def m_tail(p, S_MI, S_OUT):
    raw = [192, 224, 96, 128]
    F = [32, 36, 192, 196]
    F0, F1 = 32, 192

    def w2_issue(a, b):
        for t, f, _ in p.w2late[a:b]:
            f(t)
    SP, SEL, D = 160, 16, 24
    IDX, A0 = 4, 5
    p.fill()
    for u in (0, 1, 2):
        p.need(f'WM{u}')
        p.stamp(f'wm{u}')
        p.perm_chunk(raw[u], F[u], fs=8)
    p.release('p2')
    while p.can_pump():
        p.pump(1)
    selectors(p, SEL, 2)
    p.lane(11, [(4, 2, 8192), (0, 4, 16)], tmp=2)
    p.e(f's_add_u32 s{S_U + 7}, s{S_U + 6}, {WS_AP}')
    xa_base(p, S_T0)
    p.lane(13, [(5, 1, 256), (0, 4, 8), (4, 1, 4)], sadd=S_T0, tmp=2)
    sp_addrs(p, A0, 256, S_T0, 0, 2, IDX)
    VX1 = 12
    p.e(f's_lshl_b32 s{S_T0}, s{S_WV}, 11\ns_add_u32 s{S_T0}, s{S_T0}, {L_RED}')
    p.lane(15, RED_W, sadd=S_T0, tmp=2)
    p.e(f's_lshr_b32 s{S_T0}, s{S_WV}, 1\ns_lshl_b32 s{S_T0}, s{S_T0}, 9\ns_and_b32 s{S_T1}, s{S_WV}, 1\ns_lshl_b32 s{S_T2}, s{S_T1}, 7')
    p.e(f's_add_u32 s{S_T2}, s{S_T2}, s{S_T0}\ns_add_u32 s{S_T2}, s{S_T2}, {L_RED}')
    p.lane(8, [(5, 1, 256), (0, 5, 4)], sadd=S_T2, tmp=2)
    p.e(f's_lshr_b32 s{S_T0}, s{S_T0}, 2\ns_lshl_b32 s{S_T1}, s{S_T1}, 5\ns_add_u32 s{S_T0}, s{S_T0}, s{S_T1}\ns_add_u32 s{S_T0}, s{S_T0}, {L_X2}')
    p.lane(9, [(1, 1, 64), (2, 3, 4), (0, 1, 2)], sadd=S_T0, tmp=2)
    p.lane(7, [(2, 2, 256), (4, 2, 64), (0, 2, 16)], tmp=2)
    p.e(f's_lshl_b32 s{S_T0}, s{S_WV}, 5\ns_add_u32 s{S_T0}, s{S_T0}, {L_STATS}')
    p.lane(10, [(5, 1, 8)], sadd=S_T0)
    p.lane(3, [(0, 3, 32), (5, 1, 8)], const=L_STATS, tmp=2)
    p.need('WM3')
    p.stamp('wm3')
    p.perm_chunk(raw[3], F[3], fs=8)
    offs = [(t & 1) * 4 * 8192 + (t >> 1) * 2048 for t in range(8)]
    p.poll_first(offs, S_U + 7, 11, 128)
    p.e(f's_add_u32 s{S_T0}, s{S_U + 6}, {L_X1}')
    p.lane(VX1, AL_TERMS, sadd=S_T0, tmp=2)
    for k in range(8):
        p.e(f'v_mov_b32 v{D + k}, 0')
    p.need('MOD')
    p.stamp('mod_landed')
    p.check_retry(lambda: m_mod_issue(p, False), list(range(100, 112)), 2)
    sk = p.lab('cbs')
    p.e(f's_cmp_lt_u32 s{S_WV}, 4\ns_cbranch_scc1 {sk}')
    keep = list(p.vm)
    p.poll_rr(CB_OFFS, S_U + 5, 113, 160, 2, lambda t, r: None, landed=True)
    p.vm = keep
    for k in range(16):
        p.e(f'v_add_f32 v{160 + k}, v{160 + k}, v{176 + k}')
    for k in range(8):
        p.e(f'v_add_f32 v{160 + k}, v{160 + k}, v{168 + k}')
    for d in range(4):
        p.e(f'v_cvt_pk_bf16_f32 v{104 + d}, v{160 + 2 * d}, v{161 + 2 * d}')
    p.e(f'{sk}:')
    p.e('L_mtail:')
    one_plus(p, list(range(104, 108)), [2, 114])
    for k, dst in enumerate((SP, SP + 16, SP + 8, SP + 24)):
        for d in range(4):
            p.unpack(96 + 4 * k + d, dst + 2 * d, dst + 2 * d + 1)
    p.stamp('w_ready')
    k0 = CFG['W2PRE']
    w2_issue(0, k0)
    p.wait('poll')
    keep = list(p.vm)
    p.poll_rr(offs, S_U + 7, 11, 128, 2,
              lambda t, r: p.e(f'v_mfma_f32_16x16x32_bf16 {vr(D + 4 * (t >> 2))}, {vr(SEL + 4 * ((t >> 1) & 1))}, {vr(r)}, {vr(D + 4 * (t >> 2))}'), True, CFG['SL4'])
    p.vm = keep
    p.stamp('e4_ok')
    X = list(range(D, D + 8))
    w2_issue(k0, k0 + 4)
    for k in range(8):
        p.e(f'v_fmac_f32 v{SP + k}, v{X[k]}, v{SP + 16 + k}')
    PK = SP + 16
    for d in range(4):
        p.e(f'v_cvt_pk_bf16_f32 v{PK + d}, v{SP + 2 * d}, v{SP + 2 * d + 1}')
    for d in range(4):
        p.unpack(PK + d, X[2 * d], X[2 * d + 1])
    p.e(f'ds_write_b64 v{VX1}, {vr(PK, 2)}\nds_write_b64 v{VX1}, {vr(PK + 2, 2)} offset:4096')
    for q in range(2):
        x = X[4 * q:4 * q + 4]
        p.e(f'v_add_f32 v{SP + 2 * q}, v{x[0]}, v{x[1]}\nv_mul_f32 v{SP + 2 * q + 1}, v{x[0]}, v{x[0]}\nv_add_f32 v{SP + 4 + q}, v{x[2]}, v{x[3]}')
    for r in (1, 2, 3):
        for q in range(2):
            p.e(f'v_fmac_f32 v{SP + 2 * q + 1}, v{X[4 * q + r]}, v{X[4 * q + r]}')
    p.e(f'v_add_f32 v{SP}, v{SP}, v{SP + 4}\nv_add_f32 v{SP + 2}, v{SP + 2}, v{SP + 5}')
    R4 = [SP, SP + 2, SP + 1, SP + 3]
    p.rowsum(R4, (8, 4, 2, 1))
    p.swapred('v_add_f32', 16, R4, [SP + 4, SP + 5, SP + 6, SP + 7])
    p.stamp('t1')
    p.exec_set(0x0000000100000001)
    p.e(f'ds_write_b64 v10, {vr(SP, 2)}\nds_write_b64 v10, {vr(SP + 2, 2)} offset:16')
    p.exec_all()
    p.e('s_waitcnt lgkmcnt(0)\ns_barrier')
    p.e(f'ds_read_b64 {vr(SP, 2)}, v3\nds_read_b64 {vr(SP + 2, 2)}, v3 offset:16')
    w2_issue(k0 + 4, k0 + 8)
    p.e('s_waitcnt lgkmcnt(0)')
    p.stamp('t2')
    p.rowsum(R4, (4, 2, 1))
    for q in range(2):
        p.e(f'v_mul_f32 v{SP + 2 * q}, 0x3a800000, v{SP + 2 * q}\nv_mul_f32 v{SP + 2 * q + 1}, 0x3a800000, v{SP + 2 * q + 1}')
    for q in range(2):
        p.e(f'v_fma_f32 v{SP + 2 * q + 1}, -v{SP + 2 * q}, v{SP + 2 * q}, v{SP + 2 * q + 1}')
    for q in range(2):
        p.e(f'v_max_f32 v{SP + 2 * q + 1}, 0, v{SP + 2 * q + 1}')
    for q in range(2):
        p.e(f'v_add_f32 v{SP + 2 * q + 1}, 0x3727c5ac, v{SP + 2 * q + 1}')
    for q in range(2):
        p.e(f'v_rsq_f32 v{SP + 2 * q + 1}, v{SP + 2 * q + 1}')
    for k in range(8):
        p.e(f'v_sub_f32 v{X[k]}, v{X[k]}, v{SP + 2 * (k >> 2)}')
    for k in range(8):
        p.e(f'v_mul_f32 v{SP + 8 + k}, v{SP + 8 + k}, v{SP + 2 * (k >> 2) + 1}')
    for k in range(8):
        p.e(f'v_fmac_f32 v{SP + 24 + k}, v{X[k]}, v{SP + 8 + k}')
    for d in range(4):
        p.e(f'v_cvt_pk_bf16_f32 v{SP + d}, v{SP + 24 + 2 * d}, v{SP + 24 + 2 * d + 1}')
    p.e(f'ds_write2_b32 v13, v{SP}, v{SP + 1} offset0:0 offset1:32\nds_write2_b32 v13, v{SP + 2}, v{SP + 3} offset0:128 offset1:160')
    p.stamp('h2')
    A, ACC, OUT = SP, SP + 16, D
    for pi in range(2):
        p.e(f'ds_read_b128 {vr(A + 8 * pi)}, v{A0} offset:{64 * pi}\nds_read_b128 {vr(A + 8 * pi + 4)}, v{A0 + 1} offset:{64 * pi}')
    for k in range(16):
        p.e(f'v_mov_b32 v{ACC + k}, 0')
    GB, X1 = 232, 236

    def misc():
        p.lane(10, [(2, 2, 2048), (0, 2, 16), (4, 1, 8)], tmp=3)
        p.e(f's_lshl_b32 s{S_U + 6}, s{S_MI}, 6\ns_add_u32 s{S_T2}, s{S_U + 6}, {WS_MOD + 5 * 8192}')
        sp_addrs(p, A0, 128, None, L_X2, 2)
    p.e('s_waitcnt lgkmcnt(2)')
    interleave(p, lines_of(p, lambda: sp_gemv(p, F0, A, ACC, IDX)), lines_of(p, misc), 3)
    w2_issue(k0 + 8, 16)
    p.e('s_waitcnt lgkmcnt(0)')
    p.wait('WM4')
    interleave(p, lines_of(p, lambda: sp_gemv(p, F1, A + 8, ACC, IDX)), lines_of(p, lambda: p.perm_chunk(96, F0, fs=8)), 4)
    sp_fold(p, ACC, OUT)
    p.e(f'ds_write_b128 v15, {vr(OUT)}\nds_write_b128 v15, {vr(OUT + 4)} offset:16')
    p.stamp('t3')
    for k in range(16):
        p.e(f'v_mov_b32 v{ACC + k}, 0')
    p.e('s_waitcnt lgkmcnt(0)\ns_barrier')
    p.stamp('t5')
    G = 224
    for k in range(4):
        p.e(f'ds_read2st64_b32 {vr(G + 2 * k, 2)}, v8 offset0:{16 * k} offset1:{16 * k + 8}')
    p.wait('WM5')
    p.stamp('wm5')

    def gb_issue():
        p.e(f'buffer_load_dwordx2 {vr(GB, 2)}, v10, {sr(SRD_WS, 4)}, s{S_T2} offen sc1')
    perm5 = lines_of(p, lambda: p.perm_chunk(128, F0 + 4, fs=8))
    p.L += perm5[:20]
    p.e('s_waitcnt lgkmcnt(0)')
    for w in (4, 2, 1):
        for k in range(w):
            p.e(f'v_add_f32 v{G + k}, v{G + k}, v{G + k + w}')
    chain = f"""v_cvt_pk_bf16_f32 v{G}, v{G}, v{G}
    v_and_b32 v{G}, 0xffff0000, v{G}
    v_mov_b32 v{G + 1}, v{G}
    @
    @
    v_permlane32_swap_b32 v{G}, v{G + 1}
    v_mul_f32 v{G + 2}, {hex(LOG2E | 0x80000000)}, v{G}
    v_exp_f32 v{G + 2}, v{G + 2}
    @
    v_add_f32 v{G + 2}, 1.0, v{G + 2}
    v_rcp_f32 v{G + 2}, v{G + 2}
    @
    v_mul_f32 v{G}, v{G}, v{G + 2}
    v_mul_f32 v{G}, v{G}, v{G + 1}
    v_cvt_pk_bf16_f32 v{G}, v{G}, v{G}"""
    rest = perm5[20:]
    for ln in chain.split('\n'):
        p.e(rest.pop(0) if ln.strip() == '@' else ln)
    p.exec_set(0xffffffff)
    p.e(f'ds_write_b16 v9, v{G}')
    p.exec_all()
    p.stamp('t6')
    p.L += rest
    sk = p.lab('gb')
    p.e(f's_cmp_lg_u32 s{S_WV}, 0\ns_cbranch_scc1 {sk}\ns_cmp_ge_u32 s{S_MI}, 32\ns_cbranch_scc1 {sk}')
    gb_issue()
    p.e(f'{sk}:')
    p.e('s_waitcnt lgkmcnt(0)\ns_barrier')
    p.stamp('t7')
    p.e(f'ds_read_b128 {vr(A)}, v{A0}\nds_read_b128 {vr(A + 4)}, v{A0 + 1}\ns_waitcnt lgkmcnt(0)')
    sp_gemv(p, F0, A, ACC, IDX)
    sp_fold(p, ACC, OUT)
    for d in range(4):
        p.e(f'v_cvt_pk_bf16_f32 v{G + d}, v{OUT + 2 * d}, v{OUT + 2 * d + 1}')
    p.e(f'buffer_store_dwordx4 {vr(G)}, v7, {sr(SRD_WS, 4)}, s{S_OUT} offen sc1')
    p.stamp('f_stored')
    end = p.lab('mend')
    multi = CFG['E5W'] > 1
    p.e(f's_cmp_ge_u32 s{S_MI}, 32\ns_cbranch_scc1 {end}')
    if not multi:
        p.e(f's_cmp_lg_u32 s{S_WV}, 0\ns_cbranch_scc1 {end}')
    p.lane(11, [(4, 2, 8192), (0, 4, 16)], tmp=3)
    p.e(f's_lshl_b32 s{S_U + 7}, s{S_MI}, 8\ns_add_u32 s{S_U + 7}, s{S_U + 7}, {WS_FP}')
    for k in range(4):
        p.e(f'v_mov_b32 v{D + k}, 0')

    def consts():
        p.srd(SRD_A, P_OUT, 8192)
        p.e(f'v_add_u32 v2, s{S_U + 6}, v10\nds_read_b64 {vr(X1 + 4, 2)}, v2 offset:{L_X1}\ns_waitcnt vmcnt(1) lgkmcnt(0)')
        p.check_retry(gb_issue, [GB, GB + 1], 3)
        p.unpack(GB + 1, GB + 2, GB + 3)
        p.unpack(GB, 4, GB + 1)
        p.e(f'v_mov_b32 v{GB}, v4')
        p.unpack(X1 + 4, X1, X1 + 1)
        p.unpack(X1 + 5, X1 + 2, X1 + 3)
    acc5 = lambda t, r: p.e(f'v_mfma_f32_16x16x32_bf16 {vr(D)}, {vr(SEL)}, {vr(r)}, {vr(D)}')
    if not multi:
        consts()
        p.stamp('t8')
        p.poll_pipe([t * 4 * 8192 for t in range(14)], S_U + 7, 11, (64, 120), 3, acc5, CFG['P5'])
        p.stamp('e5_ok')
    else:
        w0, jn = p.lab('w0'), p.lab('jn')
        p.e(f's_cmp_eq_u32 s{S_WV}, 0\ns_cbranch_scc1 {w0}')
        p.e(f's_lshl_b32 s{S_T0}, s{S_WV}, 16\ns_add_u32 s{S_U + 7}, s{S_U + 7}, s{S_T0}\ns_sub_u32 s{S_U + 7}, s{S_U + 7}, 65536')
        p.e(f's_lshl_b32 s{S_T0}, s{S_WV}, 10\nv_add_u32 v4, s{S_T0}, v0')
        p.poll_pipe([0, 4 * 8192], S_U + 7, 11, (64, 120), 3, acc5, CFG['P5'])
        p.e(f'ds_write_b128 v4, {vr(D)}\ns_waitcnt lgkmcnt(0)\ns_branch {jn}\n{w0}:')
        consts()
        p.stamp('t8')
        p.e(f'{jn}:\ns_barrier\ns_cmp_lg_u32 s{S_WV}, 0\ns_cbranch_scc1 {end}')
        for k in range(7):
            p.e(f'ds_read_b128 {vr(64 + 4 * k)}, v0 offset:{1024 + 1024 * k}')
        p.stamp('e5_ok')
        p.e('s_waitcnt lgkmcnt(0)')
        for r in range(4):
            p.e(f'v_add_f32 v{64 + r}, v{64 + r}, v{68 + r}\nv_add_f32 v{72 + r}, v{72 + r}, v{76 + r}\nv_add_f32 v{80 + r}, v{80 + r}, v{84 + r}')
        for r in range(4):
            p.e(f'v_add_f32 v{64 + r}, v{64 + r}, v{72 + r}\nv_add_f32 v{80 + r}, v{80 + r}, v{88 + r}')
        for r in range(4):
            p.e(f'v_add_f32 v{D + r}, v{64 + r}, v{80 + r}')
    for h in (0, 2):
        p.rnd2(D + h, D + h + 1, 4)
    for r in range(4):
        p.e(f'v_mul_f32 v{D + r}, v{GB + r}, v{D + r}')
    for h in (0, 2):
        p.rnd2(D + h, D + h + 1, 4)
    for r in range(4):
        p.e(f'v_add_f32 v{D + r}, v{X1 + r}, v{D + r}')
    p.e(f'v_cvt_pk_bf16_f32 v{D}, v{D}, v{D + 1}\nv_cvt_pk_bf16_f32 v{D + 1}, v{D + 2}, v{D + 3}')
    p.exec_set(0xffffffff)
    p.e(f'buffer_store_dwordx2 {vr(D, 2)}, v2, {sr(SRD_A, 4)}, 0 offen')
    p.exec_all()
    p.e(f'{end}:')


def generate():
    hdr = open('cdna_kernels/' + NAME + '.s.ref').read().split('\n')
    out = [l for l in hdr if l.startswith(';') and '@launch' not in l]
    out.append(f'; @launch grid=(256,1,1) block=(512,1,1) lds={L_TOTAL}')
    out += ['.amdgcn_target "amdgcn-amd-amdhsa--gfx950"', '.text', f'.globl {NAME}_kernel', '.p2align 8',
            f'.type {NAME}_kernel,@function', f'{NAME}_kernel:']
    e = Prog('E')
    entry(e)
    body = list(e.L)
    names = {}
    for cls in ('O', 'M', 'Q', 'P', 'PR', 'R'):
        p = build_class(cls, e)
        body.append('.p2align 6')
        body += p.L
        names[cls] = p.stamp_names
    body += ['L_end:', 's_endpgm']
    out += pad_hazards(body)
    out += ['.fill 64, 4, 0xbf800000', '.p2align 8', 'L_code_end:']
    out += ['.section .rodata,"a"', '.p2align 6', f'.amdhsa_kernel {NAME}_kernel',
            '  .amdhsa_next_free_vgpr 256', '  .amdhsa_next_free_sgpr 102', '  .amdhsa_accum_offset 256',
            '  .amdhsa_group_segment_fixed_size 0', '  .amdhsa_kernarg_size 112', '  .amdhsa_user_sgpr_count 2',
            '  .amdhsa_user_sgpr_kernarg_segment_ptr 1', '  .amdhsa_system_sgpr_workgroup_id_x 1',
            '  .amdhsa_float_denorm_mode_32 3', '.end_amdhsa_kernel']
    return '\n'.join(out) + '\n', names


if __name__ == '__main__':
    path = sys.argv[1]
    for kv in sys.argv[2:]:
        k, v = kv.split('=')
        CFG[k] = eval(v)
    txt, names = generate()
    open(path, 'w').write(txt)
    import json
    json.dump(names, open(path + '.stamps.json', 'w'))
```

```python
import sys
from collections import deque
from asmlib import pad_hazards

NAME = 'adaLN_cond__gqa_block_cached__glu_gated_swiglu__decode'

CFG = dict(
    W=4,
    W_O=4, W_M=6, W_R=5, W_Q=4, W_P=4, W_PR=4,
    C3O=0, C3Q='', C3W1='M', C3W3='O', C3MOD='O', T_LOW_R=2,
    W_PRE=24, W_PREQ=8, W_INIT=5, W_LOW=2, T_LOW=2, T_LOW_M=2,
    W_POST=6, W_POSTP=4, H5W=1, W_END=8,
    SC_AT=2, Q_AT=12, BURST=5, E_BURST=2, P_EARLY=0, MOD_AT=0, P5='rr', E5W=7, STAGE=7, SL3=0, SL4=0, EARLY3=True, W2PRE=4, XCLS='O+Q+P+PR+R', PRIO='qk', QLIN=True, LATE3=0, E4KS=True, XAT=4, XSLOW=0, XW=2, H5X=True, H6=(), ML_AT=12, ML_AT_M=12, C3H=False,
    HP3=True, C3=True, H5=2, REWARM=False,
    STAMPS=False, DBGOUT=False,
    SPIN=1 << 18,
)

WS_MOD = 0x00000
WS_CBP = 0x18000
WS_Q = 0x10000
WS_ML = 0x20000
WS_AP = 0x30000
WS_OP = 0x40000
WS_FP = 0xC0000
WS_STAMP = 0x200000
WS_BYTES = 268435456

L_KT = 0
L_OPART = 0
L_XA = 40960
L_ZERO = 49152
L_MLW = 49664
L_CNT = 50176
L_STATS = 50432
L_X2 = 50688
L_FINB = 51200
L_X1 = 52224
L_RED = 60416
L_RED2 = 83968
L_STASH = 83968
L_TOTAL = 149504

CLASS_RANGES = dict(O=(0, 64), M=(64, 120), Q=(120, 184), P=(184, 200), PR=(200, 216), R=(216, 256))


def vr(a, n=4):
    return f'v[{a}:{a + n - 1}]' if n > 1 else f'v{a}'


def sr(a, n=2):
    return f's[{a}:{a + n - 1}]' if n > 1 else f's{a}'


S_WV, S_W8, S_ROT, S_KV = 3, 4, 6, 7
SRD_K, SRD_V, SRD_WS, SRD_W, SRD_A, SRD_D = 8, 12, 16, 20, 24, 28
P_X, P_K, P_V, P_WQ, P_WO, P_W1, P_W3, P_W2, P_C, P_WMOD, P_OUT, P_DBG, P_WS = 32, 34, 36, 38, 40, 44, 46, 48, 50, 52, 54, 56, 58
S_T0, S_T1, S_T2, S_T3 = 60, 61, 62, 63
S_PLO, S_PHI = 64, 65
S_MASK = 66
S_SAVE = 68
S_SPIN = 70
S_VALID = 71
S_U = 72
S_STG = 42
S_C64 = 80
S_C64B = 82
S_STAMP = 84


class Prog:
    def __init__(self, name):
        self.name = name
        self.L = []
        self.vm = []
        self.stream = deque()
        self.released = set()
        self.W = CFG['W']
        self.nlab = 0
        self.slow = 0
        self.nstamp = 0
        self.stamp_names = []

    def e(self, s):
        for line in s.split('\n'):
            line = line.strip()
            if line:
                self.L.append(line)

    def lab(self, base):
        self.nlab += 1
        return f'L_{self.name}_{base}{self.nlab}'

    def vmem(self, s, tag):
        self.e(s)
        self.vm.append(tag)
        assert len(self.vm) <= 56, 'too many outstanding'

    def waitn(self, n):
        if len(self.vm) > n:
            self.e(f's_waitcnt vmcnt({n})')
            self.vm = self.vm[len(self.vm) - n:] if n else []

    def wait(self, tag):
        if tag in self.vm:
            idx = len(self.vm) - 1 - self.vm[::-1].index(tag)
            self.waitn(len(self.vm) - 1 - idx)

    def push(self, tag, fn, need=None):
        self.stream.append((tag, fn, need))

    def can_pump(self):
        return self.stream and (self.stream[0][2] is None or self.stream[0][2] in self.released)

    def pump(self, k=1):
        for _ in range(k):
            if not self.can_pump():
                return
            tag, fn, _n = self.stream.popleft()
            self.waitn(self.W - 1)
            if self.slow > 0:
                self.slow -= 1
                self.waitn(CFG['XW'] - 1)
            fn(tag)

    def fill(self):
        while self.can_pump() and len(self.vm) < self.W:
            self.pump(1)

    def burst(self, k):
        self.W += k
        self.fill()
        self.W -= k

    def need(self, tag):
        while any(t[0] == tag for t in self.stream):
            assert self.can_pump(), f'{self.name}: stream blocked before {tag} at {self.stream[0][0]}'
            self.pump(1)
        while tag in self.vm:
            if self.can_pump() and self.vm[::-1].index(tag) <= self.W - 1:
                self.pump(1)
            else:
                self.wait(tag)

    def release(self, x):
        self.released.add(x)

    def stamp(self, name):
        if CFG['STAMPS'] == 'lite' and name not in ('start', 'pre_done', 'q_ok', 'k_done', 'o_stored', 'post_done', 'q_done', 'e3_ok', 'a_stored', 'w_ready', 'e4_ok', 'f_stored', 'end'):
            return
        if CFG['STAMPS'] == 't' and name not in ('start', 'e3_ok', 'o1', 'o2', 'o3', 'a_stored', 'e4_ok', 't1', 't2', 'h2', 't3', 't4', 't5', 't6', 'wm5', 't7', 'f_stored', 't8', 'e5_ok', 'end'):
            return
        if CFG['STAMPS'] != 't' and name[0] in 'to' and name[1:].isdigit():
            return
        if CFG['STAMPS'] == 'e' and name not in ('start', 'first', 'arrived', 'k0', 'w_landed', 'pre_done', 'end'):
            return
        if CFG['STAMPS'] != 'e' and name in ('first', 'k0'):
            return
        if CFG['STAMPS'] == 'm' and name not in ('start', 'q_ok', 'softmax', 'v2', 'pv_done', 'o_stored', 'wm0', 'wm1', 'wm2', 'wm4', 'wm3', 'wm5', 'mod_landed', 'mod_ok', 'e4_ok', 'end'):
            return
        if CFG['STAMPS'] is True and name in ('arrived', 'v2', 'wm0', 'wm1', 'wm2', 'wm4', 'wm3', 'wm5'):
            return
        if CFG['STAMPS']:
            k = S_STAMP + self.nstamp
            assert k < 100
            self.e(f's_memrealtime s[100:101]\ns_waitcnt lgkmcnt(0)\ns_mov_b32 s{k}, s100')
            self.nstamp += 1
            self.stamp_names.append(name)

    def srd(self, d, p, nbytes):
        self.e(f's_mov_b32 s{d}, s{p}\ns_mov_b32 s{d + 1}, s{p + 1}\ns_mov_b32 s{d + 2}, {hex(nbytes)}\ns_mov_b32 s{d + 3}, 0x20000')

    def lane(self, dst, terms, const=0, sadd=None, tmp=None):
        first = True
        for sh, bits, mul in terms:
            t = dst if first else tmp
            assert t is not None
            if sh == 0 and bits >= 6:
                src = 'v1'
            elif sh == 0:
                self.e(f'v_and_b32 v{t}, {(1 << bits) - 1}, v1')
                src = f'v{t}'
            elif sh + bits >= 6:
                self.e(f'v_lshrrev_b32 v{t}, {sh}, v1')
                src = f'v{t}'
            else:
                self.e(f'v_bfe_u32 v{t}, v1, {sh}, {bits}')
                src = f'v{t}'
            if first:
                if mul & (mul - 1) == 0:
                    self.e(f'v_lshlrev_b32 v{dst}, {mul.bit_length() - 1}, {src}')
                else:
                    self.e(f'v_mul_u32_u24 v{dst}, {mul}, {src}')
            else:
                if mul & (mul - 1) == 0:
                    self.e(f'v_lshl_add_u32 v{dst}, {src}, {mul.bit_length() - 1}, v{dst}')
                else:
                    self.e(f'v_mul_u32_u24 v{t}, {mul}, {src}\nv_add_u32 v{dst}, v{t}, v{dst}')
            first = False
        if const:
            self.e(f'v_add_u32 v{dst}, {const}, v{dst}')
        if sadd is not None:
            self.e(f'v_add_u32 v{dst}, s{sadd}, v{dst}')

    def exec_set(self, mask):
        lo, hi = mask & 0xffffffff, mask >> 32
        self.e(f's_mov_b32 exec_lo, {hex(lo)}\ns_mov_b32 exec_hi, {hex(hi)}')

    def exec_all(self):
        self.e('s_mov_b64 exec, -1')

    def maxu(self, dst, regs):
        regs = list(regs)
        if len(regs) % 2 == 0:
            self.e(f'v_max_u32 v{dst}, v{regs[0]}, v{regs[1]}')
            regs = regs[2:]
        else:
            self.e(f'v_max3_u32 v{dst}, v{regs[0]}, v{regs[1]}, v{regs[2]}')
            regs = regs[3:]
        while regs:
            self.e(f'v_max3_u32 v{dst}, v{dst}, v{regs[0]}, v{regs[1]}')
            regs = regs[2:]

    def check_retry(self, issue, regs, tmp):
        ok, lp = self.lab('ok'), self.lab('retry')
        if len(regs) > 1:
            self.maxu(tmp, regs)
        else:
            tmp = regs[0]
        self.e(f'v_cmp_eq_u32 vcc, -1, v{tmp}\ns_cbranch_vccz {ok}\ns_mov_b32 s{S_SPIN}, 0\n{lp}:')
        issue()
        self.e('s_waitcnt vmcnt(0)')
        if len(regs) > 1:
            self.maxu(tmp, regs)
        self.e(f's_add_u32 s{S_SPIN}, s{S_SPIN}, 1\ns_cmp_ge_u32 s{S_SPIN}, {CFG["SPIN"]}\ns_cbranch_scc1 {ok}')
        self.e(f'v_cmp_eq_u32 vcc, -1, v{tmp}\ns_cbranch_vccnz {lp}\n{ok}:')

    def poll_masked(self, issuers, regs, tmp):
        n = len(issuers)
        lp, done = self.lab('poll'), self.lab('polldone')
        self.waitn(0)
        self.e(f's_mov_b32 s{S_VALID}, 0\ns_mov_b32 s{S_SPIN}, 0\n{lp}:')
        for t in range(n):
            sk = self.lab('pi')
            self.e(f's_bitcmp1_b32 s{S_VALID}, {t}\ns_cbranch_scc1 {sk}')
            issuers[t]()
            self.e(f'{sk}:')
        self.e('s_waitcnt vmcnt(0)')
        for t in range(n):
            sk = self.lab('pc')
            self.e(f's_bitcmp1_b32 s{S_VALID}, {t}\ns_cbranch_scc1 {sk}')
            self.maxu(tmp, regs[t])
            self.e(f'v_cmp_eq_u32 vcc, -1, v{tmp}\ns_cbranch_vccnz {sk}\ns_bitset1_b32 s{S_VALID}, {t}\n{sk}:')
        self.e(f's_add_u32 s{S_SPIN}, s{S_SPIN}, 1\ns_cmp_ge_u32 s{S_SPIN}, {CFG["SPIN"]}\ns_cbranch_scc1 {done}')
        self.e(f's_cmp_lg_u32 s{S_VALID}, {hex((1 << n) - 1)}\ns_cbranch_scc1 {lp}\n{done}:')

    def poll_pipe(self, offs, s_base, vo, sets, tmp, accum, mode='pipe'):
        n = len(offs)
        done = self.lab('ppdone')
        if mode == 'rr':
            return self.poll_rr(offs, s_base, vo, sets[0], tmp, accum)

        def issue(base):
            for t in range(n):
                self.e(f's_bitcmp1_b32 s{S_VALID}, {t}\ns_cselect_b64 exec, 0, -1\ns_add_u32 s{S_T3}, s{s_base}, {offs[t]}')
                self.e(f'buffer_load_dwordx4 {vr(base + 4 * t)}, v{vo}, {sr(SRD_WS, 4)}, s{S_T3} offen sc1')
            self.exec_all()

        def check(base):
            self.e(f's_waitcnt vmcnt({n})')
            for t in range(n):
                sk = self.lab('pc')
                self.e(f's_bitcmp1_b32 s{S_VALID}, {t}\ns_cbranch_scc1 {sk}')
                self.maxu(tmp, range(base + 4 * t, base + 4 * t + 4))
                self.e(f'v_cmp_ne_u32 vcc, -1, v{tmp}\ns_or_b64 vcc, vcc, {sr(S_SAVE)}\ns_cmp_eq_u64 vcc, -1\ns_cbranch_scc0 {sk}')
                accum(t, base + 4 * t)
                self.e(f's_bitset1_b32 s{S_VALID}, {t}\n{sk}:')
            self.e(f's_cmp_eq_u32 s{S_VALID}, {hex((1 << n) - 1)}\ns_cbranch_scc1 {done}')
        lp = self.lab('pp')
        self.e(f's_mov_b32 s{S_VALID}, 0\ns_mov_b32 s{S_SPIN}, 0\ns_mov_b64 {sr(S_SAVE)}, 0')
        issue(sets[0])
        self.e(f'{lp}:')
        issue(sets[1])
        check(sets[0])
        issue(sets[0])
        check(sets[1])
        self.e(f's_add_u32 s{S_SPIN}, s{S_SPIN}, 1\ns_cmp_ge_u32 s{S_SPIN}, {CFG["SPIN"]}\ns_cselect_b64 {sr(S_SAVE)}, -1, 0\ns_branch {lp}\n{done}:')
        self.vm = ['stale'] * n

    def poll_items(self, items, tmp):
        n = len(items)
        lp, chk = self.lab('pg'), self.lab('pgchk')
        self.e(f's_mov_b32 s{S_VALID}, 0\ns_mov_b32 s{S_SPIN}, 0\ns_mov_b64 {sr(S_SAVE)}, 0\ns_branch {chk}\n{lp}:')
        for t, (txt, regs) in enumerate(items):
            sk = self.lab('pi')
            self.e(f's_bitcmp1_b32 s{S_VALID}, {t}\ns_cbranch_scc1 {sk}\n{txt}\n{sk}:')
        self.e(f's_add_u32 s{S_SPIN}, s{S_SPIN}, 1\ns_cmp_ge_u32 s{S_SPIN}, {CFG["SPIN"]}\ns_cselect_b64 {sr(S_SAVE)}, -1, 0\ns_waitcnt vmcnt(0)\n{chk}:')
        for t, (txt, regs) in enumerate(items):
            sk = self.lab('pc')
            self.e(f's_bitcmp1_b32 s{S_VALID}, {t}\ns_cbranch_scc1 {sk}')
            self.maxu(tmp, regs)
            self.e(f'v_cmp_ne_u32 vcc, -1, v{tmp}\ns_or_b64 vcc, vcc, {sr(S_SAVE)}\ns_cmp_eq_u64 vcc, -1\ns_cbranch_scc0 {sk}')
            self.e(f's_bitset1_b32 s{S_VALID}, {t}\n{sk}:')
        self.e(f's_cmp_lg_u32 s{S_VALID}, {hex((1 << n) - 1)}\ns_cbranch_scc1 {lp}')

    def poll_first(self, offs, s_base, vo, base):
        for t, off in enumerate(offs):
            self.e(f's_add_u32 s{S_T3}, s{s_base}, {off}')
            self.vmem(f'buffer_load_dwordx4 {vr(base + 4 * t)}, v{vo}, {sr(SRD_WS, 4)}, s{S_T3} offen sc1', 'poll')

    def poll_rr(self, offs, s_base, vo, base, tmp, accum, landed=False, sleep=0):
        n = len(offs)
        lp, done = self.lab('pr'), self.lab('prdone')
        chk = self.lab('prchk')
        self.e(f's_mov_b32 s{S_VALID}, 0\ns_mov_b32 s{S_SPIN}, 0\ns_mov_b64 {sr(S_SAVE)}, 0')
        if landed:
            self.e(f's_branch {chk}')
        self.e(f'{lp}:')
        if sleep:
            self.e(f's_sleep {sleep}')
        for t in range(n):
            sk = self.lab('pi')
            self.e(f's_bitcmp1_b32 s{S_VALID}, {t}\ns_cbranch_scc1 {sk}\ns_add_u32 s{S_T3}, s{s_base}, {offs[t]}')
            self.e(f'buffer_load_dwordx4 {vr(base + 4 * t)}, v{vo}, {sr(SRD_WS, 4)}, s{S_T3} offen sc1\n{sk}:')
        self.e(f's_add_u32 s{S_SPIN}, s{S_SPIN}, 1\ns_cmp_ge_u32 s{S_SPIN}, {CFG["SPIN"]}\ns_cselect_b64 {sr(S_SAVE)}, -1, 0\ns_waitcnt vmcnt(0)\n{chk}:')
        for t in range(n):
            sk = self.lab('pc')
            self.e(f's_bitcmp1_b32 s{S_VALID}, {t}\ns_cbranch_scc1 {sk}')
            self.maxu(tmp, range(base + 4 * t, base + 4 * t + 4))
            self.e(f'v_cmp_ne_u32 vcc, -1, v{tmp}\ns_or_b64 vcc, vcc, {sr(S_SAVE)}\ns_cmp_eq_u64 vcc, -1\ns_cbranch_scc0 {sk}')
            accum(t, base + 4 * t)
            self.e(f's_bitset1_b32 s{S_VALID}, {t}\n{sk}:')
        self.e(f's_cmp_lg_u32 s{S_VALID}, {hex((1 << n) - 1)}\ns_cbranch_scc1 {lp}\n{done}:')
        self.vm = []

    def perm_chunk(self, raw, dst, pump_every=0, fs=4):
        k = 0
        for c in range(4):
            for hi in range(2):
                for jj in range(4):
                    a, b = raw + 4 * (2 * jj) + c, raw + 4 * (2 * jj + 1) + c
                    sel = S_PHI if hi else S_PLO
                    self.e(f'v_perm_b32 v{dst + fs * (2 * c + hi) + jj}, v{b}, v{a}, s{sel}')
                    k += 1
                    if pump_every and k % pump_every == 0:
                        self.fill()

    def unpack(self, src, d0, d1):
        self.e(f'v_lshlrev_b32 v{d0}, 16, v{src}\nv_and_b32 v{d1}, 0xffff0000, v{src}')

    def rnd2(self, a, b, t):
        self.e(f'v_cvt_pk_bf16_f32 v{t}, v{a}, v{b}')
        self.unpack(t, a, b)

    def tree(self, B, widths):
        for w in widths:
            if w >= 2:
                for k in range(0, w, 2):
                    self.e(f'v_pk_add_f32 {vr(B + k, 2)}, {vr(B + k, 2)}, {vr(B + k + w, 2)}')
            else:
                self.e(f'v_add_f32 v{B}, v{B}, v{B + 1}')

    def rowsum(self, regs, steps):
        for st in steps:
            for r in regs:
                self.e(f'v_add_f32_dpp v{r}, v{r}, v{r} row_ror:{st} row_mask:0xf bank_mask:0xf')

    def swapred(self, op, which, regs, tmps):
        for r, t in zip(regs, tmps):
            self.e(f'v_mov_b32 v{t}, v{r}')
        for r, t in zip(regs, tmps):
            self.e(f'v_permlane{which}_swap_b32 v{r}, v{t}')
        for r, t in zip(regs, tmps):
            self.e(f'{op} v{r}, v{r}, v{t}')


LOG2E = 0x3fb8aa3b
AL_TERMS = [(5, 1, 2048), (0, 4, 16), (4, 1, 8)]
XA_TERMS = [(5, 1, 256), (0, 4, 16), (4, 1, 8)]


def layernorm(p, X, T, fix):
    s0, s1, t0, t1, m0, m1, ad = T[0], T[1], T[2], T[3], T[4], T[5], T[6]
    for q, s in ((0, s0), (1, s1)):
        x = X[4 * q:4 * q + 4]
        p.e(f'v_add_f32 v{s}, v{x[0]}, v{x[1]}\nv_add_f32 v{T[2 + q]}, v{x[2]}, v{x[3]}')
    p.e(f'v_add_f32 v{s0}, v{s0}, v{t0}\nv_add_f32 v{s1}, v{s1}, v{t1}')
    p.rowsum([s0, s1], (8, 4, 2, 1))
    p.swapred('v_add_f32', 16, [s0, s1], [t0, t1])
    A, B = T[8], T[10]
    assert A % 2 == 0 and B % 2 == 0 and T[9] == A + 1 and T[11] == B + 1
    p.e(f'v_mul_f32 v{A}, 0x3c000000, v{s0}\nv_mul_f32 v{B}, 0x3c000000, v{s1}')
    for q, mean in ((0, A), (1, B)):
        x = X[4 * q:4 * q + 4]
        p.e(f'v_sub_f32 v{t0}, v{x[0]}, v{mean}\nv_sub_f32 v{t1}, v{x[1]}, v{mean}')
        p.e(f'v_mul_f32 v{mean + 1}, v{t0}, v{t0}\nv_fmac_f32 v{mean + 1}, v{t1}, v{t1}')
        p.e(f'v_sub_f32 v{t0}, v{x[2]}, v{mean}\nv_sub_f32 v{t1}, v{x[3]}, v{mean}')
        p.e(f'v_fmac_f32 v{mean + 1}, v{t0}, v{t0}\nv_fmac_f32 v{mean + 1}, v{t1}, v{t1}')
    p.rowsum([A + 1, B + 1], (8, 4, 2, 1))
    p.swapred('v_add_f32', 16, [A + 1, B + 1], [t0, t1])
    p.e(f's_lshl_b32 s{S_T0}, s{S_WV}, 5\ns_add_u32 s{S_T0}, s{S_T0}, {L_STATS}')
    p.lane(ad, [(5, 1, 8)], sadd=S_T0)
    p.exec_set(0x0000000100000001)
    p.e(f'ds_write_b64 v{ad}, {vr(A, 2)}\nds_write_b64 v{ad}, {vr(B, 2)} offset:16')
    p.exec_all()
    p.lane(ad, [(0, 3, 32), (5, 1, 8)], const=L_STATS, tmp=t0)
    p.e('s_waitcnt lgkmcnt(0)\ns_barrier')
    p.e(f'ds_read_b64 {vr(A, 2)}, v{ad}\nds_read_b64 {vr(B, 2)}, v{ad} offset:16\ns_waitcnt lgkmcnt(0)')
    p.e(f'v_mov_b32 v{m0}, v{A}\nv_mov_b32 v{m1}, v{B}')
    p.rowsum([m0, m1], (4, 2, 1))
    p.e(f'v_mul_f32 v{m0}, 0x3e000000, v{m0}\nv_mul_f32 v{m1}, 0x3e000000, v{m1}')
    p.e(f'v_sub_f32 v{t0}, v{A}, v{m0}\nv_sub_f32 v{t1}, v{B}, v{m1}')
    p.e(f'v_mul_f32 v{s0}, 0x43000000, v{t0}\nv_mul_f32 v{s1}, 0x43000000, v{t1}')
    p.e(f'v_fmac_f32 v{A + 1}, v{s0}, v{t0}\nv_fmac_f32 v{B + 1}, v{s1}, v{t1}')
    p.rowsum([A + 1, B + 1], (4, 2, 1))
    p.rnd2(m0, m1, t0)
    p.e(f'v_mul_f32 v{s0}, 0x3a800000, v{A + 1}\nv_mul_f32 v{s1}, 0x3a800000, v{B + 1}')
    p.rnd2(s0, s1, t0)
    p.e(f'v_add_f32 v{s0}, 0x3727c5ac, v{s0}\nv_add_f32 v{s1}, 0x3727c5ac, v{s1}')
    p.rnd2(s0, s1, t0)
    p.e(f'v_sqrt_f32 v{s0}, v{s0}\nv_sqrt_f32 v{s1}, v{s1}')
    p.rnd2(s0, s1, t0)
    p.e(f'v_rcp_f32 v{A}, v{s0}\nv_rcp_f32 v{B}, v{s1}')
    for q, m, sd, ri in ((0, m0, s0, A), (1, m1, s1, B)):
        x = X[4 * q:4 * q + 4]
        for r in range(4):
            p.e(f'v_sub_f32 v{x[r]}, v{x[r]}, v{m}')
        p.rnd2(x[0], x[1], t0)
        p.rnd2(x[2], x[3], t1)
        for r in range(4):
            if fix:
                p.e(f'v_mul_f32 v{t0}, v{x[r]}, v{ri}\nv_fma_f32 v{x[r]}, -v{t0}, v{sd}, v{x[r]}\nv_fma_f32 v{x[r]}, v{x[r]}, v{ri}, v{t0}')
            else:
                p.e(f'v_mul_f32 v{x[r]}, v{x[r]}, v{ri}')
        p.rnd2(x[0], x[1], t0)
        p.rnd2(x[2], x[3], t1)


def modulate(p, X, C1, SH, T, out):
    a, b = T[0], T[1]
    for d in range(4):
        x0, x1 = X[2 * d], X[2 * d + 1]
        p.unpack(C1[d], a, b)
        p.e(f'v_mul_f32 v{x0}, v{x0}, v{a}\nv_mul_f32 v{x1}, v{x1}, v{b}')
        p.rnd2(x0, x1, a)
        p.unpack(SH[d], a, b)
        p.e(f'v_add_f32 v{x0}, v{x0}, v{a}\nv_add_f32 v{x1}, v{x1}, v{b}')
        p.e(f'v_cvt_pk_bf16_f32 v{out[d]}, v{x0}, v{x1}')


def one_plus(p, C, T):
    a, b = T[0], T[1]
    for c in C:
        p.unpack(c, a, b)
        p.e(f'v_add_f32 v{a}, 1.0, v{a}\nv_add_f32 v{b}, 1.0, v{b}\nv_cvt_pk_bf16_f32 v{c}, v{a}, v{b}')


def xa_base(p, s):
    p.e(f's_lshl_b32 s{s}, s{S_WV}, 10\ns_add_u32 s{s}, s{s}, {L_XA}')


def push_narrow_weights(p, tag0, pitch, raw0, raw1, vo, s_base, need=None):
    for u, raw in ((0, raw0), (1, raw1)):
        for jj in range(8):
            def fn(tag, u=u, raw=raw, jj=jj):
                p.e(f's_add_u32 s{S_T3}, s{s_base}, {(64 * u + jj) * pitch}')
                p.vmem(f'buffer_load_dwordx4 {vr(raw + 4 * jj)}, v{vo}, {sr(SRD_W, 4)}, s{S_T3} offen nt', tag)
            p.push(f'{tag0}{u}', fn, need[u] if need else None)


def narrow_setup(p, pitch, vo, s_base, s_col, tmp, rows=128):
    p.lane(vo, [(3, 3, 8 * pitch), (0, 3, 16)], tmp=tmp)
    p.e(f's_mul_i32 s{s_base}, s{S_WV}, {rows * pitch}\ns_add_u32 s{s_base}, s{s_base}, s{s_col}')


def narrow_gemv(p, F0, F1, B, ACC, T, s_out, f32=False, before_barrier=None, upper=None):
    a0, a1, t0 = T[0], T[1], T[2]
    xa_base(p, S_T0)
    p.lane(a0, [(0, 2, 256), (4, 2, 32), (3, 1, 16)], sadd=S_T0, tmp=t0)
    p.e(f's_mov_b32 s{S_MASK}, 0x0f0f0f0f\ns_mov_b32 s{S_MASK + 1}, 0x0f0f0f0f\nv_mov_b32 v{t0}, {L_ZERO}')
    p.e(f'v_cndmask_b32 v{a1}, v{a0}, v{t0}, {sr(S_MASK)}\nv_cndmask_b32 v{a0}, v{t0}, v{a0}, {sr(S_MASK)}')
    FF = [F0] if F1 is None else [F0, F1]
    for u in range(len(FF)):
        p.e(f'ds_read_b128 {vr(B + 8 * u)}, v{a0} offset:{128 * u}\nds_read_b128 {vr(B + 8 * u + 4)}, v{a1} offset:{128 * u}')
    p.e(f's_lshl_b32 s{S_T0}, s{S_WV}, 11\ns_add_u32 s{S_T0}, s{S_T0}, {L_RED}')
    p.lane(a0, [(5, 1, 1024), (0, 2, 256), (2, 1, 128), (4, 1, 16)], sadd=S_T0, tmp=t0)
    p.e('s_waitcnt lgkmcnt(0)')
    for u, F in enumerate(FF):
        for e in range(8):
            acc = vr(ACC + 4 * (e & 3))
            c = '0' if (u == 0 and e < 4) else acc
            p.e(f'v_mfma_f32_16x16x32_bf16 {acc}, {vr(F + 4 * e)}, {vr(B + 8 * u + 4 * (e >> 2))}, {c}')
        p.fill()
    p.exec_set(0xff00ff0000ff00ff)
    for a in range(4):
        p.e(f'ds_write_b128 v{a0}, {vr(ACC + 4 * a)} offset:{32 * a}')
    p.exec_all()
    p.e(f's_lshl_b32 s{S_T0}, s{S_WV}, 8\ns_add_u32 s{S_T0}, s{S_T0}, {L_RED}')
    p.lane(a1, [(2, 1, 128), (0, 2, 32), (5, 1, 16), (3, 2, 4)], sadd=S_T0, tmp=t0)
    p.fill()
    if before_barrier:
        before_barrier()
    p.e('s_waitcnt lgkmcnt(0)\ns_barrier')
    sk = p.lab('fin')
    p.e(f's_cmp_ge_u32 s{S_WV}, 4\ns_cbranch_scc1 {sk}')
    for k in range(8):
        p.e(f'ds_read2st64_b32 {vr(B + 2 * k, 2)}, v{a1} offset0:{8 * k} offset1:{8 * k + 4}')
    so, stride = s_out
    p.e(f's_mul_i32 s{S_T0}, s{S_WV}, {stride}\ns_add_u32 s{S_T0}, s{S_T0}, s{so}\nv_lshlrev_b32 v{a0}, {2 if f32 else 1}, v1\ns_waitcnt lgkmcnt(0)')
    for w in (8, 4, 2, 1):
        for k in range(w):
            p.e(f'v_add_f32 v{B + k}, v{B + k}, v{B + k + w}')
    if f32:
        for k in (1, 2, 3):
            p.e(f'v_mov_b32_dpp v{B + k}, v{B} quad_perm:[{k},{k},{k},{k}] row_mask:0xf bank_mask:0xf')
        p.exec_set(0x1111111111111111)
        ACC = B
    else:
        p.e(f'v_mov_b32_dpp v{B + 1}, v{B} quad_perm:[1,1,3,3] row_mask:0xf bank_mask:0xf')
        p.e(f'v_cvt_pk_bf16_f32 v{ACC}, v{B}, v{B + 1}')
        for k in (1, 2, 3):
            p.e(f'v_mov_b32_dpp v{ACC + k}, v{ACC} row_shl:{2 * k} row_mask:0xf bank_mask:0xf')
        p.exec_set(0x0101010101010101)
    p.e(f'buffer_store_dwordx4 {vr(ACC)}, v{a0}, {sr(SRD_WS, 4)}, s{S_T0} offen sc1')
    p.exec_all()
    if upper:
        end = p.lab('fend')
        p.e(f's_branch {end}\n{sk}:')
        upper()
        sk = end
    p.e(f'{sk}:')


def push_al_loads(p, tag, srd, dst, vo, s_base, flags=''):
    def issue(model=True):
        for q in range(2):
            p.e(f's_add_u32 s{S_T3}, s{s_base}, {4096 * q}')
            s = f'buffer_load_dwordx2 {vr(dst + 2 * q, 2)}, v{vo}, {sr(srd, 4)}, s{S_T3} offen {flags}'
            p.vmem(s, tag) if model else p.e(s)
    if tag is not None:
        p.push(tag, lambda t: issue())
    return issue


def silu_to_xa(p, C, T, wa):
    a, b, ea, eb = T[0], T[1], T[2], T[3]
    xa_base(p, S_T0)
    p.lane(wa, XA_TERMS, sadd=S_T0, tmp=a)
    for d in range(4):
        p.unpack(C + d, a, b)
        p.e(f'v_mul_f32 v{ea}, {hex(LOG2E | 0x80000000)}, v{a}\nv_mul_f32 v{eb}, {hex(LOG2E | 0x80000000)}, v{b}')
        p.e(f'v_exp_f32 v{ea}, v{ea}\nv_exp_f32 v{eb}, v{eb}')
        p.e(f'v_add_f32 v{ea}, 1.0, v{ea}\nv_add_f32 v{eb}, 1.0, v{eb}')
        p.e(f'v_rcp_f32 v{T[4]}, v{ea}\nv_rcp_f32 v{T[5]}, v{eb}')
        p.e(f'v_mul_f32 v{T[6]}, v{a}, v{T[4]}\nv_mul_f32 v{T[7]}, v{b}, v{T[5]}')
        p.e(f'v_cvt_pk_bf16_f32 v{C + d}, v{T[6]}, v{T[7]}')
    p.e(f'ds_write_b64 v{wa}, {vr(C, 2)}\nds_write_b64 v{wa}, {vr(C + 2, 2)} offset:512')


R_Q, R_S, R_V01, R_K = 16, 32, 64, 128
R_P0, R_P1, R_ACC = 16, 32, 48
VCH = [64, 96, 128, 160]


def entry(p):
    if CFG['STAMPS'] == 'e':
        p.e('s_memrealtime s[98:99]')
    p.e(f'''
    s_cmp_ge_u32 s2, 256
    s_cbranch_scc1 L_end
    s_load_dwordx16 s[32:47], s[0:1], 0
    s_load_dwordx8 s[48:55], s[0:1], 64
    s_load_dwordx4 s[56:59], s[0:1], 96
    v_lshrrev_b32 v2, 6, v0
    v_and_b32 v1, 63, v0
    s_lshr_b32 s{S_W8}, s2, 3
    v_readfirstlane_b32 s{S_WV}, v2
    v_lshlrev_b32 v0, 4, v1
    s_getpc_b64 s[60:61]
    L_pc:
    s_lshl_b32 s62, s{S_W8}, 3
    s_add_u32 s62, s62, s{S_WV}
    s_lshl_b32 s62, s62, 10
    s_min_u32 s62, s62, L_code_end-{NAME}_kernel-1024
    s_sub_u32 s60, s60, L_pc-{NAME}_kernel
    s_subb_u32 s61, s61, 0
    s_add_u32 s60, s60, s62
    s_addc_u32 s61, s61, 0''')
    p.vmem('global_load_dwordx4 v[252:255], v0, s[60:61]', 'code')
    p.e(f'''
    s_add_u32 s{S_ROT}, s{S_W8}, s{S_WV}
    s_and_b32 s{S_ROT}, s{S_ROT}, 7
    s_lshl_b32 s{S_ROT}, s{S_ROT}, 12
    s_cmp_ge_u32 s2, 120
    s_cselect_b32 s5, 40, 0
    s_cmp_ge_u32 s2, 216
    s_cselect_b32 s5, 0xffffffa0, s5
    s_add_u32 s5, s5, s2
    s_lshl_b32 s{S_KV}, s5, 18
    s_add_u32 s{S_KV}, s{S_KV}, s{S_ROT}
    s_mov_b32 s{SRD_K + 2}, 0x4000000
    s_mov_b32 s{SRD_K + 3}, 0x20000
    s_sub_u32 s62, s2, 120
    s_cmp_lt_u32 s62, 64
    s_cbranch_scc1 L_class_Q
    s_cmp_lt_u32 s62, 80
    s_cbranch_scc1 L_class_P
    s_cmp_lt_u32 s62, 96
    s_cbranch_scc1 L_class_PR''')
    p.vm_pre = list(p.vm)
    got_args(p)
    for j in range(4):
        p.vmem(f'buffer_load_dwordx4 {vr(R_K + 4 * j)}, v0, {sr(SRD_K, 4)}, s{S_KV} offen offset:{1024 * j} nt', 'K0')
    p.e(f'''
    s_cmp_lt_u32 s2, 64
    s_cbranch_scc1 L_class_O
    s_cmp_lt_u32 s2, 120
    s_cbranch_scc1 L_class_M
    s_branch L_class_R''')


def got_args(p):
    p.e(f's_waitcnt lgkmcnt(0)\ns_mov_b32 s{SRD_K}, s{P_K}\ns_mov_b32 s{SRD_K + 1}, s{P_K + 1}')


def common_setup(p):
    if CFG['STAMPS'] == 'e':
        p.e(f's_waitcnt lgkmcnt(0)\ns_mov_b32 s{S_STAMP}, s98')
        p.nstamp = 1
        p.stamp_names = ['entry']
    p.stamp('start')
    if CFG['DBGOUT']:
        p.e('s_memtime s[100:101]\ns_waitcnt lgkmcnt(0)\ns_mov_b32 s99, s100')
    p.srd(SRD_WS, P_WS, WS_BYTES)
    p.e('v_mov_b32 v4, -1\nv_mov_b32 v5, -1\nv_mov_b32 v6, -1\nv_mov_b32 v7, -1')


def common_setup2(p):
    p.srd(SRD_V, P_V, 0x4000000)
    p.srd(SRD_D, P_DBG, 256)
    p.e(f's_mov_b32 s{S_PLO}, 0x05040100\ns_mov_b32 s{S_PHI}, 0x07060302')


def clear_rows(p, s_off, stride, nb):
    lanes = nb // 16
    sh = lanes.bit_length() - 1
    p.lane(2, [(sh, 2, stride), (0, sh, 16)], tmp=3)
    if lanes * 4 < 64:
        p.exec_set((1 << (lanes * 4)) - 1)
    p.e(f'buffer_store_dwordx4 v[4:7], v2, {sr(SRD_WS, 4)}, s{s_off} offen sc1')
    p.exec_all()


def clears(p, role):
    sk = p.lab('clr')
    p.e(f's_cmp_lg_u32 s{S_WV}, 0\ns_cbranch_scc1 {sk}\ns_setprio 3')
    role()
    p.e(f's_lshl_b32 s{S_T0}, s5, 11\ns_add_u32 s{S_T0}, s{S_T0}, {WS_OP}')
    p.e(f'buffer_store_dwordx4 v[4:7], v0, {sr(SRD_WS, 4)}, s{S_T0} offen sc1')
    p.e(f'buffer_store_dwordx4 v[4:7], v0, {sr(SRD_WS, 4)}, s{S_T0} offen offset:1024 sc1')
    p.e(f's_lshl_b32 s{S_T0}, s5, 7\ns_add_u32 s{S_T0}, s{S_T0}, {WS_ML}')
    p.exec_set(0xff)
    p.e(f'buffer_store_dwordx4 v[4:7], v0, {sr(SRD_WS, 4)}, s{S_T0} offen sc1')
    p.exec_all()
    p.e(f'v_mov_b32 v8, 0\nv_mov_b32 v9, 0\nv_lshlrev_b32 v2, 3, v1\nds_write_b64 v2, v[8:9] offset:{L_ZERO}\nds_write_b32 v8, v8 offset:{L_CNT}')
    p.e(f's_setprio 0\n{sk}:')
    p.nclear = len(p.vm)


def prio_young(p, v):
    sk = p.lab('pr')
    p.e(f's_cmp_lt_u32 s{S_WV}, 4\ns_cbranch_scc1 {sk}\ns_setprio {v}\n{sk}:')


def count_b(p):
    sk = p.lab('arr')
    p.e(f's_cmp_lg_u32 s{S_WV}, 0\ns_cbranch_scc1 {sk}\ns_mov_b32 s{S_T0}, 1')
    p.e(f's_atomic_add s{S_T0}, {sr(P_DBG)}, 0\n{sk}:')


def arrive(p, off):
    sk = p.lab('arr')
    p.e(f's_cmp_lg_u32 s{S_WV}, 0\ns_cbranch_scc1 {sk}')
    p.e(f's_waitcnt vmcnt({len(p.vm) - p.nclear}) lgkmcnt(0)')
    p.stamp('arrived')
    for o in off:
        p.e(f's_mov_b32 s{S_T0}, 1\ns_atomic_add s{S_T0}, {sr(P_DBG)}, {o}')
    p.e(f'{sk}:\ns_barrier')


def push_cnt(p, dst, tag='CNT', off=0):
    p.push(tag, lambda t: p.vmem(f'buffer_load_dword v{dst}, off, {sr(SRD_D, 4)}, 0 offset:{off} sc1', t))


def check_cnt(p, dst, tag='CNT', off=0, total=256):
    p.need(tag)
    ok, lp = p.lab('cok'), p.lab('cretry')
    p.e(f'v_readfirstlane_b32 s{S_T0}, v{dst}\ns_mov_b32 s{S_SPIN}, 0\ns_cmp_ge_u32 s{S_T0}, {total}\ns_cbranch_scc1 {ok}\n{lp}:')
    p.e(f'buffer_load_dword v{dst}, off, {sr(SRD_D, 4)}, 0 offset:{off} sc1\ns_waitcnt vmcnt(0)\nv_readfirstlane_b32 s{S_T0}, v{dst}')
    p.e(f's_add_u32 s{S_SPIN}, s{S_SPIN}, 1\ns_cmp_ge_u32 s{S_SPIN}, {CFG["SPIN"]}\ns_cbranch_scc1 {ok}')
    p.e(f's_cmp_lt_u32 s{S_T0}, {total}\ns_cbranch_scc1 {lp}\n{ok}:')
    p.release(tag.lower())


def push_page(p, srd, tag, page, dst, need=None):
    for j in range(4):
        def fn(t, j=j):
            if j == 0 or True:
                p.e(f's_add_u32 s{S_T3}, s{S_KV}, {page * 32768}')
            p.vmem(f'buffer_load_dwordx4 {vr(dst + 4 * j)}, v0, {sr(srd, 4)}, s{S_T3} offen offset:{1024 * j} nt', t)
        p.push(tag, fn, need)


def push_k(p, t):
    push_page(p, SRD_K, f'K{t}', t, R_K + 16 * t)


def push_v(p, u, need=None):
    push_page(p, SRD_V, f'V{u}', 2 * u, p.vch[u], need)
    push_page(p, SRD_V, f'V{u}', 2 * u + 1, p.vch[u] + 16, need)


def push_v_lds(p, u):
    for k in range(8):
        def fn(t, k=k):
            if k == 0:
                p.e(f's_lshl_b32 s{S_STG}, s{S_WV}, 13\ns_add_u32 s{S_STG}, s{S_STG}, {L_STASH}')
            p.e(f's_add_u32 m0, s{S_STG}, {1024 * k}\ns_add_u32 s{S_T3}, s{S_KV}, {(2 * u + (k >> 2)) * 32768 + 1024 * (k & 3)}')
            p.vmem(f'buffer_load_dwordx4 v0, {sr(SRD_V, 4)}, s{S_T3} offen nt lds', t)
        p.push(f'V{u}', fn)


def v_from_lds(p, u, tmp):
    p.need(f'V{u}')
    p.e(f'v_add_u32 v{tmp}, s{S_STG}, v0')
    for k in range(8):
        p.e(f'ds_read_b128 {vr(p.vch[u] + 4 * k)}, v{tmp} offset:{1024 * k}')


def k_setup(p):
    p.e(f's_lshl_b32 s{S_T0}, s{S_WV}, 12')
    p.e(f'v_lshrrev_b32 v6, 4, v1\nv_lshlrev_b32 v7, 2, v6\nv_xor_b32 v7, v7, v1\nv_and_b32 v7, 15, v7\nv_lshlrev_b32 v7, 4, v7')
    p.e(f'v_lshl_add_u32 v2, v6, 8, v7\nv_add_u32 v2, s{S_T0}, v2')
    for j in (1, 2, 3):
        p.e(f'v_xor_b32 v{2 + j}, {16 * j}, v2')
    p.e(f'v_xor_b32 v7, v6, v1\nv_and_b32 v7, 15, v7\nv_lshlrev_b32 v7, 4, v7')
    p.e(f'v_and_b32 v8, 3, v1\nv_lshl_add_u32 v7, v8, 10, v7\nv_bfe_u32 v8, v1, 2, 2\nv_lshl_add_u32 v7, v8, 8, v7\nv_add_u32 v6, s{S_T0}, v7')
    for m in (1, 2, 3):
        p.e(f'v_xor_b32 v{6 + m}, {64 * m}, v6')


def k_trans(p, t):
    p.need(f'K{t}')
    for j in range(4):
        p.e(f'ds_write_b128 v{2 + j}, {vr(R_K + 16 * t + 4 * j)} offset:{1024 * j}')
    for m in range(4):
        p.e(f'ds_read_b128 {vr(R_K + 16 * t + 4 * m)}, v{6 + m}')


def q_loads(p, vo):
    def issue(model):
        for j in range(2 if CFG['QLIN'] else 4):
            if CFG['QLIN']:
                s = f'buffer_load_dwordx4 {vr(R_Q + 4 * j)}, v0, {sr(SRD_WS, 4)}, s{S_U + 3} offen offset:{1024 * j} sc1'
            else:
                s = f'buffer_load_dwordx4 {vr(R_Q + 4 * j)}, v{vo}, {sr(SRD_WS, 4)}, s{S_U + 3} offen offset:{64 * j} sc1'
            p.vmem(s, 'Q') if model else p.e(s)
    return issue


def push_q(p, vo):
    def fn(t):
        p.e(f's_lshr_b32 s{S_U + 3}, s5, 4\ns_lshl_b32 s{S_U + 3}, s{S_U + 3}, 11\ns_add_u32 s{S_U + 3}, s{S_U + 3}, {WS_Q}')
        if not CFG['QLIN']:
            p.lane(vo, [(0, 3, 256), (4, 2, 16)], tmp=R_Q)
        q_loads(p, vo)(True)
    p.push('Q', fn, 'cnt')


def qk_softmax(p, vo_q):
    if CFG['QLIN']:
        p.e(f's_lshl_b32 s{S_T0}, s{S_WV}, 12\nv_and_b32 v10, 3, v1\nv_lshlrev_b32 v10, 2, v10\nv_bfe_u32 v11, v1, 2, 1\nv_or_b32 v10, v10, v11')
        p.e(f'v_lshrrev_b32 v11, 4, v1\nv_xor_b32 v10, v10, v11\nv_lshlrev_b32 v10, 4, v10\nv_and_b32 v11, 7, v1\nv_lshl_add_u32 v10, v11, 8, v10\nv_add_u32 v6, s{S_T0}, v10')
        for m in (1, 2, 3):
            p.e(f'v_xor_b32 v{6 + m}, {64 * m}, v6')
        p.need('Q')
        p.check_retry(lambda: q_loads(p, vo_q)(False), list(range(R_Q, R_Q + 8)), 10)
        for j in range(2):
            p.e(f'ds_write_b128 v{2 + j}, {vr(R_Q + 4 * j)} offset:{1024 * j}')
        for m in range(4):
            p.e(f'ds_read_b128 {vr(R_Q + 4 * m)}, v{6 + m}')
    else:
        p.need('Q')
        p.check_retry(lambda: q_loads(p, vo_q)(False), list(range(R_Q, R_Q + 16)), 10)
    p.e('s_waitcnt lgkmcnt(0)')
    p.stamp('q_ok')
    for t in range(8):
        for m in range(4):
            s = vr(R_S + 4 * t)
            p.e(f'v_mfma_f32_16x16x32_bf16 {s}, {vr(R_K + 16 * t + 4 * m)}, {vr(R_Q + 4 * m)}, {"0" if m == 0 else s}')
        if t == 1:
            p.release('K01')
            p.burst(2)
        if t == 7:
            p.release('K47')
            p.burst(CFG['BURST'])
    T = 2
    for t in range(8):
        x = R_S + 4 * t
        for h in (0, 2):
            p.rnd2(x + h, x + h + 1, T + h // 2)
        for r in range(4):
            p.e(f'v_mul_f32 v{x + r}, 0x3db504f3, v{x + r}')
        for h in (0, 2):
            p.rnd2(x + h, x + h + 1, T + h // 2)
        if t == 0:
            p.e(f'v_max_f32 v4, v{x}, v{x + 1}')
        else:
            p.e(f'v_max3_f32 v4, v4, v{x}, v{x + 1}')
        p.e(f'v_max3_f32 v4, v4, v{x + 2}, v{x + 3}')
        if t % 2:
            p.fill()
    p.W += CFG['BURST'] - 2
    p.pump(2)
    p.W -= CFG['BURST'] - 2
    p.swapred('v_max_f32', 16, [4], [5])
    p.swapred('v_max_f32', 32, [4], [5])
    p.e(f'v_mul_f32 v6, {hex(LOG2E | 0x80000000)}, v4\ns_mov_b32 s{S_T0}, {hex(LOG2E)}')
    p.e(f's_mov_b32 s{S_MASK}, 0x00ff00ff\ns_mov_b32 s{S_MASK + 1}, 0x00ff00ff\nv_mov_b32 v5, 0')
    for t in range(8):
        x = R_S + 4 * t
        for r in range(4):
            p.e(f'v_fma_f32 v{x + r}, v{x + r}, s{S_T0}, v6')
        for r in range(4):
            p.e(f'v_exp_f32 v{x + r}, v{x + r}')
        p.e(f'v_add_f32 v7, v{x}, v{x + 1}\nv_add_f32 v8, v{x + 2}, v{x + 3}')
        p.e(f'v_cvt_pk_bf16_f32 v2, v{x}, v{x + 1}\nv_cvt_pk_bf16_f32 v3, v{x + 2}, v{x + 3}')
        p.e(f'v_add_f32 v5, v5, v7\nv_add_f32 v5, v5, v8')
        for d in range(2):
            p.e(f'v_cndmask_b32 v{R_P0 + 2 * t + d}, 0, v{2 + d}, {sr(S_MASK)}')
            p.e(f'v_cndmask_b32 v{R_P1 + 2 * t + d}, v{2 + d}, 0, {sr(S_MASK)}')
        if t % 2:
            p.fill()
    p.swapred('v_add_f32', 16, [5], [6])
    p.swapred('v_add_f32', 32, [5], [6])
    p.e(f's_lshl_b32 s{S_T0}, s{S_WV}, 6\ns_add_u32 s{S_T0}, s{S_T0}, {L_MLW}\nv_lshlrev_b32 v6, 3, v1\nv_add_u32 v7, s{S_T0}, v6')
    p.e(f'v_mov_b32 v8, 1\nv_mov_b32 v9, {L_CNT}')
    p.exec_set(0xff)
    p.e('ds_write_b64 v7, v[4:5]\ns_mov_b64 exec, 1\nds_add_rtn_u32 v8, v9, v8')
    p.exec_all()
    sk = p.lab('ml')
    p.e(f's_waitcnt lgkmcnt(0)\nv_readfirstlane_b32 s{S_T0}, v8\ns_cmp_lg_u32 s{S_T0}, 7\ns_cbranch_scc1 {sk}')
    p.e(f'ds_read_b64 v[8:9], v6 offset:{L_MLW}\ns_waitcnt lgkmcnt(0)')
    ml_combine(p, 8, 9, 2, 3, 7)
    p.e(f's_lshl_b32 s{S_T0}, s5, 7\ns_add_u32 s{S_T0}, s{S_T0}, {WS_ML}')
    p.exec_set(0xff)
    p.e(f'buffer_store_dwordx2 v[2:3], v6, {sr(SRD_WS, 4)}, s{S_T0} offen sc1')
    p.exec_all()
    p.e(f'{sk}:')
    p.stamp('softmax')


def ml_combine(p, m, l, M, L, t):
    p.e(f'v_max_f32_dpp v{M}, v{m}, v{m} row_ror:8 row_mask:0xf bank_mask:0xf')
    p.swapred('v_max_f32', 16, [M], [t])
    p.swapred('v_max_f32', 32, [M], [t])
    p.e(f'v_sub_f32 v{t}, v{m}, v{M}\nv_mul_f32 v{t}, {hex(LOG2E)}, v{t}\nv_exp_f32 v{t}, v{t}\nv_mul_f32 v{L}, v{l}, v{t}')
    p.e(f'v_add_f32_dpp v{L}, v{L}, v{L} row_ror:8 row_mask:0xf bank_mask:0xf')
    p.swapred('v_add_f32', 16, [L], [t])
    p.swapred('v_add_f32', 32, [L], [t])


def pv_chunk(p, u, T):
    p.need(f'V{u}')
    raw = p.vch[u]
    for c in range(4):
        tb = T + 8 * (c & 1)
        for hi in range(2):
            for jj in range(4):
                a, b = raw + 4 * (2 * jj) + c, raw + 4 * (2 * jj + 1) + c
                p.e(f'v_perm_b32 v{tb + 4 * hi + jj}, v{b}, v{a}, s{S_PHI if hi else S_PLO}')
        for hi in range(2):
            e = 2 * c + hi
            acc = vr(R_ACC + 4 * (e & 3))
            cc = '0' if (u == 0 and e < 4) else acc
            pb = (R_P0 if e < 4 else R_P1) + 4 * u
            p.e(f'v_mfma_f32_16x16x32_bf16 {acc}, {vr(tb + 4 * hi)}, {vr(pb)}, {cc}')
        p.fill()


def ml_loads(p):
    def issue(model):
        for k in range(2):
            s = f'buffer_load_dwordx2 {vr(6 + 2 * k, 2)}, v2, {sr(SRD_WS, 4)}, s{S_U + 3} offen offset:{1024 * k} sc1'
            p.vmem(s, 'ML') if model else p.e(s)
    return issue


def push_ml(p):
    def fn(t):
        p.e(f's_lshr_b32 s{S_U + 3}, s5, 4\ns_lshl_b32 s{S_U + 3}, s{S_U + 3}, 11\ns_add_u32 s{S_U + 3}, s{S_U + 3}, {WS_ML}')
        p.lane(2, [(3, 3, 128), (0, 3, 8)], tmp=3)
        ml_loads(p)(True)
    p.push('ML', fn, 'sm')


def ml_scale(p):
    p.need('ML')
    p.stamp('ml_landed')
    p.check_retry(lambda: ml_loads(p)(False), [6, 7, 8, 9], 3)
    p.e(f'''v_max_f32 v3, v6, v8
    v_sub_f32 v6, v6, v3
    v_sub_f32 v8, v8, v3
    v_mul_f32 v6, {hex(LOG2E)}, v6
    v_mul_f32 v8, {hex(LOG2E)}, v8
    v_exp_f32 v6, v6
    v_exp_f32 v8, v8
    v_mul_f32 v7, v7, v6
    v_fmac_f32 v7, v9, v8''')
    ml_combine(p, 3, 7, 6, 8, 9)
    p.e(f'v_sub_f32 v4, v4, v6\nv_mul_f32 v4, {hex(LOG2E)}, v4\nv_exp_f32 v4, v4\nv_rcp_f32 v8, v8\nv_mul_f32 v5, v4, v8')
    p.e(f's_mul_i32 s{S_T0}, s{S_WV}, 4864\ns_add_u32 s{S_T0}, s{S_T0}, {L_OPART}')
    p.lane(6, [(0, 3, 592), (4, 2, 144), (3, 1, 64)], sadd=S_T0, tmp=3)
    p.e(f's_mul_i32 s{S_T0}, s{S_WV}, 592\ns_add_u32 s{S_T0}, s{S_T0}, {L_OPART}')
    p.lane(7, [(4, 2, 144), (1, 1, 64), (0, 1, 32), (2, 2, 4)], sadd=S_T0, tmp=3)
    p.e('v_add_u32 v8, 16, v7\nv_lshlrev_b32 v9, 2, v1')
    p.e(f's_lshl_b32 s{S_U + 3}, s5, 11\ns_lshl_b32 s{S_T1}, s{S_WV}, 8\ns_add_u32 s{S_U + 3}, s{S_U + 3}, s{S_T1}\ns_add_u32 s{S_U + 3}, s{S_U + 3}, {WS_OP}')


def quad_pack_store(p, D, vo, s_off):
    for k in (1, 2, 3):
        p.e(f'v_mov_b32_dpp v{D + k}, v{D} quad_perm:[{k},{k},{k},{k}] row_mask:0xf bank_mask:0xf')
    p.exec_set(0x1111111111111111)
    p.vmem(f'buffer_store_dwordx4 {vr(D)}, v{vo}, {sr(SRD_WS, 4)}, s{s_off} offen sc1', 'st')
    p.exec_all()


def attn_epilogue(p):
    for k in range(0, 16, 2):
        p.e(f'v_pk_mul_f32 {vr(R_ACC + k, 2)}, {vr(R_ACC + k, 2)}, v[4:5] op_sel:[0,1] op_sel_hi:[1,1]')
        if k % 4 == 2:
            p.e(f'ds_write_b128 v6, {vr(R_ACC + k - 2)} offset:{16 * (k // 4)}')
    p.e('s_waitcnt lgkmcnt(0)\ns_barrier')
    B = R_P0
    for k in range(4):
        p.e(f'ds_read2st64_b32 {vr(B + 2 * k, 2)}, v7 offset0:{38 * k} offset1:{38 * k + 19}')
        p.e(f'ds_read2st64_b32 {vr(B + 8 + 2 * k, 2)}, v8 offset0:{38 * k} offset1:{38 * k + 19}')
    p.e('s_waitcnt lgkmcnt(0)')
    for w in (4, 2, 1):
        p.tree(B, [w])
        p.tree(B + 8, [w])
    p.e(f'v_cvt_pk_bf16_f32 v{B + 4}, v{B}, v{B + 8}')
    quad_pack_store(p, B + 4, 9, S_U + 3)
    p.stamp('o_stored')


def selectors(p, SA, t, n=8):
    p.e(f'v_and_b32 v{t}, 1, v1\nv_cmp_eq_u32 vcc, 1, v{t}\nv_mov_b32 v{t}, 0x3f80\nv_mov_b32 v{t + 1}, 1.0')
    p.e(f'v_cndmask_b32 v{t}, v{t}, v{t + 1}, vcc\nv_bfe_u32 v{t + 1}, v1, 1, 3')
    for d in range(n):
        p.e(f'v_cmp_eq_u32 vcc, {d}, v{t + 1}\nv_cndmask_b32 v{SA + d}, 0, v{t}, vcc')


def wide_b_addrs(p, A, base_terms, s_base, const, t):
    p.lane(t, base_terms, const=const, sadd=s_base, tmp=A)
    p.e(f'v_mov_b32 v{t + 1}, {L_ZERO}')
    for j in range(4):
        m = 0x11111111 << j
        p.e(f's_mov_b32 s{S_MASK}, {hex(m)}\ns_mov_b32 s{S_MASK + 1}, {hex(m)}')
        p.e(f'v_cndmask_b32 v{A + j}, v{t + 1}, v{t}, {sr(S_MASK)}')


def selectors_b(p, SA, t):
    p.e(f'v_and_b32 v{t}, 1, v1\nv_cmp_eq_u32 vcc, 1, v{t}\nv_mov_b32 v{t}, 0x3f80\nv_mov_b32 v{t + 1}, 1.0')
    p.e(f'v_cndmask_b32 v{t}, v{t}, v{t + 1}, vcc')
    p.e(f'v_lshrrev_b32 v{t + 1}, 1, v1\nv_xor_b32 v{t + 1}, v{t + 1}, v1\nv_and_b32 v{t + 1}, 8, v{t + 1}')
    p.e(f'v_bfe_u32 v{SA}, v1, 1, 2\nv_or_b32 v{t + 1}, v{t + 1}, v{SA}\nv_bfe_u32 v{SA}, v1, 5, 1\nv_lshl_or_b32 v{t + 1}, v{SA}, 2, v{t + 1}')
    for d in range(8):
        p.e(f'v_cmp_eq_u32 vcc, {d}, v{t + 1}\nv_cndmask_b32 v{SA + d}, 0, v{t}, vcc')


def sp_addrs(p, A, bstride, s_base, const, t, idx=None):
    p.lane(t, [(2, 2, bstride), (0, 1, bstride // 2), (4, 2, 16)], const=const, sadd=s_base, tmp=A)
    p.e(f'v_mov_b32 v{t + 1}, {L_ZERO}\ns_mov_b32 s{S_MASK}, 0x33333333\ns_mov_b32 s{S_MASK + 1}, 0x33333333')
    p.e(f'v_cndmask_b32 v{A}, v{t + 1}, v{t}, {sr(S_MASK)}\nv_cndmask_b32 v{A + 1}, v{t}, v{t + 1}, {sr(S_MASK)}')
    if idx is not None:
        p.e(f's_mov_b32 s{S_MASK}, 0x55555555\ns_mov_b32 s{S_MASK + 1}, 0x55555555\nv_mov_b32 v{t}, 0xeeee\nv_mov_b32 v{t + 1}, 0x4444')
        p.e(f'v_cndmask_b32 v{idx}, v{t}, v{t + 1}, {sr(S_MASK)}')


def sp_gemv(p, F, A, ACC, idx):
    for e in range(8):
        p.e(f'v_smfmac_f32_16x16x64_bf16 {vr(ACC + 4 * (e & 3))}, {vr(A + 4 * (e >> 2))}, {vr(F + 8 * e, 8)}, v{idx}')


def lines_of(p, fn):
    old, p.L = p.L, []
    fn()
    out, p.L = p.L, old
    return out


def interleave(p, main, fill, per):
    fill = list(fill)
    for m in main:
        p.L.append(m)
        p.L += fill[:per]
        fill = fill[per:]
    p.L += fill


def sp_fold(p, ACC, OUT):
    for e in range(8):
        r = ACC + 4 * (e & 3) + 2 * (e >> 2)
        p.e(f'v_add_f32 v{OUT + e}, v{r}, v{r + 1}')


def push_wide_rows(p, tag, raw, vo, s_base, row0, need=None):
    for jj in range(8):
        def fn(t, jj=jj):
            p.e(f's_add_u32 s{S_T3}, s{s_base}, {(row0 + (jj & ~1)) * 2048}')
            p.vmem(f'buffer_load_dwordx4 {vr(raw + 4 * jj)}, v{vo}, {sr(SRD_W, 4)}, s{S_T3} offen offset:{2048 * (jj & 1)} nt', t)
        p.push(tag, fn, need)


def finish(p):
    if CFG['DBGOUT']:
        p.stamp('end')
        sk = p.lab('dbg')
        p.e(f's_cmp_lg_u32 s{S_WV}, 0\ns_cbranch_scc1 {sk}')
        sk2 = p.lab('dbg')
        p.e(f's_cmp_lg_u32 s2, 64\ns_cbranch_scc1 {sk2}\ns_memtime s[100:101]\ns_waitcnt lgkmcnt(0)\ns_sub_u32 s100, s100, s99')
        p.e(f's_atomic_umax s100, {sr(P_DBG)}, 56\ns_sub_u32 s{S_T0}, s{S_STAMP + p.nstamp - 1}, s{S_STAMP}\ns_atomic_umax s{S_T0}, {sr(P_DBG)}, 60\n{sk2}:')
        slots = ['start', 'pre_done', 'k_done', 'q_ok', 'o_stored', 'e3_ok', 'a_stored', 'w_ready', 'e4_ok', 'f_stored', 'end']
        p.e(f's_not_b32 s{S_T0}, s{S_STAMP}\ns_atomic_umax s{S_T0}, {sr(P_DBG)}, 4')
        for k, n in enumerate(p.stamp_names):
            if n in slots:
                p.e(f's_atomic_umax s{S_STAMP + k}, {sr(P_DBG)}, {8 + 4 * slots.index(n)}')
        p.e(f'{sk}:')
    elif CFG['STAMPS']:
        p.e(f's_lshl_b32 s{S_T0}, s2, 3\ns_add_u32 s{S_T0}, s{S_T0}, s{S_WV}\ns_lshl_b32 s{S_T0}, s{S_T0}, 7\ns_add_u32 s{S_T0}, s{S_T0}, {WS_STAMP}')
        p.stamp('end')
        p.e('s_mov_b64 exec, 1\nv_mov_b32 v2, 0')
        for k in range(p.nstamp):
            p.e(f'v_mov_b32 v3, s{S_STAMP + k}\nbuffer_store_dword v3, v2, {sr(SRD_WS, 4)}, s{S_T0} offen offset:{4 * k}')
    p.e('s_endpgm')


def mod_unit_setup(p, s_unit, s_col, s_out):
    p.e(f's_lshl_b32 s{s_col}, s{s_unit}, 7')
    p.e(f's_lshr_b32 s{s_out}, s{s_unit}, 4\ns_lshl_b32 s{s_out}, s{s_out}, 13\ns_and_b32 s{S_T0}, s{s_unit}, 15')
    p.e(f's_lshl_b32 s{S_T0}, s{S_T0}, 7\ns_add_u32 s{s_out}, s{s_out}, s{S_T0}')
    if WS_MOD:
        p.e(f's_add_u32 s{s_out}, s{s_out}, {WS_MOD}')


def quarter_loads(p, s_col):
    p.lane(15, [(3, 3, 4 * 12288), (0, 3, 16)], tmp=128)
    p.e(f's_mul_i32 s{S_T2}, s{S_WV}, {32 * 12288}\ns_add_u32 s{S_T2}, s{S_T2}, s{s_col}')
    for jj in range(4):
        p.e(f's_add_u32 s{S_T3}, s{S_T2}, {jj * 12288}')
        p.waitn(p.W - 1)
        p.vmem(f'buffer_load_dwordx4 {vr(128 + 4 * jj)}, v15, {sr(SRD_W, 4)}, s{S_T3} offen nt', 'WQ')


def quarter_compute(p):
    raw, F, B, ACC, a0, a1, t0 = 128, 144, 160, 176, 10, 11, 15
    p.e(f's_and_b32 s{S_T0}, s2, 3\ns_lshl_b32 s{S_T0}, s{S_T0}, 1\ns_lshr_b32 s{S_T1}, s{S_WV}, 2\ns_add_u32 s{S_T0}, s{S_T0}, s{S_T1}')
    p.e(f's_lshl_b32 s{S_T0}, s{S_T0}, 10\ns_and_b32 s{S_T1}, s{S_WV}, 3\ns_lshl_b32 s{S_T1}, s{S_T1}, 6\ns_add_u32 s{S_T0}, s{S_T0}, s{S_T1}\ns_add_u32 s{S_T0}, s{S_T0}, {L_XA}')
    p.lane(a0, [(0, 2, 256), (4, 2, 16), (3, 1, 8)], sadd=S_T0, tmp=t0)
    p.e(f's_mov_b32 s{S_MASK}, 0x0f0f0f0f\ns_mov_b32 s{S_MASK + 1}, 0x0f0f0f0f\nv_mov_b32 v{t0}, {L_ZERO}')
    p.e(f'v_cndmask_b32 v{a1}, v{a0}, v{t0}, {sr(S_MASK)}\nv_cndmask_b32 v{a0}, v{t0}, v{a0}, {sr(S_MASK)}')
    p.e(f'ds_read_b64 {vr(B, 2)}, v{a0}\nds_read_b64 {vr(B + 2, 2)}, v{a1}')
    p.e(f's_lshl_b32 s{S_T0}, s{S_WV}, 11\ns_add_u32 s{S_T0}, s{S_T0}, {L_RED2}')
    p.lane(a0, [(5, 1, 1024), (0, 2, 256), (2, 1, 128), (4, 1, 16)], sadd=S_T0, tmp=t0)
    p.need('WQ')
    for c in range(4):
        for hi in range(2):
            for jj in range(2):
                p.e(f'v_perm_b32 v{F + 2 * (2 * c + hi) + jj}, v{raw + 4 * (2 * jj + 1) + c}, v{raw + 4 * (2 * jj) + c}, s{S_PHI if hi else S_PLO}')
    p.e('s_waitcnt lgkmcnt(0)')
    for e in range(8):
        acc = vr(ACC + 4 * (e & 3))
        p.e(f'v_mfma_f32_16x16x16_bf16 {acc}, {vr(F + 2 * e, 2)}, {vr(B + 2 * (e >> 2), 2)}, {"0" if e < 4 else acc}')
    p.e(f's_lshl_b32 s{S_T0}, s{S_WV}, 8\ns_add_u32 s{S_T0}, s{S_T0}, {L_RED2 - 1024}')
    p.lane(a1, [(2, 1, 128), (0, 2, 32), (5, 1, 16), (3, 2, 4)], sadd=S_T0, tmp=t0)
    p.exec_set(0xff00ff0000ff00ff)
    for a in range(4):
        p.e(f'ds_write_b128 v{a0}, {vr(ACC + 4 * a)} offset:{32 * a}')
    p.exec_all()


def quarter_final(p, s_out):
    B, a0, a1 = 160, 10, 11
    end = p.lab('qend')
    p.e(f's_cmp_ge_u32 s2, 248\ns_cbranch_scc1 {end}')
    for k in range(8):
        p.e(f'ds_read2st64_b32 {vr(B + 2 * k, 2)}, v{a1} offset0:{8 * k} offset1:{8 * k + 4}')
    p.e(f's_lshl_b32 s{S_T0}, s{S_WV}, 11\ns_add_u32 s{S_T0}, s{S_T0}, s{s_out}\ns_sub_u32 s{S_T0}, s{S_T0}, 8192\nv_lshlrev_b32 v{a0}, 2, v1\ns_waitcnt lgkmcnt(0)')
    for w in (8, 4, 2, 1):
        for k in range(w):
            p.e(f'v_add_f32 v{B + k}, v{B + k}, v{B + k + w}')
    for k in (1, 2, 3):
        p.e(f'v_mov_b32_dpp v{B + k}, v{B} quad_perm:[{k},{k},{k},{k}] row_mask:0xf bank_mask:0xf')
    p.exec_set(0x1111111111111111)
    p.e(f'buffer_store_dwordx4 {vr(B)}, v{a0}, {sr(SRD_WS, 4)}, s{S_T0} offen sc1')
    p.exec_all()
    p.e(f'{end}:')


def capture(p, fn):
    old, p.stream = p.stream, deque()
    fn()
    items, p.stream = list(p.stream), old
    return items


def weave(a, b, lead=0):
    out, a, b = [], list(a), list(b)
    out += b[:lead]
    b = b[lead:]
    while a or b:
        if b:
            out.append(b.pop(0))
        if a:
            out.append(a.pop(0))
    return out


def push_c3(p, tag, ptr, nbytes, wbase, n, first=0, dst=252, stride=None):
    def setup(t):
        p.srd(SRD_A, ptr, nbytes)
        p.e(f's_sub_u32 s{S_T2}, s2, {wbase}\ns_lshl_b32 s{S_T2}, s{S_T2}, 3\ns_add_u32 s{S_T2}, s{S_T2}, s{S_WV}')
        p.e(f's_mul_i32 s{S_T2}, s{S_T2}, {(stride or n) * 8192}\ns_add_u32 s{S_T2}, s{S_T2}, {first * 8192 + 384}')
        p.lane(15, [(3, 3, 1024), (0, 3, 16)], tmp=dst)
        for k in range(n):
            if k:
                p.e(f's_add_u32 s{S_T2}, s{S_T2}, 8192')
            p.vmem(f'buffer_load_dwordx4 {vr(dst)}, v15, {sr(SRD_A, 4)}, s{S_T2} offen', t)
    p.push(tag, setup)


def push_c3half(p, ptr, wbase, dst=252):
    def fn(t):
        p.srd(SRD_A, ptr, 1024 * 7168)
        p.e(f's_sub_u32 s{S_T2}, s2, {wbase}\ns_mul_i32 s{S_T3}, s{S_T2}, 37\ns_lshr_b32 s{S_T3}, s{S_T3}, 8\ns_mul_i32 s{S_T3}, s{S_T3}, 7')
        p.e(f's_add_u32 s{S_T2}, s{S_T2}, s{S_T3}\ns_add_u32 s{S_T2}, s{S_T2}, 7\ns_lshl_b32 s{S_T2}, s{S_T2}, 3\ns_add_u32 s{S_T2}, s{S_T2}, s{S_WV}')
        p.e(f's_lshl_b32 s{S_T2}, s{S_T2}, 13')
        p.lane(15, [(3, 3, 1024), (0, 3, 16)], tmp=dst)
        p.vmem(f'buffer_load_dwordx4 {vr(dst)}, v15, {sr(SRD_A, 4)}, s{S_T2} offen offset:384', t)
    p.push('c3', fn)


def push_c3mod(p, wbase, dst=252):
    def fn(t):
        p.srd(SRD_A, P_WMOD, 1024 * 12288)
        p.e(f's_sub_u32 s{S_T2}, s2, {wbase}\ns_lshl_b32 s{S_T2}, s{S_T2}, 3\ns_add_u32 s{S_T2}, s{S_T2}, s{S_WV}')
        p.e(f's_lshr_b32 s{S_T3}, s{S_T2}, 7\ns_lshl_b32 s{S_T3}, s{S_T3}, 10\ns_and_b32 s{S_T2}, s{S_T2}, 127')
        p.e(f's_mul_i32 s{S_T2}, s{S_T2}, {8 * 12288}\ns_add_u32 s{S_T2}, s{S_T2}, s{S_T3}\ns_add_u32 s{S_T2}, s{S_T2}, 4096')
        p.lane(15, [(3, 3, 12288), (0, 3, 16)], tmp=dst)
        p.vmem(f'buffer_load_dwordx4 {vr(dst)}, v15, {sr(SRD_A, 4)}, s{S_T2} offen offset:384', t)
        sk = p.lab('c3')
        p.e(f's_cmp_ge_u32 s{S_T3}, 2048\ns_cbranch_scc1 {sk}\ns_add_u32 s{S_T2}, s{S_T2}, 4096')
        p.e(f'buffer_load_dwordx4 {vr(dst)}, v15, {sr(SRD_A, 4)}, s{S_T2} offen offset:384\n{sk}:')
    p.push('c3', fn)


def rewarm(p, label, n, dst):
    if not CFG['REWARM']:
        return
    here = p.lab('pc')
    p.e(f's_getpc_b64 s[{S_T0}:{S_T1}]\n{here}:\ns_lshl_b32 s{S_T2}, s{S_WV}, 10\ns_add_u32 s{S_T2}, s{S_T2}, ({label}-{here})&0xfffffff0')
    p.e(f's_min_u32 s{S_T2}, s{S_T2}, (L_code_end-{here}-{1024 + 8192 * (n - 1)})&0xfffffff0')
    p.e(f's_and_b32 s{S_T0}, s{S_T0}, 0xfffffff0\ns_add_u32 s{S_T0}, s{S_T0}, s{S_T2}\ns_addc_u32 s{S_T1}, s{S_T1}, 0')
    for k in range(n):
        if k:
            p.e(f's_add_u32 s{S_T0}, s{S_T0}, 8192\ns_addc_u32 s{S_T1}, s{S_T1}, 0')
        p.vmem(f'global_load_dwordx4 {vr(dst)}, v0, s[{S_T0}:{S_T1}]', 'code')


def h6_prefetch(p, cls):
    sk = p.lab('h6')
    p.srd(SRD_A, P_W1, 1024 * 7168)
    p.srd(SRD_W, P_W3, 1024 * 7168)
    p.e(f's_sub_u32 s{S_T0}, s{S_W8}, {dict(P=23, Q=15 - 2, R=27 - 10)[cls]}\ns_cmp_ge_u32 s{S_T0}, 14\ns_cbranch_scc1 {sk}')
    p.e(f's_lshl_b32 s{S_T0}, s{S_T0}, 3\ns_add_u32 s{S_T0}, s{S_T0}, s{S_WV}\ns_and_b32 s{S_T1}, s2, 7\ns_lshl_b32 s{S_T1}, s{S_T1}, 7')
    p.lane(15, [(3, 3, 1024), (0, 3, 16)], sadd=S_T1, tmp=14)
    for ch in CFG['H6']:
        for half in range(2):
            p.e(f's_add_u32 s{S_T1}, s{S_T0}, {112 * half}\ns_mul_i32 s{S_T2}, s{S_T1}, 2341\ns_lshr_b32 s{S_T2}, s{S_T2}, 16')
            p.e(f's_mul_i32 s{S_T2}, s{S_T2}, {896 - 28 * 8}\ns_lshl_b32 s{S_T1}, s{S_T1}, 3\ns_add_u32 s{S_T2}, s{S_T2}, s{S_T1}')
            p.e(f's_add_u32 s{S_T2}, s{S_T2}, {32 * ch * 7}\ns_lshl_b32 s{S_T2}, s{S_T2}, 10')
            p.e(f'buffer_load_dwordx4 v[252:255], v15, {sr(SRD_A, 4)}, s{S_T2} offen')
            p.e(f'buffer_load_dwordx4 v[252:255], v15, {sr(SRD_W, 4)}, s{S_T2} offen')
    p.e(f'{sk}:')


def h5_prefetch(p, cls):
    p.srd(SRD_A, P_W2, 3584 * 2048)
    if CFG['H5X']:
        p.e(f's_sub_u32 s{S_T0}, s{S_W8}, {dict(P=23, Q=15 - 2, R=27 - 10)[cls]}\ns_lshr_b32 s{S_T2}, s{S_T0}, 1\ns_lshl_b32 s{S_T2}, s{S_T2}, 3')
        p.e(f's_and_b32 s{S_T1}, s2, 7\ns_add_u32 s{S_T2}, s{S_T2}, s{S_T1}\ns_lshl_b32 s{S_T2}, s{S_T2}, 17')
    else:
        p.e(f's_sub_u32 s{S_T0}, s2, {dict(Q=120 - 16, R=216 - 80, P=184)[cls]}')
        p.e(f's_lshr_b32 s{S_T2}, s{S_T0}, 1\ns_lshl_b32 s{S_T2}, s{S_T2}, 17')
    p.e(f's_and_b32 s{S_T0}, s{S_T0}, 1\ns_lshl_b32 s{S_T0}, s{S_T0}, 15')
    p.e(f's_add_u32 s{S_T2}, s{S_T2}, s{S_T0}\ns_add_u32 s{S_T2}, s{S_T2}, s{S_ROT}')
    for off in (0, 65536)[:CFG['H5']]:
        p.e(f's_add_u32 s{S_T3}, s{S_T2}, {off}')
        for j in range(4):
            p.waitn(CFG['H5W'] - 1)
            p.vmem(f'buffer_load_dwordx4 v[252:255], v0, {sr(SRD_A, 4)}, s{S_T3} offen offset:{1024 * j}', 'h5')


def build_class(cls, ent):
    p = Prog(cls)
    pre = {'P': 'mod', 'PR': 'mod', 'Q': 'q'}.get(cls)
    p.vm = list(ent.vm_pre if pre else ent.vm)
    p.e(f'L_class_{cls}:')
    if pre:
        got_args(p)
    common_setup(p)
    Wattn = CFG['W_' + cls]
    stage = CFG['STAGE'] and not pre
    p.vch = [64, 96, 160, 128] if stage else VCH
    S_COL, S_OUT, S_WB = S_U, S_U + 1, S_U + 2
    S_OUT2, S_COL2 = S_U + 4, S_U + 5
    roles = []
    if pre == 'mod':
        p.srd(SRD_W, P_WMOD, 1024 * 12288)
        p.srd(SRD_A, P_C, 8192)
        p.e(f's_sub_u32 s{S_T1}, s2, 184')
        mod_unit_setup(p, S_T1, S_COL, S_OUT)
        narrow_setup(p, 12288, 10, S_WB, S_COL, 3)
    if pre == 'q':
        p.srd(SRD_W, P_WQ, 1024 * 8192)
        p.srd(SRD_A, P_X, 8192)
        p.e(f's_sub_u32 s{S_COL}, s2, 120\ns_lshl_b32 s{S_COL}, s{S_COL}, 7\ns_add_u32 s{S_OUT}, s{S_COL}, {WS_Q}')
        narrow_setup(p, 8192, 10, S_WB, S_COL, 3)
    if pre:
        p.lane(11, AL_TERMS, tmp=3)
        p.e(f's_lshl_b32 s{S_U + 6}, s{S_WV}, 8')
        push_al_loads(p, 'ACT', SRD_A, 16, 11, S_U + 6)
        push_narrow_weights(p, 'WA', 12288 if pre == 'mod' else 8192, 64, 96, 10, S_WB)
        roles.append(lambda: clear_rows(p, S_OUT, 2048 if pre == 'mod' else 8192, 128))
    if cls == 'O' and CFG['HP3']:
        p.srd(SRD_W, P_WMOD, 1024 * 12288)
        p.e(f's_lshl_b32 s{S_T0}, s2, 3\ns_add_u32 s{S_T0}, s{S_T0}, s{S_WV}\ns_lshr_b32 s{S_T1}, s{S_T0}, 7\ns_lshl_b32 s{S_T1}, s{S_T1}, 10')
        p.e(f's_and_b32 s{S_T0}, s{S_T0}, 127\ns_mul_i32 s{S_T0}, s{S_T0}, {8 * 12288}\ns_add_u32 s{S_T0}, s{S_T0}, s{S_T1}')
        p.lane(10, [(3, 3, 12288), (0, 3, 16)], tmp=3)
        p.vmem(f'buffer_load_dwordx4 v[252:255], v10, {sr(SRD_W, 4)}, s{S_T0} offen offset:384', 'hp3')
    if cls in ('PR', 'R'):
        p.e(f's_sub_u32 s{S_T1}, s2, {216 - 32 if cls == "R" else 200 - 80}')
        mod_unit_setup(p, S_T1, S_COL2, S_OUT2)
        roles.append(lambda: clear_rows(p, S_OUT2, 2048, 128))
    if cls == 'R':
        p.e(f's_sub_u32 s{S_T1}, s2, 216\ns_and_b32 s{S_T0}, s{S_T1}, 3\ns_lshr_b32 s{S_T1}, s{S_T1}, 2')
        p.e(f's_lshl_b32 s{S_OUT}, s{S_T0}, 13\ns_lshl_b32 s{S_COL}, s{S_T1}, 8\ns_add_u32 s{S_OUT}, s{S_OUT}, s{S_COL}\ns_add_u32 s{S_OUT}, s{S_OUT}, {WS_CBP}')
        p.e(f's_mul_i32 s{S_T0}, s{S_T0}, {256 * 12288}\ns_lshl_b32 s{S_COL}, s{S_T1}, 7\ns_add_u32 s{S_COL}, s{S_COL}, s{S_T0}\ns_add_u32 s{S_COL}, s{S_COL}, {72 * 128}')

        def q_clear():
            sk = p.lab('qclr')
            p.e(f's_cmp_ge_u32 s2, 248\ns_cbranch_scc1 {sk}')
            clear_rows(p, S_OUT, 2048, 256)
            p.e(f'{sk}:')
        roles.append(q_clear)
    if cls == 'O':
        p.e(f's_and_b32 s{S_COL}, s2, 7\ns_lshl_b32 s{S_OUT}, s{S_COL}, 13\ns_lshl_b32 s{S_T0}, s{S_W8}, 8')
        p.e(f's_add_u32 s{S_OUT}, s{S_OUT}, s{S_T0}\ns_add_u32 s{S_OUT}, s{S_OUT}, {WS_AP}')
        roles.append(lambda: clear_rows(p, S_OUT, 2048, 256))
    if cls == 'M':
        p.e(f's_sub_u32 s{S_COL}, s2, 64\ns_lshl_b32 s{S_OUT}, s{S_COL}, 13\ns_lshl_b32 s{S_T0}, s{S_WV}, 10')
        p.e(f's_add_u32 s{S_OUT}, s{S_OUT}, s{S_T0}\ns_add_u32 s{S_OUT}, s{S_OUT}, {WS_FP}')

        def fp_clear():
            for k in range(8):
                if k % 4 == 0:
                    p.e(f's_add_u32 s{S_T0}, s{S_OUT}, {1024 * k}')
                p.e(f'buffer_store_dwordx4 v[4:7], v0, {sr(SRD_WS, 4)}, s{S_T0} offen offset:{1024 * (k % 4)} sc1')
        roles.append(fp_clear)
    clears(p, lambda: [r() for r in roles])

    def role_setup():
        if cls == 'O':
            p.srd(SRD_W, P_WO, 4096 * 2048)
            p.lane(12, [(4, 2, 8 * 2048), (0, 4, 16)], tmp=13)
            p.e(f's_lshl_b32 s{S_WB}, s{S_COL}, 3\ns_add_u32 s{S_WB}, s{S_WB}, s{S_WV}\ns_lshl_b32 s{S_WB}, s{S_WB}, 17')
            p.e(f's_lshl_b32 s{S_T0}, s{S_W8}, 8\ns_add_u32 s{S_WB}, s{S_WB}, s{S_T0}')
        if cls in ('PR', 'R'):
            p.srd(SRD_W, P_WMOD, 1024 * 12288)
            p.srd(SRD_A, P_C, 8192)
            narrow_setup(p, 12288, 12, S_WB, S_COL2, 13)
            p.lane(13, AL_TERMS, tmp=14)
            p.e(f's_lshl_b32 s{S_U + 6}, s{S_WV}, 8')
        if cls == 'M':
            p.srd(SRD_W, P_W2, 3584 * 2048)
            p.srd(SRD_A, P_X, 8192)
            p.e(f's_mov_b32 s{S_MASK}, 0xff00ff00\ns_mov_b32 s{S_MASK + 1}, 0xff00ff00')
            p.e(f'v_mov_b32 v12, s{P_W1}\nv_mov_b32 v13, s{P_W1 + 1}\nv_mov_b32 v14, s{P_W3}\nv_mov_b32 v15, s{P_W3 + 1}')
            p.e(f'v_cndmask_b32 v12, v12, v14, {sr(S_MASK)}\nv_cndmask_b32 v13, v13, v15, {sr(S_MASK)}')
            p.e(f's_mul_i32 s{S_T0}, s{S_WV}, {128 * 7168}\ns_lshl_b32 s{S_T1}, s{S_COL}, 7\ns_add_u32 s{S_T0}, s{S_T0}, s{S_T1}')
            p.lane(14, [(4, 2, 8 * 7168), (0, 3, 16)], sadd=S_T0, tmp=15)
            p.e('v_mov_b32 v15, 0\nv_lshl_add_u64 v[12:13], v[14:15], 0, v[12:13]')
            p.e(f's_mov_b32 s{S_C64}, 7168\ns_mov_b32 s{S_C64 + 1}, 0\ns_mov_b32 s{S_C64B}, {25 * 7168}\ns_mov_b32 s{S_C64B + 1}, 0')
            p.lane(14, [(4, 2, 8 * 2048), (0, 4, 16)], tmp=15)
            p.e(f's_lshl_b32 s{S_WB}, s{S_COL}, 17\ns_lshl_b32 s{S_T0}, s{S_WV}, 8\ns_add_u32 s{S_WB}, s{S_WB}, s{S_T0}')

    def sc_issue(model):
        for k, chunk in ((0, 0), (1, 1)):
            for q in range(2):
                p.e(f's_add_u32 s{S_T3}, s{S_U + 6}, {WS_MOD + chunk * 8192 + 4096 * q}')
                s = f'buffer_load_dwordx2 {vr(24 + 4 * k + 2 * q, 2)}, v11, {sr(SRD_WS, 4)}, s{S_T3} offen sc1'
                p.vmem(s, 'SC') if model else p.e(s)

    def w13(u, raw, nd):
        def mk(jj):
            def fn(t):
                p.vmem(f'global_load_dwordx4 {vr(raw + 4 * jj)}, v[12:13], off nt', t)
                p.e(f'v_lshl_add_u64 v[12:13], {sr(S_C64B if jj == 7 else S_C64)}, 0, v[12:13]')
            return fn
        return [(f'WM{u}', mk(jj), nd) for jj in range(8)]

    for t in range(0 if pre else 1, 8):
        if t == 4 and CFG['C3']:
            base = dict(O=(0, 2), Q=(120, 2), R=(216, 3), M=(64, 2), P=(184, 4), PR=(184, 4))
            if cls == CFG['C3W1'] or (CFG['C3W1'] == 'P' and cls == 'PR'):
                push_c3half(p, P_W1, base[cls][0]) if CFG['C3H'] else push_c3(p, 'c3', P_W1, 1024 * 7168, *base[cls])
        if t == 5 and CFG['C3']:
            if cls == CFG['C3W3'] or (CFG['C3W3'] == 'P' and cls == 'PR'):
                push_c3half(p, P_W3, base[cls][0]) if CFG['C3H'] else push_c3(p, 'c3', P_W3, 1024 * 7168, *base[cls])
        if t == 5 and CFG['C3O'] and cls in ('P', 'PR'):
            push_c3(p, 'c3', P_WO, 4096 * 2048, 184, CFG['C3O'], stride=4)
        if t == 1 and CFG['C3Q'] and cls in CFG['C3Q']:
            wb, n, first = dict(O=(0, 1, 0), R=(216, 1, 512), M=(64, 1, 512))[cls]
            push_c3(p, 'c3', P_WQ, 1024 * 8192, wb, n, first)
        if t == 6 and cls == CFG['C3MOD']:
            push_c3mod(p, dict(O=0, Q=120, M=64)[cls])
        if pre == 'q' and t == 0:
            push_cnt(p, 14, 'CNTA', 128)
        if pre == 'q' and t == CFG['SC_AT']:
            p.push('SC', lambda tg: sc_issue(True), 'cnta')
        if pre and t == 6:
            push_cnt(p, 10)
        push_page(p, SRD_K, f'K{t}', t, R_K + 16 * t, 'pre' if (pre == 'mod' and t == 0) else None)
    vv = capture(p, lambda: push_v(p, 0, 'pre' if pre else None)) + capture(p, lambda: push_v(p, 1, 'pre' if pre else None))
    qi = capture(p, lambda: push_q(p, 11))
    if stage:
        vv += capture(p, lambda: push_v_lds(p, 2))
    if pre:
        p.stream += qi + vv
    else:
        k = CFG['Q_AT'] + (CFG['STAGE'] if stage else 0)
        p.stream += vv[:k - 6] + capture(p, lambda: push_cnt(p, 10)) + vv[k - 6:k] + qi + vv[k:]
    v3 = capture(p, lambda: push_v(p, 3, 'K01' if stage else 'pv0'))
    ml = capture(p, lambda: push_ml(p))
    if not stage:
        push_v(p, 2, 'K01')
    p.stream += v3[:3] + ml + v3[3:] if pre else v3
    mark = len(p.stream)
    if cls == 'O':
        push_wide_rows(p, 'WO0', 192, 12, S_WB, 0, 'K47')
        push_wide_rows(p, 'WO1', 224, 12, S_WB, 32)
    if cls in ('R', 'PR'):
        wb = capture(p, lambda: push_narrow_weights(p, 'WB', 12288, 192, 224, 12, S_WB))
        wb = [(t, f, 'K47') for t, f, _ in wb]
        wb.insert(0 if cls == 'R' else 8, ('ACT2', capture(p, lambda: push_al_loads(p, 'ACT2', SRD_A, 96, 13, S_U + 6))[0][1], 'pv1'))
        k = 99 if cls == 'R' else CFG['P_EARLY']
        p.stream += wb[:k] + [(t, f, 'ost') for t, f, _ in wb[k:]]
    if cls == 'M':
        l3 = CFG['LATE3']
        post = w13(0, 192, 'K47') + w13(1, 224, None) + w13(2, 96, 'pv1') + w13(3, 128, 'modok' if l3 == 2 else 'pv3')
        post.insert(len(post) - (8 if l3 else 0), ('MOD', lambda t: m_mod_issue(p, True), 'p2'))
        p.stream += post
        p.w2raw = (128, 96) if l3 else (96, 128)
        p.w2late = capture(p, lambda: push_wide_rows(p, 'WM4', p.w2raw[0], 14, S_WB, 0)) + capture(p, lambda: push_wide_rows(p, 'WM5', p.w2raw[1], 14, S_WB, 32))
    if not pre:
        p.stream.insert(mark + CFG['ML_AT_M' if cls == 'M' else 'ML_AT'], ml[0])

    p.W = CFG['W_PRE'] if pre == 'mod' else CFG['W_PREQ'] if pre else CFG['W_INIT']
    while p.can_pump() and len(p.vm) < p.W and p.stream[0][0] not in ('CNTA', 'K0'):
        p.pump(1)
    p.stamp('first')
    common_setup2(p)
    k_setup(p)
    arrive(p, {'mod': [128, 0], 'q': [0], None: []}[pre])
    p.W = Wattn if pre else CFG['W_LOW']
    if CFG['PRIO'] == 'all':
        prio_young(p, 1)
    if not pre:
        k_trans(p, 0)
        p.stamp('k0')
    if pre == 'mod':
        p.need('ACT')
        silu_to_xa(p, 16, list(range(20, 28)), 12)
        p.need('WA0')
        p.perm_chunk(64, 32)
        p.need('WA1')
        p.stamp('w_landed')
        p.perm_chunk(96, 64)
        narrow_gemv(p, 32, 64, 96, 112, [12, 13, 14], (S_OUT, 2048))
        p.release('pre')
        p.stamp('pre_done')
    if pre == 'q':
        p.need('ACT')
        X = list(range(40, 48))
        for d in range(4):
            p.unpack(16 + d, X[2 * d], X[2 * d + 1])
        layernorm(p, X, list(range(48, 60)), True)
        for d in range(4):
            p.e(f'v_cvt_pk_bf16_f32 v{16 + d}, v{X[2 * d]}, v{X[2 * d + 1]}')
        p.need('WA0')
        p.perm_chunk(64, 32)
        p.need('WA1')
        p.stamp('w_landed')
        p.perm_chunk(96, 64)
        check_cnt(p, 14, 'CNTA', 128, 32)
    for t in range(0 if pre else 1, 8):
        if not pre and t == CFG[dict(M='T_LOW_M', R='T_LOW_R').get(cls, 'T_LOW')]:
            p.W = Wattn
        if t == CFG['XAT'] and cls in CFG['XCLS'].split('+'):
            p.slow = CFG['XSLOW']
        k_trans(p, t)
        if not pre and t == 1:
            count_b(p)
        if pre == 'q' and t == CFG['SC_AT'] - 1:
            p.need('SC')
            p.stamp('sc_landed')
            p.check_retry(lambda: sc_issue(False), list(range(24, 32)), 12)
            p.stamp('sc_ok')
            X = list(range(96, 104))
            for d in range(4):
                p.unpack(16 + d, X[2 * d], X[2 * d + 1])
            one_plus(p, [28, 29, 30, 31], [104, 105])
            modulate(p, X, [28, 29, 30, 31], [24, 25, 26, 27], [104, 105], [16, 17, 18, 19])
            xa_base(p, S_T0)
            p.lane(12, XA_TERMS, sadd=S_T0, tmp=13)
            p.e('ds_write_b64 v12, v[16:17]\nds_write_b64 v12, v[18:19] offset:512')
            narrow_gemv(p, 32, 64, 96, 112, [12, 13, 14], (S_OUT, 8192))
            p.release('pre')
            p.stamp('pre_done')
        if pre and t == 6:
            check_cnt(p, 10)
    role_setup()
    p.stamp('k_done')
    if not pre:
        check_cnt(p, 10)
    if CFG['PRIO'] in ('qk', 'qk+'):
        prio_young(p, 1)
    qk_softmax(p, 11)
    if CFG['PRIO'] == 'qk':
        p.e('s_setprio 0')
    p.release('sm')
    pv_chunk(p, 0, 160)
    p.release('pv0')
    if stage:
        v_from_lds(p, 2, 10)
    pv_chunk(p, 1, 64)
    p.release('pv1')
    if stage:
        p.e('s_waitcnt lgkmcnt(0)')
    if CFG['W_END'] and pre:
        p.W = max(p.W, CFG['W_END'])
    pv_chunk(p, 2, 64)
    p.stamp('v2')
    if pre:
        ml_scale(p)
        p.stamp('ml_ok')
    pv_chunk(p, 3, 64)
    p.release('pv3')
    p.stamp('pv_done')
    if cls == 'R':
        p.need('ACT2')
        silu_to_xa(p, 96, list(range(100, 108)), 10)
    if not pre:
        ml_scale(p)
        p.stamp('ml_ok')
        p.burst(CFG['E_BURST'])
    attn_epilogue(p)
    p.release('ost')
    if cls == 'M':
        p.W = max(p.W, CFG['W_POST'])
    if cls == 'PR':
        p.W = CFG['W_POSTP']
    if cls == 'O':
        p.need('WO0')
        p.perm_chunk(192, O_F, fs=8)
        while p.can_pump():
            p.pump(1)
        o_setup(p, S_COL, S_OUT)
        if CFG['EARLY3']:
            p.poll_first(E3_OFFS, S_U + 7, 13, O_E3)
        p.need('WO1')
        p.perm_chunk(224, O_F + 4, fs=8)
        p.stamp('w_ready')
        p.e('L_otail:')
        o_tail(p, S_OUT)
    if cls == 'PR':
        p.need('ACT2')
        silu_to_xa(p, 96, list(range(100, 108)), 10)
        p.perm_chunk(192, 32)
        p.need('WB1')
        p.perm_chunk(224, 64)
        narrow_gemv(p, 32, 64, 96, 112, [12, 13, 14], (S_OUT2, 2048))
        p.stamp('post_done')
    if cls == 'R':
        p.need('WB0')
        while p.can_pump():
            p.pump(1)
        quarter_loads(p, S_COL)
        p.perm_chunk(192, 32)
        p.need('WB1')
        p.perm_chunk(224, 64)
        narrow_gemv(p, 32, 64, 96, 112, [12, 13, 14], (S_OUT2, 2048), before_barrier=lambda: quarter_compute(p),
                    upper=lambda: quarter_final(p, S_OUT))
        p.stamp('q_done')
    if cls == 'M':
        m_tail(p, S_COL, S_OUT)
    if cls in ('Q', 'R', 'P') and CFG['H6']:
        h6_prefetch(p, cls)
    if cls in ('Q', 'R', 'P') and CFG['H5']:
        h5_prefetch(p, cls)
    assert not p.stream, [t[0] for t in p.stream]
    finish(p)
    return p


O_SEL, O_E3, O_B, O_F = 16, 64, 24, 96
E3_OFFS = [(t >> 2) * 2 * 4 * 16 * 2048 + (t & 3) * 4 * 2048 for t in range(8)]
RED_W = [(4, 2, 512), (0, 4, 32)]


def o_setup(p, S_KS, S_OUT):
    selectors(p, O_SEL, 10)
    p.lane(13, [(3, 1, 4 * 16 * 2048), (4, 2, 2048), (0, 3, 16)], tmp=10)
    p.e(f's_lshr_b32 s{S_T0}, s{S_KS}, 1\ns_lshl_b32 s{S_T0}, s{S_T0}, 15\ns_and_b32 s{S_T1}, s{S_KS}, 1\ns_lshl_b32 s{S_T1}, s{S_T1}, 10')
    p.e(f's_add_u32 s{S_T0}, s{S_T0}, s{S_T1}\ns_lshl_b32 s{S_T1}, s{S_WV}, 7\ns_add_u32 s{S_T0}, s{S_T0}, s{S_T1}\ns_add_u32 s{S_U + 7}, s{S_T0}, {WS_OP}')
    xa_base(p, S_T0)
    p.lane(14, [(5, 1, 256), (3, 1, 128), (0, 3, 8), (4, 1, 4)], sadd=S_T0, tmp=10)
    sp_addrs(p, O_B, 128, S_T0, 0, 10, O_B + 2)
    p.e(f's_lshl_b32 s{S_T0}, s{S_WV}, 11\ns_add_u32 s{S_T0}, s{S_T0}, {L_RED}')
    p.lane(15, RED_W, sadd=S_T0, tmp=10)
    p.e(f's_lshl_b32 s{S_T0}, s{S_WV}, 9\ns_add_u32 s{S_T0}, s{S_T0}, {L_RED}')
    p.lane(O_B + 4, [(0, 6, 8)], sadd=S_T0)
    p.e(f's_lshl_b32 s{S_T0}, s{S_WV}, 11\ns_add_u32 s{S_OUT}, s{S_OUT}, s{S_T0}')
    for k in range(20):
        p.e(f'v_mov_b32 v{32 + k}, 0')


def o_tail(p, S_OUT):
    ACC, D, OUT, A = 32, 48, 52, 160
    p.waitn(0)
    p.poll_rr(E3_OFFS, S_U + 7, 13, O_E3, 10,
              lambda t, r: p.e(f'v_mfma_f32_16x16x32_bf16 {vr(D)}, {vr(O_SEL + 4 * (t >> 2))}, {vr(r)}, {vr(D)}'), CFG['EARLY3'], CFG['SL3'])
    p.stamp('e3_ok')
    p.e(f'v_cvt_pk_bf16_f32 v{D}, v{D}, v{D + 1}\nv_cvt_pk_bf16_f32 v{D + 1}, v{D + 2}, v{D + 3}')
    p.e(f'ds_write2_b32 v14, v{D}, v{D + 1} offset0:0 offset1:16')
    p.e(f'ds_read_b128 {vr(A)}, v{O_B}\nds_read_b128 {vr(A + 4)}, v{O_B + 1}\ns_waitcnt lgkmcnt(0)')
    p.stamp('o1')
    sp_gemv(p, O_F, A, ACC, O_B + 2)
    sp_fold(p, ACC, OUT)
    p.e(f'ds_write_b128 v15, {vr(OUT)}\nds_write_b128 v15, {vr(OUT + 4)} offset:16')
    sk = p.lab('ofin')
    p.stamp('o2')
    p.e(f's_waitcnt lgkmcnt(0)\ns_barrier')
    p.stamp('o3')
    p.e(f's_cmp_ge_u32 s{S_WV}, 4\ns_cbranch_scc1 {sk}')
    B = 168
    for k in range(4):
        p.e(f'ds_read2st64_b64 {vr(B + 4 * k)}, v{O_B + 4} offset0:{8 * k} offset1:{8 * k + 4}')
    p.e('s_waitcnt lgkmcnt(0)')
    p.tree(B, (8, 4, 2))
    p.e(f'v_cvt_pk_bf16_f32 v{B + 4}, v{B}, v{B + 1}')
    quad_pack_store(p, B + 4, 9, S_OUT)
    p.e(f'{sk}:')
    p.stamp('a_stored')


CB_OFFS = [WS_CBP - 2048 + 8192 * kq + 4096 * q for kq in range(4) for q in range(2)]


def m_mod_issue(p, first):
    if first:
        p.lane(112, AL_TERMS, tmp=2)
        p.lane(113, [(5, 1, 2048), (0, 4, 32), (4, 1, 16)], tmp=2)
        p.e(f's_lshl_b32 s{S_U + 6}, s{S_WV}, 8\ns_lshl_b32 s{S_U + 5}, s{S_WV}, 9')
        for k in range(104, 108):
            p.e(f'v_mov_b32 v{k}, 0')
        push_al_loads(p, None, SRD_A, 96, 112, S_U + 6)(False)
    hi, jn = p.lab('cbhi'), p.lab('cbj')
    p.e(f's_cmp_ge_u32 s{S_WV}, 4\ns_cbranch_scc1 {hi}')
    for q in range(2):
        p.e(f's_add_u32 s{S_T3}, s{S_U + 6}, {WS_MOD + 4 * 8192 + 4096 * q}')
        p.e(f'buffer_load_dwordx2 {vr(104 + 2 * q, 2)}, v112, {sr(SRD_WS, 4)}, s{S_T3} offen sc1')
    if first:
        p.e(f's_branch {jn}\n{hi}:')
        for t, off in enumerate(CB_OFFS):
            p.e(f's_add_u32 s{S_T3}, s{S_U + 5}, {off}')
            p.e(f'buffer_load_dwordx4 {vr(160 + 4 * t)}, v113, {sr(SRD_WS, 4)}, s{S_T3} offen sc1')
        p.e(f'{jn}:')
    else:
        p.e(f'{hi}:')
    for k, chunk in ((0, 2), (2, 3)):
        for q in range(2):
            p.e(f's_add_u32 s{S_T3}, s{S_U + 6}, {WS_MOD + chunk * 8192 + 4096 * q}')
            s = f'buffer_load_dwordx2 {vr(100 + 4 * k + 2 * q, 2)}, v112, {sr(SRD_WS, 4)}, s{S_T3} offen sc1'
            p.vmem(s, 'MOD') if first else p.e(s)


def m_tail(p, S_MI, S_OUT):
    raw = [192, 224, 96, 128]
    F = [32, 36, 192, 196]
    F0, F1 = 32, 192

    def w2_issue(a, b):
        for t, f, _ in p.w2late[a:b]:
            f(t)
    SP, SEL, D = 160, 16, 24
    IDX, A0 = 4, 5
    p.fill()
    for u in (0, 1, 2):
        p.need(f'WM{u}')
        p.stamp(f'wm{u}')
        p.perm_chunk(raw[u], F[u], fs=8)
    p.release('p2')
    while p.can_pump():
        p.pump(1)
    if CFG['E4KS']:
        selectors_b(p, SEL, 2)
        p.lane(11, [(4, 2, 2048), (0, 4, 16)], tmp=2)
    else:
        selectors(p, SEL, 2)
        p.lane(11, [(4, 2, 8192), (0, 4, 16)], tmp=2)
    p.e(f's_add_u32 s{S_U + 7}, s{S_U + 6}, {WS_AP}')
    xa_base(p, S_T0)
    sp_addrs(p, A0, 256, S_T0, 0, 2, IDX)
    VX1 = 12
    l3 = CFG['LATE3']
    E4R = p.w2raw[1]

    def late_addrs():
        xa_base(p, S_T0)
        p.lane(13, [(5, 1, 256), (0, 4, 8), (4, 1, 4)], sadd=S_T0, tmp=2)
        p.e(f's_add_u32 s{S_T0}, s{S_U + 6}, {L_X1}')
        p.lane(VX1, AL_TERMS, sadd=S_T0, tmp=2)

    def perm3():
        p.need('WM3')
        p.stamp('wm3')
        p.perm_chunk(raw[3], F[3], fs=8)
    p.e(f's_lshl_b32 s{S_T0}, s{S_WV}, 11\ns_add_u32 s{S_T0}, s{S_T0}, {L_RED}')
    p.lane(15, RED_W, sadd=S_T0, tmp=2)
    p.e(f's_lshr_b32 s{S_T0}, s{S_WV}, 1\ns_lshl_b32 s{S_T0}, s{S_T0}, 9\ns_and_b32 s{S_T1}, s{S_WV}, 1\ns_lshl_b32 s{S_T2}, s{S_T1}, 7')
    p.e(f's_add_u32 s{S_T2}, s{S_T2}, s{S_T0}\ns_add_u32 s{S_T2}, s{S_T2}, {L_RED}')
    p.lane(8, [(5, 1, 256), (0, 5, 4)], sadd=S_T2, tmp=2)
    p.e(f's_lshr_b32 s{S_T0}, s{S_T0}, 2\ns_lshl_b32 s{S_T1}, s{S_T1}, 5\ns_add_u32 s{S_T0}, s{S_T0}, s{S_T1}\ns_add_u32 s{S_T0}, s{S_T0}, {L_X2}')
    p.lane(9, [(1, 1, 64), (2, 3, 4), (0, 1, 2)], sadd=S_T0, tmp=2)
    p.lane(7, [(2, 2, 256), (4, 2, 64), (0, 2, 16)], tmp=2)
    p.e(f's_lshl_b32 s{S_T0}, s{S_WV}, 5\ns_add_u32 s{S_T0}, s{S_T0}, {L_STATS}')
    p.lane(10, [(5, 1, 8)], sadd=S_T0)
    p.lane(3, [(0, 3, 32), (5, 1, 8)], const=L_STATS, tmp=2)
    offs = [t * 8192 if CFG['E4KS'] else (t & 1) * 4 * 8192 + (t >> 1) * 2048 for t in range(8)]
    if not l3:
        perm3()
        p.poll_first(offs, S_U + 7, 11, E4R)
        late_addrs()
    for k in range(8):
        p.e(f'v_mov_b32 v{D + k}, 0')
    p.need('MOD')
    p.stamp('mod_landed')
    def packed(chunk, reg):
        txt = '\n'.join(f's_add_u32 s{S_T3}, s{S_U + 6}, {WS_MOD + chunk * 8192 + 4096 * q}\n'
                        f'buffer_load_dwordx2 {vr(reg + 2 * q, 2)}, v112, {sr(SRD_WS, 4)}, s{S_T3} offen sc1' for q in range(2))
        return (txt, list(range(reg, reg + 4)))

    def partial(kq):
        txt = '\n'.join(f's_add_u32 s{S_T3}, s{S_U + 5}, {CB_OFFS[2 * kq + q]}\n'
                        f'buffer_load_dwordx4 {vr(160 + 8 * kq + 4 * q)}, v113, {sr(SRD_WS, 4)}, s{S_T3} offen sc1' for q in range(2))
        return (txt, list(range(160 + 8 * kq, 168 + 8 * kq)))
    hi, jn = p.lab('mhi'), p.lab('mjn')
    p.e(f's_cmp_ge_u32 s{S_WV}, 4\ns_cbranch_scc1 {hi}')
    p.poll_items([packed(2, 100), packed(4, 104), packed(3, 108)], 2)
    p.e(f's_branch {jn}\n{hi}:')
    p.poll_items([packed(2, 100), packed(3, 108)] + [partial(k) for k in range(4)], 2)
    p.e(f'{jn}:')
    if l3 == 2:
        p.release('modok')
        p.burst(8)
    sk = p.lab('cbs')
    p.e(f's_cmp_lt_u32 s{S_WV}, 4\ns_cbranch_scc1 {sk}')
    for k in range(16):
        p.e(f'v_add_f32 v{160 + k}, v{160 + k}, v{176 + k}')
    for k in range(8):
        p.e(f'v_add_f32 v{160 + k}, v{160 + k}, v{168 + k}')
    for d in range(4):
        p.e(f'v_cvt_pk_bf16_f32 v{104 + d}, v{160 + 2 * d}, v{161 + 2 * d}')
    p.e(f'{sk}:')
    p.e('L_mtail:')
    one_plus(p, list(range(104, 108)), [2, 114])
    for k, dst in enumerate((SP, SP + 16, SP + 8, SP + 24)):
        for d in range(4):
            p.unpack(96 + 4 * k + d, dst + 2 * d, dst + 2 * d + 1)
    if l3:
        p.poll_first(offs, S_U + 7, 11, E4R)
        late_addrs()
        perm3()
    p.stamp('w_ready')
    k0 = CFG['W2PRE']
    w2_issue(0, k0)
    p.wait('poll')
    keep = list(p.vm)

    def acc4(t, r):
        if CFG['E4KS']:
            for q in range(2):
                p.e(f'v_mfma_f32_16x16x32_bf16 {vr(D + 4 * q)}, {vr(SEL + 4 * q)}, {vr(r)}, {vr(D + 4 * q)}')
        else:
            p.e(f'v_mfma_f32_16x16x32_bf16 {vr(D + 4 * (t >> 2))}, {vr(SEL + 4 * ((t >> 1) & 1))}, {vr(r)}, {vr(D + 4 * (t >> 2))}')
    p.poll_rr(offs, S_U + 7, 11, E4R, 2, acc4, True, CFG['SL4'])
    p.vm = keep
    p.stamp('e4_ok')
    X = list(range(D, D + 8))
    w2_issue(k0, k0 + 4)
    for k in range(0, 8, 2):
        p.e(f'v_pk_fma_f32 {vr(SP + k, 2)}, {vr(X[k], 2)}, {vr(SP + 16 + k, 2)}, {vr(SP + k, 2)}')
    PK = SP + 16
    for d in range(4):
        p.e(f'v_cvt_pk_bf16_f32 v{PK + d}, v{SP + 2 * d}, v{SP + 2 * d + 1}')
    for d in range(4):
        p.unpack(PK + d, X[2 * d], X[2 * d + 1])
    p.e(f'ds_write_b64 v{VX1}, {vr(PK, 2)}\nds_write_b64 v{VX1}, {vr(PK + 2, 2)} offset:4096')
    for q in range(2):
        x = X[4 * q:4 * q + 4]
        p.e(f'v_add_f32 v{SP + 2 * q}, v{x[0]}, v{x[1]}\nv_mul_f32 v{SP + 2 * q + 1}, v{x[0]}, v{x[0]}\nv_add_f32 v{SP + 4 + q}, v{x[2]}, v{x[3]}')
    for r in (1, 2, 3):
        for q in range(2):
            p.e(f'v_fmac_f32 v{SP + 2 * q + 1}, v{X[4 * q + r]}, v{X[4 * q + r]}')
    p.e(f'v_add_f32 v{SP}, v{SP}, v{SP + 4}\nv_add_f32 v{SP + 2}, v{SP + 2}, v{SP + 5}')
    R4 = [SP, SP + 2, SP + 1, SP + 3]
    p.rowsum(R4, (8, 4, 2, 1))
    p.swapred('v_add_f32', 16, R4, [SP + 4, SP + 5, SP + 6, SP + 7])
    p.stamp('t1')
    p.exec_set(0x0000000100000001)
    p.e(f'ds_write_b64 v10, {vr(SP, 2)}\nds_write_b64 v10, {vr(SP + 2, 2)} offset:16')
    p.exec_all()
    for k in range(0, 8, 2):
        p.e(f'v_pk_mul_f32 {vr(X[k], 2)}, {vr(X[k], 2)}, {vr(SP + 8 + k, 2)}')
    p.e('s_waitcnt lgkmcnt(0)\ns_barrier')
    p.e(f'ds_read_b64 {vr(SP, 2)}, v3\nds_read_b64 {vr(SP + 2, 2)}, v3 offset:16')
    w2_issue(k0 + 4, k0 + 8)
    p.e('s_waitcnt lgkmcnt(0)')
    p.stamp('t2')
    p.rowsum(R4, (4, 2, 1))
    for q in range(2):
        p.e(f'v_mul_f32 v{SP + 2 * q}, 0x3a800000, v{SP + 2 * q}\nv_mul_f32 v{SP + 2 * q + 1}, 0x3a800000, v{SP + 2 * q + 1}')
    for q in range(2):
        p.e(f'v_fma_f32 v{SP + 2 * q + 1}, -v{SP + 2 * q}, v{SP + 2 * q}, v{SP + 2 * q + 1}')
    for q in range(2):
        p.e(f'v_max_f32 v{SP + 2 * q + 1}, 0, v{SP + 2 * q + 1}')
    for q in range(2):
        p.e(f'v_add_f32 v{SP + 2 * q + 1}, 0x3727c5ac, v{SP + 2 * q + 1}')
    for q in range(2):
        p.e(f'v_rsq_f32 v{SP + 2 * q + 1}, v{SP + 2 * q + 1}')
    for k in range(0, 8, 2):
        p.e(f'v_pk_fma_f32 {vr(X[k], 2)}, {vr(SP + 8 + k, 2)}, {vr(SP + 2 * (k >> 2), 2)}, {vr(X[k], 2)} op_sel:[0,0,0] op_sel_hi:[1,0,1] neg_lo:[0,1,0] neg_hi:[0,1,0]')
    for k in range(0, 8, 2):
        p.e(f'v_pk_fma_f32 {vr(SP + 24 + k, 2)}, {vr(X[k], 2)}, {vr(SP + 2 * (k >> 2), 2)}, {vr(SP + 24 + k, 2)} op_sel:[0,1,0] op_sel_hi:[1,1,1]')
    for d in range(4):
        p.e(f'v_cvt_pk_bf16_f32 v{SP + d}, v{SP + 24 + 2 * d}, v{SP + 24 + 2 * d + 1}')
    p.e(f'ds_write2_b32 v13, v{SP}, v{SP + 1} offset0:0 offset1:32\nds_write2_b32 v13, v{SP + 2}, v{SP + 3} offset0:128 offset1:160')
    p.stamp('h2')
    A, ACC, OUT = SP, SP + 16, D
    for pi in range(2):
        p.e(f'ds_read_b128 {vr(A + 8 * pi)}, v{A0} offset:{64 * pi}\nds_read_b128 {vr(A + 8 * pi + 4)}, v{A0 + 1} offset:{64 * pi}')
    for k in range(16):
        p.e(f'v_mov_b32 v{ACC + k}, 0')
    GB, X1 = 232, 236

    def misc():
        p.lane(10, [(2, 2, 2048), (0, 2, 16), (4, 1, 8)], tmp=3)
        p.e(f's_lshl_b32 s{S_U + 6}, s{S_MI}, 6\ns_add_u32 s{S_T2}, s{S_U + 6}, {WS_MOD + 5 * 8192}')
        sp_addrs(p, A0, 128, None, L_X2, 2)
    p.e('s_waitcnt lgkmcnt(2)')
    interleave(p, lines_of(p, lambda: sp_gemv(p, F0, A, ACC, IDX)), lines_of(p, misc), 3)
    w2_issue(k0 + 8, 16)
    p.e('s_waitcnt lgkmcnt(0)')
    p.wait('WM4')
    interleave(p, lines_of(p, lambda: sp_gemv(p, F1, A + 8, ACC, IDX)), lines_of(p, lambda: p.perm_chunk(p.w2raw[0], F0, fs=8)), 4)
    sp_fold(p, ACC, OUT)
    p.e(f'ds_write_b128 v15, {vr(OUT)}\nds_write_b128 v15, {vr(OUT + 4)} offset:16')
    p.stamp('t3')
    for k in range(16):
        p.e(f'v_mov_b32 v{ACC + k}, 0')
    p.e('s_waitcnt lgkmcnt(0)\ns_barrier')
    p.stamp('t5')
    G = 224
    for k in range(4):
        p.e(f'ds_read2st64_b32 {vr(G + 2 * k, 2)}, v8 offset0:{16 * k} offset1:{16 * k + 8}')
    p.wait('WM5')
    p.stamp('wm5')

    def gb_issue():
        p.e(f'buffer_load_dwordx2 {vr(GB, 2)}, v10, {sr(SRD_WS, 4)}, s{S_T2} offen sc1')
    perm5 = lines_of(p, lambda: p.perm_chunk(p.w2raw[1], F0 + 4, fs=8))
    p.L += perm5[:20]
    p.e('s_waitcnt lgkmcnt(0)')
    p.tree(G, (4, 2, 1))
    chain = f"""v_cvt_pk_bf16_f32 v{G}, v{G}, v{G}
    v_and_b32 v{G}, 0xffff0000, v{G}
    v_mov_b32 v{G + 1}, v{G}
    @
    @
    v_permlane32_swap_b32 v{G}, v{G + 1}
    v_mul_f32 v{G + 2}, {hex(LOG2E | 0x80000000)}, v{G}
    v_exp_f32 v{G + 2}, v{G + 2}
    @
    v_add_f32 v{G + 2}, 1.0, v{G + 2}
    v_rcp_f32 v{G + 2}, v{G + 2}
    @
    v_mul_f32 v{G}, v{G}, v{G + 2}
    v_mul_f32 v{G}, v{G}, v{G + 1}
    v_cvt_pk_bf16_f32 v{G}, v{G}, v{G}"""
    rest = perm5[20:]
    for ln in chain.split('\n'):
        p.e(rest.pop(0) if ln.strip() == '@' else ln)
    p.exec_set(0xffffffff)
    p.e(f'ds_write_b16 v9, v{G}')
    p.exec_all()
    p.stamp('t6')
    p.L += rest
    sk = p.lab('gb')
    p.e(f's_cmp_lg_u32 s{S_WV}, 0\ns_cbranch_scc1 {sk}\ns_cmp_ge_u32 s{S_MI}, 32\ns_cbranch_scc1 {sk}')
    gb_issue()
    p.e(f'{sk}:')
    p.e('s_waitcnt lgkmcnt(0)\ns_barrier')
    p.stamp('t7')
    p.e(f'ds_read_b128 {vr(A)}, v{A0}\nds_read_b128 {vr(A + 4)}, v{A0 + 1}\ns_waitcnt lgkmcnt(0)')
    sp_gemv(p, F0, A, ACC, IDX)
    sp_fold(p, ACC, OUT)
    for d in range(4):
        p.e(f'v_cvt_pk_bf16_f32 v{G + d}, v{OUT + 2 * d}, v{OUT + 2 * d + 1}')
    p.e(f'buffer_store_dwordx4 {vr(G)}, v7, {sr(SRD_WS, 4)}, s{S_OUT} offen sc1')
    p.stamp('f_stored')
    end = p.lab('mend')
    multi = CFG['E5W'] > 1
    p.e(f's_cmp_ge_u32 s{S_MI}, 32\ns_cbranch_scc1 {end}')
    if not multi:
        p.e(f's_cmp_lg_u32 s{S_WV}, 0\ns_cbranch_scc1 {end}')
    p.lane(11, [(4, 2, 8192), (0, 4, 16)], tmp=3)
    p.e(f's_lshl_b32 s{S_U + 7}, s{S_MI}, 8\ns_add_u32 s{S_U + 7}, s{S_U + 7}, {WS_FP}')
    for k in range(4):
        p.e(f'v_mov_b32 v{D + k}, 0')

    def consts():
        p.srd(SRD_A, P_OUT, 8192)
        p.e(f'v_add_u32 v2, s{S_U + 6}, v10\nds_read_b64 {vr(X1 + 4, 2)}, v2 offset:{L_X1}\ns_waitcnt vmcnt(1) lgkmcnt(0)')
        p.check_retry(gb_issue, [GB, GB + 1], 3)
        p.unpack(GB + 1, GB + 2, GB + 3)
        p.unpack(GB, 4, GB + 1)
        p.e(f'v_mov_b32 v{GB}, v4')
        p.unpack(X1 + 4, X1, X1 + 1)
        p.unpack(X1 + 5, X1 + 2, X1 + 3)
    acc5 = lambda t, r: p.e(f'v_mfma_f32_16x16x32_bf16 {vr(D)}, {vr(SEL)}, {vr(r)}, {vr(D)}')
    if not multi:
        consts()
        p.stamp('t8')
        p.poll_pipe([t * 4 * 8192 for t in range(14)], S_U + 7, 11, (64, 120), 3, acc5, CFG['P5'])
        p.stamp('e5_ok')
    else:
        w0, jn = p.lab('w0'), p.lab('jn')
        p.e(f's_cmp_eq_u32 s{S_WV}, 0\ns_cbranch_scc1 {w0}')
        p.e(f's_lshl_b32 s{S_T0}, s{S_WV}, 16\ns_add_u32 s{S_U + 7}, s{S_U + 7}, s{S_T0}\ns_sub_u32 s{S_U + 7}, s{S_U + 7}, 65536')
        p.e(f's_lshl_b32 s{S_T0}, s{S_WV}, 10\nv_add_u32 v4, s{S_T0}, v0')
        p.poll_first([0, 4 * 8192], S_U + 7, 11, 64)
        if CFG['E4KS']:
            selectors(p, SEL, 2, 4)
        p.e('s_waitcnt vmcnt(0)')
        p.poll_rr([0, 4 * 8192], S_U + 7, 11, 64, 3, acc5, True)
        p.e(f'ds_write_b128 v4, {vr(D)}\ns_waitcnt lgkmcnt(0)\ns_branch {jn}\n{w0}:')
        consts()
        p.stamp('t8')
        p.e(f'{jn}:\ns_barrier\ns_cmp_lg_u32 s{S_WV}, 0\ns_cbranch_scc1 {end}')
        for k in range(7):
            p.e(f'ds_read_b128 {vr(64 + 4 * k)}, v0 offset:{1024 + 1024 * k}')
        p.stamp('e5_ok')
        p.e('s_waitcnt lgkmcnt(0)')
        for a_, b_ in ((64, 80), (68, 84), (72, 88), (68, 76), (64, 72)):
            for r in (0, 2):
                p.e(f'v_pk_add_f32 {vr(a_ + r, 2)}, {vr(a_ + r, 2)}, {vr(b_ + r, 2)}')
        for r in (0, 2):
            p.e(f'v_pk_add_f32 {vr(D + r, 2)}, {vr(64 + r, 2)}, {vr(68 + r, 2)}')
    for r in (0, 2):
        p.e(f'v_pk_fma_f32 {vr(D + r, 2)}, {vr(D + r, 2)}, {vr(GB + r, 2)}, {vr(X1 + r, 2)}')
    p.e(f'v_cvt_pk_bf16_f32 v{D}, v{D}, v{D + 1}\nv_cvt_pk_bf16_f32 v{D + 1}, v{D + 2}, v{D + 3}')
    p.exec_set(0xffffffff)
    p.e(f'buffer_store_dwordx2 {vr(D, 2)}, v2, {sr(SRD_A, 4)}, 0 offen')
    p.exec_all()
    p.e(f'{end}:')


def generate():
    hdr = open('cdna_kernels/' + NAME + '.s.ref').read().split('\n')
    out = [l for l in hdr if l.startswith(';') and '@launch' not in l]
    out.append(f'; @launch grid=(256,1,1) block=(512,1,1) lds={L_TOTAL}')
    out += ['.amdgcn_target "amdgcn-amd-amdhsa--gfx950"', '.text', f'.globl {NAME}_kernel', '.p2align 8',
            f'.type {NAME}_kernel,@function', f'{NAME}_kernel:']
    e = Prog('E')
    entry(e)
    body = list(e.L)
    names = {}
    for cls in ('O', 'M', 'Q', 'P', 'PR', 'R'):
        p = build_class(cls, e)
        body.append('.p2align 6')
        body += p.L
        names[cls] = p.stamp_names
    body += ['L_end:', 's_endpgm']
    out += pad_hazards(body)
    out += ['.fill 64, 4, 0xbf800000', '.p2align 8', 'L_code_end:']
    out += ['.section .rodata,"a"', '.p2align 6', f'.amdhsa_kernel {NAME}_kernel',
            '  .amdhsa_next_free_vgpr 256', '  .amdhsa_next_free_sgpr 102', '  .amdhsa_accum_offset 256',
            '  .amdhsa_group_segment_fixed_size 0', '  .amdhsa_kernarg_size 112', '  .amdhsa_user_sgpr_count 2',
            '  .amdhsa_user_sgpr_kernarg_segment_ptr 1', '  .amdhsa_system_sgpr_workgroup_id_x 1',
            '  .amdhsa_float_denorm_mode_32 3', '.end_amdhsa_kernel']
    return '\n'.join(out) + '\n', names


if __name__ == '__main__':
    path = sys.argv[1]
    for kv in sys.argv[2:]:
        k, v = kv.split('=')
        CFG[k] = eval(v)
    txt, names = generate()
    open(path, 'w').write(txt)
    import json
    json.dump(names, open(path + '.stamps.json', 'w'))
```

```python
import sys
from collections import deque
from asmlib import pad_hazards

NAME = 'adaLN_cond__gqa_block_cached__glu_gated_swiglu__decode'

CFG = dict(
    W=4,
    W_O=4, W_M=6, W_R=5, W_Q=4, W_P=4, W_PR=4,
    C3O=0, C3Q='', C3W1='M', C3W3='O', C3MOD='O', T_LOW_R=2,
    W_PRE=24, W_PREQ=8, W_INIT=5, W_LOW=2, T_LOW=2, T_LOW_M=2,
    W_POST=6, W_POSTP=4, H5W=1, W_END=8,
    SC_AT=3, Q_AT=12, BURST=5, E_BURST=2, P_EARLY=0, MOD_AT=0, P5='rr', E5W=7, STAGE=7, SL3=0, SL4=0, EARLY3=True, W2PRE=4, XCLS='O+Q+P+PR+R', PRIO='qk', QLIN=True, LATE3=0, E4KS=True, GATE=False, GATE_MISS=0, TOUCH=False, P_HOLD=1, Q_BURST=0, XAT=4, XSLOW=0, XW=2, H5X=True, H6=(), ML_AT=12, ML_AT_M=12, C3H=False,
    HP3=True, C3=True, H5=2, REWARM=False,
    STAMPS=False, DBGOUT=False,
    SPIN=1 << 18,
)

WS_MOD = 0x00000
WS_CBP = 0x18000
WS_Q = 0x10000
WS_ML = 0x20000
WS_AP = 0x30000
WS_OP = 0x40000
WS_FP = 0xC0000
WS_STAMP = 0x200000
WS_BYTES = 268435456

L_KT = 0
L_OPART = 0
L_XA = 40960
L_ZERO = 49152
L_MLW = 49664
L_CNT = 50176
L_STATS = 50432
L_X2 = 50688
L_FINB = 51200
L_X1 = 52224
L_RED = 60416
L_RED2 = 83968
L_STASH = 83968
L_TOTAL = 149504

CLASS_RANGES = dict(O=(0, 64), M=(64, 120), Q=(120, 184), P=(184, 200), PR=(200, 216), R=(216, 256))


def vr(a, n=4):
    return f'v[{a}:{a + n - 1}]' if n > 1 else f'v{a}'


def sr(a, n=2):
    return f's[{a}:{a + n - 1}]' if n > 1 else f's{a}'


S_WV, S_W8, S_ROT, S_KV = 3, 4, 6, 7
SRD_K, SRD_V, SRD_WS, SRD_W, SRD_A, SRD_D = 8, 12, 16, 20, 24, 28
P_X, P_K, P_V, P_WQ, P_WO, P_W1, P_W3, P_W2, P_C, P_WMOD, P_OUT, P_DBG, P_WS = 32, 34, 36, 38, 40, 44, 46, 48, 50, 52, 54, 56, 58
S_T0, S_T1, S_T2, S_T3 = 60, 61, 62, 63
S_PLO, S_PHI = 64, 65
S_MASK = 66
S_SAVE = 68
S_SPIN = 70
S_VALID = 71
S_U = 72
S_STG = 42
S_C64 = 80
S_C64B = 82
S_STAMP = 84


class Prog:
    def __init__(self, name):
        self.name = name
        self.L = []
        self.vm = []
        self.stream = deque()
        self.released = set()
        self.W = CFG['W']
        self.nlab = 0
        self.slow = 0
        self.nstamp = 0
        self.stamp_names = []

    def e(self, s):
        for line in s.split('\n'):
            line = line.strip()
            if line:
                self.L.append(line)

    def lab(self, base):
        self.nlab += 1
        return f'L_{self.name}_{base}{self.nlab}'

    def vmem(self, s, tag):
        self.e(s)
        self.vm.append(tag)
        assert len(self.vm) <= 56, 'too many outstanding'

    def waitn(self, n):
        if len(self.vm) > n:
            self.e(f's_waitcnt vmcnt({n})')
            self.vm = self.vm[len(self.vm) - n:] if n else []

    def wait(self, tag):
        if tag in self.vm:
            idx = len(self.vm) - 1 - self.vm[::-1].index(tag)
            self.waitn(len(self.vm) - 1 - idx)

    def push(self, tag, fn, need=None):
        self.stream.append((tag, fn, need))

    def can_pump(self):
        return self.stream and (self.stream[0][2] is None or self.stream[0][2] in self.released)

    def pump(self, k=1):
        for _ in range(k):
            if not self.can_pump():
                return
            tag, fn, _n = self.stream.popleft()
            self.waitn(self.W - 1)
            if self.slow > 0:
                self.slow -= 1
                self.waitn(CFG['XW'] - 1)
            fn(tag)

    def fill(self):
        while self.can_pump() and len(self.vm) < self.W:
            self.pump(1)

    def burst(self, k):
        self.W += k
        self.fill()
        self.W -= k

    def need(self, tag):
        while any(t[0] == tag for t in self.stream):
            assert self.can_pump(), f'{self.name}: stream blocked before {tag} at {self.stream[0][0]}'
            self.pump(1)
        while tag in self.vm:
            if self.can_pump() and self.vm[::-1].index(tag) <= self.W - 1:
                self.pump(1)
            else:
                self.wait(tag)

    def release(self, x):
        self.released.add(x)

    def stamp(self, name):
        if CFG['STAMPS'] == 'lite' and name not in ('start', 'pre_done', 'q_ok', 'k_done', 'o_stored', 'post_done', 'q_done', 'e3_ok', 'a_stored', 'w_ready', 'e4_ok', 'f_stored', 'end'):
            return
        if CFG['STAMPS'] == 't' and name not in ('start', 'e3_ok', 'o1', 'o2', 'o3', 'a_stored', 'e4_ok', 't1', 't2', 'h2', 't3', 't4', 't5', 't6', 'wm5', 't7', 'f_stored', 't8', 'e5_ok', 'end'):
            return
        if CFG['STAMPS'] != 't' and name[0] in 'to' and name[1:].isdigit():
            return
        if CFG['STAMPS'] == 'e' and name not in ('start', 'first', 'arrived', 'k0', 'w_landed', 'pre_done', 'end'):
            return
        if CFG['STAMPS'] != 'e' and name in ('first', 'k0'):
            return
        if CFG['STAMPS'] == 'm' and name not in ('start', 'q_ok', 'softmax', 'v2', 'pv_done', 'o_stored', 'wm0', 'wm1', 'wm2', 'wm4', 'wm3', 'wm5', 'mod_landed', 'mod_ok', 'e4_ok', 'end'):
            return
        if CFG['STAMPS'] is True and name in ('arrived', 'v2', 'wm0', 'wm1', 'wm2', 'wm4', 'wm3', 'wm5'):
            return
        if CFG['STAMPS']:
            k = S_STAMP + self.nstamp
            assert k < 100
            self.e(f's_memrealtime s[100:101]\ns_waitcnt lgkmcnt(0)\ns_mov_b32 s{k}, s100')
            self.nstamp += 1
            self.stamp_names.append(name)

    def srd(self, d, p, nbytes):
        self.e(f's_mov_b32 s{d}, s{p}\ns_mov_b32 s{d + 1}, s{p + 1}\ns_mov_b32 s{d + 2}, {hex(nbytes)}\ns_mov_b32 s{d + 3}, 0x20000')

    def lane(self, dst, terms, const=0, sadd=None, tmp=None):
        first = True
        for sh, bits, mul in terms:
            t = dst if first else tmp
            assert t is not None
            if sh == 0 and bits >= 6:
                src = 'v1'
            elif sh == 0:
                self.e(f'v_and_b32 v{t}, {(1 << bits) - 1}, v1')
                src = f'v{t}'
            elif sh + bits >= 6:
                self.e(f'v_lshrrev_b32 v{t}, {sh}, v1')
                src = f'v{t}'
            else:
                self.e(f'v_bfe_u32 v{t}, v1, {sh}, {bits}')
                src = f'v{t}'
            if first:
                if mul & (mul - 1) == 0:
                    self.e(f'v_lshlrev_b32 v{dst}, {mul.bit_length() - 1}, {src}')
                else:
                    self.e(f'v_mul_u32_u24 v{dst}, {mul}, {src}')
            else:
                if mul & (mul - 1) == 0:
                    self.e(f'v_lshl_add_u32 v{dst}, {src}, {mul.bit_length() - 1}, v{dst}')
                else:
                    self.e(f'v_mul_u32_u24 v{t}, {mul}, {src}\nv_add_u32 v{dst}, v{t}, v{dst}')
            first = False
        if const:
            self.e(f'v_add_u32 v{dst}, {const}, v{dst}')
        if sadd is not None:
            self.e(f'v_add_u32 v{dst}, s{sadd}, v{dst}')

    def exec_set(self, mask):
        lo, hi = mask & 0xffffffff, mask >> 32
        self.e(f's_mov_b32 exec_lo, {hex(lo)}\ns_mov_b32 exec_hi, {hex(hi)}')

    def exec_all(self):
        self.e('s_mov_b64 exec, -1')

    def maxu(self, dst, regs):
        regs = list(regs)
        if len(regs) % 2 == 0:
            self.e(f'v_max_u32 v{dst}, v{regs[0]}, v{regs[1]}')
            regs = regs[2:]
        else:
            self.e(f'v_max3_u32 v{dst}, v{regs[0]}, v{regs[1]}, v{regs[2]}')
            regs = regs[3:]
        while regs:
            self.e(f'v_max3_u32 v{dst}, v{dst}, v{regs[0]}, v{regs[1]}')
            regs = regs[2:]

    def check_retry(self, issue, regs, tmp):
        ok, lp = self.lab('ok'), self.lab('retry')
        if len(regs) > 1:
            self.maxu(tmp, regs)
        else:
            tmp = regs[0]
        self.e(f'v_cmp_eq_u32 vcc, -1, v{tmp}\ns_cbranch_vccz {ok}\ns_mov_b32 s{S_SPIN}, 0\n{lp}:')
        issue()
        self.e('s_waitcnt vmcnt(0)')
        if len(regs) > 1:
            self.maxu(tmp, regs)
        self.e(f's_add_u32 s{S_SPIN}, s{S_SPIN}, 1\ns_cmp_ge_u32 s{S_SPIN}, {CFG["SPIN"]}\ns_cbranch_scc1 {ok}')
        self.e(f'v_cmp_eq_u32 vcc, -1, v{tmp}\ns_cbranch_vccnz {lp}\n{ok}:')

    def poll_masked(self, issuers, regs, tmp):
        n = len(issuers)
        lp, done = self.lab('poll'), self.lab('polldone')
        self.waitn(0)
        self.e(f's_mov_b32 s{S_VALID}, 0\ns_mov_b32 s{S_SPIN}, 0\n{lp}:')
        for t in range(n):
            sk = self.lab('pi')
            self.e(f's_bitcmp1_b32 s{S_VALID}, {t}\ns_cbranch_scc1 {sk}')
            issuers[t]()
            self.e(f'{sk}:')
        self.e('s_waitcnt vmcnt(0)')
        for t in range(n):
            sk = self.lab('pc')
            self.e(f's_bitcmp1_b32 s{S_VALID}, {t}\ns_cbranch_scc1 {sk}')
            self.maxu(tmp, regs[t])
            self.e(f'v_cmp_eq_u32 vcc, -1, v{tmp}\ns_cbranch_vccnz {sk}\ns_bitset1_b32 s{S_VALID}, {t}\n{sk}:')
        self.e(f's_add_u32 s{S_SPIN}, s{S_SPIN}, 1\ns_cmp_ge_u32 s{S_SPIN}, {CFG["SPIN"]}\ns_cbranch_scc1 {done}')
        self.e(f's_cmp_lg_u32 s{S_VALID}, {hex((1 << n) - 1)}\ns_cbranch_scc1 {lp}\n{done}:')

    def poll_pipe(self, offs, s_base, vo, sets, tmp, accum, mode='pipe'):
        n = len(offs)
        done = self.lab('ppdone')
        if mode == 'rr':
            return self.poll_rr(offs, s_base, vo, sets[0], tmp, accum)

        def issue(base):
            for t in range(n):
                self.e(f's_bitcmp1_b32 s{S_VALID}, {t}\ns_cselect_b64 exec, 0, -1\ns_add_u32 s{S_T3}, s{s_base}, {offs[t]}')
                self.e(f'buffer_load_dwordx4 {vr(base + 4 * t)}, v{vo}, {sr(SRD_WS, 4)}, s{S_T3} offen sc1')
            self.exec_all()

        def check(base):
            self.e(f's_waitcnt vmcnt({n})')
            for t in range(n):
                sk = self.lab('pc')
                self.e(f's_bitcmp1_b32 s{S_VALID}, {t}\ns_cbranch_scc1 {sk}')
                self.maxu(tmp, range(base + 4 * t, base + 4 * t + 4))
                self.e(f'v_cmp_ne_u32 vcc, -1, v{tmp}\ns_or_b64 vcc, vcc, {sr(S_SAVE)}\ns_cmp_eq_u64 vcc, -1\ns_cbranch_scc0 {sk}')
                accum(t, base + 4 * t)
                self.e(f's_bitset1_b32 s{S_VALID}, {t}\n{sk}:')
            self.e(f's_cmp_eq_u32 s{S_VALID}, {hex((1 << n) - 1)}\ns_cbranch_scc1 {done}')
        lp = self.lab('pp')
        self.e(f's_mov_b32 s{S_VALID}, 0\ns_mov_b32 s{S_SPIN}, 0\ns_mov_b64 {sr(S_SAVE)}, 0')
        issue(sets[0])
        self.e(f'{lp}:')
        issue(sets[1])
        check(sets[0])
        issue(sets[0])
        check(sets[1])
        self.e(f's_add_u32 s{S_SPIN}, s{S_SPIN}, 1\ns_cmp_ge_u32 s{S_SPIN}, {CFG["SPIN"]}\ns_cselect_b64 {sr(S_SAVE)}, -1, 0\ns_branch {lp}\n{done}:')
        self.vm = ['stale'] * n

    def poll_items(self, items, tmp):
        n = len(items)
        lp, chk = self.lab('pg'), self.lab('pgchk')
        self.e(f's_mov_b32 s{S_VALID}, 0\ns_mov_b32 s{S_SPIN}, 0\ns_mov_b64 {sr(S_SAVE)}, 0\ns_branch {chk}\n{lp}:')
        for t, (txt, regs) in enumerate(items):
            sk = self.lab('pi')
            self.e(f's_bitcmp1_b32 s{S_VALID}, {t}\ns_cbranch_scc1 {sk}\n{txt}\n{sk}:')
        self.e(f's_add_u32 s{S_SPIN}, s{S_SPIN}, 1\ns_cmp_ge_u32 s{S_SPIN}, {CFG["SPIN"]}\ns_cselect_b64 {sr(S_SAVE)}, -1, 0\ns_waitcnt vmcnt(0)\n{chk}:')
        for t, (txt, regs) in enumerate(items):
            sk = self.lab('pc')
            self.e(f's_bitcmp1_b32 s{S_VALID}, {t}\ns_cbranch_scc1 {sk}')
            self.maxu(tmp, regs)
            self.e(f'v_cmp_ne_u32 vcc, -1, v{tmp}\ns_or_b64 vcc, vcc, {sr(S_SAVE)}\ns_cmp_eq_u64 vcc, -1\ns_cbranch_scc0 {sk}')
            self.e(f's_bitset1_b32 s{S_VALID}, {t}\n{sk}:')
        self.e(f's_cmp_lg_u32 s{S_VALID}, {hex((1 << n) - 1)}\ns_cbranch_scc1 {lp}')

    def poll_first(self, offs, s_base, vo, base):
        for t, off in enumerate(offs):
            self.e(f's_add_u32 s{S_T3}, s{s_base}, {off}')
            self.vmem(f'buffer_load_dwordx4 {vr(base + 4 * t)}, v{vo}, {sr(SRD_WS, 4)}, s{S_T3} offen sc1', 'poll')

    def poll_rr(self, offs, s_base, vo, base, tmp, accum, landed=False, sleep=0):
        n = len(offs)
        lp, done = self.lab('pr'), self.lab('prdone')
        chk = self.lab('prchk')
        self.e(f's_mov_b32 s{S_VALID}, 0\ns_mov_b32 s{S_SPIN}, 0\ns_mov_b64 {sr(S_SAVE)}, 0')
        if landed:
            self.e(f's_branch {chk}')
        self.e(f'{lp}:')
        if sleep:
            self.e(f's_sleep {sleep}')
        for t in range(n):
            sk = self.lab('pi')
            self.e(f's_bitcmp1_b32 s{S_VALID}, {t}\ns_cbranch_scc1 {sk}\ns_add_u32 s{S_T3}, s{s_base}, {offs[t]}')
            self.e(f'buffer_load_dwordx4 {vr(base + 4 * t)}, v{vo}, {sr(SRD_WS, 4)}, s{S_T3} offen sc1\n{sk}:')
        self.e(f's_add_u32 s{S_SPIN}, s{S_SPIN}, 1\ns_cmp_ge_u32 s{S_SPIN}, {CFG["SPIN"]}\ns_cselect_b64 {sr(S_SAVE)}, -1, 0\ns_waitcnt vmcnt(0)\n{chk}:')
        for t in range(n):
            sk = self.lab('pc')
            self.e(f's_bitcmp1_b32 s{S_VALID}, {t}\ns_cbranch_scc1 {sk}')
            self.maxu(tmp, range(base + 4 * t, base + 4 * t + 4))
            self.e(f'v_cmp_ne_u32 vcc, -1, v{tmp}\ns_or_b64 vcc, vcc, {sr(S_SAVE)}\ns_cmp_eq_u64 vcc, -1\ns_cbranch_scc0 {sk}')
            accum(t, base + 4 * t)
            self.e(f's_bitset1_b32 s{S_VALID}, {t}\n{sk}:')
        self.e(f's_cmp_lg_u32 s{S_VALID}, {hex((1 << n) - 1)}\ns_cbranch_scc1 {lp}\n{done}:')
        self.vm = []

    def perm_chunk(self, raw, dst, pump_every=0, fs=4):
        k = 0
        for c in range(4):
            for hi in range(2):
                for jj in range(4):
                    a, b = raw + 4 * (2 * jj) + c, raw + 4 * (2 * jj + 1) + c
                    sel = S_PHI if hi else S_PLO
                    self.e(f'v_perm_b32 v{dst + fs * (2 * c + hi) + jj}, v{b}, v{a}, s{sel}')
                    k += 1
                    if pump_every and k % pump_every == 0:
                        self.fill()

    def unpack(self, src, d0, d1):
        self.e(f'v_lshlrev_b32 v{d0}, 16, v{src}\nv_and_b32 v{d1}, 0xffff0000, v{src}')

    def rnd2(self, a, b, t):
        self.e(f'v_cvt_pk_bf16_f32 v{t}, v{a}, v{b}')
        self.unpack(t, a, b)

    def tree(self, B, widths):
        for w in widths:
            if w >= 2:
                for k in range(0, w, 2):
                    self.e(f'v_pk_add_f32 {vr(B + k, 2)}, {vr(B + k, 2)}, {vr(B + k + w, 2)}')
            else:
                self.e(f'v_add_f32 v{B}, v{B}, v{B + 1}')

    def rowsum(self, regs, steps):
        for st in steps:
            for r in regs:
                self.e(f'v_add_f32_dpp v{r}, v{r}, v{r} row_ror:{st} row_mask:0xf bank_mask:0xf')

    def swapred(self, op, which, regs, tmps):
        for r, t in zip(regs, tmps):
            self.e(f'v_mov_b32 v{t}, v{r}')
        for r, t in zip(regs, tmps):
            self.e(f'v_permlane{which}_swap_b32 v{r}, v{t}')
        for r, t in zip(regs, tmps):
            self.e(f'{op} v{r}, v{r}, v{t}')


LOG2E = 0x3fb8aa3b
AL_TERMS = [(5, 1, 2048), (0, 4, 16), (4, 1, 8)]
XA_TERMS = [(5, 1, 256), (0, 4, 16), (4, 1, 8)]


def layernorm(p, X, T, fix):
    s0, s1, t0, t1, m0, m1, ad = T[0], T[1], T[2], T[3], T[4], T[5], T[6]
    for q, s in ((0, s0), (1, s1)):
        x = X[4 * q:4 * q + 4]
        p.e(f'v_add_f32 v{s}, v{x[0]}, v{x[1]}\nv_add_f32 v{T[2 + q]}, v{x[2]}, v{x[3]}')
    p.e(f'v_add_f32 v{s0}, v{s0}, v{t0}\nv_add_f32 v{s1}, v{s1}, v{t1}')
    p.rowsum([s0, s1], (8, 4, 2, 1))
    p.swapred('v_add_f32', 16, [s0, s1], [t0, t1])
    A, B = T[8], T[10]
    assert A % 2 == 0 and B % 2 == 0 and T[9] == A + 1 and T[11] == B + 1
    p.e(f'v_mul_f32 v{A}, 0x3c000000, v{s0}\nv_mul_f32 v{B}, 0x3c000000, v{s1}')
    for q, mean in ((0, A), (1, B)):
        x = X[4 * q:4 * q + 4]
        p.e(f'v_sub_f32 v{t0}, v{x[0]}, v{mean}\nv_sub_f32 v{t1}, v{x[1]}, v{mean}')
        p.e(f'v_mul_f32 v{mean + 1}, v{t0}, v{t0}\nv_fmac_f32 v{mean + 1}, v{t1}, v{t1}')
        p.e(f'v_sub_f32 v{t0}, v{x[2]}, v{mean}\nv_sub_f32 v{t1}, v{x[3]}, v{mean}')
        p.e(f'v_fmac_f32 v{mean + 1}, v{t0}, v{t0}\nv_fmac_f32 v{mean + 1}, v{t1}, v{t1}')
    p.rowsum([A + 1, B + 1], (8, 4, 2, 1))
    p.swapred('v_add_f32', 16, [A + 1, B + 1], [t0, t1])
    p.e(f's_lshl_b32 s{S_T0}, s{S_WV}, 5\ns_add_u32 s{S_T0}, s{S_T0}, {L_STATS}')
    p.lane(ad, [(5, 1, 8)], sadd=S_T0)
    p.exec_set(0x0000000100000001)
    p.e(f'ds_write_b64 v{ad}, {vr(A, 2)}\nds_write_b64 v{ad}, {vr(B, 2)} offset:16')
    p.exec_all()
    p.lane(ad, [(0, 3, 32), (5, 1, 8)], const=L_STATS, tmp=t0)
    p.e('s_waitcnt lgkmcnt(0)\ns_barrier')
    p.e(f'ds_read_b64 {vr(A, 2)}, v{ad}\nds_read_b64 {vr(B, 2)}, v{ad} offset:16\ns_waitcnt lgkmcnt(0)')
    p.e(f'v_mov_b32 v{m0}, v{A}\nv_mov_b32 v{m1}, v{B}')
    p.rowsum([m0, m1], (4, 2, 1))
    p.e(f'v_mul_f32 v{m0}, 0x3e000000, v{m0}\nv_mul_f32 v{m1}, 0x3e000000, v{m1}')
    p.e(f'v_sub_f32 v{t0}, v{A}, v{m0}\nv_sub_f32 v{t1}, v{B}, v{m1}')
    p.e(f'v_mul_f32 v{s0}, 0x43000000, v{t0}\nv_mul_f32 v{s1}, 0x43000000, v{t1}')
    p.e(f'v_fmac_f32 v{A + 1}, v{s0}, v{t0}\nv_fmac_f32 v{B + 1}, v{s1}, v{t1}')
    p.rowsum([A + 1, B + 1], (4, 2, 1))
    p.rnd2(m0, m1, t0)
    p.e(f'v_mul_f32 v{s0}, 0x3a800000, v{A + 1}\nv_mul_f32 v{s1}, 0x3a800000, v{B + 1}')
    p.rnd2(s0, s1, t0)
    p.e(f'v_add_f32 v{s0}, 0x3727c5ac, v{s0}\nv_add_f32 v{s1}, 0x3727c5ac, v{s1}')
    p.rnd2(s0, s1, t0)
    p.e(f'v_sqrt_f32 v{s0}, v{s0}\nv_sqrt_f32 v{s1}, v{s1}')
    p.rnd2(s0, s1, t0)
    p.e(f'v_rcp_f32 v{A}, v{s0}\nv_rcp_f32 v{B}, v{s1}')
    for q, m, sd, ri in ((0, m0, s0, A), (1, m1, s1, B)):
        x = X[4 * q:4 * q + 4]
        for r in range(4):
            p.e(f'v_sub_f32 v{x[r]}, v{x[r]}, v{m}')
        p.rnd2(x[0], x[1], t0)
        p.rnd2(x[2], x[3], t1)
        for r in range(4):
            if fix:
                p.e(f'v_mul_f32 v{t0}, v{x[r]}, v{ri}\nv_fma_f32 v{x[r]}, -v{t0}, v{sd}, v{x[r]}\nv_fma_f32 v{x[r]}, v{x[r]}, v{ri}, v{t0}')
            else:
                p.e(f'v_mul_f32 v{x[r]}, v{x[r]}, v{ri}')
        p.rnd2(x[0], x[1], t0)
        p.rnd2(x[2], x[3], t1)


def modulate(p, X, C1, SH, T, out):
    a, b = T[0], T[1]
    for d in range(4):
        x0, x1 = X[2 * d], X[2 * d + 1]
        p.unpack(C1[d], a, b)
        p.e(f'v_mul_f32 v{x0}, v{x0}, v{a}\nv_mul_f32 v{x1}, v{x1}, v{b}')
        p.rnd2(x0, x1, a)
        p.unpack(SH[d], a, b)
        p.e(f'v_add_f32 v{x0}, v{x0}, v{a}\nv_add_f32 v{x1}, v{x1}, v{b}')
        p.e(f'v_cvt_pk_bf16_f32 v{out[d]}, v{x0}, v{x1}')


def one_plus(p, C, T):
    a, b = T[0], T[1]
    for c in C:
        p.unpack(c, a, b)
        p.e(f'v_add_f32 v{a}, 1.0, v{a}\nv_add_f32 v{b}, 1.0, v{b}\nv_cvt_pk_bf16_f32 v{c}, v{a}, v{b}')


def xa_base(p, s):
    p.e(f's_lshl_b32 s{s}, s{S_WV}, 10\ns_add_u32 s{s}, s{s}, {L_XA}')


def push_narrow_weights(p, tag0, pitch, raw0, raw1, vo, s_base, need=None):
    for u, raw in ((0, raw0), (1, raw1)):
        for jj in range(8):
            def fn(tag, u=u, raw=raw, jj=jj):
                p.e(f's_add_u32 s{S_T3}, s{s_base}, {(64 * u + jj) * pitch}')
                p.vmem(f'buffer_load_dwordx4 {vr(raw + 4 * jj)}, v{vo}, {sr(SRD_W, 4)}, s{S_T3} offen nt', tag)
            p.push(f'{tag0}{u}', fn, need[u] if need else None)


def narrow_setup(p, pitch, vo, s_base, s_col, tmp, rows=128):
    p.lane(vo, [(3, 3, 8 * pitch), (0, 3, 16)], tmp=tmp)
    p.e(f's_mul_i32 s{s_base}, s{S_WV}, {rows * pitch}\ns_add_u32 s{s_base}, s{s_base}, s{s_col}')


def narrow_gemv(p, F0, F1, B, ACC, T, s_out, f32=False, before_barrier=None, upper=None):
    a0, a1, t0 = T[0], T[1], T[2]
    xa_base(p, S_T0)
    p.lane(a0, [(0, 2, 256), (4, 2, 32), (3, 1, 16)], sadd=S_T0, tmp=t0)
    p.e(f's_mov_b32 s{S_MASK}, 0x0f0f0f0f\ns_mov_b32 s{S_MASK + 1}, 0x0f0f0f0f\nv_mov_b32 v{t0}, {L_ZERO}')
    p.e(f'v_cndmask_b32 v{a1}, v{a0}, v{t0}, {sr(S_MASK)}\nv_cndmask_b32 v{a0}, v{t0}, v{a0}, {sr(S_MASK)}')
    FF = [F0] if F1 is None else [F0, F1]
    for u in range(len(FF)):
        p.e(f'ds_read_b128 {vr(B + 8 * u)}, v{a0} offset:{128 * u}\nds_read_b128 {vr(B + 8 * u + 4)}, v{a1} offset:{128 * u}')
    p.e(f's_lshl_b32 s{S_T0}, s{S_WV}, 11\ns_add_u32 s{S_T0}, s{S_T0}, {L_RED}')
    p.lane(a0, [(5, 1, 1024), (0, 2, 256), (2, 1, 128), (4, 1, 16)], sadd=S_T0, tmp=t0)
    p.e('s_waitcnt lgkmcnt(0)')
    for u, F in enumerate(FF):
        for e in range(8):
            acc = vr(ACC + 4 * (e & 3))
            c = '0' if (u == 0 and e < 4) else acc
            p.e(f'v_mfma_f32_16x16x32_bf16 {acc}, {vr(F + 4 * e)}, {vr(B + 8 * u + 4 * (e >> 2))}, {c}')
        p.fill()
    p.exec_set(0xff00ff0000ff00ff)
    for a in range(4):
        p.e(f'ds_write_b128 v{a0}, {vr(ACC + 4 * a)} offset:{32 * a}')
    p.exec_all()
    p.e(f's_lshl_b32 s{S_T0}, s{S_WV}, 8\ns_add_u32 s{S_T0}, s{S_T0}, {L_RED}')
    p.lane(a1, [(2, 1, 128), (0, 2, 32), (5, 1, 16), (3, 2, 4)], sadd=S_T0, tmp=t0)
    p.fill()
    if before_barrier:
        before_barrier()
    p.e('s_waitcnt lgkmcnt(0)\ns_barrier')
    sk = p.lab('fin')
    p.e(f's_cmp_ge_u32 s{S_WV}, 4\ns_cbranch_scc1 {sk}')
    for k in range(8):
        p.e(f'ds_read2st64_b32 {vr(B + 2 * k, 2)}, v{a1} offset0:{8 * k} offset1:{8 * k + 4}')
    so, stride = s_out
    p.e(f's_mul_i32 s{S_T0}, s{S_WV}, {stride}\ns_add_u32 s{S_T0}, s{S_T0}, s{so}\nv_lshlrev_b32 v{a0}, {2 if f32 else 1}, v1\ns_waitcnt lgkmcnt(0)')
    for w in (8, 4, 2, 1):
        for k in range(w):
            p.e(f'v_add_f32 v{B + k}, v{B + k}, v{B + k + w}')
    if f32:
        for k in (1, 2, 3):
            p.e(f'v_mov_b32_dpp v{B + k}, v{B} quad_perm:[{k},{k},{k},{k}] row_mask:0xf bank_mask:0xf')
        p.exec_set(0x1111111111111111)
        ACC = B
    else:
        p.e(f'v_mov_b32_dpp v{B + 1}, v{B} quad_perm:[1,1,3,3] row_mask:0xf bank_mask:0xf')
        p.e(f'v_cvt_pk_bf16_f32 v{ACC}, v{B}, v{B + 1}')
        for k in (1, 2, 3):
            p.e(f'v_mov_b32_dpp v{ACC + k}, v{ACC} row_shl:{2 * k} row_mask:0xf bank_mask:0xf')
        p.exec_set(0x0101010101010101)
    p.e(f'buffer_store_dwordx4 {vr(ACC)}, v{a0}, {sr(SRD_WS, 4)}, s{S_T0} offen sc1')
    p.exec_all()
    if upper:
        end = p.lab('fend')
        p.e(f's_branch {end}\n{sk}:')
        upper()
        sk = end
    p.e(f'{sk}:')


def push_al_loads(p, tag, srd, dst, vo, s_base, flags=''):
    def issue(model=True):
        for q in range(2):
            p.e(f's_add_u32 s{S_T3}, s{s_base}, {4096 * q}')
            s = f'buffer_load_dwordx2 {vr(dst + 2 * q, 2)}, v{vo}, {sr(srd, 4)}, s{S_T3} offen {flags}'
            p.vmem(s, tag) if model else p.e(s)
    if tag is not None:
        p.push(tag, lambda t: issue())
    return issue


def silu_to_xa(p, C, T, wa):
    a, b, ea, eb = T[0], T[1], T[2], T[3]
    xa_base(p, S_T0)
    p.lane(wa, XA_TERMS, sadd=S_T0, tmp=a)
    for d in range(4):
        p.unpack(C + d, a, b)
        p.e(f'v_mul_f32 v{ea}, {hex(LOG2E | 0x80000000)}, v{a}\nv_mul_f32 v{eb}, {hex(LOG2E | 0x80000000)}, v{b}')
        p.e(f'v_exp_f32 v{ea}, v{ea}\nv_exp_f32 v{eb}, v{eb}')
        p.e(f'v_add_f32 v{ea}, 1.0, v{ea}\nv_add_f32 v{eb}, 1.0, v{eb}')
        p.e(f'v_rcp_f32 v{T[4]}, v{ea}\nv_rcp_f32 v{T[5]}, v{eb}')
        p.e(f'v_mul_f32 v{T[6]}, v{a}, v{T[4]}\nv_mul_f32 v{T[7]}, v{b}, v{T[5]}')
        p.e(f'v_cvt_pk_bf16_f32 v{C + d}, v{T[6]}, v{T[7]}')
    p.e(f'ds_write_b64 v{wa}, {vr(C, 2)}\nds_write_b64 v{wa}, {vr(C + 2, 2)} offset:512')


R_Q, R_S, R_V01, R_K = 16, 32, 64, 128
R_P0, R_P1, R_ACC = 16, 32, 48
VCH = [64, 96, 128, 160]


def entry(p):
    if CFG['STAMPS'] == 'e':
        p.e('s_memrealtime s[98:99]')
    p.e(f'''
    s_cmp_ge_u32 s2, 256
    s_cbranch_scc1 L_end
    s_load_dwordx16 s[32:47], s[0:1], 0
    s_load_dwordx8 s[48:55], s[0:1], 64
    s_load_dwordx4 s[56:59], s[0:1], 96
    v_lshrrev_b32 v2, 6, v0
    v_and_b32 v1, 63, v0
    s_lshr_b32 s{S_W8}, s2, 3
    v_readfirstlane_b32 s{S_WV}, v2
    v_lshlrev_b32 v0, 4, v1
    s_getpc_b64 s[60:61]
    L_pc:
    s_lshl_b32 s62, s{S_W8}, 3
    s_add_u32 s62, s62, s{S_WV}
    s_lshl_b32 s62, s62, 10
    s_min_u32 s62, s62, L_code_end-{NAME}_kernel-1024
    s_sub_u32 s60, s60, L_pc-{NAME}_kernel
    s_subb_u32 s61, s61, 0
    s_add_u32 s60, s60, s62
    s_addc_u32 s61, s61, 0''')
    p.vmem('global_load_dwordx4 v[252:255], v0, s[60:61]', 'code')
    p.e(f'''
    s_add_u32 s{S_ROT}, s{S_W8}, s{S_WV}
    s_and_b32 s{S_ROT}, s{S_ROT}, 7
    s_lshl_b32 s{S_ROT}, s{S_ROT}, 12
    s_cmp_ge_u32 s2, 120
    s_cselect_b32 s5, 40, 0
    s_cmp_ge_u32 s2, 216
    s_cselect_b32 s5, 0xffffffa0, s5
    s_add_u32 s5, s5, s2
    s_lshl_b32 s{S_KV}, s5, 18
    s_add_u32 s{S_KV}, s{S_KV}, s{S_ROT}
    s_mov_b32 s{SRD_K + 2}, 0x4000000
    s_mov_b32 s{SRD_K + 3}, 0x20000
    s_sub_u32 s62, s2, 120
    s_cmp_lt_u32 s62, 64
    s_cbranch_scc1 L_class_Q
    s_cmp_lt_u32 s62, 80
    s_cbranch_scc1 L_class_P
    s_cmp_lt_u32 s62, 96
    s_cbranch_scc1 L_class_PR''')
    p.vm_pre = list(p.vm)
    got_args(p)
    for j in range(4):
        p.vmem(f'buffer_load_dwordx4 {vr(R_K + 4 * j)}, v0, {sr(SRD_K, 4)}, s{S_KV} offen offset:{1024 * j} nt', 'K0')
    p.e(f'''
    s_cmp_lt_u32 s2, 64
    s_cbranch_scc1 L_class_O
    s_cmp_lt_u32 s2, 120
    s_cbranch_scc1 L_class_M
    s_branch L_class_R''')


def got_args(p):
    p.e(f's_waitcnt lgkmcnt(0)\ns_mov_b32 s{SRD_K}, s{P_K}\ns_mov_b32 s{SRD_K + 1}, s{P_K + 1}')


def common_setup(p):
    if CFG['STAMPS'] == 'e':
        p.e(f's_waitcnt lgkmcnt(0)\ns_mov_b32 s{S_STAMP}, s98')
        p.nstamp = 1
        p.stamp_names = ['entry']
    p.stamp('start')
    if CFG['DBGOUT']:
        p.e('s_memtime s[100:101]\ns_waitcnt lgkmcnt(0)\ns_mov_b32 s99, s100')
    p.srd(SRD_WS, P_WS, WS_BYTES)
    p.e('v_mov_b32 v4, -1\nv_mov_b32 v5, -1\nv_mov_b32 v6, -1\nv_mov_b32 v7, -1')


def common_setup2(p):
    p.srd(SRD_V, P_V, 0x4000000)
    p.srd(SRD_D, P_DBG, 256)
    p.e(f's_mov_b32 s{S_PLO}, 0x05040100\ns_mov_b32 s{S_PHI}, 0x07060302')


def clear_rows(p, s_off, stride, nb):
    lanes = nb // 16
    sh = lanes.bit_length() - 1
    p.lane(2, [(sh, 2, stride), (0, sh, 16)], tmp=3)
    if lanes * 4 < 64:
        p.exec_set((1 << (lanes * 4)) - 1)
    p.e(f'buffer_store_dwordx4 v[4:7], v2, {sr(SRD_WS, 4)}, s{s_off} offen sc1')
    p.exec_all()


def clears(p, role):
    sk = p.lab('clr')
    p.e(f's_cmp_lg_u32 s{S_WV}, 0\ns_cbranch_scc1 {sk}\ns_setprio 3')
    role()
    p.e(f's_lshl_b32 s{S_T0}, s5, 11\ns_add_u32 s{S_T0}, s{S_T0}, {WS_OP}')
    p.e(f'buffer_store_dwordx4 v[4:7], v0, {sr(SRD_WS, 4)}, s{S_T0} offen sc1')
    p.e(f'buffer_store_dwordx4 v[4:7], v0, {sr(SRD_WS, 4)}, s{S_T0} offen offset:1024 sc1')
    p.e(f's_lshl_b32 s{S_T0}, s5, 7\ns_add_u32 s{S_T0}, s{S_T0}, {WS_ML}')
    p.exec_set(0xff)
    p.e(f'buffer_store_dwordx4 v[4:7], v0, {sr(SRD_WS, 4)}, s{S_T0} offen sc1')
    p.exec_all()
    p.e(f'v_mov_b32 v8, 0\nv_mov_b32 v9, 0\nv_lshlrev_b32 v2, 3, v1\nds_write_b64 v2, v[8:9] offset:{L_ZERO}\nds_write_b32 v8, v8 offset:{L_CNT}')
    p.e(f's_setprio 0\n{sk}:')
    p.nclear = len(p.vm)


def prio_young(p, v):
    sk = p.lab('pr')
    p.e(f's_cmp_lt_u32 s{S_WV}, 4\ns_cbranch_scc1 {sk}\ns_setprio {v}\n{sk}:')


def touch(p, cls):
    if not CFG['TOUCH']:
        return
    p.e(f's_lshl_b32 s{S_T0}, s{S_W8}, 3\ns_add_u32 s{S_T0}, s{S_T0}, s{S_WV}')
    if cls == 'O':
        p.e(f's_and_b32 s{S_T0}, s{S_T0}, 31\ns_lshl_b32 s{S_T0}, s{S_T0}, 21\ns_load_dword s43, {sr(P_V)}, s{S_T0}')
    else:
        ptrs = {'M': ((P_W1, 7 << 20), (P_W3, 7 << 20), (P_W2, 7 << 20)), 'R': ((P_WMOD, 12 << 20), (P_WO, 8 << 20), (P_OUT, 4096))}[cls]
        p.e(f's_and_b32 s{S_T0}, s{S_T0}, 7\ns_lshl_b32 s{S_T0}, s{S_T0}, 21')
        for ptr, nb in ptrs:
            p.e(f's_min_u32 s{S_T1}, s{S_T0}, {nb - 64}\ns_load_dword s43, {sr(ptr)}, s{S_T1}')


def count_b(p):
    sk = p.lab('arr')
    p.e(f's_cmp_lg_u32 s{S_WV}, 0\ns_cbranch_scc1 {sk}\ns_mov_b32 s{S_T0}, 1')
    p.e(f's_atomic_add s{S_T0}, {sr(P_DBG)}, 0\n{sk}:')


def arrive(p, off):
    sk = p.lab('arr')
    p.e(f's_cmp_lg_u32 s{S_WV}, 0\ns_cbranch_scc1 {sk}')
    p.e(f's_waitcnt vmcnt({len(p.vm) - p.nclear}) lgkmcnt(0)')
    p.stamp('arrived')
    for o in off:
        p.e(f's_mov_b32 s{S_T0}, 1\ns_atomic_add s{S_T0}, {sr(P_DBG)}, {o}')
    p.e(f'{sk}:\ns_barrier')


def push_cnt(p, dst, tag='CNT', off=0):
    p.push(tag, lambda t: p.vmem(f'buffer_load_dword v{dst}, off, {sr(SRD_D, 4)}, 0 offset:{off} sc1', t))


def check_cnt(p, dst, tag='CNT', off=0, total=256):
    p.need(tag)
    ok, lp = p.lab('cok'), p.lab('cretry')
    p.e(f'v_readfirstlane_b32 s{S_T0}, v{dst}\ns_mov_b32 s{S_SPIN}, 0\ns_cmp_ge_u32 s{S_T0}, {total}\ns_cbranch_scc1 {ok}\n{lp}:')
    p.e(f'buffer_load_dword v{dst}, off, {sr(SRD_D, 4)}, 0 offset:{off} sc1\ns_waitcnt vmcnt(0)\nv_readfirstlane_b32 s{S_T0}, v{dst}')
    p.e(f's_add_u32 s{S_SPIN}, s{S_SPIN}, 1\ns_cmp_ge_u32 s{S_SPIN}, {CFG["SPIN"]}\ns_cbranch_scc1 {ok}')
    p.e(f's_cmp_lt_u32 s{S_T0}, {total}\ns_cbranch_scc1 {lp}\n{ok}:')
    p.release(tag.lower())


def push_page(p, srd, tag, page, dst, need=None):
    for j in range(4):
        def fn(t, j=j):
            if j == 0 or True:
                p.e(f's_add_u32 s{S_T3}, s{S_KV}, {page * 32768}')
            p.vmem(f'buffer_load_dwordx4 {vr(dst + 4 * j)}, v0, {sr(srd, 4)}, s{S_T3} offen offset:{1024 * j} nt', t)
        p.push(tag, fn, need)


def push_k(p, t):
    push_page(p, SRD_K, f'K{t}', t, R_K + 16 * t)


def push_v(p, u, need=None):
    push_page(p, SRD_V, f'V{u}', 2 * u, p.vch[u], need)
    push_page(p, SRD_V, f'V{u}', 2 * u + 1, p.vch[u] + 16, need)


def push_v_lds(p, u):
    for k in range(8):
        def fn(t, k=k):
            if k == 0:
                p.e(f's_lshl_b32 s{S_STG}, s{S_WV}, 13\ns_add_u32 s{S_STG}, s{S_STG}, {L_STASH}')
            p.e(f's_add_u32 m0, s{S_STG}, {1024 * k}\ns_add_u32 s{S_T3}, s{S_KV}, {(2 * u + (k >> 2)) * 32768 + 1024 * (k & 3)}')
            p.vmem(f'buffer_load_dwordx4 v0, {sr(SRD_V, 4)}, s{S_T3} offen nt lds', t)
        p.push(f'V{u}', fn)


def v_from_lds(p, u, tmp):
    p.need(f'V{u}')
    p.e(f'v_add_u32 v{tmp}, s{S_STG}, v0')
    for k in range(8):
        p.e(f'ds_read_b128 {vr(p.vch[u] + 4 * k)}, v{tmp} offset:{1024 * k}')


def k_setup(p):
    p.e(f's_lshl_b32 s{S_T0}, s{S_WV}, 12')
    p.e(f'v_lshrrev_b32 v6, 4, v1\nv_lshlrev_b32 v7, 2, v6\nv_xor_b32 v7, v7, v1\nv_and_b32 v7, 15, v7\nv_lshlrev_b32 v7, 4, v7')
    p.e(f'v_lshl_add_u32 v2, v6, 8, v7\nv_add_u32 v2, s{S_T0}, v2')
    for j in (1, 2, 3):
        p.e(f'v_xor_b32 v{2 + j}, {16 * j}, v2')
    p.e(f'v_xor_b32 v7, v6, v1\nv_and_b32 v7, 15, v7\nv_lshlrev_b32 v7, 4, v7')
    p.e(f'v_and_b32 v8, 3, v1\nv_lshl_add_u32 v7, v8, 10, v7\nv_bfe_u32 v8, v1, 2, 2\nv_lshl_add_u32 v7, v8, 8, v7\nv_add_u32 v6, s{S_T0}, v7')
    for m in (1, 2, 3):
        p.e(f'v_xor_b32 v{6 + m}, {64 * m}, v6')


def k_trans(p, t):
    p.need(f'K{t}')
    for j in range(4):
        p.e(f'ds_write_b128 v{2 + j}, {vr(R_K + 16 * t + 4 * j)} offset:{1024 * j}')
    for m in range(4):
        p.e(f'ds_read_b128 {vr(R_K + 16 * t + 4 * m)}, v{6 + m}')


def q_loads(p, vo):
    def issue(model):
        for j in range(2 if CFG['QLIN'] else 4):
            if CFG['QLIN']:
                s = f'buffer_load_dwordx4 {vr(R_Q + 4 * j)}, v0, {sr(SRD_WS, 4)}, s{S_U + 3} offen offset:{1024 * j} sc1'
            else:
                s = f'buffer_load_dwordx4 {vr(R_Q + 4 * j)}, v{vo}, {sr(SRD_WS, 4)}, s{S_U + 3} offen offset:{64 * j} sc1'
            p.vmem(s, 'Q') if model else p.e(s)
    return issue


def push_q(p, vo):
    def fn(t):
        p.e(f's_lshr_b32 s{S_U + 3}, s5, 4\ns_lshl_b32 s{S_U + 3}, s{S_U + 3}, 11\ns_add_u32 s{S_U + 3}, s{S_U + 3}, {WS_Q}')
        if not CFG['QLIN']:
            p.lane(vo, [(0, 3, 256), (4, 2, 16)], tmp=R_Q)
        q_loads(p, vo)(True)
    p.push('Q', fn, 'cnt')


def qk_softmax(p, vo_q):
    if CFG['QLIN']:
        p.e(f's_lshl_b32 s{S_T0}, s{S_WV}, 12\nv_and_b32 v10, 3, v1\nv_lshlrev_b32 v10, 2, v10\nv_bfe_u32 v11, v1, 2, 1\nv_or_b32 v10, v10, v11')
        p.e(f'v_lshrrev_b32 v11, 4, v1\nv_xor_b32 v10, v10, v11\nv_lshlrev_b32 v10, 4, v10\nv_and_b32 v11, 7, v1\nv_lshl_add_u32 v10, v11, 8, v10\nv_add_u32 v6, s{S_T0}, v10')
        for m in (1, 2, 3):
            p.e(f'v_xor_b32 v{6 + m}, {64 * m}, v6')
        p.need('Q')
        p.check_retry(lambda: q_loads(p, vo_q)(False), list(range(R_Q, R_Q + 8)), 10)
        for j in range(2):
            p.e(f'ds_write_b128 v{2 + j}, {vr(R_Q + 4 * j)} offset:{1024 * j}')
        for m in range(4):
            p.e(f'ds_read_b128 {vr(R_Q + 4 * m)}, v{6 + m}')
    else:
        p.need('Q')
        p.check_retry(lambda: q_loads(p, vo_q)(False), list(range(R_Q, R_Q + 16)), 10)
    p.e('s_waitcnt lgkmcnt(0)')
    p.stamp('q_ok')
    for t in range(8):
        for m in range(4):
            s = vr(R_S + 4 * t)
            p.e(f'v_mfma_f32_16x16x32_bf16 {s}, {vr(R_K + 16 * t + 4 * m)}, {vr(R_Q + 4 * m)}, {"0" if m == 0 else s}')
        if t == 1:
            p.release('K01')
            p.burst(2)
        if t == 7:
            p.release('K47')
            p.burst(CFG['BURST'])
    T = 2
    for t in range(8):
        x = R_S + 4 * t
        for h in (0, 2):
            p.rnd2(x + h, x + h + 1, T + h // 2)
        for r in range(4):
            p.e(f'v_mul_f32 v{x + r}, 0x3db504f3, v{x + r}')
        for h in (0, 2):
            p.rnd2(x + h, x + h + 1, T + h // 2)
        if t == 0:
            p.e(f'v_max_f32 v4, v{x}, v{x + 1}')
        else:
            p.e(f'v_max3_f32 v4, v4, v{x}, v{x + 1}')
        p.e(f'v_max3_f32 v4, v4, v{x + 2}, v{x + 3}')
        if t % 2:
            p.fill()
    p.W += CFG['BURST'] - 2
    p.pump(2)
    p.W -= CFG['BURST'] - 2
    p.swapred('v_max_f32', 16, [4], [5])
    p.swapred('v_max_f32', 32, [4], [5])
    p.e(f'v_mul_f32 v6, {hex(LOG2E | 0x80000000)}, v4\ns_mov_b32 s{S_T0}, {hex(LOG2E)}')
    p.e(f's_mov_b32 s{S_MASK}, 0x00ff00ff\ns_mov_b32 s{S_MASK + 1}, 0x00ff00ff\nv_mov_b32 v5, 0')
    for t in range(8):
        x = R_S + 4 * t
        for r in range(4):
            p.e(f'v_fma_f32 v{x + r}, v{x + r}, s{S_T0}, v6')
        for r in range(4):
            p.e(f'v_exp_f32 v{x + r}, v{x + r}')
        p.e(f'v_add_f32 v7, v{x}, v{x + 1}\nv_add_f32 v8, v{x + 2}, v{x + 3}')
        p.e(f'v_cvt_pk_bf16_f32 v2, v{x}, v{x + 1}\nv_cvt_pk_bf16_f32 v3, v{x + 2}, v{x + 3}')
        p.e(f'v_add_f32 v5, v5, v7\nv_add_f32 v5, v5, v8')
        for d in range(2):
            p.e(f'v_cndmask_b32 v{R_P0 + 2 * t + d}, 0, v{2 + d}, {sr(S_MASK)}')
            p.e(f'v_cndmask_b32 v{R_P1 + 2 * t + d}, v{2 + d}, 0, {sr(S_MASK)}')
        if t % 2:
            p.fill()
    p.swapred('v_add_f32', 16, [5], [6])
    p.swapred('v_add_f32', 32, [5], [6])
    p.e(f's_lshl_b32 s{S_T0}, s{S_WV}, 6\ns_add_u32 s{S_T0}, s{S_T0}, {L_MLW}\nv_lshlrev_b32 v6, 3, v1\nv_add_u32 v7, s{S_T0}, v6')
    p.e(f'v_mov_b32 v8, 1\nv_mov_b32 v9, {L_CNT}')
    p.exec_set(0xff)
    p.e('ds_write_b64 v7, v[4:5]\ns_mov_b64 exec, 1\nds_add_rtn_u32 v8, v9, v8')
    p.exec_all()
    sk = p.lab('ml')
    p.e(f's_waitcnt lgkmcnt(0)\nv_readfirstlane_b32 s{S_T0}, v8\ns_cmp_lg_u32 s{S_T0}, 7\ns_cbranch_scc1 {sk}')
    p.e(f'ds_read_b64 v[8:9], v6 offset:{L_MLW}\ns_waitcnt lgkmcnt(0)')
    ml_combine(p, 8, 9, 2, 3, 7)
    p.e(f's_lshl_b32 s{S_T0}, s5, 7\ns_add_u32 s{S_T0}, s{S_T0}, {WS_ML}')
    p.exec_set(0xff)
    p.e(f'buffer_store_dwordx2 v[2:3], v6, {sr(SRD_WS, 4)}, s{S_T0} offen sc1')
    p.exec_all()
    p.e(f'{sk}:')
    p.stamp('softmax')


def ml_combine(p, m, l, M, L, t):
    p.e(f'v_max_f32_dpp v{M}, v{m}, v{m} row_ror:8 row_mask:0xf bank_mask:0xf')
    p.swapred('v_max_f32', 16, [M], [t])
    p.swapred('v_max_f32', 32, [M], [t])
    p.e(f'v_sub_f32 v{t}, v{m}, v{M}\nv_mul_f32 v{t}, {hex(LOG2E)}, v{t}\nv_exp_f32 v{t}, v{t}\nv_mul_f32 v{L}, v{l}, v{t}')
    p.e(f'v_add_f32_dpp v{L}, v{L}, v{L} row_ror:8 row_mask:0xf bank_mask:0xf')
    p.swapred('v_add_f32', 16, [L], [t])
    p.swapred('v_add_f32', 32, [L], [t])


def pv_chunk(p, u, T):
    p.need(f'V{u}')
    raw = p.vch[u]
    for c in range(4):
        tb = T + 8 * (c & 1)
        for hi in range(2):
            for jj in range(4):
                a, b = raw + 4 * (2 * jj) + c, raw + 4 * (2 * jj + 1) + c
                p.e(f'v_perm_b32 v{tb + 4 * hi + jj}, v{b}, v{a}, s{S_PHI if hi else S_PLO}')
        for hi in range(2):
            e = 2 * c + hi
            acc = vr(R_ACC + 4 * (e & 3))
            cc = '0' if (u == 0 and e < 4) else acc
            pb = (R_P0 if e < 4 else R_P1) + 4 * u
            p.e(f'v_mfma_f32_16x16x32_bf16 {acc}, {vr(tb + 4 * hi)}, {vr(pb)}, {cc}')
        p.fill()


def ml_loads(p):
    def issue(model):
        for k in range(2):
            s = f'buffer_load_dwordx2 {vr(6 + 2 * k, 2)}, v2, {sr(SRD_WS, 4)}, s{S_U + 3} offen offset:{1024 * k} sc1'
            p.vmem(s, 'ML') if model else p.e(s)
    return issue


def push_ml(p):
    def fn(t):
        p.e(f's_lshr_b32 s{S_U + 3}, s5, 4\ns_lshl_b32 s{S_U + 3}, s{S_U + 3}, 11\ns_add_u32 s{S_U + 3}, s{S_U + 3}, {WS_ML}')
        p.lane(2, [(3, 3, 128), (0, 3, 8)], tmp=3)
        ml_loads(p)(True)
    p.push('ML', fn, 'sm')


def ml_scale(p):
    p.need('ML')
    p.stamp('ml_landed')
    p.check_retry(lambda: ml_loads(p)(False), [6, 7, 8, 9], 3)
    p.e(f'''v_max_f32 v3, v6, v8
    v_sub_f32 v6, v6, v3
    v_sub_f32 v8, v8, v3
    v_mul_f32 v6, {hex(LOG2E)}, v6
    v_mul_f32 v8, {hex(LOG2E)}, v8
    v_exp_f32 v6, v6
    v_exp_f32 v8, v8
    v_mul_f32 v7, v7, v6
    v_fmac_f32 v7, v9, v8''')
    ml_combine(p, 3, 7, 6, 8, 9)
    p.e(f'v_sub_f32 v4, v4, v6\nv_mul_f32 v4, {hex(LOG2E)}, v4\nv_exp_f32 v4, v4\nv_rcp_f32 v8, v8\nv_mul_f32 v5, v4, v8')
    p.e(f's_mul_i32 s{S_T0}, s{S_WV}, 4864\ns_add_u32 s{S_T0}, s{S_T0}, {L_OPART}')
    p.lane(6, [(0, 3, 592), (4, 2, 144), (3, 1, 64)], sadd=S_T0, tmp=3)
    p.e(f's_mul_i32 s{S_T0}, s{S_WV}, 592\ns_add_u32 s{S_T0}, s{S_T0}, {L_OPART}')
    p.lane(7, [(4, 2, 144), (1, 1, 64), (0, 1, 32), (2, 2, 4)], sadd=S_T0, tmp=3)
    p.e('v_add_u32 v8, 16, v7\nv_lshlrev_b32 v9, 2, v1')
    p.e(f's_lshl_b32 s{S_U + 3}, s5, 11\ns_lshl_b32 s{S_T1}, s{S_WV}, 8\ns_add_u32 s{S_U + 3}, s{S_U + 3}, s{S_T1}\ns_add_u32 s{S_U + 3}, s{S_U + 3}, {WS_OP}')


def quad_pack_store(p, D, vo, s_off):
    for k in (1, 2, 3):
        p.e(f'v_mov_b32_dpp v{D + k}, v{D} quad_perm:[{k},{k},{k},{k}] row_mask:0xf bank_mask:0xf')
    p.exec_set(0x1111111111111111)
    p.vmem(f'buffer_store_dwordx4 {vr(D)}, v{vo}, {sr(SRD_WS, 4)}, s{s_off} offen sc1', 'st')
    p.exec_all()


def attn_epilogue(p):
    for k in range(0, 16, 2):
        p.e(f'v_pk_mul_f32 {vr(R_ACC + k, 2)}, {vr(R_ACC + k, 2)}, v[4:5] op_sel:[0,1] op_sel_hi:[1,1]')
        if k % 4 == 2:
            p.e(f'ds_write_b128 v6, {vr(R_ACC + k - 2)} offset:{16 * (k // 4)}')
    p.e('s_waitcnt lgkmcnt(0)\ns_barrier')
    B = R_P0
    for k in range(4):
        p.e(f'ds_read2st64_b32 {vr(B + 2 * k, 2)}, v7 offset0:{38 * k} offset1:{38 * k + 19}')
        p.e(f'ds_read2st64_b32 {vr(B + 8 + 2 * k, 2)}, v8 offset0:{38 * k} offset1:{38 * k + 19}')
    p.e('s_waitcnt lgkmcnt(0)')
    for w in (4, 2, 1):
        p.tree(B, [w])
        p.tree(B + 8, [w])
    p.e(f'v_cvt_pk_bf16_f32 v{B + 4}, v{B}, v{B + 8}')
    quad_pack_store(p, B + 4, 9, S_U + 3)
    p.stamp('o_stored')


def selectors(p, SA, t, n=8):
    p.e(f'v_and_b32 v{t}, 1, v1\nv_cmp_eq_u32 vcc, 1, v{t}\nv_mov_b32 v{t}, 0x3f80\nv_mov_b32 v{t + 1}, 1.0')
    p.e(f'v_cndmask_b32 v{t}, v{t}, v{t + 1}, vcc\nv_bfe_u32 v{t + 1}, v1, 1, 3')
    for d in range(n):
        p.e(f'v_cmp_eq_u32 vcc, {d}, v{t + 1}\nv_cndmask_b32 v{SA + d}, 0, v{t}, vcc')


def wide_b_addrs(p, A, base_terms, s_base, const, t):
    p.lane(t, base_terms, const=const, sadd=s_base, tmp=A)
    p.e(f'v_mov_b32 v{t + 1}, {L_ZERO}')
    for j in range(4):
        m = 0x11111111 << j
        p.e(f's_mov_b32 s{S_MASK}, {hex(m)}\ns_mov_b32 s{S_MASK + 1}, {hex(m)}')
        p.e(f'v_cndmask_b32 v{A + j}, v{t + 1}, v{t}, {sr(S_MASK)}')


def selectors_b(p, SA, t):
    p.e(f'v_and_b32 v{t}, 1, v1\nv_cmp_eq_u32 vcc, 1, v{t}\nv_mov_b32 v{t}, 0x3f80\nv_mov_b32 v{t + 1}, 1.0')
    p.e(f'v_cndmask_b32 v{t}, v{t}, v{t + 1}, vcc')
    p.e(f'v_lshrrev_b32 v{t + 1}, 1, v1\nv_xor_b32 v{t + 1}, v{t + 1}, v1\nv_and_b32 v{t + 1}, 8, v{t + 1}')
    p.e(f'v_bfe_u32 v{SA}, v1, 1, 2\nv_or_b32 v{t + 1}, v{t + 1}, v{SA}\nv_bfe_u32 v{SA}, v1, 5, 1\nv_lshl_or_b32 v{t + 1}, v{SA}, 2, v{t + 1}')
    for d in range(8):
        p.e(f'v_cmp_eq_u32 vcc, {d}, v{t + 1}\nv_cndmask_b32 v{SA + d}, 0, v{t}, vcc')


def sp_addrs(p, A, bstride, s_base, const, t, idx=None):
    p.lane(t, [(2, 2, bstride), (0, 1, bstride // 2), (4, 2, 16)], const=const, sadd=s_base, tmp=A)
    p.e(f'v_mov_b32 v{t + 1}, {L_ZERO}\ns_mov_b32 s{S_MASK}, 0x33333333\ns_mov_b32 s{S_MASK + 1}, 0x33333333')
    p.e(f'v_cndmask_b32 v{A}, v{t + 1}, v{t}, {sr(S_MASK)}\nv_cndmask_b32 v{A + 1}, v{t}, v{t + 1}, {sr(S_MASK)}')
    if idx is not None:
        p.e(f's_mov_b32 s{S_MASK}, 0x55555555\ns_mov_b32 s{S_MASK + 1}, 0x55555555\nv_mov_b32 v{t}, 0xeeee\nv_mov_b32 v{t + 1}, 0x4444')
        p.e(f'v_cndmask_b32 v{idx}, v{t}, v{t + 1}, {sr(S_MASK)}')


def sp_gemv(p, F, A, ACC, idx):
    for e in range(8):
        p.e(f'v_smfmac_f32_16x16x64_bf16 {vr(ACC + 4 * (e & 3))}, {vr(A + 4 * (e >> 2))}, {vr(F + 8 * e, 8)}, v{idx}')


def lines_of(p, fn):
    old, p.L = p.L, []
    fn()
    out, p.L = p.L, old
    return out


def interleave(p, main, fill, per):
    fill = list(fill)
    for m in main:
        p.L.append(m)
        p.L += fill[:per]
        fill = fill[per:]
    p.L += fill


def sp_fold(p, ACC, OUT):
    for e in range(8):
        r = ACC + 4 * (e & 3) + 2 * (e >> 2)
        p.e(f'v_add_f32 v{OUT + e}, v{r}, v{r + 1}')


def push_wide_rows(p, tag, raw, vo, s_base, row0, need=None):
    for jj in range(8):
        def fn(t, jj=jj):
            p.e(f's_add_u32 s{S_T3}, s{s_base}, {(row0 + (jj & ~1)) * 2048}')
            p.vmem(f'buffer_load_dwordx4 {vr(raw + 4 * jj)}, v{vo}, {sr(SRD_W, 4)}, s{S_T3} offen offset:{2048 * (jj & 1)} nt', t)
        p.push(tag, fn, need)


def finish(p):
    if CFG['DBGOUT']:
        p.stamp('end')
        sk = p.lab('dbg')
        p.e(f's_cmp_lg_u32 s{S_WV}, 0\ns_cbranch_scc1 {sk}')
        sk2 = p.lab('dbg')
        p.e(f's_cmp_lg_u32 s2, 64\ns_cbranch_scc1 {sk2}\ns_memtime s[100:101]\ns_waitcnt lgkmcnt(0)\ns_sub_u32 s100, s100, s99')
        p.e(f's_atomic_umax s100, {sr(P_DBG)}, 56\ns_sub_u32 s{S_T0}, s{S_STAMP + p.nstamp - 1}, s{S_STAMP}\ns_atomic_umax s{S_T0}, {sr(P_DBG)}, 60\n{sk2}:')
        slots = ['start', 'pre_done', 'k_done', 'q_ok', 'o_stored', 'e3_ok', 'a_stored', 'w_ready', 'e4_ok', 'f_stored', 'end']
        p.e(f's_not_b32 s{S_T0}, s{S_STAMP}\ns_atomic_umax s{S_T0}, {sr(P_DBG)}, 4')
        for k, n in enumerate(p.stamp_names):
            if n in slots:
                p.e(f's_atomic_umax s{S_STAMP + k}, {sr(P_DBG)}, {8 + 4 * slots.index(n)}')
        p.e(f'{sk}:')
    elif CFG['STAMPS']:
        p.e(f's_lshl_b32 s{S_T0}, s2, 3\ns_add_u32 s{S_T0}, s{S_T0}, s{S_WV}\ns_lshl_b32 s{S_T0}, s{S_T0}, 7\ns_add_u32 s{S_T0}, s{S_T0}, {WS_STAMP}')
        p.stamp('end')
        p.e('s_mov_b64 exec, 1\nv_mov_b32 v2, 0')
        for k in range(p.nstamp):
            p.e(f'v_mov_b32 v3, s{S_STAMP + k}\nbuffer_store_dword v3, v2, {sr(SRD_WS, 4)}, s{S_T0} offen offset:{4 * k}')
    p.e('s_endpgm')


def mod_unit_setup(p, s_unit, s_col, s_out):
    p.e(f's_lshl_b32 s{s_col}, s{s_unit}, 7')
    p.e(f's_lshr_b32 s{s_out}, s{s_unit}, 4\ns_lshl_b32 s{s_out}, s{s_out}, 13\ns_and_b32 s{S_T0}, s{s_unit}, 15')
    p.e(f's_lshl_b32 s{S_T0}, s{S_T0}, 7\ns_add_u32 s{s_out}, s{s_out}, s{S_T0}')
    if WS_MOD:
        p.e(f's_add_u32 s{s_out}, s{s_out}, {WS_MOD}')


def quarter_loads(p, s_col):
    p.lane(15, [(3, 3, 4 * 12288), (0, 3, 16)], tmp=128)
    p.e(f's_mul_i32 s{S_T2}, s{S_WV}, {32 * 12288}\ns_add_u32 s{S_T2}, s{S_T2}, s{s_col}')
    for jj in range(4):
        p.e(f's_add_u32 s{S_T3}, s{S_T2}, {jj * 12288}')
        p.waitn(p.W - 1)
        p.vmem(f'buffer_load_dwordx4 {vr(128 + 4 * jj)}, v15, {sr(SRD_W, 4)}, s{S_T3} offen nt', 'WQ')


def quarter_compute(p):
    raw, F, B, ACC, a0, a1, t0 = 128, 144, 160, 176, 10, 11, 15
    p.e(f's_and_b32 s{S_T0}, s2, 3\ns_lshl_b32 s{S_T0}, s{S_T0}, 1\ns_lshr_b32 s{S_T1}, s{S_WV}, 2\ns_add_u32 s{S_T0}, s{S_T0}, s{S_T1}')
    p.e(f's_lshl_b32 s{S_T0}, s{S_T0}, 10\ns_and_b32 s{S_T1}, s{S_WV}, 3\ns_lshl_b32 s{S_T1}, s{S_T1}, 6\ns_add_u32 s{S_T0}, s{S_T0}, s{S_T1}\ns_add_u32 s{S_T0}, s{S_T0}, {L_XA}')
    p.lane(a0, [(0, 2, 256), (4, 2, 16), (3, 1, 8)], sadd=S_T0, tmp=t0)
    p.e(f's_mov_b32 s{S_MASK}, 0x0f0f0f0f\ns_mov_b32 s{S_MASK + 1}, 0x0f0f0f0f\nv_mov_b32 v{t0}, {L_ZERO}')
    p.e(f'v_cndmask_b32 v{a1}, v{a0}, v{t0}, {sr(S_MASK)}\nv_cndmask_b32 v{a0}, v{t0}, v{a0}, {sr(S_MASK)}')
    p.e(f'ds_read_b64 {vr(B, 2)}, v{a0}\nds_read_b64 {vr(B + 2, 2)}, v{a1}')
    p.e(f's_lshl_b32 s{S_T0}, s{S_WV}, 11\ns_add_u32 s{S_T0}, s{S_T0}, {L_RED2}')
    p.lane(a0, [(5, 1, 1024), (0, 2, 256), (2, 1, 128), (4, 1, 16)], sadd=S_T0, tmp=t0)
    p.need('WQ')
    for c in range(4):
        for hi in range(2):
            for jj in range(2):
                p.e(f'v_perm_b32 v{F + 2 * (2 * c + hi) + jj}, v{raw + 4 * (2 * jj + 1) + c}, v{raw + 4 * (2 * jj) + c}, s{S_PHI if hi else S_PLO}')
    p.e('s_waitcnt lgkmcnt(0)')
    for e in range(8):
        acc = vr(ACC + 4 * (e & 3))
        p.e(f'v_mfma_f32_16x16x16_bf16 {acc}, {vr(F + 2 * e, 2)}, {vr(B + 2 * (e >> 2), 2)}, {"0" if e < 4 else acc}')
    p.e(f's_lshl_b32 s{S_T0}, s{S_WV}, 8\ns_add_u32 s{S_T0}, s{S_T0}, {L_RED2 - 1024}')
    p.lane(a1, [(2, 1, 128), (0, 2, 32), (5, 1, 16), (3, 2, 4)], sadd=S_T0, tmp=t0)
    p.exec_set(0xff00ff0000ff00ff)
    for a in range(4):
        p.e(f'ds_write_b128 v{a0}, {vr(ACC + 4 * a)} offset:{32 * a}')
    p.exec_all()


def quarter_final(p, s_out):
    B, a0, a1 = 160, 10, 11
    end = p.lab('qend')
    p.e(f's_cmp_ge_u32 s2, 248\ns_cbranch_scc1 {end}')
    for k in range(8):
        p.e(f'ds_read2st64_b32 {vr(B + 2 * k, 2)}, v{a1} offset0:{8 * k} offset1:{8 * k + 4}')
    p.e(f's_lshl_b32 s{S_T0}, s{S_WV}, 11\ns_add_u32 s{S_T0}, s{S_T0}, s{s_out}\ns_sub_u32 s{S_T0}, s{S_T0}, 8192\nv_lshlrev_b32 v{a0}, 2, v1\ns_waitcnt lgkmcnt(0)')
    for w in (8, 4, 2, 1):
        for k in range(w):
            p.e(f'v_add_f32 v{B + k}, v{B + k}, v{B + k + w}')
    for k in (1, 2, 3):
        p.e(f'v_mov_b32_dpp v{B + k}, v{B} quad_perm:[{k},{k},{k},{k}] row_mask:0xf bank_mask:0xf')
    p.exec_set(0x1111111111111111)
    p.e(f'buffer_store_dwordx4 {vr(B)}, v{a0}, {sr(SRD_WS, 4)}, s{S_T0} offen sc1')
    p.exec_all()
    p.e(f'{end}:')


def capture(p, fn):
    old, p.stream = p.stream, deque()
    fn()
    items, p.stream = list(p.stream), old
    return items


def weave(a, b, lead=0):
    out, a, b = [], list(a), list(b)
    out += b[:lead]
    b = b[lead:]
    while a or b:
        if b:
            out.append(b.pop(0))
        if a:
            out.append(a.pop(0))
    return out


def push_c3(p, tag, ptr, nbytes, wbase, n, first=0, dst=252, stride=None):
    def setup(t):
        p.srd(SRD_A, ptr, nbytes)
        p.e(f's_sub_u32 s{S_T2}, s2, {wbase}\ns_lshl_b32 s{S_T2}, s{S_T2}, 3\ns_add_u32 s{S_T2}, s{S_T2}, s{S_WV}')
        p.e(f's_mul_i32 s{S_T2}, s{S_T2}, {(stride or n) * 8192}\ns_add_u32 s{S_T2}, s{S_T2}, {first * 8192 + 384}')
        p.lane(15, [(3, 3, 1024), (0, 3, 16)], tmp=dst)
        p.e(f's_min_u32 s{S_T2}, s{S_T2}, {nbytes - n * 8192 + 384}')
        for k in range(n):
            if k:
                p.e(f's_add_u32 s{S_T2}, s{S_T2}, 8192')
            p.vmem(f'buffer_load_dwordx4 {vr(dst)}, v15, {sr(SRD_A, 4)}, s{S_T2} offen', t)
    p.push(tag, setup)


def push_c3half(p, ptr, wbase, dst=252):
    def fn(t):
        p.srd(SRD_A, ptr, 1024 * 7168)
        p.e(f's_sub_u32 s{S_T2}, s2, {wbase}\ns_mul_i32 s{S_T3}, s{S_T2}, 37\ns_lshr_b32 s{S_T3}, s{S_T3}, 8\ns_mul_i32 s{S_T3}, s{S_T3}, 7')
        p.e(f's_add_u32 s{S_T2}, s{S_T2}, s{S_T3}\ns_add_u32 s{S_T2}, s{S_T2}, 7\ns_lshl_b32 s{S_T2}, s{S_T2}, 3\ns_add_u32 s{S_T2}, s{S_T2}, s{S_WV}')
        p.e(f's_lshl_b32 s{S_T2}, s{S_T2}, 13')
        p.lane(15, [(3, 3, 1024), (0, 3, 16)], tmp=dst)
        p.vmem(f'buffer_load_dwordx4 {vr(dst)}, v15, {sr(SRD_A, 4)}, s{S_T2} offen offset:384', t)
    p.push('c3', fn)


def push_c3mod(p, wbase, dst=252):
    def fn(t):
        p.srd(SRD_A, P_WMOD, 1024 * 12288)
        p.e(f's_sub_u32 s{S_T2}, s2, {wbase}\ns_lshl_b32 s{S_T2}, s{S_T2}, 3\ns_add_u32 s{S_T2}, s{S_T2}, s{S_WV}')
        p.e(f's_lshr_b32 s{S_T3}, s{S_T2}, 7\ns_lshl_b32 s{S_T3}, s{S_T3}, 10\ns_and_b32 s{S_T2}, s{S_T2}, 127')
        p.e(f's_mul_i32 s{S_T2}, s{S_T2}, {8 * 12288}\ns_add_u32 s{S_T2}, s{S_T2}, s{S_T3}\ns_add_u32 s{S_T2}, s{S_T2}, 4096')
        p.lane(15, [(3, 3, 12288), (0, 3, 16)], tmp=dst)
        p.vmem(f'buffer_load_dwordx4 {vr(dst)}, v15, {sr(SRD_A, 4)}, s{S_T2} offen offset:384', t)
        sk = p.lab('c3')
        p.e(f's_cmp_ge_u32 s{S_T3}, 2048\ns_cbranch_scc1 {sk}\ns_add_u32 s{S_T2}, s{S_T2}, 4096')
        p.e(f'buffer_load_dwordx4 {vr(dst)}, v15, {sr(SRD_A, 4)}, s{S_T2} offen offset:384\n{sk}:')
    p.push('c3', fn)


def rewarm(p, label, n, dst):
    if not CFG['REWARM']:
        return
    here = p.lab('pc')
    p.e(f's_getpc_b64 s[{S_T0}:{S_T1}]\n{here}:\ns_lshl_b32 s{S_T2}, s{S_WV}, 10\ns_add_u32 s{S_T2}, s{S_T2}, ({label}-{here})&0xfffffff0')
    p.e(f's_min_u32 s{S_T2}, s{S_T2}, (L_code_end-{here}-{1024 + 8192 * (n - 1)})&0xfffffff0')
    p.e(f's_and_b32 s{S_T0}, s{S_T0}, 0xfffffff0\ns_add_u32 s{S_T0}, s{S_T0}, s{S_T2}\ns_addc_u32 s{S_T1}, s{S_T1}, 0')
    for k in range(n):
        if k:
            p.e(f's_add_u32 s{S_T0}, s{S_T0}, 8192\ns_addc_u32 s{S_T1}, s{S_T1}, 0')
        p.vmem(f'global_load_dwordx4 {vr(dst)}, v0, s[{S_T0}:{S_T1}]', 'code')


def helper_gate(p, cls):
    lp, ok = p.lab('hg'), p.lab('hgok')
    if cls == 'R':
        p.e(f's_and_b32 s{S_T0}, s2, 3\ns_add_u32 s{S_T0}, s{S_T0}, 10')
    else:
        p.e(f's_lshr_b32 s{S_T0}, s5, 4')
    p.e(f's_lshl_b32 s{S_T0}, s{S_T0}, 15\ns_add_u32 s{S_T0}, s{S_T0}, {WS_OP + 2044}\ns_mov_b32 s{S_SPIN}, 0')
    p.lane(15, [(0, 4, 2048)])
    p.e(f'{lp}:\nbuffer_load_dword v14, v15, {sr(SRD_WS, 4)}, s{S_T0} offen sc1')
    p.e(f's_add_u32 s{S_SPIN}, s{S_SPIN}, 1\ns_cmp_ge_u32 s{S_SPIN}, {CFG["SPIN"]}\ns_cbranch_scc1 {ok}\ns_waitcnt vmcnt(0)')
    p.e(f'v_cmp_eq_u32 vcc, -1, v14\ns_bcnt1_i32_b64 s{S_T1}, vcc\ns_cmp_gt_u32 s{S_T1}, {4 * CFG["GATE_MISS"]}\ns_cbranch_scc1 {lp}\n{ok}:')
    p.vm = []


def h6_prefetch(p, cls):
    sk = p.lab('h6')
    p.srd(SRD_A, P_W1, 1024 * 7168)
    p.srd(SRD_W, P_W3, 1024 * 7168)
    p.e(f's_sub_u32 s{S_T0}, s{S_W8}, {dict(P=23, Q=15 - 2, R=27 - 10)[cls]}\ns_cmp_ge_u32 s{S_T0}, 14\ns_cbranch_scc1 {sk}')
    p.e(f's_lshl_b32 s{S_T0}, s{S_T0}, 3\ns_add_u32 s{S_T0}, s{S_T0}, s{S_WV}\ns_and_b32 s{S_T1}, s2, 7\ns_lshl_b32 s{S_T1}, s{S_T1}, 7')
    p.lane(15, [(3, 3, 1024), (0, 3, 16)], sadd=S_T1, tmp=14)
    for ch in CFG['H6']:
        for half in range(2):
            p.e(f's_add_u32 s{S_T1}, s{S_T0}, {112 * half}\ns_mul_i32 s{S_T2}, s{S_T1}, 2341\ns_lshr_b32 s{S_T2}, s{S_T2}, 16')
            p.e(f's_mul_i32 s{S_T2}, s{S_T2}, {896 - 28 * 8}\ns_lshl_b32 s{S_T1}, s{S_T1}, 3\ns_add_u32 s{S_T2}, s{S_T2}, s{S_T1}')
            p.e(f's_add_u32 s{S_T2}, s{S_T2}, {32 * ch * 7}\ns_lshl_b32 s{S_T2}, s{S_T2}, 10')
            p.e(f'buffer_load_dwordx4 v[252:255], v15, {sr(SRD_A, 4)}, s{S_T2} offen')
            p.e(f'buffer_load_dwordx4 v[252:255], v15, {sr(SRD_W, 4)}, s{S_T2} offen')
    p.e(f'{sk}:')


def h5_prefetch(p, cls):
    p.srd(SRD_A, P_W2, 3584 * 2048)
    if CFG['H5X']:
        p.e(f's_sub_u32 s{S_T0}, s{S_W8}, {dict(P=23, Q=15 - 2, R=27 - 10)[cls]}\ns_lshr_b32 s{S_T2}, s{S_T0}, 1\ns_lshl_b32 s{S_T2}, s{S_T2}, 3')
        p.e(f's_and_b32 s{S_T1}, s2, 7\ns_add_u32 s{S_T2}, s{S_T2}, s{S_T1}\ns_lshl_b32 s{S_T2}, s{S_T2}, 17')
    else:
        p.e(f's_sub_u32 s{S_T0}, s2, {dict(Q=120 - 16, R=216 - 80, P=184)[cls]}')
        p.e(f's_lshr_b32 s{S_T2}, s{S_T0}, 1\ns_lshl_b32 s{S_T2}, s{S_T2}, 17')
    p.e(f's_and_b32 s{S_T0}, s{S_T0}, 1\ns_lshl_b32 s{S_T0}, s{S_T0}, 15')
    p.e(f's_add_u32 s{S_T2}, s{S_T2}, s{S_T0}\ns_add_u32 s{S_T2}, s{S_T2}, s{S_ROT}')
    sk = p.lab('h5')
    p.e(f's_cmp_ge_u32 s{S_T2}, {3584 * 2048}\ns_cbranch_scc1 {sk}')
    for off in (0, 65536)[:CFG['H5']]:
        p.e(f's_add_u32 s{S_T3}, s{S_T2}, {off}')
        for j in range(4):
            p.waitn(CFG['H5W'] - 1)
            p.vmem(f'buffer_load_dwordx4 v[252:255], v0, {sr(SRD_A, 4)}, s{S_T3} offen offset:{1024 * j}', 'h5')
    p.e(f'{sk}:')


def build_class(cls, ent):
    p = Prog(cls)
    pre = {'P': 'mod', 'PR': 'mod', 'Q': 'q'}.get(cls)
    p.vm = list(ent.vm_pre if pre else ent.vm)
    p.e(f'L_class_{cls}:')
    if pre:
        got_args(p)
    common_setup(p)
    Wattn = CFG['W_' + cls]
    stage = CFG['STAGE'] and not pre
    p.vch = [64, 96, 160, 128] if stage else VCH
    S_COL, S_OUT, S_WB = S_U, S_U + 1, S_U + 2
    S_OUT2, S_COL2 = S_U + 4, S_U + 5
    roles = []
    if pre == 'mod':
        p.srd(SRD_W, P_WMOD, 1024 * 12288)
        p.srd(SRD_A, P_C, 8192)
        p.e(f's_sub_u32 s{S_T1}, s2, 184')
        mod_unit_setup(p, S_T1, S_COL, S_OUT)
        narrow_setup(p, 12288, 10, S_WB, S_COL, 3)
    if pre == 'q':
        p.srd(SRD_W, P_WQ, 1024 * 8192)
        p.srd(SRD_A, P_X, 8192)
        p.e(f's_sub_u32 s{S_COL}, s2, 120\ns_lshl_b32 s{S_COL}, s{S_COL}, 7\ns_add_u32 s{S_OUT}, s{S_COL}, {WS_Q}')
        narrow_setup(p, 8192, 10, S_WB, S_COL, 3)
    if pre:
        p.lane(11, AL_TERMS, tmp=3)
        p.e(f's_lshl_b32 s{S_U + 6}, s{S_WV}, 8')
        push_al_loads(p, 'ACT', SRD_A, 16, 11, S_U + 6)
        push_narrow_weights(p, 'WA', 12288 if pre == 'mod' else 8192, 64, 96, 10, S_WB)
        roles.append(lambda: clear_rows(p, S_OUT, 2048 if pre == 'mod' else 8192, 128))
    if cls == 'O' and CFG['HP3']:
        p.srd(SRD_W, P_WMOD, 1024 * 12288)
        p.e(f's_lshl_b32 s{S_T0}, s2, 3\ns_add_u32 s{S_T0}, s{S_T0}, s{S_WV}\ns_lshr_b32 s{S_T1}, s{S_T0}, 7\ns_lshl_b32 s{S_T1}, s{S_T1}, 10')
        p.e(f's_and_b32 s{S_T0}, s{S_T0}, 127\ns_mul_i32 s{S_T0}, s{S_T0}, {8 * 12288}\ns_add_u32 s{S_T0}, s{S_T0}, s{S_T1}')
        p.lane(10, [(3, 3, 12288), (0, 3, 16)], tmp=3)
        p.vmem(f'buffer_load_dwordx4 v[252:255], v10, {sr(SRD_W, 4)}, s{S_T0} offen offset:384', 'hp3')
    if cls in ('PR', 'R'):
        p.e(f's_sub_u32 s{S_T1}, s2, {216 - 32 if cls == "R" else 200 - 80}')
        mod_unit_setup(p, S_T1, S_COL2, S_OUT2)
        roles.append(lambda: clear_rows(p, S_OUT2, 2048, 128))
    if cls == 'R':
        p.e(f's_sub_u32 s{S_T1}, s2, 216\ns_and_b32 s{S_T0}, s{S_T1}, 3\ns_lshr_b32 s{S_T1}, s{S_T1}, 2')
        p.e(f's_lshl_b32 s{S_OUT}, s{S_T0}, 13\ns_lshl_b32 s{S_COL}, s{S_T1}, 8\ns_add_u32 s{S_OUT}, s{S_OUT}, s{S_COL}\ns_add_u32 s{S_OUT}, s{S_OUT}, {WS_CBP}')
        p.e(f's_mul_i32 s{S_T0}, s{S_T0}, {256 * 12288}\ns_lshl_b32 s{S_COL}, s{S_T1}, 7\ns_add_u32 s{S_COL}, s{S_COL}, s{S_T0}\ns_add_u32 s{S_COL}, s{S_COL}, {72 * 128}')

        def q_clear():
            sk = p.lab('qclr')
            p.e(f's_cmp_ge_u32 s2, 248\ns_cbranch_scc1 {sk}')
            clear_rows(p, S_OUT, 2048, 256)
            p.e(f'{sk}:')
        roles.append(q_clear)
    if cls == 'O':
        p.e(f's_and_b32 s{S_COL}, s2, 7\ns_lshl_b32 s{S_OUT}, s{S_COL}, 13\ns_lshl_b32 s{S_T0}, s{S_W8}, 8')
        p.e(f's_add_u32 s{S_OUT}, s{S_OUT}, s{S_T0}\ns_add_u32 s{S_OUT}, s{S_OUT}, {WS_AP}')
        roles.append(lambda: clear_rows(p, S_OUT, 2048, 256))
    if cls == 'M':
        p.e(f's_sub_u32 s{S_COL}, s2, 64\ns_lshl_b32 s{S_OUT}, s{S_COL}, 13\ns_lshl_b32 s{S_T0}, s{S_WV}, 10')
        p.e(f's_add_u32 s{S_OUT}, s{S_OUT}, s{S_T0}\ns_add_u32 s{S_OUT}, s{S_OUT}, {WS_FP}')

        def fp_clear():
            for k in range(8):
                if k % 4 == 0:
                    p.e(f's_add_u32 s{S_T0}, s{S_OUT}, {1024 * k}')
                p.e(f'buffer_store_dwordx4 v[4:7], v0, {sr(SRD_WS, 4)}, s{S_T0} offen offset:{1024 * (k % 4)} sc1')
        roles.append(fp_clear)
    clears(p, lambda: [r() for r in roles])

    def role_setup():
        if cls == 'O':
            p.srd(SRD_W, P_WO, 4096 * 2048)
            p.lane(12, [(4, 2, 8 * 2048), (0, 4, 16)], tmp=13)
            p.e(f's_lshl_b32 s{S_WB}, s{S_COL}, 3\ns_add_u32 s{S_WB}, s{S_WB}, s{S_WV}\ns_lshl_b32 s{S_WB}, s{S_WB}, 17')
            p.e(f's_lshl_b32 s{S_T0}, s{S_W8}, 8\ns_add_u32 s{S_WB}, s{S_WB}, s{S_T0}')
        if cls in ('PR', 'R'):
            p.srd(SRD_W, P_WMOD, 1024 * 12288)
            p.srd(SRD_A, P_C, 8192)
            narrow_setup(p, 12288, 12, S_WB, S_COL2, 13)
            p.lane(13, AL_TERMS, tmp=14)
            p.e(f's_lshl_b32 s{S_U + 6}, s{S_WV}, 8')
        if cls == 'M':
            p.srd(SRD_W, P_W2, 3584 * 2048)
            p.srd(SRD_A, P_X, 8192)
            p.e(f's_mov_b32 s{S_MASK}, 0xff00ff00\ns_mov_b32 s{S_MASK + 1}, 0xff00ff00')
            p.e(f'v_mov_b32 v12, s{P_W1}\nv_mov_b32 v13, s{P_W1 + 1}\nv_mov_b32 v14, s{P_W3}\nv_mov_b32 v15, s{P_W3 + 1}')
            p.e(f'v_cndmask_b32 v12, v12, v14, {sr(S_MASK)}\nv_cndmask_b32 v13, v13, v15, {sr(S_MASK)}')
            p.e(f's_mul_i32 s{S_T0}, s{S_WV}, {128 * 7168}\ns_lshl_b32 s{S_T1}, s{S_COL}, 7\ns_add_u32 s{S_T0}, s{S_T0}, s{S_T1}')
            p.lane(14, [(4, 2, 8 * 7168), (0, 3, 16)], sadd=S_T0, tmp=15)
            p.e('v_mov_b32 v15, 0\nv_lshl_add_u64 v[12:13], v[14:15], 0, v[12:13]')
            p.e(f's_mov_b32 s{S_C64}, 7168\ns_mov_b32 s{S_C64 + 1}, 0\ns_mov_b32 s{S_C64B}, {25 * 7168}\ns_mov_b32 s{S_C64B + 1}, 0')
            p.lane(14, [(4, 2, 8 * 2048), (0, 4, 16)], tmp=15)
            p.e(f's_lshl_b32 s{S_WB}, s{S_COL}, 17\ns_lshl_b32 s{S_T0}, s{S_WV}, 8\ns_add_u32 s{S_WB}, s{S_WB}, s{S_T0}')

    def sc_issue(model):
        for k, chunk in ((0, 0), (1, 1)):
            for q in range(2):
                p.e(f's_add_u32 s{S_T3}, s{S_U + 6}, {WS_MOD + chunk * 8192 + 4096 * q}')
                s = f'buffer_load_dwordx2 {vr(24 + 4 * k + 2 * q, 2)}, v11, {sr(SRD_WS, 4)}, s{S_T3} offen sc1'
                p.vmem(s, 'SC') if model else p.e(s)

    def w13(u, raw, nd):
        def mk(jj):
            def fn(t):
                p.vmem(f'global_load_dwordx4 {vr(raw + 4 * jj)}, v[12:13], off nt', t)
                p.e(f'v_lshl_add_u64 v[12:13], {sr(S_C64B if jj == 7 else S_C64)}, 0, v[12:13]')
            return fn
        return [(f'WM{u}', mk(jj), nd) for jj in range(8)]

    for t in range(0 if pre else 1, 8):
        if t == 4 and CFG['C3']:
            base = dict(O=(0, 2), Q=(120, 2), R=(216, 3), M=(64, 2), P=(184, 4), PR=(184, 4))
            if cls == CFG['C3W1'] or (CFG['C3W1'] == 'P' and cls == 'PR'):
                push_c3half(p, P_W1, base[cls][0]) if CFG['C3H'] else push_c3(p, 'c3', P_W1, 1024 * 7168, *base[cls])
        if t == 5 and CFG['C3']:
            if cls == CFG['C3W3'] or (CFG['C3W3'] == 'P' and cls == 'PR'):
                push_c3half(p, P_W3, base[cls][0]) if CFG['C3H'] else push_c3(p, 'c3', P_W3, 1024 * 7168, *base[cls])
        if t == 5 and CFG['C3O'] and cls in ('P', 'PR'):
            push_c3(p, 'c3', P_WO, 4096 * 2048, 184, CFG['C3O'], stride=4)
        if t == 1 and CFG['C3Q'] and cls in CFG['C3Q']:
            wb, n, first = dict(O=(0, 1, 0), R=(216, 1, 512), M=(64, 1, 512))[cls]
            push_c3(p, 'c3', P_WQ, 1024 * 8192, wb, n, first)
        if t == 6 and cls == CFG['C3MOD']:
            push_c3mod(p, dict(O=0, Q=120, M=64)[cls])
        if pre == 'q' and t == 0:
            push_cnt(p, 14, 'CNTA', 128)
        if pre == 'q' and t == CFG['SC_AT']:
            p.push('SC', lambda tg: sc_issue(True), 'cnta')
        if pre and t == 6:
            push_cnt(p, 10)
        push_page(p, SRD_K, f'K{t}', t, R_K + 16 * t, 'pre' if (pre == 'mod' and t == CFG['P_HOLD']) else None)
    vv = capture(p, lambda: push_v(p, 0, 'pre' if pre else None)) + capture(p, lambda: push_v(p, 1, 'pre' if pre else None))
    qi = capture(p, lambda: push_q(p, 11))
    if stage:
        vv += capture(p, lambda: push_v_lds(p, 2))
    if pre:
        p.stream += qi + vv
    else:
        k = CFG['Q_AT'] + (CFG['STAGE'] if stage else 0)
        p.stream += vv[:k - 6] + capture(p, lambda: push_cnt(p, 10)) + vv[k - 6:k] + qi + vv[k:]
    v3 = capture(p, lambda: push_v(p, 3, 'K01' if stage else 'pv0'))
    ml = capture(p, lambda: push_ml(p))
    if not stage:
        push_v(p, 2, 'K01')
    p.stream += v3[:3] + ml + v3[3:] if pre else v3
    mark = len(p.stream)
    if cls == 'O':
        push_wide_rows(p, 'WO0', 192, 12, S_WB, 0, 'K47')
        push_wide_rows(p, 'WO1', 224, 12, S_WB, 32)
    if cls in ('R', 'PR'):
        wb = capture(p, lambda: push_narrow_weights(p, 'WB', 12288, 192, 224, 12, S_WB))
        wb = [(t, f, 'K47') for t, f, _ in wb]
        wb.insert(0 if cls == 'R' else 8, ('ACT2', capture(p, lambda: push_al_loads(p, 'ACT2', SRD_A, 96, 13, S_U + 6))[0][1], 'pv1'))
        k = 99 if cls == 'R' else CFG['P_EARLY']
        p.stream += wb[:k] + [(t, f, 'ost') for t, f, _ in wb[k:]]
    if cls == 'M':
        l3 = CFG['LATE3']
        post = w13(0, 192, 'K47') + w13(1, 224, None) + w13(2, 96, 'pv1') + w13(3, 128, 'modok' if l3 == 2 else 'pv3')
        post.insert(len(post) - (8 if l3 else 0), ('MOD', lambda t: m_mod_issue(p, True), 'p2'))
        p.stream += post
        p.w2raw = (128, 96) if l3 else (96, 128)
        p.w2late = capture(p, lambda: push_wide_rows(p, 'WM4', p.w2raw[0], 14, S_WB, 0)) + capture(p, lambda: push_wide_rows(p, 'WM5', p.w2raw[1], 14, S_WB, 32))
    if not pre:
        p.stream.insert(mark + CFG['ML_AT_M' if cls == 'M' else 'ML_AT'], ml[0])

    p.W = CFG['W_PRE'] if pre == 'mod' else CFG['W_PREQ'] if pre else CFG['W_INIT']
    while p.can_pump() and len(p.vm) < p.W and p.stream[0][0] not in ('CNTA', 'K0'):
        p.pump(1)
    p.stamp('first')
    if not pre:
        touch(p, cls)
    common_setup2(p)
    k_setup(p)
    arrive(p, {'mod': [128, 0], 'q': [0], None: []}[pre])
    p.W = Wattn if pre else CFG['W_LOW']
    if CFG['PRIO'] == 'all':
        prio_young(p, 1)
    if not pre:
        k_trans(p, 0)
        p.stamp('k0')
    if pre == 'mod':
        p.need('ACT')
        silu_to_xa(p, 16, list(range(20, 28)), 12)
        p.need('WA0')
        p.perm_chunk(64, 32)
        p.need('WA1')
        p.stamp('w_landed')
        p.perm_chunk(96, 64)
        narrow_gemv(p, 32, 64, 96, 112, [12, 13, 14], (S_OUT, 2048))
        p.release('pre')
        p.stamp('pre_done')
    if pre == 'q':
        p.need('ACT')
        X = list(range(40, 48))
        for d in range(4):
            p.unpack(16 + d, X[2 * d], X[2 * d + 1])
        layernorm(p, X, list(range(48, 60)), True)
        for d in range(4):
            p.e(f'v_cvt_pk_bf16_f32 v{16 + d}, v{X[2 * d]}, v{X[2 * d + 1]}')
        p.need('WA0')
        p.perm_chunk(64, 32)
        p.need('WA1')
        p.stamp('w_landed')
        p.perm_chunk(96, 64)
        check_cnt(p, 14, 'CNTA', 128, 32)
    for t in range(0 if pre else 1, 8):
        if not pre and t == CFG[dict(M='T_LOW_M', R='T_LOW_R').get(cls, 'T_LOW')]:
            p.W = Wattn
        if t == CFG['XAT'] and cls in CFG['XCLS'].split('+'):
            p.slow = CFG['XSLOW']
        k_trans(p, t)
        if not pre and t == 1:
            count_b(p)
        if pre == 'q' and t == CFG['SC_AT'] - 1:
            p.need('SC')
            p.burst(CFG['Q_BURST'])
            p.stamp('sc_landed')
            p.check_retry(lambda: sc_issue(False), list(range(24, 32)), 12)
            p.stamp('sc_ok')
            X = list(range(96, 104))
            for d in range(4):
                p.unpack(16 + d, X[2 * d], X[2 * d + 1])
            one_plus(p, [28, 29, 30, 31], [104, 105])
            modulate(p, X, [28, 29, 30, 31], [24, 25, 26, 27], [104, 105], [16, 17, 18, 19])
            xa_base(p, S_T0)
            p.lane(12, XA_TERMS, sadd=S_T0, tmp=13)
            p.e('ds_write_b64 v12, v[16:17]\nds_write_b64 v12, v[18:19] offset:512')
            narrow_gemv(p, 32, 64, 96, 112, [12, 13, 14], (S_OUT, 8192))
            p.release('pre')
            p.stamp('pre_done')
        if pre and t == 6:
            check_cnt(p, 10)
    role_setup()
    p.stamp('k_done')
    if not pre:
        check_cnt(p, 10)
    if CFG['PRIO'] in ('qk', 'qk+'):
        prio_young(p, 1)
    qk_softmax(p, 11)
    if CFG['PRIO'] == 'qk':
        p.e('s_setprio 0')
    p.release('sm')
    pv_chunk(p, 0, 160)
    p.release('pv0')
    if stage:
        v_from_lds(p, 2, 10)
    pv_chunk(p, 1, 64)
    p.release('pv1')
    if stage:
        p.e('s_waitcnt lgkmcnt(0)')
    if CFG['W_END'] and pre:
        p.W = max(p.W, CFG['W_END'])
    pv_chunk(p, 2, 64)
    p.stamp('v2')
    if pre:
        ml_scale(p)
        p.stamp('ml_ok')
    pv_chunk(p, 3, 64)
    p.release('pv3')
    p.stamp('pv_done')
    if cls == 'R':
        p.need('ACT2')
        silu_to_xa(p, 96, list(range(100, 108)), 10)
    if not pre:
        ml_scale(p)
        p.stamp('ml_ok')
        p.burst(CFG['E_BURST'])
    attn_epilogue(p)
    p.release('ost')
    if cls == 'M':
        p.W = max(p.W, CFG['W_POST'])
    if cls == 'PR':
        p.W = CFG['W_POSTP']
    if cls == 'O':
        p.need('WO0')
        p.perm_chunk(192, O_F, fs=8)
        while p.can_pump():
            p.pump(1)
        o_setup(p, S_COL, S_OUT)
        if CFG['EARLY3']:
            p.poll_first(E3_OFFS, S_U + 7, 13, O_E3)
        p.need('WO1')
        p.perm_chunk(224, O_F + 4, fs=8)
        p.stamp('w_ready')
        p.e('L_otail:')
        o_tail(p, S_OUT)
    if cls == 'PR':
        p.need('ACT2')
        silu_to_xa(p, 96, list(range(100, 108)), 10)
        p.perm_chunk(192, 32)
        p.need('WB1')
        p.perm_chunk(224, 64)
        narrow_gemv(p, 32, 64, 96, 112, [12, 13, 14], (S_OUT2, 2048))
        p.stamp('post_done')
    if cls == 'R':
        p.need('WB0')
        while p.can_pump():
            p.pump(1)
        quarter_loads(p, S_COL)
        p.perm_chunk(192, 32)
        p.need('WB1')
        p.perm_chunk(224, 64)
        narrow_gemv(p, 32, 64, 96, 112, [12, 13, 14], (S_OUT2, 2048), before_barrier=lambda: quarter_compute(p),
                    upper=lambda: quarter_final(p, S_OUT))
        p.stamp('q_done')
    if cls == 'M':
        m_tail(p, S_COL, S_OUT)
    if cls in ('Q', 'R', 'P') and CFG['GATE']:
        helper_gate(p, cls)
    if cls in ('Q', 'R', 'P') and CFG['H6']:
        h6_prefetch(p, cls)
    if cls in ('Q', 'R', 'P') and CFG['H5']:
        h5_prefetch(p, cls)
    assert not p.stream, [t[0] for t in p.stream]
    finish(p)
    return p


O_SEL, O_E3, O_B, O_F = 16, 64, 24, 96
E3_OFFS = [(t >> 2) * 2 * 4 * 16 * 2048 + (t & 3) * 4 * 2048 for t in range(8)]
RED_W = [(4, 2, 512), (0, 4, 32)]


def o_setup(p, S_KS, S_OUT):
    selectors(p, O_SEL, 10)
    p.lane(13, [(3, 1, 4 * 16 * 2048), (4, 2, 2048), (0, 3, 16)], tmp=10)
    p.e(f's_lshr_b32 s{S_T0}, s{S_KS}, 1\ns_lshl_b32 s{S_T0}, s{S_T0}, 15\ns_and_b32 s{S_T1}, s{S_KS}, 1\ns_lshl_b32 s{S_T1}, s{S_T1}, 10')
    p.e(f's_add_u32 s{S_T0}, s{S_T0}, s{S_T1}\ns_lshl_b32 s{S_T1}, s{S_WV}, 7\ns_add_u32 s{S_T0}, s{S_T0}, s{S_T1}\ns_add_u32 s{S_U + 7}, s{S_T0}, {WS_OP}')
    xa_base(p, S_T0)
    p.lane(14, [(5, 1, 256), (3, 1, 128), (0, 3, 8), (4, 1, 4)], sadd=S_T0, tmp=10)
    sp_addrs(p, O_B, 128, S_T0, 0, 10, O_B + 2)
    p.e(f's_lshl_b32 s{S_T0}, s{S_WV}, 11\ns_add_u32 s{S_T0}, s{S_T0}, {L_RED}')
    p.lane(15, RED_W, sadd=S_T0, tmp=10)
    p.e(f's_lshl_b32 s{S_T0}, s{S_WV}, 9\ns_add_u32 s{S_T0}, s{S_T0}, {L_RED}')
    p.lane(O_B + 4, [(0, 6, 8)], sadd=S_T0)
    p.e(f's_lshl_b32 s{S_T0}, s{S_WV}, 11\ns_add_u32 s{S_OUT}, s{S_OUT}, s{S_T0}')
    for k in range(20):
        p.e(f'v_mov_b32 v{32 + k}, 0')


def o_tail(p, S_OUT):
    ACC, D, OUT, A = 32, 48, 52, 160
    p.waitn(0)
    p.poll_rr(E3_OFFS, S_U + 7, 13, O_E3, 10,
              lambda t, r: p.e(f'v_mfma_f32_16x16x32_bf16 {vr(D)}, {vr(O_SEL + 4 * (t >> 2))}, {vr(r)}, {vr(D)}'), CFG['EARLY3'], CFG['SL3'])
    p.stamp('e3_ok')
    p.e(f'v_cvt_pk_bf16_f32 v{D}, v{D}, v{D + 1}\nv_cvt_pk_bf16_f32 v{D + 1}, v{D + 2}, v{D + 3}')
    p.e(f'ds_write2_b32 v14, v{D}, v{D + 1} offset0:0 offset1:16')
    p.e(f'ds_read_b128 {vr(A)}, v{O_B}\nds_read_b128 {vr(A + 4)}, v{O_B + 1}\ns_waitcnt lgkmcnt(0)')
    p.stamp('o1')
    sp_gemv(p, O_F, A, ACC, O_B + 2)
    sp_fold(p, ACC, OUT)
    p.e(f'ds_write_b128 v15, {vr(OUT)}\nds_write_b128 v15, {vr(OUT + 4)} offset:16')
    sk = p.lab('ofin')
    p.stamp('o2')
    p.e(f's_waitcnt lgkmcnt(0)\ns_barrier')
    p.stamp('o3')
    p.e(f's_cmp_ge_u32 s{S_WV}, 4\ns_cbranch_scc1 {sk}')
    B = 168
    for k in range(4):
        p.e(f'ds_read2st64_b64 {vr(B + 4 * k)}, v{O_B + 4} offset0:{8 * k} offset1:{8 * k + 4}')
    p.e('s_waitcnt lgkmcnt(0)')
    p.tree(B, (8, 4, 2))
    p.e(f'v_cvt_pk_bf16_f32 v{B + 4}, v{B}, v{B + 1}')
    quad_pack_store(p, B + 4, 9, S_OUT)
    p.e(f'{sk}:')
    p.stamp('a_stored')


CB_OFFS = [WS_CBP - 2048 + 8192 * kq + 4096 * q for kq in range(4) for q in range(2)]


def m_mod_issue(p, first):
    if first:
        p.lane(112, AL_TERMS, tmp=2)
        p.lane(113, [(5, 1, 2048), (0, 4, 32), (4, 1, 16)], tmp=2)
        p.e(f's_lshl_b32 s{S_U + 6}, s{S_WV}, 8\ns_lshl_b32 s{S_U + 5}, s{S_WV}, 9')
        for k in range(104, 108):
            p.e(f'v_mov_b32 v{k}, 0')
        push_al_loads(p, None, SRD_A, 96, 112, S_U + 6)(False)
    hi, jn = p.lab('cbhi'), p.lab('cbj')
    p.e(f's_cmp_ge_u32 s{S_WV}, 4\ns_cbranch_scc1 {hi}')
    for q in range(2):
        p.e(f's_add_u32 s{S_T3}, s{S_U + 6}, {WS_MOD + 4 * 8192 + 4096 * q}')
        p.e(f'buffer_load_dwordx2 {vr(104 + 2 * q, 2)}, v112, {sr(SRD_WS, 4)}, s{S_T3} offen sc1')
    if first:
        p.e(f's_branch {jn}\n{hi}:')
        for t, off in enumerate(CB_OFFS):
            p.e(f's_add_u32 s{S_T3}, s{S_U + 5}, {off}')
            p.e(f'buffer_load_dwordx4 {vr(160 + 4 * t)}, v113, {sr(SRD_WS, 4)}, s{S_T3} offen sc1')
        p.e(f'{jn}:')
    else:
        p.e(f'{hi}:')
    for k, chunk in ((0, 2), (2, 3)):
        for q in range(2):
            p.e(f's_add_u32 s{S_T3}, s{S_U + 6}, {WS_MOD + chunk * 8192 + 4096 * q}')
            s = f'buffer_load_dwordx2 {vr(100 + 4 * k + 2 * q, 2)}, v112, {sr(SRD_WS, 4)}, s{S_T3} offen sc1'
            p.vmem(s, 'MOD') if first else p.e(s)


def m_tail(p, S_MI, S_OUT):
    raw = [192, 224, 96, 128]
    F = [32, 36, 192, 196]
    F0, F1 = 32, 192

    def w2_issue(a, b):
        for t, f, _ in p.w2late[a:b]:
            f(t)
    SP, SEL, D = 160, 16, 24
    IDX, A0 = 4, 5
    p.fill()
    for u in (0, 1, 2):
        p.need(f'WM{u}')
        p.stamp(f'wm{u}')
        p.perm_chunk(raw[u], F[u], fs=8)
    p.release('p2')
    while p.can_pump():
        p.pump(1)
    if CFG['E4KS']:
        selectors_b(p, SEL, 2)
        p.lane(11, [(4, 2, 2048), (0, 4, 16)], tmp=2)
    else:
        selectors(p, SEL, 2)
        p.lane(11, [(4, 2, 8192), (0, 4, 16)], tmp=2)
    p.e(f's_add_u32 s{S_U + 7}, s{S_U + 6}, {WS_AP}')
    xa_base(p, S_T0)
    sp_addrs(p, A0, 256, S_T0, 0, 2, IDX)
    VX1 = 12
    l3 = CFG['LATE3']
    E4R = p.w2raw[1]

    def late_addrs():
        xa_base(p, S_T0)
        p.lane(13, [(5, 1, 256), (0, 4, 8), (4, 1, 4)], sadd=S_T0, tmp=2)
        p.e(f's_add_u32 s{S_T0}, s{S_U + 6}, {L_X1}')
        p.lane(VX1, AL_TERMS, sadd=S_T0, tmp=2)

    def perm3():
        p.need('WM3')
        p.stamp('wm3')
        p.perm_chunk(raw[3], F[3], fs=8)
    p.e(f's_lshl_b32 s{S_T0}, s{S_WV}, 11\ns_add_u32 s{S_T0}, s{S_T0}, {L_RED}')
    p.lane(15, RED_W, sadd=S_T0, tmp=2)
    p.e(f's_lshr_b32 s{S_T0}, s{S_WV}, 1\ns_lshl_b32 s{S_T0}, s{S_T0}, 9\ns_and_b32 s{S_T1}, s{S_WV}, 1\ns_lshl_b32 s{S_T2}, s{S_T1}, 7')
    p.e(f's_add_u32 s{S_T2}, s{S_T2}, s{S_T0}\ns_add_u32 s{S_T2}, s{S_T2}, {L_RED}')
    p.lane(8, [(5, 1, 256), (0, 5, 4)], sadd=S_T2, tmp=2)
    p.e(f's_lshr_b32 s{S_T0}, s{S_T0}, 2\ns_lshl_b32 s{S_T1}, s{S_T1}, 5\ns_add_u32 s{S_T0}, s{S_T0}, s{S_T1}\ns_add_u32 s{S_T0}, s{S_T0}, {L_X2}')
    p.lane(9, [(1, 1, 64), (2, 3, 4), (0, 1, 2)], sadd=S_T0, tmp=2)
    p.lane(7, [(2, 2, 256), (4, 2, 64), (0, 2, 16)], tmp=2)
    p.e(f's_lshl_b32 s{S_T0}, s{S_WV}, 5\ns_add_u32 s{S_T0}, s{S_T0}, {L_STATS}')
    p.lane(10, [(5, 1, 8)], sadd=S_T0)
    p.lane(3, [(0, 3, 32), (5, 1, 8)], const=L_STATS, tmp=2)
    offs = [t * 8192 if CFG['E4KS'] else (t & 1) * 4 * 8192 + (t >> 1) * 2048 for t in range(8)]
    if not l3:
        perm3()
        p.poll_first(offs, S_U + 7, 11, E4R)
        late_addrs()
    for k in range(8):
        p.e(f'v_mov_b32 v{D + k}, 0')
    p.need('MOD')
    p.stamp('mod_landed')
    def packed(chunk, reg):
        txt = '\n'.join(f's_add_u32 s{S_T3}, s{S_U + 6}, {WS_MOD + chunk * 8192 + 4096 * q}\n'
                        f'buffer_load_dwordx2 {vr(reg + 2 * q, 2)}, v112, {sr(SRD_WS, 4)}, s{S_T3} offen sc1' for q in range(2))
        return (txt, list(range(reg, reg + 4)))

    def partial(kq):
        txt = '\n'.join(f's_add_u32 s{S_T3}, s{S_U + 5}, {CB_OFFS[2 * kq + q]}\n'
                        f'buffer_load_dwordx4 {vr(160 + 8 * kq + 4 * q)}, v113, {sr(SRD_WS, 4)}, s{S_T3} offen sc1' for q in range(2))
        return (txt, list(range(160 + 8 * kq, 168 + 8 * kq)))
    hi, jn = p.lab('mhi'), p.lab('mjn')
    p.e(f's_cmp_ge_u32 s{S_WV}, 4\ns_cbranch_scc1 {hi}')
    p.poll_items([packed(2, 100), packed(4, 104), packed(3, 108)], 2)
    p.e(f's_branch {jn}\n{hi}:')
    p.poll_items([packed(2, 100), packed(3, 108)] + [partial(k) for k in range(4)], 2)
    p.e(f'{jn}:')
    if l3 == 2:
        p.release('modok')
        p.burst(8)
    sk = p.lab('cbs')
    p.e(f's_cmp_lt_u32 s{S_WV}, 4\ns_cbranch_scc1 {sk}')
    for k in range(16):
        p.e(f'v_add_f32 v{160 + k}, v{160 + k}, v{176 + k}')
    for k in range(8):
        p.e(f'v_add_f32 v{160 + k}, v{160 + k}, v{168 + k}')
    for d in range(4):
        p.e(f'v_cvt_pk_bf16_f32 v{104 + d}, v{160 + 2 * d}, v{161 + 2 * d}')
    p.e(f'{sk}:')
    p.e('L_mtail:')
    one_plus(p, list(range(104, 108)), [2, 114])
    for k, dst in enumerate((SP, SP + 16, SP + 8, SP + 24)):
        for d in range(4):
            p.unpack(96 + 4 * k + d, dst + 2 * d, dst + 2 * d + 1)
    if l3:
        p.poll_first(offs, S_U + 7, 11, E4R)
        late_addrs()
        perm3()
    p.stamp('w_ready')
    k0 = CFG['W2PRE']
    w2_issue(0, k0)
    p.wait('poll')
    keep = list(p.vm)

    def acc4(t, r):
        if CFG['E4KS']:
            for q in range(2):
                p.e(f'v_mfma_f32_16x16x32_bf16 {vr(D + 4 * q)}, {vr(SEL + 4 * q)}, {vr(r)}, {vr(D + 4 * q)}')
        else:
            p.e(f'v_mfma_f32_16x16x32_bf16 {vr(D + 4 * (t >> 2))}, {vr(SEL + 4 * ((t >> 1) & 1))}, {vr(r)}, {vr(D + 4 * (t >> 2))}')
    p.poll_rr(offs, S_U + 7, 11, E4R, 2, acc4, True, CFG['SL4'])
    p.vm = keep
    p.stamp('e4_ok')
    X = list(range(D, D + 8))
    w2_issue(k0, k0 + 4)
    for k in range(0, 8, 2):
        p.e(f'v_pk_fma_f32 {vr(SP + k, 2)}, {vr(X[k], 2)}, {vr(SP + 16 + k, 2)}, {vr(SP + k, 2)}')
    PK = SP + 16
    for d in range(4):
        p.e(f'v_cvt_pk_bf16_f32 v{PK + d}, v{SP + 2 * d}, v{SP + 2 * d + 1}')
    for d in range(4):
        p.unpack(PK + d, X[2 * d], X[2 * d + 1])
    p.e(f'ds_write_b64 v{VX1}, {vr(PK, 2)}\nds_write_b64 v{VX1}, {vr(PK + 2, 2)} offset:4096')
    for q in range(2):
        x = X[4 * q:4 * q + 4]
        p.e(f'v_add_f32 v{SP + 2 * q}, v{x[0]}, v{x[1]}\nv_mul_f32 v{SP + 2 * q + 1}, v{x[0]}, v{x[0]}\nv_add_f32 v{SP + 4 + q}, v{x[2]}, v{x[3]}')
    for r in (1, 2, 3):
        for q in range(2):
            p.e(f'v_fmac_f32 v{SP + 2 * q + 1}, v{X[4 * q + r]}, v{X[4 * q + r]}')
    p.e(f'v_add_f32 v{SP}, v{SP}, v{SP + 4}\nv_add_f32 v{SP + 2}, v{SP + 2}, v{SP + 5}')
    R4 = [SP, SP + 2, SP + 1, SP + 3]
    p.rowsum(R4, (8, 4, 2, 1))
    p.swapred('v_add_f32', 16, R4, [SP + 4, SP + 5, SP + 6, SP + 7])
    p.stamp('t1')
    p.exec_set(0x0000000100000001)
    p.e(f'ds_write_b64 v10, {vr(SP, 2)}\nds_write_b64 v10, {vr(SP + 2, 2)} offset:16')
    p.exec_all()
    for k in range(0, 8, 2):
        p.e(f'v_pk_mul_f32 {vr(X[k], 2)}, {vr(X[k], 2)}, {vr(SP + 8 + k, 2)}')
    p.e('s_waitcnt lgkmcnt(0)\ns_barrier')
    p.e(f'ds_read_b64 {vr(SP, 2)}, v3\nds_read_b64 {vr(SP + 2, 2)}, v3 offset:16')
    w2_issue(k0 + 4, k0 + 8)
    p.e('s_waitcnt lgkmcnt(0)')
    p.stamp('t2')
    p.rowsum(R4, (4, 2, 1))
    for q in range(2):
        p.e(f'v_mul_f32 v{SP + 2 * q}, 0x3a800000, v{SP + 2 * q}\nv_mul_f32 v{SP + 2 * q + 1}, 0x3a800000, v{SP + 2 * q + 1}')
    for q in range(2):
        p.e(f'v_fma_f32 v{SP + 2 * q + 1}, -v{SP + 2 * q}, v{SP + 2 * q}, v{SP + 2 * q + 1}')
    for q in range(2):
        p.e(f'v_max_f32 v{SP + 2 * q + 1}, 0, v{SP + 2 * q + 1}')
    for q in range(2):
        p.e(f'v_add_f32 v{SP + 2 * q + 1}, 0x3727c5ac, v{SP + 2 * q + 1}')
    for q in range(2):
        p.e(f'v_rsq_f32 v{SP + 2 * q + 1}, v{SP + 2 * q + 1}')
    for k in range(0, 8, 2):
        p.e(f'v_pk_fma_f32 {vr(X[k], 2)}, {vr(SP + 8 + k, 2)}, {vr(SP + 2 * (k >> 2), 2)}, {vr(X[k], 2)} op_sel:[0,0,0] op_sel_hi:[1,0,1] neg_lo:[0,1,0] neg_hi:[0,1,0]')
    for k in range(0, 8, 2):
        p.e(f'v_pk_fma_f32 {vr(SP + 24 + k, 2)}, {vr(X[k], 2)}, {vr(SP + 2 * (k >> 2), 2)}, {vr(SP + 24 + k, 2)} op_sel:[0,1,0] op_sel_hi:[1,1,1]')
    for d in range(4):
        p.e(f'v_cvt_pk_bf16_f32 v{SP + d}, v{SP + 24 + 2 * d}, v{SP + 24 + 2 * d + 1}')
    p.e(f'ds_write2_b32 v13, v{SP}, v{SP + 1} offset0:0 offset1:32\nds_write2_b32 v13, v{SP + 2}, v{SP + 3} offset0:128 offset1:160')
    p.stamp('h2')
    A, ACC, OUT = SP, SP + 16, D
    for pi in range(2):
        p.e(f'ds_read_b128 {vr(A + 8 * pi)}, v{A0} offset:{64 * pi}\nds_read_b128 {vr(A + 8 * pi + 4)}, v{A0 + 1} offset:{64 * pi}')
    for k in range(16):
        p.e(f'v_mov_b32 v{ACC + k}, 0')
    GB, X1 = 232, 236

    def misc():
        p.lane(10, [(2, 2, 2048), (0, 2, 16), (4, 1, 8)], tmp=3)
        p.e(f's_lshl_b32 s{S_U + 6}, s{S_MI}, 6\ns_add_u32 s{S_T2}, s{S_U + 6}, {WS_MOD + 5 * 8192}')
        sp_addrs(p, A0, 128, None, L_X2, 2)
    p.e('s_waitcnt lgkmcnt(2)')
    interleave(p, lines_of(p, lambda: sp_gemv(p, F0, A, ACC, IDX)), lines_of(p, misc), 3)
    w2_issue(k0 + 8, 16)
    p.e('s_waitcnt lgkmcnt(0)')
    p.wait('WM4')
    interleave(p, lines_of(p, lambda: sp_gemv(p, F1, A + 8, ACC, IDX)), lines_of(p, lambda: p.perm_chunk(p.w2raw[0], F0, fs=8)), 4)
    sp_fold(p, ACC, OUT)
    p.e(f'ds_write_b128 v15, {vr(OUT)}\nds_write_b128 v15, {vr(OUT + 4)} offset:16')
    p.stamp('t3')
    for k in range(16):
        p.e(f'v_mov_b32 v{ACC + k}, 0')
    p.e('s_waitcnt lgkmcnt(0)\ns_barrier')
    p.stamp('t5')
    G = 224
    for k in range(4):
        p.e(f'ds_read2st64_b32 {vr(G + 2 * k, 2)}, v8 offset0:{16 * k} offset1:{16 * k + 8}')
    p.wait('WM5')
    p.stamp('wm5')

    def gb_issue():
        p.e(f'buffer_load_dwordx2 {vr(GB, 2)}, v10, {sr(SRD_WS, 4)}, s{S_T2} offen sc1')
    perm5 = lines_of(p, lambda: p.perm_chunk(p.w2raw[1], F0 + 4, fs=8))
    p.L += perm5[:20]
    p.e('s_waitcnt lgkmcnt(0)')
    p.tree(G, (4, 2, 1))
    chain = f"""v_cvt_pk_bf16_f32 v{G}, v{G}, v{G}
    v_and_b32 v{G}, 0xffff0000, v{G}
    v_mov_b32 v{G + 1}, v{G}
    @
    @
    v_permlane32_swap_b32 v{G}, v{G + 1}
    v_mul_f32 v{G + 2}, {hex(LOG2E | 0x80000000)}, v{G}
    v_exp_f32 v{G + 2}, v{G + 2}
    @
    v_add_f32 v{G + 2}, 1.0, v{G + 2}
    v_rcp_f32 v{G + 2}, v{G + 2}
    @
    v_mul_f32 v{G}, v{G}, v{G + 2}
    v_mul_f32 v{G}, v{G}, v{G + 1}
    v_cvt_pk_bf16_f32 v{G}, v{G}, v{G}"""
    rest = perm5[20:]
    for ln in chain.split('\n'):
        p.e(rest.pop(0) if ln.strip() == '@' else ln)
    p.exec_set(0xffffffff)
    p.e(f'ds_write_b16 v9, v{G}')
    p.exec_all()
    p.stamp('t6')
    p.L += rest
    sk = p.lab('gb')
    p.e(f's_cmp_lg_u32 s{S_WV}, 0\ns_cbranch_scc1 {sk}\ns_cmp_ge_u32 s{S_MI}, 32\ns_cbranch_scc1 {sk}')
    gb_issue()
    p.e(f'{sk}:')
    p.e('s_waitcnt lgkmcnt(0)\ns_barrier')
    p.stamp('t7')
    p.e(f'ds_read_b128 {vr(A)}, v{A0}\nds_read_b128 {vr(A + 4)}, v{A0 + 1}\ns_waitcnt lgkmcnt(0)')
    sp_gemv(p, F0, A, ACC, IDX)
    sp_fold(p, ACC, OUT)
    for d in range(4):
        p.e(f'v_cvt_pk_bf16_f32 v{G + d}, v{OUT + 2 * d}, v{OUT + 2 * d + 1}')
    p.e(f'buffer_store_dwordx4 {vr(G)}, v7, {sr(SRD_WS, 4)}, s{S_OUT} offen sc1')
    p.stamp('f_stored')
    end = p.lab('mend')
    multi = CFG['E5W'] > 1
    p.e(f's_cmp_ge_u32 s{S_MI}, 32\ns_cbranch_scc1 {end}')
    if not multi:
        p.e(f's_cmp_lg_u32 s{S_WV}, 0\ns_cbranch_scc1 {end}')
    p.lane(11, [(4, 2, 8192), (0, 4, 16)], tmp=3)
    p.e(f's_lshl_b32 s{S_U + 7}, s{S_MI}, 8\ns_add_u32 s{S_U + 7}, s{S_U + 7}, {WS_FP}')
    for k in range(4):
        p.e(f'v_mov_b32 v{D + k}, 0')

    def consts():
        p.srd(SRD_A, P_OUT, 8192)
        p.e(f'v_add_u32 v2, s{S_U + 6}, v10\nds_read_b64 {vr(X1 + 4, 2)}, v2 offset:{L_X1}\ns_waitcnt vmcnt(1) lgkmcnt(0)')
        p.check_retry(gb_issue, [GB, GB + 1], 3)
        p.unpack(GB + 1, GB + 2, GB + 3)
        p.unpack(GB, 4, GB + 1)
        p.e(f'v_mov_b32 v{GB}, v4')
        p.unpack(X1 + 4, X1, X1 + 1)
        p.unpack(X1 + 5, X1 + 2, X1 + 3)
    acc5 = lambda t, r: p.e(f'v_mfma_f32_16x16x32_bf16 {vr(D)}, {vr(SEL)}, {vr(r)}, {vr(D)}')
    if not multi:
        consts()
        p.stamp('t8')
        p.poll_pipe([t * 4 * 8192 for t in range(14)], S_U + 7, 11, (64, 120), 3, acc5, CFG['P5'])
        p.stamp('e5_ok')
    else:
        w0, jn = p.lab('w0'), p.lab('jn')
        p.e(f's_cmp_eq_u32 s{S_WV}, 0\ns_cbranch_scc1 {w0}')
        p.e(f's_lshl_b32 s{S_T0}, s{S_WV}, 16\ns_add_u32 s{S_U + 7}, s{S_U + 7}, s{S_T0}\ns_sub_u32 s{S_U + 7}, s{S_U + 7}, 65536')
        p.e(f's_lshl_b32 s{S_T0}, s{S_WV}, 10\nv_add_u32 v4, s{S_T0}, v0')
        p.poll_first([0, 4 * 8192], S_U + 7, 11, 64)
        if CFG['E4KS']:
            selectors(p, SEL, 2, 4)
        p.e('s_waitcnt vmcnt(0)')
        p.poll_rr([0, 4 * 8192], S_U + 7, 11, 64, 3, acc5, True)
        p.e(f'ds_write_b128 v4, {vr(D)}\ns_waitcnt lgkmcnt(0)\ns_branch {jn}\n{w0}:')
        consts()
        p.stamp('t8')
        p.e(f'{jn}:\ns_barrier\ns_cmp_lg_u32 s{S_WV}, 0\ns_cbranch_scc1 {end}')
        for k in range(7):
            p.e(f'ds_read_b128 {vr(64 + 4 * k)}, v0 offset:{1024 + 1024 * k}')
        p.stamp('e5_ok')
        p.e('s_waitcnt lgkmcnt(0)')
        for a_, b_ in ((64, 80), (68, 84), (72, 88), (68, 76), (64, 72)):
            for r in (0, 2):
                p.e(f'v_pk_add_f32 {vr(a_ + r, 2)}, {vr(a_ + r, 2)}, {vr(b_ + r, 2)}')
        for r in (0, 2):
            p.e(f'v_pk_add_f32 {vr(D + r, 2)}, {vr(64 + r, 2)}, {vr(68 + r, 2)}')
    for r in (0, 2):
        p.e(f'v_pk_fma_f32 {vr(D + r, 2)}, {vr(D + r, 2)}, {vr(GB + r, 2)}, {vr(X1 + r, 2)}')
    p.e(f'v_cvt_pk_bf16_f32 v{D}, v{D}, v{D + 1}\nv_cvt_pk_bf16_f32 v{D + 1}, v{D + 2}, v{D + 3}')
    p.exec_set(0xffffffff)
    p.e(f'buffer_store_dwordx2 {vr(D, 2)}, v2, {sr(SRD_A, 4)}, 0 offen')
    p.exec_all()
    p.e(f'{end}:')


def generate():
    hdr = open('cdna_kernels/' + NAME + '.s.ref').read().split('\n')
    out = [l for l in hdr if l.startswith(';') and '@launch' not in l]
    out.append(f'; @launch grid=(256,1,1) block=(512,1,1) lds={L_TOTAL}')
    out += ['.amdgcn_target "amdgcn-amd-amdhsa--gfx950"', '.text', f'.globl {NAME}_kernel', '.p2align 8',
            f'.type {NAME}_kernel,@function', f'{NAME}_kernel:']
    e = Prog('E')
    entry(e)
    body = list(e.L)
    names = {}
    for cls in ('O', 'M', 'Q', 'P', 'PR', 'R'):
        p = build_class(cls, e)
        body.append('.p2align 6')
        body += p.L
        names[cls] = p.stamp_names
    body += ['L_end:', 's_endpgm']
    out += pad_hazards(body)
    out += ['.fill 64, 4, 0xbf800000', '.p2align 8', 'L_code_end:']
    out += ['.section .rodata,"a"', '.p2align 6', f'.amdhsa_kernel {NAME}_kernel',
            '  .amdhsa_next_free_vgpr 256', '  .amdhsa_next_free_sgpr 102', '  .amdhsa_accum_offset 256',
            '  .amdhsa_group_segment_fixed_size 0', '  .amdhsa_kernarg_size 112', '  .amdhsa_user_sgpr_count 2',
            '  .amdhsa_user_sgpr_kernarg_segment_ptr 1', '  .amdhsa_system_sgpr_workgroup_id_x 1',
            '  .amdhsa_float_denorm_mode_32 3', '.end_amdhsa_kernel']
    return '\n'.join(out) + '\n', names


if __name__ == '__main__':
    path = sys.argv[1]
    for kv in sys.argv[2:]:
        k, v = kv.split('=')
        CFG[k] = eval(v)
    txt, names = generate()
    open(path, 'w').write(txt)
    import json
    json.dump(names, open(path + '.stamps.json', 'w'))
```

```python
import sys
from collections import deque
from asmlib import pad_hazards

NAME = 'adaLN_cond__gqa_block_cached__glu_gated_swiglu__decode'

CFG = dict(
    W=4,
    W_O=4, W_M=6, W_R=5, W_Q=4, W_P=4, W_PR=4,
    C3O=0, C3Q='', C3W1='M', C3W3='O', C3MOD='O', T_LOW_R=2,
    W_PRE=24, W_PREQ=8, W_INIT=5, W_LOW=2, T_LOW=2, T_LOW_M=2,
    W_POST=6, W_POSTP=4, H5W=2, W_END=8,
    SC_AT=3, Q_AT=12, BURST=5, E_BURST=2, P_EARLY=0, MOD_AT=0, P5='rr', E5W=7, STAGE=7, SL3=0, SL4=0, EARLY3=True, W2PRE=4, XCLS='O+Q+P+PR+R', PRIO='qk', QLIN=True, LATE3=2, E4KS=True, GATE=False, GATE_MISS=0, ENTRY=False, XPRE=1, MGATE_MISS=6, W_GATE=8, H6W=6, USH=3, OLATE=False, JUMP0=False, GMAP=False, R_AT=4, TOUCH=False, P_HOLD=1, Q_BURST=0, XAT=4, XSLOW=0, XW=2, H5X=True, H6=(3,), ML_AT=12, ML_AT_M=12, C3H=False,
    HP3=True, C3=True, H5=2, REWARM=False,
    STAMPS=False, DBGOUT=False,
    SPIN=1 << 18,
)

WS_MOD = 0x00000
WS_CBP = 0x18000
WS_Q = 0x10000
WS_ML = 0x20000
WS_AP = 0x30000
WS_OP = 0x40000
WS_FP = 0xC0000
WS_STAMP = 0x200000
WS_BYTES = 268435456

L_KT = 0
L_OPART = 0
L_XA = 40960
L_ZERO = 49152
L_MLW = 49664
L_CNT = 50176
L_STATS = 50432
L_X2 = 50688
L_FINB = 51200
L_X1 = 52224
L_RED = 60416
L_RED2 = 83968
L_STASH = 83968
L_TOTAL = 149504

CLASS_RANGES = dict(O=(0, 64), M=(64, 120), Q=(120, 184), P=(184, 200), PR=(200, 216), R=(216, 256))


def vr(a, n=4):
    return f'v[{a}:{a + n - 1}]' if n > 1 else f'v{a}'


def sr(a, n=2):
    return f's[{a}:{a + n - 1}]' if n > 1 else f's{a}'


S_WV, S_W8, S_ROT, S_KV = 3, 4, 6, 7
SRD_K, SRD_V, SRD_WS, SRD_W, SRD_A, SRD_D = 8, 12, 16, 20, 24, 28
P_X, P_K, P_V, P_WQ, P_WO, P_W1, P_W3, P_W2, P_C, P_WMOD, P_OUT, P_DBG, P_WS = 32, 34, 36, 38, 40, 44, 46, 48, 50, 52, 54, 56, 58
S_T0, S_T1, S_T2, S_T3 = 60, 61, 62, 63
S_PLO, S_PHI = 64, 65
S_MASK = 66
S_SAVE = 68
S_SPIN = 70
S_VALID = 71
S_U = 72
S_STG = 42
S_C64 = 80
S_C64B = 82
S_STAMP = 84


class Prog:
    def __init__(self, name):
        self.name = name
        self.L = []
        self.vm = []
        self.stream = deque()
        self.released = set()
        self.W = CFG['W']
        self.nlab = 0
        self.slow = 0
        self.nstamp = 0
        self.stamp_names = []

    def e(self, s):
        for line in s.split('\n'):
            line = line.strip()
            if line:
                self.L.append(line)

    def lab(self, base):
        self.nlab += 1
        return f'L_{self.name}_{base}{self.nlab}'

    def vmem(self, s, tag):
        self.e(s)
        self.vm.append(tag)
        assert len(self.vm) <= 56, 'too many outstanding'

    def waitn(self, n):
        if len(self.vm) > n:
            self.e(f's_waitcnt vmcnt({n})')
            self.vm = self.vm[len(self.vm) - n:] if n else []

    def wait(self, tag):
        if tag in self.vm:
            idx = len(self.vm) - 1 - self.vm[::-1].index(tag)
            self.waitn(len(self.vm) - 1 - idx)

    def push(self, tag, fn, need=None):
        self.stream.append((tag, fn, need))

    def can_pump(self):
        return self.stream and (self.stream[0][2] is None or self.stream[0][2] in self.released)

    def pump(self, k=1):
        for _ in range(k):
            if not self.can_pump():
                return
            tag, fn, _n = self.stream.popleft()
            self.waitn(self.W - 1)
            if self.slow > 0:
                self.slow -= 1
                self.waitn(CFG['XW'] - 1)
            fn(tag)

    def fill(self):
        while self.can_pump() and len(self.vm) < self.W:
            self.pump(1)

    def burst(self, k):
        self.W += k
        self.fill()
        self.W -= k

    def need(self, tag):
        while any(t[0] == tag for t in self.stream):
            assert self.can_pump(), f'{self.name}: stream blocked before {tag} at {self.stream[0][0]}'
            self.pump(1)
        while tag in self.vm:
            if self.can_pump() and self.vm[::-1].index(tag) <= self.W - 1:
                self.pump(1)
            else:
                self.wait(tag)

    def release(self, x):
        self.released.add(x)

    def stamp(self, name):
        if CFG['STAMPS'] == 'lite' and name not in ('start', 'pre_done', 'q_ok', 'k_done', 'o_stored', 'post_done', 'q_done', 'e3_ok', 'a_stored', 'w_ready', 'e4_ok', 'f_stored', 'end'):
            return
        if CFG['STAMPS'] == 't' and name not in ('start', 'e3_ok', 'o1', 'o2', 'o3', 'a_stored', 'e4_ok', 't1', 't2', 'h2', 't3', 't4', 't5', 't6', 'wm5', 't7', 'f_stored', 't8', 'e5_ok', 'end'):
            return
        if CFG['STAMPS'] != 't' and name[0] in 'to' and name[1:].isdigit():
            return
        if CFG['STAMPS'] == 'e' and name not in ('start', 'first', 'arrived', 'k0', 'w_landed', 'pre_done', 'end'):
            return
        if CFG['STAMPS'] != 'e' and name in ('first', 'k0'):
            return
        if CFG['STAMPS'] == 'm' and name not in ('start', 'q_ok', 'softmax', 'v2', 'pv_done', 'o_stored', 'wm0', 'wm1', 'wm2', 'wm4', 'wm3', 'wm5', 'mod_landed', 'gate', 'e4_ok', 'end'):
            return
        if CFG['STAMPS'] is True and name in ('mod_ok', 'gate', 'arrived', 'v2', 'wm0', 'wm1', 'wm2', 'wm4', 'wm3', 'wm5'):
            return
        if CFG['STAMPS']:
            k = S_STAMP + self.nstamp
            assert k < 100
            self.e(f's_memrealtime s[100:101]\ns_waitcnt lgkmcnt(0)\ns_mov_b32 s{k}, s100')
            self.nstamp += 1
            self.stamp_names.append(name)

    def srd(self, d, p, nbytes):
        self.e(f's_mov_b32 s{d}, s{p}\ns_mov_b32 s{d + 1}, s{p + 1}\ns_mov_b32 s{d + 2}, {hex(nbytes)}\ns_mov_b32 s{d + 3}, 0x20000')

    def lane(self, dst, terms, const=0, sadd=None, tmp=None):
        first = True
        for sh, bits, mul in terms:
            t = dst if first else tmp
            assert t is not None
            if sh == 0 and bits >= 6:
                src = 'v1'
            elif sh == 0:
                self.e(f'v_and_b32 v{t}, {(1 << bits) - 1}, v1')
                src = f'v{t}'
            elif sh + bits >= 6:
                self.e(f'v_lshrrev_b32 v{t}, {sh}, v1')
                src = f'v{t}'
            else:
                self.e(f'v_bfe_u32 v{t}, v1, {sh}, {bits}')
                src = f'v{t}'
            if first:
                if mul & (mul - 1) == 0:
                    self.e(f'v_lshlrev_b32 v{dst}, {mul.bit_length() - 1}, {src}')
                else:
                    self.e(f'v_mul_u32_u24 v{dst}, {mul}, {src}')
            else:
                if mul & (mul - 1) == 0:
                    self.e(f'v_lshl_add_u32 v{dst}, {src}, {mul.bit_length() - 1}, v{dst}')
                else:
                    self.e(f'v_mul_u32_u24 v{t}, {mul}, {src}\nv_add_u32 v{dst}, v{t}, v{dst}')
            first = False
        if const:
            self.e(f'v_add_u32 v{dst}, {const}, v{dst}')
        if sadd is not None:
            self.e(f'v_add_u32 v{dst}, s{sadd}, v{dst}')

    def exec_set(self, mask):
        lo, hi = mask & 0xffffffff, mask >> 32
        self.e(f's_mov_b32 exec_lo, {hex(lo)}\ns_mov_b32 exec_hi, {hex(hi)}')

    def exec_all(self):
        self.e('s_mov_b64 exec, -1')

    def maxu(self, dst, regs):
        regs = list(regs)
        if len(regs) % 2 == 0:
            self.e(f'v_max_u32 v{dst}, v{regs[0]}, v{regs[1]}')
            regs = regs[2:]
        else:
            self.e(f'v_max3_u32 v{dst}, v{regs[0]}, v{regs[1]}, v{regs[2]}')
            regs = regs[3:]
        while regs:
            self.e(f'v_max3_u32 v{dst}, v{dst}, v{regs[0]}, v{regs[1]}')
            regs = regs[2:]

    def check_retry(self, issue, regs, tmp):
        ok, lp = self.lab('ok'), self.lab('retry')
        if len(regs) > 1:
            self.maxu(tmp, regs)
        else:
            tmp = regs[0]
        self.e(f'v_cmp_eq_u32 vcc, -1, v{tmp}\ns_cbranch_vccz {ok}\ns_mov_b32 s{S_SPIN}, 0\n{lp}:')
        issue()
        self.e('s_waitcnt vmcnt(0)')
        if len(regs) > 1:
            self.maxu(tmp, regs)
        self.e(f's_add_u32 s{S_SPIN}, s{S_SPIN}, 1\ns_cmp_ge_u32 s{S_SPIN}, {CFG["SPIN"]}\ns_cbranch_scc1 {ok}')
        self.e(f'v_cmp_eq_u32 vcc, -1, v{tmp}\ns_cbranch_vccnz {lp}\n{ok}:')

    def poll_masked(self, issuers, regs, tmp):
        n = len(issuers)
        lp, done = self.lab('poll'), self.lab('polldone')
        self.waitn(0)
        self.e(f's_mov_b32 s{S_VALID}, 0\ns_mov_b32 s{S_SPIN}, 0\n{lp}:')
        for t in range(n):
            sk = self.lab('pi')
            self.e(f's_bitcmp1_b32 s{S_VALID}, {t}\ns_cbranch_scc1 {sk}')
            issuers[t]()
            self.e(f'{sk}:')
        self.e('s_waitcnt vmcnt(0)')
        for t in range(n):
            sk = self.lab('pc')
            self.e(f's_bitcmp1_b32 s{S_VALID}, {t}\ns_cbranch_scc1 {sk}')
            self.maxu(tmp, regs[t])
            self.e(f'v_cmp_eq_u32 vcc, -1, v{tmp}\ns_cbranch_vccnz {sk}\ns_bitset1_b32 s{S_VALID}, {t}\n{sk}:')
        self.e(f's_add_u32 s{S_SPIN}, s{S_SPIN}, 1\ns_cmp_ge_u32 s{S_SPIN}, {CFG["SPIN"]}\ns_cbranch_scc1 {done}')
        self.e(f's_cmp_lg_u32 s{S_VALID}, {hex((1 << n) - 1)}\ns_cbranch_scc1 {lp}\n{done}:')

    def poll_pipe(self, offs, s_base, vo, sets, tmp, accum, mode='pipe'):
        n = len(offs)
        done = self.lab('ppdone')
        if mode == 'rr':
            return self.poll_rr(offs, s_base, vo, sets[0], tmp, accum)

        def issue(base):
            for t in range(n):
                self.e(f's_bitcmp1_b32 s{S_VALID}, {t}\ns_cselect_b64 exec, 0, -1\ns_add_u32 s{S_T3}, s{s_base}, {offs[t]}')
                self.e(f'buffer_load_dwordx4 {vr(base + 4 * t)}, v{vo}, {sr(SRD_WS, 4)}, s{S_T3} offen sc1')
            self.exec_all()

        def check(base):
            self.e(f's_waitcnt vmcnt({n})')
            for t in range(n):
                sk = self.lab('pc')
                self.e(f's_bitcmp1_b32 s{S_VALID}, {t}\ns_cbranch_scc1 {sk}')
                self.maxu(tmp, range(base + 4 * t, base + 4 * t + 4))
                self.e(f'v_cmp_ne_u32 vcc, -1, v{tmp}\ns_or_b64 vcc, vcc, {sr(S_SAVE)}\ns_cmp_eq_u64 vcc, -1\ns_cbranch_scc0 {sk}')
                accum(t, base + 4 * t)
                self.e(f's_bitset1_b32 s{S_VALID}, {t}\n{sk}:')
            self.e(f's_cmp_eq_u32 s{S_VALID}, {hex((1 << n) - 1)}\ns_cbranch_scc1 {done}')
        lp = self.lab('pp')
        self.e(f's_mov_b32 s{S_VALID}, 0\ns_mov_b32 s{S_SPIN}, 0\ns_mov_b64 {sr(S_SAVE)}, 0')
        issue(sets[0])
        self.e(f'{lp}:')
        issue(sets[1])
        check(sets[0])
        issue(sets[0])
        check(sets[1])
        self.e(f's_add_u32 s{S_SPIN}, s{S_SPIN}, 1\ns_cmp_ge_u32 s{S_SPIN}, {CFG["SPIN"]}\ns_cselect_b64 {sr(S_SAVE)}, -1, 0\ns_branch {lp}\n{done}:')
        self.vm = ['stale'] * n

    def poll_items(self, items, tmp):
        n = len(items)
        lp, chk = self.lab('pg'), self.lab('pgchk')
        self.e(f's_mov_b32 s{S_VALID}, 0\ns_mov_b32 s{S_SPIN}, 0\ns_mov_b64 {sr(S_SAVE)}, 0\ns_branch {chk}\n{lp}:')
        for t, (txt, regs) in enumerate(items):
            sk = self.lab('pi')
            self.e(f's_bitcmp1_b32 s{S_VALID}, {t}\ns_cbranch_scc1 {sk}\n{txt}\n{sk}:')
        self.e(f's_add_u32 s{S_SPIN}, s{S_SPIN}, 1\ns_cmp_ge_u32 s{S_SPIN}, {CFG["SPIN"]}\ns_cselect_b64 {sr(S_SAVE)}, -1, 0\ns_waitcnt vmcnt(0)\n{chk}:')
        for t, (txt, regs) in enumerate(items):
            sk = self.lab('pc')
            self.e(f's_bitcmp1_b32 s{S_VALID}, {t}\ns_cbranch_scc1 {sk}')
            self.maxu(tmp, regs)
            self.e(f'v_cmp_ne_u32 vcc, -1, v{tmp}\ns_or_b64 vcc, vcc, {sr(S_SAVE)}\ns_cmp_eq_u64 vcc, -1\ns_cbranch_scc0 {sk}')
            self.e(f's_bitset1_b32 s{S_VALID}, {t}\n{sk}:')
        self.e(f's_cmp_lg_u32 s{S_VALID}, {hex((1 << n) - 1)}\ns_cbranch_scc1 {lp}')

    def poll_first(self, offs, s_base, vo, base):
        for t, off in enumerate(offs):
            self.e(f's_add_u32 s{S_T3}, s{s_base}, {off}')
            self.vmem(f'buffer_load_dwordx4 {vr(base + 4 * t)}, v{vo}, {sr(SRD_WS, 4)}, s{S_T3} offen sc1', 'poll')

    def poll_rr(self, offs, s_base, vo, base, tmp, accum, landed=False, sleep=0):
        n = len(offs)
        lp, done = self.lab('pr'), self.lab('prdone')
        chk = self.lab('prchk')
        self.e(f's_mov_b32 s{S_VALID}, 0\ns_mov_b32 s{S_SPIN}, 0\ns_mov_b64 {sr(S_SAVE)}, 0')
        if landed:
            self.e(f's_branch {chk}')
        self.e(f'{lp}:')
        if sleep:
            self.e(f's_sleep {sleep}')
        for t in range(n):
            sk = self.lab('pi')
            self.e(f's_bitcmp1_b32 s{S_VALID}, {t}\ns_cbranch_scc1 {sk}\ns_add_u32 s{S_T3}, s{s_base}, {offs[t]}')
            self.e(f'buffer_load_dwordx4 {vr(base + 4 * t)}, v{vo}, {sr(SRD_WS, 4)}, s{S_T3} offen sc1\n{sk}:')
        self.e(f's_add_u32 s{S_SPIN}, s{S_SPIN}, 1\ns_cmp_ge_u32 s{S_SPIN}, {CFG["SPIN"]}\ns_cselect_b64 {sr(S_SAVE)}, -1, 0\ns_waitcnt vmcnt(0)\n{chk}:')
        for t in range(n):
            sk = self.lab('pc')
            self.e(f's_bitcmp1_b32 s{S_VALID}, {t}\ns_cbranch_scc1 {sk}')
            self.maxu(tmp, range(base + 4 * t, base + 4 * t + 4))
            self.e(f'v_cmp_ne_u32 vcc, -1, v{tmp}\ns_or_b64 vcc, vcc, {sr(S_SAVE)}\ns_cmp_eq_u64 vcc, -1\ns_cbranch_scc0 {sk}')
            accum(t, base + 4 * t)
            self.e(f's_bitset1_b32 s{S_VALID}, {t}\n{sk}:')
        self.e(f's_cmp_lg_u32 s{S_VALID}, {hex((1 << n) - 1)}\ns_cbranch_scc1 {lp}\n{done}:')
        self.vm = []

    def perm_chunk(self, raw, dst, pump_every=0, fs=4):
        k = 0
        for c in range(4):
            for hi in range(2):
                for jj in range(4):
                    a, b = raw + 4 * (2 * jj) + c, raw + 4 * (2 * jj + 1) + c
                    sel = S_PHI if hi else S_PLO
                    self.e(f'v_perm_b32 v{dst + fs * (2 * c + hi) + jj}, v{b}, v{a}, s{sel}')
                    k += 1
                    if pump_every and k % pump_every == 0:
                        self.fill()

    def unpack(self, src, d0, d1):
        self.e(f'v_lshlrev_b32 v{d0}, 16, v{src}\nv_and_b32 v{d1}, 0xffff0000, v{src}')

    def rnd2(self, a, b, t):
        self.e(f'v_cvt_pk_bf16_f32 v{t}, v{a}, v{b}')
        self.unpack(t, a, b)

    def tree(self, B, widths):
        for w in widths:
            if w >= 2:
                for k in range(0, w, 2):
                    self.e(f'v_pk_add_f32 {vr(B + k, 2)}, {vr(B + k, 2)}, {vr(B + k + w, 2)}')
            else:
                self.e(f'v_add_f32 v{B}, v{B}, v{B + 1}')

    def rowsum(self, regs, steps):
        for st in steps:
            for r in regs:
                self.e(f'v_add_f32_dpp v{r}, v{r}, v{r} row_ror:{st} row_mask:0xf bank_mask:0xf')

    def swapred(self, op, which, regs, tmps):
        for r, t in zip(regs, tmps):
            self.e(f'v_mov_b32 v{t}, v{r}')
        for r, t in zip(regs, tmps):
            self.e(f'v_permlane{which}_swap_b32 v{r}, v{t}')
        for r, t in zip(regs, tmps):
            self.e(f'{op} v{r}, v{r}, v{t}')


LOG2E = 0x3fb8aa3b
AL_TERMS = [(5, 1, 2048), (0, 4, 16), (4, 1, 8)]
XA_TERMS = [(5, 1, 256), (0, 4, 16), (4, 1, 8)]


def layernorm(p, X, T, fix):
    s0, s1, t0, t1, m0, m1, ad = T[0], T[1], T[2], T[3], T[4], T[5], T[6]
    for q, s in ((0, s0), (1, s1)):
        x = X[4 * q:4 * q + 4]
        p.e(f'v_add_f32 v{s}, v{x[0]}, v{x[1]}\nv_add_f32 v{T[2 + q]}, v{x[2]}, v{x[3]}')
    p.e(f'v_add_f32 v{s0}, v{s0}, v{t0}\nv_add_f32 v{s1}, v{s1}, v{t1}')
    p.rowsum([s0, s1], (8, 4, 2, 1))
    p.swapred('v_add_f32', 16, [s0, s1], [t0, t1])
    A, B = T[8], T[10]
    assert A % 2 == 0 and B % 2 == 0 and T[9] == A + 1 and T[11] == B + 1
    p.e(f'v_mul_f32 v{A}, 0x3c000000, v{s0}\nv_mul_f32 v{B}, 0x3c000000, v{s1}')
    for q, mean in ((0, A), (1, B)):
        x = X[4 * q:4 * q + 4]
        p.e(f'v_sub_f32 v{t0}, v{x[0]}, v{mean}\nv_sub_f32 v{t1}, v{x[1]}, v{mean}')
        p.e(f'v_mul_f32 v{mean + 1}, v{t0}, v{t0}\nv_fmac_f32 v{mean + 1}, v{t1}, v{t1}')
        p.e(f'v_sub_f32 v{t0}, v{x[2]}, v{mean}\nv_sub_f32 v{t1}, v{x[3]}, v{mean}')
        p.e(f'v_fmac_f32 v{mean + 1}, v{t0}, v{t0}\nv_fmac_f32 v{mean + 1}, v{t1}, v{t1}')
    p.rowsum([A + 1, B + 1], (8, 4, 2, 1))
    p.swapred('v_add_f32', 16, [A + 1, B + 1], [t0, t1])
    p.e(f's_lshl_b32 s{S_T0}, s{S_WV}, 5\ns_add_u32 s{S_T0}, s{S_T0}, {L_STATS}')
    p.lane(ad, [(5, 1, 8)], sadd=S_T0)
    p.exec_set(0x0000000100000001)
    p.e(f'ds_write_b64 v{ad}, {vr(A, 2)}\nds_write_b64 v{ad}, {vr(B, 2)} offset:16')
    p.exec_all()
    p.lane(ad, [(0, 3, 32), (5, 1, 8)], const=L_STATS, tmp=t0)
    p.e('s_waitcnt lgkmcnt(0)\ns_barrier')
    p.e(f'ds_read_b64 {vr(A, 2)}, v{ad}\nds_read_b64 {vr(B, 2)}, v{ad} offset:16\ns_waitcnt lgkmcnt(0)')
    p.e(f'v_mov_b32 v{m0}, v{A}\nv_mov_b32 v{m1}, v{B}')
    p.rowsum([m0, m1], (4, 2, 1))
    p.e(f'v_mul_f32 v{m0}, 0x3e000000, v{m0}\nv_mul_f32 v{m1}, 0x3e000000, v{m1}')
    p.e(f'v_sub_f32 v{t0}, v{A}, v{m0}\nv_sub_f32 v{t1}, v{B}, v{m1}')
    p.e(f'v_mul_f32 v{s0}, 0x43000000, v{t0}\nv_mul_f32 v{s1}, 0x43000000, v{t1}')
    p.e(f'v_fmac_f32 v{A + 1}, v{s0}, v{t0}\nv_fmac_f32 v{B + 1}, v{s1}, v{t1}')
    p.rowsum([A + 1, B + 1], (4, 2, 1))
    p.rnd2(m0, m1, t0)
    p.e(f'v_mul_f32 v{s0}, 0x3a800000, v{A + 1}\nv_mul_f32 v{s1}, 0x3a800000, v{B + 1}')
    p.rnd2(s0, s1, t0)
    p.e(f'v_add_f32 v{s0}, 0x3727c5ac, v{s0}\nv_add_f32 v{s1}, 0x3727c5ac, v{s1}')
    p.rnd2(s0, s1, t0)
    p.e(f'v_sqrt_f32 v{s0}, v{s0}\nv_sqrt_f32 v{s1}, v{s1}')
    p.rnd2(s0, s1, t0)
    p.e(f'v_rcp_f32 v{A}, v{s0}\nv_rcp_f32 v{B}, v{s1}')
    for q, m, sd, ri in ((0, m0, s0, A), (1, m1, s1, B)):
        x = X[4 * q:4 * q + 4]
        for r in range(4):
            p.e(f'v_sub_f32 v{x[r]}, v{x[r]}, v{m}')
        p.rnd2(x[0], x[1], t0)
        p.rnd2(x[2], x[3], t1)
        for r in range(4):
            if fix:
                p.e(f'v_mul_f32 v{t0}, v{x[r]}, v{ri}\nv_fma_f32 v{x[r]}, -v{t0}, v{sd}, v{x[r]}\nv_fma_f32 v{x[r]}, v{x[r]}, v{ri}, v{t0}')
            else:
                p.e(f'v_mul_f32 v{x[r]}, v{x[r]}, v{ri}')
        p.rnd2(x[0], x[1], t0)
        p.rnd2(x[2], x[3], t1)


def modulate(p, X, C1, SH, T, out):
    a, b = T[0], T[1]
    for d in range(4):
        x0, x1 = X[2 * d], X[2 * d + 1]
        p.unpack(C1[d], a, b)
        p.e(f'v_mul_f32 v{x0}, v{x0}, v{a}\nv_mul_f32 v{x1}, v{x1}, v{b}')
        p.rnd2(x0, x1, a)
        p.unpack(SH[d], a, b)
        p.e(f'v_add_f32 v{x0}, v{x0}, v{a}\nv_add_f32 v{x1}, v{x1}, v{b}')
        p.e(f'v_cvt_pk_bf16_f32 v{out[d]}, v{x0}, v{x1}')


def one_plus(p, C, T):
    a, b = T[0], T[1]
    for c in C:
        p.unpack(c, a, b)
        p.e(f'v_add_f32 v{a}, 1.0, v{a}\nv_add_f32 v{b}, 1.0, v{b}\nv_cvt_pk_bf16_f32 v{c}, v{a}, v{b}')


def xa_base(p, s):
    p.e(f's_lshl_b32 s{s}, s{S_WV}, 10\ns_add_u32 s{s}, s{s}, {L_XA}')


def push_narrow_weights(p, tag0, pitch, raw0, raw1, vo, s_base, need=None):
    for u, raw in ((0, raw0), (1, raw1)):
        for jj in range(8):
            def fn(tag, u=u, raw=raw, jj=jj):
                p.e(f's_add_u32 s{S_T3}, s{s_base}, {(64 * u + jj) * pitch}')
                p.vmem(f'buffer_load_dwordx4 {vr(raw + 4 * jj)}, v{vo}, {sr(SRD_W, 4)}, s{S_T3} offen nt', tag)
            p.push(f'{tag0}{u}', fn, need[u] if need else None)


def narrow_setup(p, pitch, vo, s_base, s_col, tmp, rows=128):
    p.lane(vo, [(3, 3, 8 * pitch), (0, 3, 16)], tmp=tmp)
    p.e(f's_mul_i32 s{s_base}, s{S_WV}, {rows * pitch}\ns_add_u32 s{s_base}, s{s_base}, s{s_col}')


def narrow_gemv(p, F0, F1, B, ACC, T, s_out, f32=False, before_barrier=None, upper=None):
    a0, a1, t0 = T[0], T[1], T[2]
    xa_base(p, S_T0)
    p.lane(a0, [(0, 2, 256), (4, 2, 32), (3, 1, 16)], sadd=S_T0, tmp=t0)
    p.e(f's_mov_b32 s{S_MASK}, 0x0f0f0f0f\ns_mov_b32 s{S_MASK + 1}, 0x0f0f0f0f\nv_mov_b32 v{t0}, {L_ZERO}')
    p.e(f'v_cndmask_b32 v{a1}, v{a0}, v{t0}, {sr(S_MASK)}\nv_cndmask_b32 v{a0}, v{t0}, v{a0}, {sr(S_MASK)}')
    FF = [F0] if F1 is None else [F0, F1]
    for u in range(len(FF)):
        p.e(f'ds_read_b128 {vr(B + 8 * u)}, v{a0} offset:{128 * u}\nds_read_b128 {vr(B + 8 * u + 4)}, v{a1} offset:{128 * u}')
    p.e(f's_lshl_b32 s{S_T0}, s{S_WV}, 11\ns_add_u32 s{S_T0}, s{S_T0}, {L_RED}')
    p.lane(a0, [(5, 1, 1024), (0, 2, 256), (2, 1, 128), (4, 1, 16)], sadd=S_T0, tmp=t0)
    p.e('s_waitcnt lgkmcnt(0)')
    for u, F in enumerate(FF):
        for e in range(8):
            acc = vr(ACC + 4 * (e & 3))
            c = '0' if (u == 0 and e < 4) else acc
            p.e(f'v_mfma_f32_16x16x32_bf16 {acc}, {vr(F + 4 * e)}, {vr(B + 8 * u + 4 * (e >> 2))}, {c}')
        p.fill()
    p.exec_set(0xff00ff0000ff00ff)
    for a in range(4):
        p.e(f'ds_write_b128 v{a0}, {vr(ACC + 4 * a)} offset:{32 * a}')
    p.exec_all()
    p.e(f's_lshl_b32 s{S_T0}, s{S_WV}, 8\ns_add_u32 s{S_T0}, s{S_T0}, {L_RED}')
    p.lane(a1, [(2, 1, 128), (0, 2, 32), (5, 1, 16), (3, 2, 4)], sadd=S_T0, tmp=t0)
    p.fill()
    if before_barrier:
        before_barrier()
    p.e('s_waitcnt lgkmcnt(0)\ns_barrier')
    sk = p.lab('fin')
    p.e(f's_cmp_ge_u32 s{S_WV}, 4\ns_cbranch_scc1 {sk}')
    for k in range(8):
        p.e(f'ds_read2st64_b32 {vr(B + 2 * k, 2)}, v{a1} offset0:{8 * k} offset1:{8 * k + 4}')
    so, stride = s_out
    p.e(f's_mul_i32 s{S_T0}, s{S_WV}, {stride}\ns_add_u32 s{S_T0}, s{S_T0}, s{so}\nv_lshlrev_b32 v{a0}, {2 if f32 else 1}, v1\ns_waitcnt lgkmcnt(0)')
    for w in (8, 4, 2, 1):
        for k in range(w):
            p.e(f'v_add_f32 v{B + k}, v{B + k}, v{B + k + w}')
    if f32:
        for k in (1, 2, 3):
            p.e(f'v_mov_b32_dpp v{B + k}, v{B} quad_perm:[{k},{k},{k},{k}] row_mask:0xf bank_mask:0xf')
        p.exec_set(0x1111111111111111)
        ACC = B
    else:
        p.e(f'v_mov_b32_dpp v{B + 1}, v{B} quad_perm:[1,1,3,3] row_mask:0xf bank_mask:0xf')
        p.e(f'v_cvt_pk_bf16_f32 v{ACC}, v{B}, v{B + 1}')
        for k in (1, 2, 3):
            p.e(f'v_mov_b32_dpp v{ACC + k}, v{ACC} row_shl:{2 * k} row_mask:0xf bank_mask:0xf')
        p.exec_set(0x0101010101010101)
    p.e(f'buffer_store_dwordx4 {vr(ACC)}, v{a0}, {sr(SRD_WS, 4)}, s{S_T0} offen sc1')
    p.exec_all()
    if upper:
        end = p.lab('fend')
        p.e(f's_branch {end}\n{sk}:')
        upper()
        sk = end
    p.e(f'{sk}:')


def push_al_loads(p, tag, srd, dst, vo, s_base, flags=''):
    def issue(model=True):
        for q in range(2):
            p.e(f's_add_u32 s{S_T3}, s{s_base}, {4096 * q}')
            s = f'buffer_load_dwordx2 {vr(dst + 2 * q, 2)}, v{vo}, {sr(srd, 4)}, s{S_T3} offen {flags}'
            p.vmem(s, tag) if model else p.e(s)
    if tag is not None:
        p.push(tag, lambda t: issue())
    return issue


def silu_to_xa(p, C, T, wa):
    a, b, ea, eb = T[0], T[1], T[2], T[3]
    xa_base(p, S_T0)
    p.lane(wa, XA_TERMS, sadd=S_T0, tmp=a)
    for d in range(4):
        p.unpack(C + d, a, b)
        p.e(f'v_mul_f32 v{ea}, {hex(LOG2E | 0x80000000)}, v{a}\nv_mul_f32 v{eb}, {hex(LOG2E | 0x80000000)}, v{b}')
        p.e(f'v_exp_f32 v{ea}, v{ea}\nv_exp_f32 v{eb}, v{eb}')
        p.e(f'v_add_f32 v{ea}, 1.0, v{ea}\nv_add_f32 v{eb}, 1.0, v{eb}')
        p.e(f'v_rcp_f32 v{T[4]}, v{ea}\nv_rcp_f32 v{T[5]}, v{eb}')
        p.e(f'v_mul_f32 v{T[6]}, v{a}, v{T[4]}\nv_mul_f32 v{T[7]}, v{b}, v{T[5]}')
        p.e(f'v_cvt_pk_bf16_f32 v{C + d}, v{T[6]}, v{T[7]}')
    p.e(f'ds_write_b64 v{wa}, {vr(C, 2)}\nds_write_b64 v{wa}, {vr(C + 2, 2)} offset:512')


R_Q, R_S, R_V01, R_K = 16, 32, 64, 128
R_P0, R_P1, R_ACC = 16, 32, 48
VCH = [64, 96, 128, 160]


def amap():
    if not CFG['GMAP']:
        return '''s_cmp_ge_u32 s2, 120
    s_cselect_b32 s5, 40, 0
    s_cmp_ge_u32 s2, 216
    s_cselect_b32 s5, 0xffffffa0, s5
    s_add_u32 s5, s5, s2'''
    return '''s_cmp_ge_u32 s2, 120
    s_cselect_b32 s5, 120, 0
    s_cselect_b32 s63, 32, 0
    s_cmp_ge_u32 s2, 184
    s_cselect_b32 s5, 64, s5
    s_cselect_b32 s63, 0, s63
    s_cmp_ge_u32 s2, 192
    s_cselect_b32 s5, 128, s5
    s_cselect_b32 s63, 32, s63
    s_sub_u32 s5, s2, s5
    s_and_b32 s62, s5, 0x60
    s_add_u32 s5, s5, s62
    s_or_b32 s5, s5, s63'''


def ids(p):
    p.e(f'''v_lshrrev_b32 v2, 6, v0
    v_and_b32 v1, 63, v0
    s_lshr_b32 s{S_W8}, s2, 3
    v_readfirstlane_b32 s{S_WV}, v2
    v_lshlrev_b32 v0, 4, v1''')


def code_prefetch(p):
    pc = p.lab('pc')
    p.e(f'''s_getpc_b64 s[60:61]
    {pc}:
    s_lshl_b32 s62, s{S_W8}, 3
    s_add_u32 s62, s62, s{S_WV}
    s_lshl_b32 s62, s62, 10
    s_min_u32 s62, s62, L_code_end-{NAME}_kernel-1024
    s_sub_u32 s60, s60, {pc}-{NAME}_kernel
    s_subb_u32 s61, s61, 0
    s_add_u32 s60, s60, s62
    s_addc_u32 s61, s61, 0''')
    p.vmem('global_load_dwordx4 v[252:255], v0, s[60:61]', 'code')


def kv_base(p):
    p.e(f'''s_add_u32 s{S_ROT}, s{S_W8}, s{S_WV}
    s_and_b32 s{S_ROT}, s{S_ROT}, 7
    s_lshl_b32 s{S_ROT}, s{S_ROT}, 12
    {amap()}
    s_lshl_b32 s{S_KV}, s5, 18
    s_add_u32 s{S_KV}, s{S_KV}, s{S_ROT}
    s_mov_b32 s{SRD_K + 2}, 0x4000000
    s_mov_b32 s{SRD_K + 3}, 0x20000''')


def entry(p):
    if CFG['STAMPS'] == 'e' or CFG['ENTRY']:
        p.e('s_memrealtime s[98:99]')
    p.e(f'''
    s_cmp_ge_u32 s2, 256
    s_cbranch_scc1 L_end
    s_load_dwordx16 s[32:47], s[0:1], 0
    s_load_dwordx8 s[48:55], s[0:1], 64
    s_load_dwordx4 s[56:59], s[0:1], 96''')
    disp = '''s_sub_u32 s62, s2, 120
    s_cmp_lt_u32 s62, 64
    s_cbranch_scc1 L_class_Q
    s_cmp_lt_u32 s62, 80
    s_cbranch_scc1 L_class_P
    s_cmp_lt_u32 s62, 96
    s_cbranch_scc1 L_class_PR'''
    if CFG['JUMP0']:
        p.e(disp)
        p.vm_pre = []
    ids(p)
    code_prefetch(p)
    kv_base(p)
    if not CFG['JUMP0']:
        p.e(disp)
        p.vm_pre = list(p.vm)
    got_args(p)
    for j in range(4):
        p.vmem(f'buffer_load_dwordx4 {vr(R_K + 4 * j)}, v0, {sr(SRD_K, 4)}, s{S_KV} offen offset:{1024 * j} nt', 'K0')
    p.e(f'''
    s_cmp_lt_u32 s2, 64
    s_cbranch_scc1 L_class_O
    s_cmp_lt_u32 s2, 120
    s_cbranch_scc1 L_class_M
    s_branch L_class_R''')


def got_args(p):
    p.e(f's_waitcnt lgkmcnt(0)\ns_mov_b32 s{SRD_K}, s{P_K}\ns_mov_b32 s{SRD_K + 1}, s{P_K + 1}')


def common_setup(p):
    if CFG['STAMPS'] == 'e':
        p.e(f's_waitcnt lgkmcnt(0)\ns_mov_b32 s{S_STAMP}, s98')
        p.nstamp = 1
        p.stamp_names = ['entry']
    if CFG['ENTRY']:
        p.e(f's_waitcnt lgkmcnt(0)\ns_mov_b32 s{S_STAMP}, s98')
        p.nstamp = 1
        p.stamp_names = ['start']
    else:
        p.stamp('start')
    if CFG['DBGOUT']:
        p.e('s_memtime s[100:101]\ns_waitcnt lgkmcnt(0)\ns_mov_b32 s99, s100')
    p.srd(SRD_WS, P_WS, WS_BYTES)
    p.e('v_mov_b32 v4, -1\nv_mov_b32 v5, -1\nv_mov_b32 v6, -1\nv_mov_b32 v7, -1')


def common_setup2(p):
    p.srd(SRD_V, P_V, 0x4000000)
    p.srd(SRD_D, P_DBG, 256)
    p.e(f's_mov_b32 s{S_PLO}, 0x05040100\ns_mov_b32 s{S_PHI}, 0x07060302')


def clear_rows(p, s_off, stride, nb):
    lanes = nb // 16
    sh = lanes.bit_length() - 1
    p.lane(2, [(sh, 2, stride), (0, sh, 16)], tmp=3)
    if lanes * 4 < 64:
        p.exec_set((1 << (lanes * 4)) - 1)
    p.e(f'buffer_store_dwordx4 v[4:7], v2, {sr(SRD_WS, 4)}, s{s_off} offen sc1')
    p.exec_all()


def clears(p, role):
    sk = p.lab('clr')
    p.e(f's_cmp_lg_u32 s{S_WV}, 0\ns_cbranch_scc1 {sk}\ns_setprio 3')
    role()
    p.e(f's_lshl_b32 s{S_T0}, s5, 11\ns_add_u32 s{S_T0}, s{S_T0}, {WS_OP}')
    p.e(f'buffer_store_dwordx4 v[4:7], v0, {sr(SRD_WS, 4)}, s{S_T0} offen sc1')
    p.e(f'buffer_store_dwordx4 v[4:7], v0, {sr(SRD_WS, 4)}, s{S_T0} offen offset:1024 sc1')
    p.e(f's_lshl_b32 s{S_T0}, s5, 7\ns_add_u32 s{S_T0}, s{S_T0}, {WS_ML}')
    p.exec_set(0xff)
    p.e(f'buffer_store_dwordx4 v[4:7], v0, {sr(SRD_WS, 4)}, s{S_T0} offen sc1')
    p.exec_all()
    p.e(f'v_mov_b32 v8, 0\nv_mov_b32 v9, 0\nv_lshlrev_b32 v2, 3, v1\nds_write_b64 v2, v[8:9] offset:{L_ZERO}\nds_write_b32 v8, v8 offset:{L_CNT}')
    p.e(f's_setprio 0\n{sk}:')
    p.nclear = len(p.vm)


def prio_young(p, v):
    sk = p.lab('pr')
    p.e(f's_cmp_lt_u32 s{S_WV}, 4\ns_cbranch_scc1 {sk}\ns_setprio {v}\n{sk}:')


def touch(p, cls):
    if not CFG['TOUCH']:
        return
    p.e(f's_lshl_b32 s{S_T0}, s{S_W8}, 3\ns_add_u32 s{S_T0}, s{S_T0}, s{S_WV}')
    if cls == 'O':
        p.e(f's_and_b32 s{S_T0}, s{S_T0}, 31\ns_lshl_b32 s{S_T0}, s{S_T0}, 21\ns_load_dword s43, {sr(P_V)}, s{S_T0}')
    else:
        ptrs = {'M': ((P_W1, 7 << 20), (P_W3, 7 << 20), (P_W2, 7 << 20)), 'R': ((P_WMOD, 12 << 20), (P_WO, 8 << 20), (P_OUT, 4096))}[cls]
        p.e(f's_and_b32 s{S_T0}, s{S_T0}, 7\ns_lshl_b32 s{S_T0}, s{S_T0}, 21')
        for ptr, nb in ptrs:
            p.e(f's_min_u32 s{S_T1}, s{S_T0}, {nb - 64}\ns_load_dword s43, {sr(ptr)}, s{S_T1}')


def count_b(p):
    sk = p.lab('arr')
    p.e(f's_cmp_lg_u32 s{S_WV}, 0\ns_cbranch_scc1 {sk}\ns_mov_b32 s{S_T0}, 1')
    p.e(f's_atomic_add s{S_T0}, {sr(P_DBG)}, 0\n{sk}:')


def arrive(p, off):
    sk = p.lab('arr')
    p.e(f's_cmp_lg_u32 s{S_WV}, 0\ns_cbranch_scc1 {sk}')
    p.e(f's_waitcnt vmcnt({len(p.vm) - p.nclear}) lgkmcnt(0)')
    p.stamp('arrived')
    for o in off:
        p.e(f's_mov_b32 s{S_T0}, 1\ns_atomic_add s{S_T0}, {sr(P_DBG)}, {o}')
    p.e(f'{sk}:\ns_barrier')


def push_cnt(p, dst, tag='CNT', off=0):
    p.push(tag, lambda t: p.vmem(f'buffer_load_dword v{dst}, off, {sr(SRD_D, 4)}, 0 offset:{off} sc1', t))


def check_cnt(p, dst, tag='CNT', off=0, total=256):
    p.need(tag)
    ok, lp = p.lab('cok'), p.lab('cretry')
    p.e(f'v_readfirstlane_b32 s{S_T0}, v{dst}\ns_mov_b32 s{S_SPIN}, 0\ns_cmp_ge_u32 s{S_T0}, {total}\ns_cbranch_scc1 {ok}\n{lp}:')
    p.e(f'buffer_load_dword v{dst}, off, {sr(SRD_D, 4)}, 0 offset:{off} sc1\ns_waitcnt vmcnt(0)\nv_readfirstlane_b32 s{S_T0}, v{dst}')
    p.e(f's_add_u32 s{S_SPIN}, s{S_SPIN}, 1\ns_cmp_ge_u32 s{S_SPIN}, {CFG["SPIN"]}\ns_cbranch_scc1 {ok}')
    p.e(f's_cmp_lt_u32 s{S_T0}, {total}\ns_cbranch_scc1 {lp}\n{ok}:')
    p.release(tag.lower())


def push_page(p, srd, tag, page, dst, need=None):
    for j in range(4):
        def fn(t, j=j):
            if j == 0 or True:
                p.e(f's_add_u32 s{S_T3}, s{S_KV}, {page * 32768}')
            p.vmem(f'buffer_load_dwordx4 {vr(dst + 4 * j)}, v0, {sr(srd, 4)}, s{S_T3} offen offset:{1024 * j} nt', t)
        p.push(tag, fn, need)


def push_k(p, t):
    push_page(p, SRD_K, f'K{t}', t, R_K + 16 * t)


def push_v(p, u, need=None):
    push_page(p, SRD_V, f'V{u}', 2 * u, p.vch[u], need)
    push_page(p, SRD_V, f'V{u}', 2 * u + 1, p.vch[u] + 16, need)


def push_v_lds(p, u):
    for k in range(8):
        def fn(t, k=k):
            if k == 0:
                p.e(f's_lshl_b32 s{S_STG}, s{S_WV}, 13\ns_add_u32 s{S_STG}, s{S_STG}, {L_STASH}')
            p.e(f's_add_u32 m0, s{S_STG}, {1024 * k}\ns_add_u32 s{S_T3}, s{S_KV}, {(2 * u + (k >> 2)) * 32768 + 1024 * (k & 3)}')
            p.vmem(f'buffer_load_dwordx4 v0, {sr(SRD_V, 4)}, s{S_T3} offen nt lds', t)
        p.push(f'V{u}', fn)


def v_from_lds(p, u, tmp):
    p.need(f'V{u}')
    p.e(f'v_add_u32 v{tmp}, s{S_STG}, v0')
    for k in range(8):
        p.e(f'ds_read_b128 {vr(p.vch[u] + 4 * k)}, v{tmp} offset:{1024 * k}')


def k_setup(p):
    p.e(f's_lshl_b32 s{S_T0}, s{S_WV}, 12')
    p.e(f'v_lshrrev_b32 v6, 4, v1\nv_lshlrev_b32 v7, 2, v6\nv_xor_b32 v7, v7, v1\nv_and_b32 v7, 15, v7\nv_lshlrev_b32 v7, 4, v7')
    p.e(f'v_lshl_add_u32 v2, v6, 8, v7\nv_add_u32 v2, s{S_T0}, v2')
    for j in (1, 2, 3):
        p.e(f'v_xor_b32 v{2 + j}, {16 * j}, v2')
    p.e(f'v_xor_b32 v7, v6, v1\nv_and_b32 v7, 15, v7\nv_lshlrev_b32 v7, 4, v7')
    p.e(f'v_and_b32 v8, 3, v1\nv_lshl_add_u32 v7, v8, 10, v7\nv_bfe_u32 v8, v1, 2, 2\nv_lshl_add_u32 v7, v8, 8, v7\nv_add_u32 v6, s{S_T0}, v7')
    for m in (1, 2, 3):
        p.e(f'v_xor_b32 v{6 + m}, {64 * m}, v6')


def k_trans(p, t):
    p.need(f'K{t}')
    for j in range(4):
        p.e(f'ds_write_b128 v{2 + j}, {vr(R_K + 16 * t + 4 * j)} offset:{1024 * j}')
    for m in range(4):
        p.e(f'ds_read_b128 {vr(R_K + 16 * t + 4 * m)}, v{6 + m}')


def q_loads(p, vo):
    def issue(model):
        for j in range(2 if CFG['QLIN'] else 4):
            if CFG['QLIN']:
                s = f'buffer_load_dwordx4 {vr(R_Q + 4 * j)}, v0, {sr(SRD_WS, 4)}, s{S_U + 3} offen offset:{1024 * j} sc1'
            else:
                s = f'buffer_load_dwordx4 {vr(R_Q + 4 * j)}, v{vo}, {sr(SRD_WS, 4)}, s{S_U + 3} offen offset:{64 * j} sc1'
            p.vmem(s, 'Q') if model else p.e(s)
    return issue


def push_q(p, vo):
    def fn(t):
        p.e(f's_lshr_b32 s{S_U + 3}, s5, 4\ns_lshl_b32 s{S_U + 3}, s{S_U + 3}, 11\ns_add_u32 s{S_U + 3}, s{S_U + 3}, {WS_Q}')
        if not CFG['QLIN']:
            p.lane(vo, [(0, 3, 256), (4, 2, 16)], tmp=R_Q)
        q_loads(p, vo)(True)
    p.push('Q', fn, 'cnt')


def qk_softmax(p, vo_q):
    if CFG['QLIN']:
        p.e(f's_lshl_b32 s{S_T0}, s{S_WV}, 12\nv_and_b32 v10, 3, v1\nv_lshlrev_b32 v10, 2, v10\nv_bfe_u32 v11, v1, 2, 1\nv_or_b32 v10, v10, v11')
        p.e(f'v_lshrrev_b32 v11, 4, v1\nv_xor_b32 v10, v10, v11\nv_lshlrev_b32 v10, 4, v10\nv_and_b32 v11, 7, v1\nv_lshl_add_u32 v10, v11, 8, v10\nv_add_u32 v6, s{S_T0}, v10')
        for m in (1, 2, 3):
            p.e(f'v_xor_b32 v{6 + m}, {64 * m}, v6')
        p.need('Q')
        p.check_retry(lambda: q_loads(p, vo_q)(False), list(range(R_Q, R_Q + 8)), 10)
        for j in range(2):
            p.e(f'ds_write_b128 v{2 + j}, {vr(R_Q + 4 * j)} offset:{1024 * j}')
        for m in range(4):
            p.e(f'ds_read_b128 {vr(R_Q + 4 * m)}, v{6 + m}')
    else:
        p.need('Q')
        p.check_retry(lambda: q_loads(p, vo_q)(False), list(range(R_Q, R_Q + 16)), 10)
    p.e('s_waitcnt lgkmcnt(0)')
    p.stamp('q_ok')
    for t in range(8):
        for m in range(4):
            s = vr(R_S + 4 * t)
            p.e(f'v_mfma_f32_16x16x32_bf16 {s}, {vr(R_K + 16 * t + 4 * m)}, {vr(R_Q + 4 * m)}, {"0" if m == 0 else s}')
        if t == 1:
            p.release('K01')
            p.burst(2)
        if t == 7:
            p.release('K47')
            p.burst(CFG['BURST'])
    T = 2
    for t in range(8):
        x = R_S + 4 * t
        for h in (0, 2):
            p.rnd2(x + h, x + h + 1, T + h // 2)
        for r in range(4):
            p.e(f'v_mul_f32 v{x + r}, 0x3db504f3, v{x + r}')
        for h in (0, 2):
            p.rnd2(x + h, x + h + 1, T + h // 2)
        if t == 0:
            p.e(f'v_max_f32 v4, v{x}, v{x + 1}')
        else:
            p.e(f'v_max3_f32 v4, v4, v{x}, v{x + 1}')
        p.e(f'v_max3_f32 v4, v4, v{x + 2}, v{x + 3}')
        if t % 2:
            p.fill()
    p.W += CFG['BURST'] - 2
    p.pump(2)
    p.W -= CFG['BURST'] - 2
    p.swapred('v_max_f32', 16, [4], [5])
    p.swapred('v_max_f32', 32, [4], [5])
    p.e(f'v_mul_f32 v6, {hex(LOG2E | 0x80000000)}, v4\ns_mov_b32 s{S_T0}, {hex(LOG2E)}')
    p.e(f's_mov_b32 s{S_MASK}, 0x00ff00ff\ns_mov_b32 s{S_MASK + 1}, 0x00ff00ff\nv_mov_b32 v5, 0')
    for t in range(8):
        x = R_S + 4 * t
        for r in range(4):
            p.e(f'v_fma_f32 v{x + r}, v{x + r}, s{S_T0}, v6')
        for r in range(4):
            p.e(f'v_exp_f32 v{x + r}, v{x + r}')
        p.e(f'v_add_f32 v7, v{x}, v{x + 1}\nv_add_f32 v8, v{x + 2}, v{x + 3}')
        p.e(f'v_cvt_pk_bf16_f32 v2, v{x}, v{x + 1}\nv_cvt_pk_bf16_f32 v3, v{x + 2}, v{x + 3}')
        p.e(f'v_add_f32 v5, v5, v7\nv_add_f32 v5, v5, v8')
        for d in range(2):
            p.e(f'v_cndmask_b32 v{R_P0 + 2 * t + d}, 0, v{2 + d}, {sr(S_MASK)}')
            p.e(f'v_cndmask_b32 v{R_P1 + 2 * t + d}, v{2 + d}, 0, {sr(S_MASK)}')
        if t % 2:
            p.fill()
    p.swapred('v_add_f32', 16, [5], [6])
    p.swapred('v_add_f32', 32, [5], [6])
    p.e(f's_lshl_b32 s{S_T0}, s{S_WV}, 6\ns_add_u32 s{S_T0}, s{S_T0}, {L_MLW}\nv_lshlrev_b32 v6, 3, v1\nv_add_u32 v7, s{S_T0}, v6')
    p.e(f'v_mov_b32 v8, 1\nv_mov_b32 v9, {L_CNT}')
    p.exec_set(0xff)
    p.e('ds_write_b64 v7, v[4:5]\ns_mov_b64 exec, 1\nds_add_rtn_u32 v8, v9, v8')
    p.exec_all()
    sk = p.lab('ml')
    p.e(f's_waitcnt lgkmcnt(0)\nv_readfirstlane_b32 s{S_T0}, v8\ns_cmp_lg_u32 s{S_T0}, 7\ns_cbranch_scc1 {sk}')
    p.e(f'ds_read_b64 v[8:9], v6 offset:{L_MLW}\ns_waitcnt lgkmcnt(0)')
    ml_combine(p, 8, 9, 2, 3, 7)
    p.e(f's_lshl_b32 s{S_T0}, s5, 7\ns_add_u32 s{S_T0}, s{S_T0}, {WS_ML}')
    p.exec_set(0xff)
    p.e(f'buffer_store_dwordx2 v[2:3], v6, {sr(SRD_WS, 4)}, s{S_T0} offen sc1')
    p.exec_all()
    p.e(f'{sk}:')
    p.stamp('softmax')


def ml_combine(p, m, l, M, L, t):
    p.e(f'v_max_f32_dpp v{M}, v{m}, v{m} row_ror:8 row_mask:0xf bank_mask:0xf')
    p.swapred('v_max_f32', 16, [M], [t])
    p.swapred('v_max_f32', 32, [M], [t])
    p.e(f'v_sub_f32 v{t}, v{m}, v{M}\nv_mul_f32 v{t}, {hex(LOG2E)}, v{t}\nv_exp_f32 v{t}, v{t}\nv_mul_f32 v{L}, v{l}, v{t}')
    p.e(f'v_add_f32_dpp v{L}, v{L}, v{L} row_ror:8 row_mask:0xf bank_mask:0xf')
    p.swapred('v_add_f32', 16, [L], [t])
    p.swapred('v_add_f32', 32, [L], [t])


def pv_chunk(p, u, T):
    p.need(f'V{u}')
    raw = p.vch[u]
    for c in range(4):
        tb = T + 8 * (c & 1)
        for hi in range(2):
            for jj in range(4):
                a, b = raw + 4 * (2 * jj) + c, raw + 4 * (2 * jj + 1) + c
                p.e(f'v_perm_b32 v{tb + 4 * hi + jj}, v{b}, v{a}, s{S_PHI if hi else S_PLO}')
        for hi in range(2):
            e = 2 * c + hi
            acc = vr(R_ACC + 4 * (e & 3))
            cc = '0' if (u == 0 and e < 4) else acc
            pb = (R_P0 if e < 4 else R_P1) + 4 * u
            p.e(f'v_mfma_f32_16x16x32_bf16 {acc}, {vr(tb + 4 * hi)}, {vr(pb)}, {cc}')
        p.fill()


def ml_loads(p):
    def issue(model):
        for k in range(2):
            s = f'buffer_load_dwordx2 {vr(6 + 2 * k, 2)}, v2, {sr(SRD_WS, 4)}, s{S_U + 3} offen offset:{1024 * k} sc1'
            p.vmem(s, 'ML') if model else p.e(s)
    return issue


def push_ml(p):
    def fn(t):
        p.e(f's_lshr_b32 s{S_U + 3}, s5, 4\ns_lshl_b32 s{S_U + 3}, s{S_U + 3}, 11\ns_add_u32 s{S_U + 3}, s{S_U + 3}, {WS_ML}')
        p.lane(2, [(3, 3, 128), (0, 3, 8)], tmp=3)
        ml_loads(p)(True)
    p.push('ML', fn, 'sm')


def ml_scale(p):
    p.need('ML')
    p.stamp('ml_landed')
    p.check_retry(lambda: ml_loads(p)(False), [6, 7, 8, 9], 3)
    p.e(f'''v_max_f32 v3, v6, v8
    v_sub_f32 v6, v6, v3
    v_sub_f32 v8, v8, v3
    v_mul_f32 v6, {hex(LOG2E)}, v6
    v_mul_f32 v8, {hex(LOG2E)}, v8
    v_exp_f32 v6, v6
    v_exp_f32 v8, v8
    v_mul_f32 v7, v7, v6
    v_fmac_f32 v7, v9, v8''')
    ml_combine(p, 3, 7, 6, 8, 9)
    p.e(f'v_sub_f32 v4, v4, v6\nv_mul_f32 v4, {hex(LOG2E)}, v4\nv_exp_f32 v4, v4\nv_rcp_f32 v8, v8\nv_mul_f32 v5, v4, v8')
    p.e(f's_mul_i32 s{S_T0}, s{S_WV}, 4864\ns_add_u32 s{S_T0}, s{S_T0}, {L_OPART}')
    p.lane(6, [(0, 3, 592), (4, 2, 144), (3, 1, 64)], sadd=S_T0, tmp=3)
    p.e(f's_mul_i32 s{S_T0}, s{S_WV}, 592\ns_add_u32 s{S_T0}, s{S_T0}, {L_OPART}')
    p.lane(7, [(4, 2, 144), (1, 1, 64), (0, 1, 32), (2, 2, 4)], sadd=S_T0, tmp=3)
    p.e('v_add_u32 v8, 16, v7\nv_lshlrev_b32 v9, 2, v1')
    p.e(f's_lshl_b32 s{S_U + 3}, s5, 11\ns_lshl_b32 s{S_T1}, s{S_WV}, 8\ns_add_u32 s{S_U + 3}, s{S_U + 3}, s{S_T1}\ns_add_u32 s{S_U + 3}, s{S_U + 3}, {WS_OP}')


def quad_pack_store(p, D, vo, s_off):
    for k in (1, 2, 3):
        p.e(f'v_mov_b32_dpp v{D + k}, v{D} quad_perm:[{k},{k},{k},{k}] row_mask:0xf bank_mask:0xf')
    p.exec_set(0x1111111111111111)
    p.vmem(f'buffer_store_dwordx4 {vr(D)}, v{vo}, {sr(SRD_WS, 4)}, s{s_off} offen sc1', 'st')
    p.exec_all()


def attn_epilogue(p):
    for k in range(0, 16, 2):
        p.e(f'v_pk_mul_f32 {vr(R_ACC + k, 2)}, {vr(R_ACC + k, 2)}, v[4:5] op_sel:[0,1] op_sel_hi:[1,1]')
        if k % 4 == 2:
            p.e(f'ds_write_b128 v6, {vr(R_ACC + k - 2)} offset:{16 * (k // 4)}')
    p.e('s_waitcnt lgkmcnt(0)\ns_barrier')
    B = R_P0
    for k in range(4):
        p.e(f'ds_read2st64_b32 {vr(B + 2 * k, 2)}, v7 offset0:{38 * k} offset1:{38 * k + 19}')
        p.e(f'ds_read2st64_b32 {vr(B + 8 + 2 * k, 2)}, v8 offset0:{38 * k} offset1:{38 * k + 19}')
    p.e('s_waitcnt lgkmcnt(0)')
    for w in (4, 2, 1):
        p.tree(B, [w])
        p.tree(B + 8, [w])
    p.e(f'v_cvt_pk_bf16_f32 v{B + 4}, v{B}, v{B + 8}')
    quad_pack_store(p, B + 4, 9, S_U + 3)
    p.stamp('o_stored')


def selectors(p, SA, t, n=8):
    p.e(f'v_and_b32 v{t}, 1, v1\nv_cmp_eq_u32 vcc, 1, v{t}\nv_mov_b32 v{t}, 0x3f80\nv_mov_b32 v{t + 1}, 1.0')
    p.e(f'v_cndmask_b32 v{t}, v{t}, v{t + 1}, vcc\nv_bfe_u32 v{t + 1}, v1, 1, 3')
    for d in range(n):
        p.e(f'v_cmp_eq_u32 vcc, {d}, v{t + 1}\nv_cndmask_b32 v{SA + d}, 0, v{t}, vcc')


def wide_b_addrs(p, A, base_terms, s_base, const, t):
    p.lane(t, base_terms, const=const, sadd=s_base, tmp=A)
    p.e(f'v_mov_b32 v{t + 1}, {L_ZERO}')
    for j in range(4):
        m = 0x11111111 << j
        p.e(f's_mov_b32 s{S_MASK}, {hex(m)}\ns_mov_b32 s{S_MASK + 1}, {hex(m)}')
        p.e(f'v_cndmask_b32 v{A + j}, v{t + 1}, v{t}, {sr(S_MASK)}')


def selectors_b(p, SA, t):
    p.e(f'v_and_b32 v{t}, 1, v1\nv_cmp_eq_u32 vcc, 1, v{t}\nv_mov_b32 v{t}, 0x3f80\nv_mov_b32 v{t + 1}, 1.0')
    p.e(f'v_cndmask_b32 v{t}, v{t}, v{t + 1}, vcc')
    p.e(f'v_lshrrev_b32 v{t + 1}, 1, v1\nv_xor_b32 v{t + 1}, v{t + 1}, v1\nv_and_b32 v{t + 1}, 8, v{t + 1}')
    p.e(f'v_bfe_u32 v{SA}, v1, 1, 2\nv_or_b32 v{t + 1}, v{t + 1}, v{SA}\nv_bfe_u32 v{SA}, v1, 5, 1\nv_lshl_or_b32 v{t + 1}, v{SA}, 2, v{t + 1}')
    for d in range(8):
        p.e(f'v_cmp_eq_u32 vcc, {d}, v{t + 1}\nv_cndmask_b32 v{SA + d}, 0, v{t}, vcc')


def sp_addrs(p, A, bstride, s_base, const, t, idx=None):
    p.lane(t, [(2, 2, bstride), (0, 1, bstride // 2), (4, 2, 16)], const=const, sadd=s_base, tmp=A)
    p.e(f'v_mov_b32 v{t + 1}, {L_ZERO}\ns_mov_b32 s{S_MASK}, 0x33333333\ns_mov_b32 s{S_MASK + 1}, 0x33333333')
    p.e(f'v_cndmask_b32 v{A}, v{t + 1}, v{t}, {sr(S_MASK)}\nv_cndmask_b32 v{A + 1}, v{t}, v{t + 1}, {sr(S_MASK)}')
    if idx is not None:
        p.e(f's_mov_b32 s{S_MASK}, 0x55555555\ns_mov_b32 s{S_MASK + 1}, 0x55555555\nv_mov_b32 v{t}, 0xeeee\nv_mov_b32 v{t + 1}, 0x4444')
        p.e(f'v_cndmask_b32 v{idx}, v{t}, v{t + 1}, {sr(S_MASK)}')


def sp_gemv(p, F, A, ACC, idx):
    for e in range(8):
        p.e(f'v_smfmac_f32_16x16x64_bf16 {vr(ACC + 4 * (e & 3))}, {vr(A + 4 * (e >> 2))}, {vr(F + 8 * e, 8)}, v{idx}')


def lines_of(p, fn):
    old, p.L = p.L, []
    fn()
    out, p.L = p.L, old
    return out


def interleave(p, main, fill, per):
    fill = list(fill)
    for m in main:
        p.L.append(m)
        p.L += fill[:per]
        fill = fill[per:]
    p.L += fill


def sp_fold(p, ACC, OUT):
    for e in range(8):
        r = ACC + 4 * (e & 3) + 2 * (e >> 2)
        p.e(f'v_add_f32 v{OUT + e}, v{r}, v{r + 1}')


def push_wide_rows(p, tag, raw, vo, s_base, row0, need=None):
    for jj in range(8):
        def fn(t, jj=jj):
            p.e(f's_add_u32 s{S_T3}, s{s_base}, {(row0 + (jj & ~1)) * 2048}')
            p.vmem(f'buffer_load_dwordx4 {vr(raw + 4 * jj)}, v{vo}, {sr(SRD_W, 4)}, s{S_T3} offen offset:{2048 * (jj & 1)} nt', t)
        p.push(tag, fn, need)


def finish(p):
    if CFG['DBGOUT']:
        p.stamp('end')
        sk = p.lab('dbg')
        p.e(f's_cmp_lg_u32 s{S_WV}, 0\ns_cbranch_scc1 {sk}')
        sk2 = p.lab('dbg')
        p.e(f's_cmp_lg_u32 s2, 64\ns_cbranch_scc1 {sk2}\ns_memtime s[100:101]\ns_waitcnt lgkmcnt(0)\ns_sub_u32 s100, s100, s99')
        p.e(f's_atomic_umax s100, {sr(P_DBG)}, 56\ns_sub_u32 s{S_T0}, s{S_STAMP + p.nstamp - 1}, s{S_STAMP}\ns_atomic_umax s{S_T0}, {sr(P_DBG)}, 60\n{sk2}:')
        slots = ['start', 'pre_done', 'k_done', 'q_ok', 'o_stored', 'e3_ok', 'a_stored', 'w_ready', 'e4_ok', 'f_stored', 'end']
        p.e(f's_not_b32 s{S_T0}, s{S_STAMP}\ns_atomic_umax s{S_T0}, {sr(P_DBG)}, 4')
        for k, n in enumerate(p.stamp_names):
            if n in slots:
                p.e(f's_atomic_umax s{S_STAMP + k}, {sr(P_DBG)}, {8 + 4 * slots.index(n)}')
        p.e(f'{sk}:')
    elif CFG['STAMPS']:
        p.e(f's_lshl_b32 s{S_T0}, s2, 3\ns_add_u32 s{S_T0}, s{S_T0}, s{S_WV}\ns_lshl_b32 s{S_T0}, s{S_T0}, 7\ns_add_u32 s{S_T0}, s{S_T0}, {WS_STAMP}')
        p.stamp('end')
        p.e('s_mov_b64 exec, 1\nv_mov_b32 v2, 0')
        for k in range(p.nstamp):
            p.e(f'v_mov_b32 v3, s{S_STAMP + k}\nbuffer_store_dword v3, v2, {sr(SRD_WS, 4)}, s{S_T0} offen offset:{4 * k}')
    p.e('s_endpgm')


def unit_index(p, dst, base, n):
    p.e(f's_sub_u32 s{dst}, s2, {base - CFG["USH"]}')
    if CFG['USH']:
        p.e(f's_cmp_ge_u32 s{dst}, {n}\ns_cselect_b32 s{S_T0}, {n}, 0\ns_sub_u32 s{dst}, s{dst}, s{S_T0}')


def mod_unit_setup(p, s_unit, s_col, s_out):
    p.e(f's_lshl_b32 s{s_col}, s{s_unit}, 7')
    p.e(f's_lshr_b32 s{s_out}, s{s_unit}, 4\ns_lshl_b32 s{s_out}, s{s_out}, 13\ns_and_b32 s{S_T0}, s{s_unit}, 15')
    p.e(f's_lshl_b32 s{S_T0}, s{S_T0}, 7\ns_add_u32 s{s_out}, s{s_out}, s{S_T0}')
    if WS_MOD:
        p.e(f's_add_u32 s{s_out}, s{s_out}, {WS_MOD}')


def quarter_loads(p, s_col, raw=128):
    p.lane(15, [(3, 3, 4 * 12288), (0, 3, 16)], tmp=raw)
    p.e(f's_mul_i32 s{S_T2}, s{S_WV}, {32 * 12288}\ns_add_u32 s{S_T2}, s{S_T2}, s{s_col}')
    for jj in range(4):
        p.e(f's_add_u32 s{S_T3}, s{S_T2}, {jj * 12288}')
        p.waitn(p.W - 1)
        p.vmem(f'buffer_load_dwordx4 {vr(raw + 4 * jj)}, v15, {sr(SRD_W, 4)}, s{S_T3} offen nt', 'WQ')


def quarter_compute(p, raw=128, F=144, B=160, ACC=176):
    a0, a1, t0 = 10, 11, 15
    p.e(f's_and_b32 s{S_T0}, s2, 3\ns_lshl_b32 s{S_T0}, s{S_T0}, 1\ns_lshr_b32 s{S_T1}, s{S_WV}, 2\ns_add_u32 s{S_T0}, s{S_T0}, s{S_T1}')
    p.e(f's_lshl_b32 s{S_T0}, s{S_T0}, 10\ns_and_b32 s{S_T1}, s{S_WV}, 3\ns_lshl_b32 s{S_T1}, s{S_T1}, 6\ns_add_u32 s{S_T0}, s{S_T0}, s{S_T1}\ns_add_u32 s{S_T0}, s{S_T0}, {L_XA}')
    p.lane(a0, [(0, 2, 256), (4, 2, 16), (3, 1, 8)], sadd=S_T0, tmp=t0)
    p.e(f's_mov_b32 s{S_MASK}, 0x0f0f0f0f\ns_mov_b32 s{S_MASK + 1}, 0x0f0f0f0f\nv_mov_b32 v{t0}, {L_ZERO}')
    p.e(f'v_cndmask_b32 v{a1}, v{a0}, v{t0}, {sr(S_MASK)}\nv_cndmask_b32 v{a0}, v{t0}, v{a0}, {sr(S_MASK)}')
    p.e(f'ds_read_b64 {vr(B, 2)}, v{a0}\nds_read_b64 {vr(B + 2, 2)}, v{a1}')
    p.e(f's_lshl_b32 s{S_T0}, s{S_WV}, 11\ns_add_u32 s{S_T0}, s{S_T0}, {L_RED2}')
    p.lane(a0, [(5, 1, 1024), (0, 2, 256), (2, 1, 128), (4, 1, 16)], sadd=S_T0, tmp=t0)
    p.need('WQ')
    for c in range(4):
        for hi in range(2):
            for jj in range(2):
                p.e(f'v_perm_b32 v{F + 2 * (2 * c + hi) + jj}, v{raw + 4 * (2 * jj + 1) + c}, v{raw + 4 * (2 * jj) + c}, s{S_PHI if hi else S_PLO}')
    p.e('s_waitcnt lgkmcnt(0)')
    for e in range(8):
        acc = vr(ACC + 4 * (e & 3))
        p.e(f'v_mfma_f32_16x16x16_bf16 {acc}, {vr(F + 2 * e, 2)}, {vr(B + 2 * (e >> 2), 2)}, {"0" if e < 4 else acc}')
    p.e(f's_lshl_b32 s{S_T0}, s{S_WV}, 8\ns_add_u32 s{S_T0}, s{S_T0}, {L_RED2 - 1024}')
    p.lane(a1, [(2, 1, 128), (0, 2, 32), (5, 1, 16), (3, 2, 4)], sadd=S_T0, tmp=t0)
    p.exec_set(0xff00ff0000ff00ff)
    for a in range(4):
        p.e(f'ds_write_b128 v{a0}, {vr(ACC + 4 * a)} offset:{32 * a}')
    p.exec_all()


def quarter_final(p, s_out, B=160):
    a0, a1 = 10, 11
    end = p.lab('qend')
    p.e(f's_cmp_ge_u32 s2, 248\ns_cbranch_scc1 {end}')
    for k in range(8):
        p.e(f'ds_read2st64_b32 {vr(B + 2 * k, 2)}, v{a1} offset0:{8 * k} offset1:{8 * k + 4}')
    p.e(f's_lshl_b32 s{S_T0}, s{S_WV}, 11\ns_add_u32 s{S_T0}, s{S_T0}, s{s_out}\ns_sub_u32 s{S_T0}, s{S_T0}, 8192\nv_lshlrev_b32 v{a0}, 2, v1\ns_waitcnt lgkmcnt(0)')
    for w in (8, 4, 2, 1):
        for k in range(w):
            p.e(f'v_add_f32 v{B + k}, v{B + k}, v{B + k + w}')
    for k in (1, 2, 3):
        p.e(f'v_mov_b32_dpp v{B + k}, v{B} quad_perm:[{k},{k},{k},{k}] row_mask:0xf bank_mask:0xf')
    p.exec_set(0x1111111111111111)
    p.e(f'buffer_store_dwordx4 {vr(B)}, v{a0}, {sr(SRD_WS, 4)}, s{S_T0} offen sc1')
    p.exec_all()
    p.e(f'{end}:')


def capture(p, fn):
    old, p.stream = p.stream, deque()
    fn()
    items, p.stream = list(p.stream), old
    return items


def weave(a, b, lead=0):
    out, a, b = [], list(a), list(b)
    out += b[:lead]
    b = b[lead:]
    while a or b:
        if b:
            out.append(b.pop(0))
        if a:
            out.append(a.pop(0))
    return out


def push_c3(p, tag, ptr, nbytes, wbase, n, first=0, dst=252, stride=None):
    def setup(t):
        p.srd(SRD_A, ptr, nbytes)
        p.e(f's_sub_u32 s{S_T2}, s2, {wbase}\ns_lshl_b32 s{S_T2}, s{S_T2}, 3\ns_add_u32 s{S_T2}, s{S_T2}, s{S_WV}')
        p.e(f's_mul_i32 s{S_T2}, s{S_T2}, {(stride or n) * 8192}\ns_add_u32 s{S_T2}, s{S_T2}, {first * 8192 + 384}')
        p.lane(15, [(3, 3, 1024), (0, 3, 16)], tmp=dst)
        p.e(f's_min_u32 s{S_T2}, s{S_T2}, {nbytes - n * 8192 + 384}')
        for k in range(n):
            if k:
                p.e(f's_add_u32 s{S_T2}, s{S_T2}, 8192')
            p.vmem(f'buffer_load_dwordx4 {vr(dst)}, v15, {sr(SRD_A, 4)}, s{S_T2} offen', t)
    p.push(tag, setup)


def push_c3half(p, ptr, wbase, dst=252):
    def fn(t):
        p.srd(SRD_A, ptr, 1024 * 7168)
        p.e(f's_sub_u32 s{S_T2}, s2, {wbase}\ns_mul_i32 s{S_T3}, s{S_T2}, 37\ns_lshr_b32 s{S_T3}, s{S_T3}, 8\ns_mul_i32 s{S_T3}, s{S_T3}, 7')
        p.e(f's_add_u32 s{S_T2}, s{S_T2}, s{S_T3}\ns_add_u32 s{S_T2}, s{S_T2}, 7\ns_lshl_b32 s{S_T2}, s{S_T2}, 3\ns_add_u32 s{S_T2}, s{S_T2}, s{S_WV}')
        p.e(f's_lshl_b32 s{S_T2}, s{S_T2}, 13')
        p.lane(15, [(3, 3, 1024), (0, 3, 16)], tmp=dst)
        p.vmem(f'buffer_load_dwordx4 {vr(dst)}, v15, {sr(SRD_A, 4)}, s{S_T2} offen offset:384', t)
    p.push('c3', fn)


def push_c3mod(p, wbase, dst=252):
    def fn(t):
        p.srd(SRD_A, P_WMOD, 1024 * 12288)
        p.e(f's_sub_u32 s{S_T2}, s2, {wbase}\ns_lshl_b32 s{S_T2}, s{S_T2}, 3\ns_add_u32 s{S_T2}, s{S_T2}, s{S_WV}')
        p.e(f's_lshr_b32 s{S_T3}, s{S_T2}, 7\ns_lshl_b32 s{S_T3}, s{S_T3}, 10\ns_and_b32 s{S_T2}, s{S_T2}, 127')
        p.e(f's_mul_i32 s{S_T2}, s{S_T2}, {8 * 12288}\ns_add_u32 s{S_T2}, s{S_T2}, s{S_T3}\ns_add_u32 s{S_T2}, s{S_T2}, 4096')
        p.lane(15, [(3, 3, 12288), (0, 3, 16)], tmp=dst)
        p.vmem(f'buffer_load_dwordx4 {vr(dst)}, v15, {sr(SRD_A, 4)}, s{S_T2} offen offset:384', t)
        sk = p.lab('c3')
        p.e(f's_cmp_ge_u32 s{S_T3}, 2048\ns_cbranch_scc1 {sk}\ns_add_u32 s{S_T2}, s{S_T2}, 4096')
        p.e(f'buffer_load_dwordx4 {vr(dst)}, v15, {sr(SRD_A, 4)}, s{S_T2} offen offset:384\n{sk}:')
    p.push('c3', fn)


def push_c3mod_late(p, dst=252):
    def fn(t):
        sk = p.lab('c3')
        p.e(f's_bitcmp1_b32 s2, 2\ns_cbranch_scc0 {sk}')
        p.srd(SRD_A, P_WMOD, 1024 * 12288)
        p.e(f's_lshl_b32 s{S_T2}, s{S_W8}, 2\ns_and_b32 s{S_T3}, s2, 3\ns_add_u32 s{S_T2}, s{S_T2}, s{S_T3}\ns_lshl_b32 s{S_T2}, s{S_T2}, 3\ns_add_u32 s{S_T2}, s{S_T2}, s{S_WV}')
        p.e(f's_lshr_b32 s{S_T3}, s{S_T2}, 7\ns_lshl_b32 s{S_T3}, s{S_T3}, 10\ns_and_b32 s{S_T2}, s{S_T2}, 127')
        p.e(f's_mul_i32 s{S_T2}, s{S_T2}, {8 * 12288}\ns_add_u32 s{S_T2}, s{S_T2}, s{S_T3}\ns_add_u32 s{S_T2}, s{S_T2}, 4096')
        p.lane(15, [(3, 3, 12288), (0, 3, 16)], tmp=dst)
        for k in range(3):
            if k:
                p.e(f's_add_u32 s{S_T2}, s{S_T2}, 2048')
            p.e(f'buffer_load_dwordx4 {vr(dst)}, v15, {sr(SRD_A, 4)}, s{S_T2} offen offset:384')
        p.e(f'{sk}:')
    p.push('c3', fn)


def rewarm(p, label, n, dst):
    if not CFG['REWARM']:
        return
    here = p.lab('pc')
    p.e(f's_getpc_b64 s[{S_T0}:{S_T1}]\n{here}:\ns_lshl_b32 s{S_T2}, s{S_WV}, 10\ns_add_u32 s{S_T2}, s{S_T2}, ({label}-{here})&0xfffffff0')
    p.e(f's_min_u32 s{S_T2}, s{S_T2}, (L_code_end-{here}-{1024 + 8192 * (n - 1)})&0xfffffff0')
    p.e(f's_and_b32 s{S_T0}, s{S_T0}, 0xfffffff0\ns_add_u32 s{S_T0}, s{S_T0}, s{S_T2}\ns_addc_u32 s{S_T1}, s{S_T1}, 0')
    for k in range(n):
        if k:
            p.e(f's_add_u32 s{S_T0}, s{S_T0}, 8192\ns_addc_u32 s{S_T1}, s{S_T1}, 0')
        p.vmem(f'global_load_dwordx4 {vr(dst)}, v0, s[{S_T0}:{S_T1}]', 'code')


def helper_gate(p, cls, miss=None, va=15, vd=14):
    lp, ok = p.lab('hg'), p.lab('hgok')
    if miss is None:
        miss = CFG['GATE_MISS']
    if cls in 'RM':
        p.e(f's_and_b32 s{S_T0}, s2, 3\ns_add_u32 s{S_T0}, s{S_T0}, 10')
    else:
        p.e(f's_lshr_b32 s{S_T0}, s5, 4')
    p.e(f's_lshl_b32 s{S_T0}, s{S_T0}, 15\ns_add_u32 s{S_T0}, s{S_T0}, {WS_OP + 2044}\ns_mov_b32 s{S_SPIN}, 0')
    p.lane(va, [(0, 4, 2048)])
    p.e(f'{lp}:\nbuffer_load_dword v{vd}, v{va}, {sr(SRD_WS, 4)}, s{S_T0} offen sc1')
    p.e(f's_add_u32 s{S_SPIN}, s{S_SPIN}, 1\ns_cmp_ge_u32 s{S_SPIN}, {CFG["SPIN"]}\ns_cbranch_scc1 {ok}\ns_waitcnt vmcnt(0)')
    p.e(f'v_cmp_eq_u32 vcc, -1, v{vd}\ns_bcnt1_i32_b64 s{S_T1}, vcc\ns_cmp_gt_u32 s{S_T1}, {4 * miss}\ns_cbranch_scc1 {lp}\n{ok}:')
    p.vm = []


def h6_prefetch(p, cls):
    sk = p.lab('h6')
    p.srd(SRD_A, P_W1, 1024 * 7168)
    p.srd(SRD_W, P_W3, 1024 * 7168)
    p.e(f's_sub_u32 s{S_T0}, s{S_W8}, {dict(P=23, Q=15 - 2, R=27 - 10)[cls]}\ns_cmp_ge_u32 s{S_T0}, 14\ns_cbranch_scc1 {sk}')
    p.e(f's_lshl_b32 s{S_T0}, s{S_T0}, 3\ns_add_u32 s{S_T0}, s{S_T0}, s{S_WV}\ns_add_u32 s{S_T1}, s2, {CFG["USH"]}\ns_and_b32 s{S_T1}, s{S_T1}, 7\ns_lshl_b32 s{S_T1}, s{S_T1}, 7')
    p.lane(15, [(3, 3, 1024), (0, 3, 16)], sadd=S_T1, tmp=14)
    for ch in CFG['H6']:
        for half in range(2):
            p.e(f's_add_u32 s{S_T1}, s{S_T0}, {112 * half}\ns_mul_i32 s{S_T2}, s{S_T1}, 2341\ns_lshr_b32 s{S_T2}, s{S_T2}, 16')
            p.e(f's_mul_i32 s{S_T2}, s{S_T2}, {896 - 28 * 8}\ns_lshl_b32 s{S_T1}, s{S_T1}, 3\ns_add_u32 s{S_T2}, s{S_T2}, s{S_T1}')
            p.e(f's_add_u32 s{S_T2}, s{S_T2}, {32 * ch * 7}\ns_lshl_b32 s{S_T2}, s{S_T2}, 10')
            p.e(f's_waitcnt vmcnt({CFG["H6W"] - 2})')
            p.e(f'buffer_load_dwordx4 v[252:255], v15, {sr(SRD_A, 4)}, s{S_T2} offen')
            p.e(f'buffer_load_dwordx4 v[252:255], v15, {sr(SRD_W, 4)}, s{S_T2} offen')
    p.e(f'{sk}:')


def h5_prefetch(p, cls):
    p.srd(SRD_A, P_W2, 3584 * 2048)
    if CFG['H5X']:
        p.e(f's_sub_u32 s{S_T0}, s{S_W8}, {dict(P=23, Q=15 - 2, R=27 - 10)[cls]}\ns_lshr_b32 s{S_T2}, s{S_T0}, 1\ns_lshl_b32 s{S_T2}, s{S_T2}, 3')
        p.e(f's_add_u32 s{S_T1}, s2, {CFG["USH"]}\ns_and_b32 s{S_T1}, s{S_T1}, 7\ns_add_u32 s{S_T2}, s{S_T2}, s{S_T1}\ns_lshl_b32 s{S_T2}, s{S_T2}, 17')
    else:
        p.e(f's_sub_u32 s{S_T0}, s2, {dict(Q=120 - 16, R=216 - 80, P=184)[cls]}')
        p.e(f's_lshr_b32 s{S_T2}, s{S_T0}, 1\ns_lshl_b32 s{S_T2}, s{S_T2}, 17')
    p.e(f's_and_b32 s{S_T0}, s{S_T0}, 1\ns_lshl_b32 s{S_T0}, s{S_T0}, 15')
    p.e(f's_add_u32 s{S_T2}, s{S_T2}, s{S_T0}\ns_add_u32 s{S_T2}, s{S_T2}, s{S_ROT}')
    sk = p.lab('h5')
    p.e(f's_cmp_ge_u32 s{S_T2}, {3584 * 2048}\ns_cbranch_scc1 {sk}')
    for off in (0, 65536)[:CFG['H5']]:
        p.e(f's_add_u32 s{S_T3}, s{S_T2}, {off}')
        for j in range(4):
            p.waitn(CFG['H5W'] - 1)
            p.vmem(f'buffer_load_dwordx4 v[252:255], v0, {sr(SRD_A, 4)}, s{S_T3} offen offset:{1024 * j}', 'h5')
    p.e(f'{sk}:')


def build_class(cls, ent):
    p = Prog(cls)
    pre = {'P': 'mod', 'PR': 'mod', 'Q': 'q'}.get(cls)
    p.vm = list(ent.vm_pre if pre else ent.vm)
    p.e(f'L_class_{cls}:')
    if pre:
        if CFG['JUMP0']:
            ids(p)
            code_prefetch(p)
            kv_base(p)
        got_args(p)
    common_setup(p)
    Wattn = CFG['W_' + cls]
    er = cls == 'R' and CFG['R_AT']
    late = pre or er
    stage = CFG['STAGE'] and not late
    p.vch = [64, 96, 160, 128] if stage else VCH
    S_COL, S_OUT, S_WB = S_U, S_U + 1, S_U + 2
    S_OUT2, S_COL2 = S_U + 4, S_U + 5
    roles = []
    if pre == 'mod':
        p.srd(SRD_W, P_WMOD, 1024 * 12288)
        p.srd(SRD_A, P_C, 8192)
        unit_index(p, S_T1, 184, 32)
        mod_unit_setup(p, S_T1, S_COL, S_OUT)
        narrow_setup(p, 12288, 10, S_WB, S_COL, 3)
    if pre == 'q':
        p.srd(SRD_W, P_WQ, 1024 * 8192)
        p.srd(SRD_A, P_X, 8192)
        unit_index(p, S_COL, 120, 64)
        p.e(f's_lshl_b32 s{S_COL}, s{S_COL}, 7\ns_add_u32 s{S_OUT}, s{S_COL}, {WS_Q}')
        narrow_setup(p, 8192, 10, S_WB, S_COL, 3)
    if pre:
        p.lane(11, AL_TERMS, tmp=3)
        p.e(f's_lshl_b32 s{S_U + 6}, s{S_WV}, 8')
        push_al_loads(p, 'ACT', SRD_A, 16, 11, S_U + 6)
        push_narrow_weights(p, 'WA', 12288 if pre == 'mod' else 8192, 64, 96, 10, S_WB)
        roles.append(lambda: clear_rows(p, S_OUT, 2048 if pre == 'mod' else 8192, 128))
    if cls == 'O' and CFG['HP3']:
        p.srd(SRD_W, P_WMOD, 1024 * 12288)
        p.e(f's_lshl_b32 s{S_T0}, s2, 3\ns_add_u32 s{S_T0}, s{S_T0}, s{S_WV}\ns_lshr_b32 s{S_T1}, s{S_T0}, 7\ns_lshl_b32 s{S_T1}, s{S_T1}, 10')
        p.e(f's_and_b32 s{S_T0}, s{S_T0}, 127\ns_mul_i32 s{S_T0}, s{S_T0}, {8 * 12288}\ns_add_u32 s{S_T0}, s{S_T0}, s{S_T1}')
        p.lane(10, [(3, 3, 12288), (0, 3, 16)], tmp=3)
        p.vmem(f'buffer_load_dwordx4 v[252:255], v10, {sr(SRD_W, 4)}, s{S_T0} offen offset:384', 'hp3')
    if cls in ('PR', 'R'):
        unit_index(p, S_T1, *((216, 40) if cls == 'R' else (200, 16)))
        p.e(f's_add_u32 s{S_T1}, s{S_T1}, {32 if cls == "R" else 80}')
        mod_unit_setup(p, S_T1, S_COL2, S_OUT2)
        roles.append(lambda: clear_rows(p, S_OUT2, 2048, 128))
    if cls == 'R':
        p.e(f's_sub_u32 s{S_T1}, s2, 216\ns_and_b32 s{S_T0}, s{S_T1}, 3\ns_lshr_b32 s{S_T1}, s{S_T1}, 2')
        p.e(f's_lshl_b32 s{S_OUT}, s{S_T0}, 13\ns_lshl_b32 s{S_COL}, s{S_T1}, 8\ns_add_u32 s{S_OUT}, s{S_OUT}, s{S_COL}\ns_add_u32 s{S_OUT}, s{S_OUT}, {WS_CBP}')
        p.e(f's_mul_i32 s{S_T0}, s{S_T0}, {256 * 12288}\ns_lshl_b32 s{S_COL}, s{S_T1}, 7\ns_add_u32 s{S_COL}, s{S_COL}, s{S_T0}\ns_add_u32 s{S_COL}, s{S_COL}, {72 * 128}')

        def q_clear():
            sk = p.lab('qclr')
            p.e(f's_cmp_ge_u32 s2, 248\ns_cbranch_scc1 {sk}')
            clear_rows(p, S_OUT, 2048, 256)
            p.e(f'{sk}:')
        roles.append(q_clear)
    if cls == 'O':
        p.e(f's_and_b32 s{S_COL}, s2, 7\ns_lshl_b32 s{S_OUT}, s{S_COL}, 13\ns_lshl_b32 s{S_T0}, s{S_W8}, 8')
        p.e(f's_add_u32 s{S_OUT}, s{S_OUT}, s{S_T0}\ns_add_u32 s{S_OUT}, s{S_OUT}, {WS_AP}')
        roles.append(lambda: clear_rows(p, S_OUT, 2048, 256))
    if cls == 'M':
        unit_index(p, S_COL, 64, 56)
        p.e(f's_lshl_b32 s{S_OUT}, s{S_COL}, 13\ns_lshl_b32 s{S_T0}, s{S_WV}, 10')
        p.e(f's_add_u32 s{S_OUT}, s{S_OUT}, s{S_T0}\ns_add_u32 s{S_OUT}, s{S_OUT}, {WS_FP}')

        def fp_clear():
            for k in range(8):
                if k % 4 == 0:
                    p.e(f's_add_u32 s{S_T0}, s{S_OUT}, {1024 * k}')
                p.e(f'buffer_store_dwordx4 v[4:7], v0, {sr(SRD_WS, 4)}, s{S_T0} offen offset:{1024 * (k % 4)} sc1')
        roles.append(fp_clear)
    clears(p, lambda: [r() for r in roles])

    def role_setup():
        if cls == 'O':
            p.srd(SRD_W, P_WO, 4096 * 2048)
            p.lane(12, [(4, 2, 8 * 2048), (0, 4, 16)], tmp=13)
            p.e(f's_lshl_b32 s{S_WB}, s{S_COL}, 3\ns_add_u32 s{S_WB}, s{S_WB}, s{S_WV}\ns_lshl_b32 s{S_WB}, s{S_WB}, 17')
            p.e(f's_lshl_b32 s{S_T0}, s{S_W8}, 8\ns_add_u32 s{S_WB}, s{S_WB}, s{S_T0}')
        if cls in ('PR', 'R'):
            p.srd(SRD_W, P_WMOD, 1024 * 12288)
            p.srd(SRD_A, P_C, 8192)
            narrow_setup(p, 12288, 12, S_WB, S_COL2, 13)
            p.lane(13, AL_TERMS, tmp=14)
            p.e(f's_lshl_b32 s{S_U + 6}, s{S_WV}, 8')
        if cls == 'M':
            p.srd(SRD_W, P_W2, 3584 * 2048)
            p.srd(SRD_A, P_X, 8192)
            p.e(f's_mov_b32 s{S_MASK}, 0xff00ff00\ns_mov_b32 s{S_MASK + 1}, 0xff00ff00')
            p.e(f'v_mov_b32 v12, s{P_W1}\nv_mov_b32 v13, s{P_W1 + 1}\nv_mov_b32 v14, s{P_W3}\nv_mov_b32 v15, s{P_W3 + 1}')
            p.e(f'v_cndmask_b32 v12, v12, v14, {sr(S_MASK)}\nv_cndmask_b32 v13, v13, v15, {sr(S_MASK)}')
            p.e(f's_mul_i32 s{S_T0}, s{S_WV}, {128 * 7168}\ns_lshl_b32 s{S_T1}, s{S_COL}, 7\ns_add_u32 s{S_T0}, s{S_T0}, s{S_T1}')
            p.lane(14, [(4, 2, 8 * 7168), (0, 3, 16)], sadd=S_T0, tmp=15)
            p.e('v_mov_b32 v15, 0\nv_lshl_add_u64 v[12:13], v[14:15], 0, v[12:13]')
            p.e(f's_mov_b32 s{S_C64}, 7168\ns_mov_b32 s{S_C64 + 1}, 0\ns_mov_b32 s{S_C64B}, {25 * 7168}\ns_mov_b32 s{S_C64B + 1}, 0')
            p.lane(14, [(4, 2, 8 * 2048), (0, 4, 16)], tmp=15)
            p.e(f's_lshl_b32 s{S_WB}, s{S_COL}, 17\ns_lshl_b32 s{S_T0}, s{S_WV}, 8\ns_add_u32 s{S_WB}, s{S_WB}, s{S_T0}')

    def sc_issue(model):
        for k, chunk in ((0, 0), (1, 1)):
            for q in range(2):
                p.e(f's_add_u32 s{S_T3}, s{S_U + 6}, {WS_MOD + chunk * 8192 + 4096 * q}')
                s = f'buffer_load_dwordx2 {vr(24 + 4 * k + 2 * q, 2)}, v11, {sr(SRD_WS, 4)}, s{S_T3} offen sc1'
                p.vmem(s, 'SC') if model else p.e(s)

    def w13(u, raw, nd):
        def mk(jj):
            def fn(t):
                p.vmem(f'global_load_dwordx4 {vr(raw + 4 * jj)}, v[12:13], off nt', t)
                p.e(f'v_lshl_add_u64 v[12:13], {sr(S_C64B if jj == 7 else S_C64)}, 0, v[12:13]')
            return fn
        return [(f'WM{u}', mk(jj), nd) for jj in range(8)]

    for t in range(0 if pre else 1, 8):
        if t == 4 and CFG['C3']:
            base = dict(O=(0, 2), Q=(120, 2), R=(216, 3), M=(64, 2), P=(184, 4), PR=(184, 4))
            if cls == CFG['C3W1'] or (CFG['C3W1'] == 'P' and cls == 'PR'):
                push_c3half(p, P_W1, base[cls][0]) if CFG['C3H'] else push_c3(p, 'c3', P_W1, 1024 * 7168, *base[cls])
        if t == 5 and CFG['C3']:
            if cls == CFG['C3W3'] or (CFG['C3W3'] == 'P' and cls == 'PR'):
                push_c3half(p, P_W3, base[cls][0]) if CFG['C3H'] else push_c3(p, 'c3', P_W3, 1024 * 7168, *base[cls])
        if t == 5 and CFG['C3O'] and cls in ('P', 'PR'):
            push_c3(p, 'c3', P_WO, 4096 * 2048, 184, CFG['C3O'], stride=4)
        if t == 1 and CFG['C3Q'] and cls in CFG['C3Q']:
            wb, n, first = dict(O=(0, 1, 0), R=(216, 1, 512), M=(64, 1, 512))[cls]
            push_c3(p, 'c3', P_WQ, 1024 * 8192, wb, n, first)
        if t == (1 if CFG['R_AT'] else 6) and cls == CFG['C3MOD']:
            push_c3mod_late(p) if CFG['OLATE'] else push_c3mod(p, dict(O=0, Q=120, M=64)[cls])
        if pre == 'q' and t == 0:
            push_cnt(p, 14, 'CNTA', 128)
        if pre == 'q' and t == CFG['SC_AT']:
            p.push('SC', lambda tg: sc_issue(True), 'cnta')
        if er and t == CFG['R_AT']:
            p.push('Rs', lambda tg: role_setup())
            push_al_loads(p, 'ACT2', SRD_A, 32, 13, S_U + 6)
            push_narrow_weights(p, 'WB', 12288, 64, 96, 12, S_WB)
            p.push('WQ', lambda tg: quarter_loads(p, S_COL, 16))
        if late and t == 6:
            push_cnt(p, 127 if er else 10)
        push_page(p, SRD_K, f'K{t}', t, R_K + 16 * t, 'pre' if (pre == 'mod' and t == CFG['P_HOLD']) else None)
    vv = capture(p, lambda: push_v(p, 0, 'pre' if late else None)) + capture(p, lambda: push_v(p, 1, 'pre' if late else None))
    qi = capture(p, lambda: push_q(p, 11))
    if stage:
        vv += capture(p, lambda: push_v_lds(p, 2))
    if late:
        p.stream += qi + vv
    else:
        k = CFG['Q_AT'] + (CFG['STAGE'] if stage else 0)
        p.stream += vv[:k - 6] + capture(p, lambda: push_cnt(p, 10)) + vv[k - 6:k] + qi + vv[k:]
    v3 = capture(p, lambda: push_v(p, 3, 'K01' if stage else 'pv0'))
    ml = capture(p, lambda: push_ml(p))
    if not stage:
        push_v(p, 2, 'K01')
    p.stream += v3[:3] + ml + v3[3:] if late else v3
    mark = len(p.stream)
    if cls == 'O':
        push_wide_rows(p, 'WO0', 192, 12, S_WB, 0, 'K47')
        push_wide_rows(p, 'WO1', 224, 12, S_WB, 32)
    if cls in ('R', 'PR') and not er:
        wb = capture(p, lambda: push_narrow_weights(p, 'WB', 12288, 192, 224, 12, S_WB))
        wb = [(t, f, 'K47') for t, f, _ in wb]
        wb.insert(0 if cls == 'R' else 8, ('ACT2', capture(p, lambda: push_al_loads(p, 'ACT2', SRD_A, 96, 13, S_U + 6))[0][1], 'pv1'))
        k = 99 if cls == 'R' else CFG['P_EARLY']
        p.stream += wb[:k] + [(t, f, 'ost') for t, f, _ in wb[k:]]
    if cls == 'M':
        l3 = CFG['LATE3']
        if l3 == 3:
            x = CFG['XPRE']
            assert x <= 2
            post = sum((w13(u, r, 'K47' if u < x else 'gate') for u, r in enumerate((192, 224, 96, 128))), [])
            post.insert(8 * x, ('MOD', lambda t: m_mod_issue(p, True), 'ost'))
        else:
            post = w13(0, 192, 'K47') + w13(1, 224, None) + w13(2, 96, 'pv1') + w13(3, 128, 'modok' if l3 == 2 else 'pv3')
            post.insert(len(post) - (8 if l3 else 0), ('MOD', lambda t: m_mod_issue(p, True), 'p2'))
        p.stream += post
        p.w2raw = (128, 96) if l3 else (96, 128)
        p.w2late = capture(p, lambda: push_wide_rows(p, 'WM4', p.w2raw[0], 14, S_WB, 0)) + capture(p, lambda: push_wide_rows(p, 'WM5', p.w2raw[1], 14, S_WB, 32))
    if not late:
        k = CFG['ML_AT_M' if cls == 'M' else 'ML_AT']
        if cls == 'M' and CFG['LATE3'] == 3:
            k = min(k, 8 * CFG['XPRE'])
        p.stream.insert(mark + k, ml[0])

    p.W = CFG['W_PRE'] if pre == 'mod' else CFG['W_PREQ'] if pre else CFG['W_INIT']
    while p.can_pump() and len(p.vm) < p.W and p.stream[0][0] not in ('CNTA', 'K0'):
        p.pump(1)
    p.stamp('first')
    if not pre:
        touch(p, cls)
    common_setup2(p)
    k_setup(p)
    arrive(p, {'mod': [128, 0], 'q': [0], None: []}[pre])
    p.W = Wattn if pre else CFG['W_LOW']
    if CFG['PRIO'] == 'all':
        prio_young(p, 1)
    if not pre:
        k_trans(p, 0)
        p.stamp('k0')
    if pre == 'mod':
        p.need('ACT')
        silu_to_xa(p, 16, list(range(20, 28)), 12)
        p.need('WA0')
        p.perm_chunk(64, 32)
        p.need('WA1')
        p.stamp('w_landed')
        p.perm_chunk(96, 64)
        narrow_gemv(p, 32, 64, 96, 112, [12, 13, 14], (S_OUT, 2048))
        p.release('pre')
        p.stamp('pre_done')
    if pre == 'q':
        p.need('ACT')
        X = list(range(40, 48))
        for d in range(4):
            p.unpack(16 + d, X[2 * d], X[2 * d + 1])
        layernorm(p, X, list(range(48, 60)), True)
        for d in range(4):
            p.e(f'v_cvt_pk_bf16_f32 v{16 + d}, v{X[2 * d]}, v{X[2 * d + 1]}')
        p.need('WA0')
        p.perm_chunk(64, 32)
        p.need('WA1')
        p.stamp('w_landed')
        p.perm_chunk(96, 64)
        check_cnt(p, 14, 'CNTA', 128, 32)
    for t in range(0 if pre else 1, 8):
        if not pre and t == CFG[dict(M='T_LOW_M', R='T_LOW_R').get(cls, 'T_LOW')]:
            p.W = Wattn
        if t == CFG['XAT'] and cls in CFG['XCLS'].split('+'):
            p.slow = CFG['XSLOW']
        k_trans(p, t)
        if not pre and t == 1:
            count_b(p)
        if pre == 'q' and t == CFG['SC_AT'] - 1:
            p.need('SC')
            p.burst(CFG['Q_BURST'])
            p.stamp('sc_landed')
            p.check_retry(lambda: sc_issue(False), list(range(24, 32)), 12)
            p.stamp('sc_ok')
            X = list(range(96, 104))
            for d in range(4):
                p.unpack(16 + d, X[2 * d], X[2 * d + 1])
            one_plus(p, [28, 29, 30, 31], [104, 105])
            modulate(p, X, [28, 29, 30, 31], [24, 25, 26, 27], [104, 105], [16, 17, 18, 19])
            xa_base(p, S_T0)
            p.lane(12, XA_TERMS, sadd=S_T0, tmp=13)
            p.e('ds_write_b64 v12, v[16:17]\nds_write_b64 v12, v[18:19] offset:512')
            narrow_gemv(p, 32, 64, 96, 112, [12, 13, 14], (S_OUT, 8192))
            p.release('pre')
            p.stamp('pre_done')
        if er and t == CFG['R_AT'] - 1:
            p.need('ACT2')
            silu_to_xa(p, 32, list(range(36, 44)), 10)
            p.need('WB0')
            p.perm_chunk(64, 32)
            p.need('WB1')
            p.perm_chunk(96, 64)
            p.burst(2)
            narrow_gemv(p, 32, 64, 96, 112, [12, 13, 14], (S_OUT2, 2048))
            quarter_compute(p, 16, 32, 48, 64)
            sk = p.lab('qf')
            p.burst(3)
            p.e(f's_waitcnt lgkmcnt(0)\ns_barrier\ns_cmp_lt_u32 s{S_WV}, 4\ns_cbranch_scc1 {sk}')
            quarter_final(p, S_OUT, 48)
            p.e(f'{sk}:')
            p.release('pre')
            p.stamp('q_done')
        if late and t == 6:
            check_cnt(p, 127 if er else 10)
    if not er:
        role_setup()
    p.stamp('k_done')
    if not late:
        check_cnt(p, 10)
    if CFG['PRIO'] in ('qk', 'qk+'):
        prio_young(p, 1)
    qk_softmax(p, 11)
    if CFG['PRIO'] == 'qk':
        p.e('s_setprio 0')
    p.release('sm')
    pv_chunk(p, 0, 160)
    p.release('pv0')
    if stage:
        v_from_lds(p, 2, 10)
    pv_chunk(p, 1, 64)
    p.release('pv1')
    if stage:
        p.e('s_waitcnt lgkmcnt(0)')
    if CFG['W_END'] and late:
        p.W = max(p.W, CFG['W_END'])
    pv_chunk(p, 2, 64)
    p.stamp('v2')
    if late:
        ml_scale(p)
        p.stamp('ml_ok')
    pv_chunk(p, 3, 64)
    p.release('pv3')
    p.stamp('pv_done')
    if cls == 'R' and not er:
        p.need('ACT2')
        silu_to_xa(p, 96, list(range(100, 108)), 10)
    if not late:
        ml_scale(p)
        p.stamp('ml_ok')
        p.burst(CFG['E_BURST'])
    attn_epilogue(p)
    p.release('ost')
    if cls == 'M':
        p.W = max(p.W, CFG['W_POST'])
    if cls == 'PR':
        p.W = CFG['W_POSTP']
    if cls == 'O':
        p.need('WO0')
        p.perm_chunk(192, O_F, fs=8)
        while p.can_pump():
            p.pump(1)
        o_setup(p, S_COL, S_OUT)
        if CFG['EARLY3']:
            p.poll_first(E3_OFFS, S_U + 7, 13, O_E3)
        p.need('WO1')
        p.perm_chunk(224, O_F + 4, fs=8)
        p.stamp('w_ready')
        p.e('L_otail:')
        o_tail(p, S_OUT)
    if cls == 'PR':
        p.need('ACT2')
        silu_to_xa(p, 96, list(range(100, 108)), 10)
        p.perm_chunk(192, 32)
        p.need('WB1')
        p.perm_chunk(224, 64)
        narrow_gemv(p, 32, 64, 96, 112, [12, 13, 14], (S_OUT2, 2048))
        p.stamp('post_done')
    if cls == 'R' and not er:
        p.need('WB0')
        while p.can_pump():
            p.pump(1)
        quarter_loads(p, S_COL)
        p.perm_chunk(192, 32)
        p.need('WB1')
        p.perm_chunk(224, 64)
        narrow_gemv(p, 32, 64, 96, 112, [12, 13, 14], (S_OUT2, 2048), before_barrier=lambda: quarter_compute(p),
                    upper=lambda: quarter_final(p, S_OUT))
        p.stamp('q_done')
    if cls == 'M':
        m_tail(p, S_COL, S_OUT)
    if cls in ('Q', 'R', 'P') and CFG['GATE']:
        helper_gate(p, cls)
    if cls in ('Q', 'R', 'P') and CFG['H6']:
        h6_prefetch(p, cls)
    if cls in ('Q', 'R', 'P') and CFG['H5']:
        h5_prefetch(p, cls)
    assert not p.stream, [t[0] for t in p.stream]
    finish(p)
    return p


O_SEL, O_E3, O_B, O_F = 16, 64, 24, 96
E3_OFFS = [(t >> 2) * 2 * 4 * 16 * 2048 + (t & 3) * 4 * 2048 for t in range(8)]
RED_W = [(4, 2, 512), (0, 4, 32)]


def o_setup(p, S_KS, S_OUT):
    selectors(p, O_SEL, 10)
    p.lane(13, [(3, 1, 4 * 16 * 2048), (4, 2, 2048), (0, 3, 16)], tmp=10)
    p.e(f's_lshr_b32 s{S_T0}, s{S_KS}, 1\ns_lshl_b32 s{S_T0}, s{S_T0}, 15\ns_and_b32 s{S_T1}, s{S_KS}, 1\ns_lshl_b32 s{S_T1}, s{S_T1}, 10')
    p.e(f's_add_u32 s{S_T0}, s{S_T0}, s{S_T1}\ns_lshl_b32 s{S_T1}, s{S_WV}, 7\ns_add_u32 s{S_T0}, s{S_T0}, s{S_T1}\ns_add_u32 s{S_U + 7}, s{S_T0}, {WS_OP}')
    xa_base(p, S_T0)
    p.lane(14, [(5, 1, 256), (3, 1, 128), (0, 3, 8), (4, 1, 4)], sadd=S_T0, tmp=10)
    sp_addrs(p, O_B, 128, S_T0, 0, 10, O_B + 2)
    p.e(f's_lshl_b32 s{S_T0}, s{S_WV}, 11\ns_add_u32 s{S_T0}, s{S_T0}, {L_RED}')
    p.lane(15, RED_W, sadd=S_T0, tmp=10)
    p.e(f's_lshl_b32 s{S_T0}, s{S_WV}, 9\ns_add_u32 s{S_T0}, s{S_T0}, {L_RED}')
    p.lane(O_B + 4, [(0, 6, 8)], sadd=S_T0)
    p.e(f's_lshl_b32 s{S_T0}, s{S_WV}, 11\ns_add_u32 s{S_OUT}, s{S_OUT}, s{S_T0}')
    for k in range(20):
        p.e(f'v_mov_b32 v{32 + k}, 0')


def o_tail(p, S_OUT):
    ACC, D, OUT, A = 32, 48, 52, 160
    p.waitn(0)
    p.poll_rr(E3_OFFS, S_U + 7, 13, O_E3, 10,
              lambda t, r: p.e(f'v_mfma_f32_16x16x32_bf16 {vr(D)}, {vr(O_SEL + 4 * (t >> 2))}, {vr(r)}, {vr(D)}'), CFG['EARLY3'], CFG['SL3'])
    p.stamp('e3_ok')
    p.e(f'v_cvt_pk_bf16_f32 v{D}, v{D}, v{D + 1}\nv_cvt_pk_bf16_f32 v{D + 1}, v{D + 2}, v{D + 3}')
    p.e(f'ds_write2_b32 v14, v{D}, v{D + 1} offset0:0 offset1:16')
    p.e(f'ds_read_b128 {vr(A)}, v{O_B}\nds_read_b128 {vr(A + 4)}, v{O_B + 1}\ns_waitcnt lgkmcnt(0)')
    p.stamp('o1')
    sp_gemv(p, O_F, A, ACC, O_B + 2)
    sp_fold(p, ACC, OUT)
    p.e(f'ds_write_b128 v15, {vr(OUT)}\nds_write_b128 v15, {vr(OUT + 4)} offset:16')
    sk = p.lab('ofin')
    p.stamp('o2')
    p.e(f's_waitcnt lgkmcnt(0)\ns_barrier')
    p.stamp('o3')
    p.e(f's_cmp_ge_u32 s{S_WV}, 4\ns_cbranch_scc1 {sk}')
    B = 168
    for k in range(4):
        p.e(f'ds_read2st64_b64 {vr(B + 4 * k)}, v{O_B + 4} offset0:{8 * k} offset1:{8 * k + 4}')
    p.e('s_waitcnt lgkmcnt(0)')
    p.tree(B, (8, 4, 2))
    p.e(f'v_cvt_pk_bf16_f32 v{B + 4}, v{B}, v{B + 1}')
    quad_pack_store(p, B + 4, 9, S_OUT)
    p.e(f'{sk}:')
    p.stamp('a_stored')


CB_OFFS = [WS_CBP - 2048 + 8192 * kq + 4096 * q for kq in range(4) for q in range(2)]


def m_mod_issue(p, first):
    if first:
        p.lane(112, AL_TERMS, tmp=2)
        p.lane(113, [(5, 1, 2048), (0, 4, 32), (4, 1, 16)], tmp=2)
        p.e(f's_lshl_b32 s{S_U + 6}, s{S_WV}, 8\ns_lshl_b32 s{S_U + 5}, s{S_WV}, 9')
        for k in range(104, 108):
            p.e(f'v_mov_b32 v{k}, 0')
        push_al_loads(p, None, SRD_A, 96, 112, S_U + 6)(False)
    hi, jn = p.lab('cbhi'), p.lab('cbj')
    p.e(f's_cmp_ge_u32 s{S_WV}, 4\ns_cbranch_scc1 {hi}')
    for q in range(2):
        p.e(f's_add_u32 s{S_T3}, s{S_U + 6}, {WS_MOD + 4 * 8192 + 4096 * q}')
        p.e(f'buffer_load_dwordx2 {vr(104 + 2 * q, 2)}, v112, {sr(SRD_WS, 4)}, s{S_T3} offen sc1')
    if first:
        p.e(f's_branch {jn}\n{hi}:')
        for t, off in enumerate(CB_OFFS):
            p.e(f's_add_u32 s{S_T3}, s{S_U + 5}, {off}')
            p.e(f'buffer_load_dwordx4 {vr(160 + 4 * t)}, v113, {sr(SRD_WS, 4)}, s{S_T3} offen sc1')
        p.e(f'{jn}:')
    else:
        p.e(f'{hi}:')
    for k, chunk in ((0, 2), (2, 3)):
        for q in range(2):
            p.e(f's_add_u32 s{S_T3}, s{S_U + 6}, {WS_MOD + chunk * 8192 + 4096 * q}')
            s = f'buffer_load_dwordx2 {vr(100 + 4 * k + 2 * q, 2)}, v112, {sr(SRD_WS, 4)}, s{S_T3} offen sc1'
            p.vmem(s, 'MOD') if first else p.e(s)


def m_tail(p, S_MI, S_OUT):
    raw = [192, 224, 96, 128]
    F = [32, 36, 192, 196]
    F0, F1 = 32, 192

    def w2_issue(a, b):
        for t, f, _ in p.w2late[a:b]:
            f(t)
    SP, SEL, D = 160, 16, 24
    IDX, A0 = 4, 5
    p.fill()
    for u in range(CFG['XPRE']) if CFG['LATE3'] == 3 else (0, 1, 2):
        p.need(f'WM{u}')
        p.stamp(f'wm{u}')
        p.perm_chunk(raw[u], F[u], fs=8)
    p.release('p2')
    while p.can_pump():
        p.pump(1)
    if CFG['E4KS']:
        selectors_b(p, SEL, 2)
        p.lane(11, [(4, 2, 2048), (0, 4, 16)], tmp=2)
    else:
        selectors(p, SEL, 2)
        p.lane(11, [(4, 2, 8192), (0, 4, 16)], tmp=2)
    p.e(f's_add_u32 s{S_U + 7}, s{S_U + 6}, {WS_AP}')
    xa_base(p, S_T0)
    sp_addrs(p, A0, 256, S_T0, 0, 2, IDX)
    VX1 = 12
    l3 = CFG['LATE3']
    E4R = p.w2raw[1]

    def late_addrs():
        xa_base(p, S_T0)
        p.lane(13, [(5, 1, 256), (0, 4, 8), (4, 1, 4)], sadd=S_T0, tmp=2)
        p.e(f's_add_u32 s{S_T0}, s{S_U + 6}, {L_X1}')
        p.lane(VX1, AL_TERMS, sadd=S_T0, tmp=2)

    def perm3():
        p.need('WM3')
        p.stamp('wm3')
        p.perm_chunk(raw[3], F[3], fs=8)
    p.e(f's_lshl_b32 s{S_T0}, s{S_WV}, 11\ns_add_u32 s{S_T0}, s{S_T0}, {L_RED}')
    p.lane(15, RED_W, sadd=S_T0, tmp=2)
    p.e(f's_lshr_b32 s{S_T0}, s{S_WV}, 1\ns_lshl_b32 s{S_T0}, s{S_T0}, 9\ns_and_b32 s{S_T1}, s{S_WV}, 1\ns_lshl_b32 s{S_T2}, s{S_T1}, 7')
    p.e(f's_add_u32 s{S_T2}, s{S_T2}, s{S_T0}\ns_add_u32 s{S_T2}, s{S_T2}, {L_RED}')
    p.lane(8, [(5, 1, 256), (0, 5, 4)], sadd=S_T2, tmp=2)
    p.e(f's_lshr_b32 s{S_T0}, s{S_T0}, 2\ns_lshl_b32 s{S_T1}, s{S_T1}, 5\ns_add_u32 s{S_T0}, s{S_T0}, s{S_T1}\ns_add_u32 s{S_T0}, s{S_T0}, {L_X2}')
    p.lane(9, [(1, 1, 64), (2, 3, 4), (0, 1, 2)], sadd=S_T0, tmp=2)
    p.lane(7, [(2, 2, 256), (4, 2, 64), (0, 2, 16)], tmp=2)
    p.e(f's_lshl_b32 s{S_T0}, s{S_WV}, 5\ns_add_u32 s{S_T0}, s{S_T0}, {L_STATS}')
    p.lane(10, [(5, 1, 8)], sadd=S_T0)
    p.lane(3, [(0, 3, 32), (5, 1, 8)], const=L_STATS, tmp=2)
    offs = [t * 8192 if CFG['E4KS'] else (t & 1) * 4 * 8192 + (t >> 1) * 2048 for t in range(8)]
    if not l3:
        perm3()
        p.poll_first(offs, S_U + 7, 11, E4R)
        late_addrs()
    for k in range(8):
        p.e(f'v_mov_b32 v{D + k}, 0')
    p.need('MOD')
    p.stamp('mod_landed')
    def packed(chunk, reg):
        txt = '\n'.join(f's_add_u32 s{S_T3}, s{S_U + 6}, {WS_MOD + chunk * 8192 + 4096 * q}\n'
                        f'buffer_load_dwordx2 {vr(reg + 2 * q, 2)}, v112, {sr(SRD_WS, 4)}, s{S_T3} offen sc1' for q in range(2))
        return (txt, list(range(reg, reg + 4)))

    def partial(kq):
        txt = '\n'.join(f's_add_u32 s{S_T3}, s{S_U + 5}, {CB_OFFS[2 * kq + q]}\n'
                        f'buffer_load_dwordx4 {vr(160 + 8 * kq + 4 * q)}, v113, {sr(SRD_WS, 4)}, s{S_T3} offen sc1' for q in range(2))
        return (txt, list(range(160 + 8 * kq, 168 + 8 * kq)))
    hi, jn = p.lab('mhi'), p.lab('mjn')
    p.e(f's_cmp_ge_u32 s{S_WV}, 4\ns_cbranch_scc1 {hi}')
    p.poll_items([packed(2, 100), packed(4, 104), packed(3, 108)], 2)
    p.e(f's_branch {jn}\n{hi}:')
    p.poll_items([packed(2, 100), packed(3, 108)] + [partial(k) for k in range(4)], 2)
    p.e(f'{jn}:')
    if l3 == 2:
        p.release('modok')
        p.burst(8)
    sk = p.lab('cbs')
    p.e(f's_cmp_lt_u32 s{S_WV}, 4\ns_cbranch_scc1 {sk}')
    for k in range(16):
        p.e(f'v_add_f32 v{160 + k}, v{160 + k}, v{176 + k}')
    for k in range(8):
        p.e(f'v_add_f32 v{160 + k}, v{160 + k}, v{168 + k}')
    for d in range(4):
        p.e(f'v_cvt_pk_bf16_f32 v{104 + d}, v{160 + 2 * d}, v{161 + 2 * d}')
    p.e(f'{sk}:')
    p.e('L_mtail:')
    one_plus(p, list(range(104, 108)), [2, 114])
    for k, dst in enumerate((SP, SP + 16, SP + 8, SP + 24)):
        for d in range(4):
            p.unpack(96 + 4 * k + d, dst + 2 * d, dst + 2 * d + 1)
    if l3 == 3:
        p.stamp('mod_ok')
        helper_gate(p, 'M', CFG['MGATE_MISS'], 2, 114)
        p.stamp('gate')
        p.release('gate')
        p.W = CFG['W_GATE']
        for u in range(CFG['XPRE'], 3):
            p.need(f'WM{u}')
            p.stamp(f'wm{u}')
            p.perm_chunk(raw[u], F[u], fs=8)
        while p.can_pump():
            p.pump(1)
    if l3:
        p.poll_first(offs, S_U + 7, 11, E4R)
        late_addrs()
        perm3()
    p.stamp('w_ready')
    k0 = CFG['W2PRE']
    w2_issue(0, k0)
    p.wait('poll')
    keep = list(p.vm)

    def acc4(t, r):
        if CFG['E4KS']:
            for q in range(2):
                p.e(f'v_mfma_f32_16x16x32_bf16 {vr(D + 4 * q)}, {vr(SEL + 4 * q)}, {vr(r)}, {vr(D + 4 * q)}')
        else:
            p.e(f'v_mfma_f32_16x16x32_bf16 {vr(D + 4 * (t >> 2))}, {vr(SEL + 4 * ((t >> 1) & 1))}, {vr(r)}, {vr(D + 4 * (t >> 2))}')
    p.poll_rr(offs, S_U + 7, 11, E4R, 2, acc4, True, CFG['SL4'])
    p.vm = keep
    p.stamp('e4_ok')
    X = list(range(D, D + 8))
    w2_issue(k0, k0 + 4)
    for k in range(0, 8, 2):
        p.e(f'v_pk_fma_f32 {vr(SP + k, 2)}, {vr(X[k], 2)}, {vr(SP + 16 + k, 2)}, {vr(SP + k, 2)}')
    PK = SP + 16
    for d in range(4):
        p.e(f'v_cvt_pk_bf16_f32 v{PK + d}, v{SP + 2 * d}, v{SP + 2 * d + 1}')
    for d in range(4):
        p.unpack(PK + d, X[2 * d], X[2 * d + 1])
    p.e(f'ds_write_b64 v{VX1}, {vr(PK, 2)}\nds_write_b64 v{VX1}, {vr(PK + 2, 2)} offset:4096')
    for q in range(2):
        x = X[4 * q:4 * q + 4]
        p.e(f'v_add_f32 v{SP + 2 * q}, v{x[0]}, v{x[1]}\nv_mul_f32 v{SP + 2 * q + 1}, v{x[0]}, v{x[0]}\nv_add_f32 v{SP + 4 + q}, v{x[2]}, v{x[3]}')
    for r in (1, 2, 3):
        for q in range(2):
            p.e(f'v_fmac_f32 v{SP + 2 * q + 1}, v{X[4 * q + r]}, v{X[4 * q + r]}')
    p.e(f'v_add_f32 v{SP}, v{SP}, v{SP + 4}\nv_add_f32 v{SP + 2}, v{SP + 2}, v{SP + 5}')
    R4 = [SP, SP + 2, SP + 1, SP + 3]
    p.rowsum(R4, (8, 4, 2, 1))
    p.swapred('v_add_f32', 16, R4, [SP + 4, SP + 5, SP + 6, SP + 7])
    p.stamp('t1')
    p.exec_set(0x0000000100000001)
    p.e(f'ds_write_b64 v10, {vr(SP, 2)}\nds_write_b64 v10, {vr(SP + 2, 2)} offset:16')
    p.exec_all()
    for k in range(0, 8, 2):
        p.e(f'v_pk_mul_f32 {vr(X[k], 2)}, {vr(X[k], 2)}, {vr(SP + 8 + k, 2)}')
    p.e('s_waitcnt lgkmcnt(0)\ns_barrier')
    p.e(f'ds_read_b64 {vr(SP, 2)}, v3\nds_read_b64 {vr(SP + 2, 2)}, v3 offset:16')
    w2_issue(k0 + 4, k0 + 8)
    p.e('s_waitcnt lgkmcnt(0)')
    p.stamp('t2')
    p.rowsum(R4, (4, 2, 1))
    for q in range(2):
        p.e(f'v_mul_f32 v{SP + 2 * q}, 0x3a800000, v{SP + 2 * q}\nv_mul_f32 v{SP + 2 * q + 1}, 0x3a800000, v{SP + 2 * q + 1}')
    for q in range(2):
        p.e(f'v_fma_f32 v{SP + 2 * q + 1}, -v{SP + 2 * q}, v{SP + 2 * q}, v{SP + 2 * q + 1}')
    for q in range(2):
        p.e(f'v_max_f32 v{SP + 2 * q + 1}, 0, v{SP + 2 * q + 1}')
    for q in range(2):
        p.e(f'v_add_f32 v{SP + 2 * q + 1}, 0x3727c5ac, v{SP + 2 * q + 1}')
    for q in range(2):
        p.e(f'v_rsq_f32 v{SP + 2 * q + 1}, v{SP + 2 * q + 1}')
    for k in range(0, 8, 2):
        p.e(f'v_pk_fma_f32 {vr(X[k], 2)}, {vr(SP + 8 + k, 2)}, {vr(SP + 2 * (k >> 2), 2)}, {vr(X[k], 2)} op_sel:[0,0,0] op_sel_hi:[1,0,1] neg_lo:[0,1,0] neg_hi:[0,1,0]')
    for k in range(0, 8, 2):
        p.e(f'v_pk_fma_f32 {vr(SP + 24 + k, 2)}, {vr(X[k], 2)}, {vr(SP + 2 * (k >> 2), 2)}, {vr(SP + 24 + k, 2)} op_sel:[0,1,0] op_sel_hi:[1,1,1]')
    for d in range(4):
        p.e(f'v_cvt_pk_bf16_f32 v{SP + d}, v{SP + 24 + 2 * d}, v{SP + 24 + 2 * d + 1}')
    p.e(f'ds_write2_b32 v13, v{SP}, v{SP + 1} offset0:0 offset1:32\nds_write2_b32 v13, v{SP + 2}, v{SP + 3} offset0:128 offset1:160')
    p.stamp('h2')
    A, ACC, OUT = SP, SP + 16, D
    for pi in range(2):
        p.e(f'ds_read_b128 {vr(A + 8 * pi)}, v{A0} offset:{64 * pi}\nds_read_b128 {vr(A + 8 * pi + 4)}, v{A0 + 1} offset:{64 * pi}')
    for k in range(16):
        p.e(f'v_mov_b32 v{ACC + k}, 0')
    GB, X1 = 232, 236

    def misc():
        p.lane(10, [(2, 2, 2048), (0, 2, 16), (4, 1, 8)], tmp=3)
        p.e(f's_lshl_b32 s{S_U + 6}, s{S_MI}, 6\ns_add_u32 s{S_T2}, s{S_U + 6}, {WS_MOD + 5 * 8192}')
        sp_addrs(p, A0, 128, None, L_X2, 2)
    p.e('s_waitcnt lgkmcnt(2)')
    interleave(p, lines_of(p, lambda: sp_gemv(p, F0, A, ACC, IDX)), lines_of(p, misc), 3)
    w2_issue(k0 + 8, 16)
    p.e('s_waitcnt lgkmcnt(0)')
    p.wait('WM4')
    interleave(p, lines_of(p, lambda: sp_gemv(p, F1, A + 8, ACC, IDX)), lines_of(p, lambda: p.perm_chunk(p.w2raw[0], F0, fs=8)), 4)
    sp_fold(p, ACC, OUT)
    p.e(f'ds_write_b128 v15, {vr(OUT)}\nds_write_b128 v15, {vr(OUT + 4)} offset:16')
    p.stamp('t3')
    for k in range(16):
        p.e(f'v_mov_b32 v{ACC + k}, 0')
    p.e('s_waitcnt lgkmcnt(0)\ns_barrier')
    p.stamp('t5')
    G = 224
    for k in range(4):
        p.e(f'ds_read2st64_b32 {vr(G + 2 * k, 2)}, v8 offset0:{16 * k} offset1:{16 * k + 8}')
    p.wait('WM5')
    p.stamp('wm5')

    def gb_issue():
        p.e(f'buffer_load_dwordx2 {vr(GB, 2)}, v10, {sr(SRD_WS, 4)}, s{S_T2} offen sc1')
    perm5 = lines_of(p, lambda: p.perm_chunk(p.w2raw[1], F0 + 4, fs=8))
    p.L += perm5[:20]
    p.e('s_waitcnt lgkmcnt(0)')
    p.tree(G, (4, 2, 1))
    chain = f"""v_cvt_pk_bf16_f32 v{G}, v{G}, v{G}
    v_and_b32 v{G}, 0xffff0000, v{G}
    v_mov_b32 v{G + 1}, v{G}
    @
    @
    v_permlane32_swap_b32 v{G}, v{G + 1}
    v_mul_f32 v{G + 2}, {hex(LOG2E | 0x80000000)}, v{G}
    v_exp_f32 v{G + 2}, v{G + 2}
    @
    v_add_f32 v{G + 2}, 1.0, v{G + 2}
    v_rcp_f32 v{G + 2}, v{G + 2}
    @
    v_mul_f32 v{G}, v{G}, v{G + 2}
    v_mul_f32 v{G}, v{G}, v{G + 1}
    v_cvt_pk_bf16_f32 v{G}, v{G}, v{G}"""
    rest = perm5[20:]
    for ln in chain.split('\n'):
        p.e(rest.pop(0) if ln.strip() == '@' else ln)
    p.exec_set(0xffffffff)
    p.e(f'ds_write_b16 v9, v{G}')
    p.exec_all()
    p.stamp('t6')
    p.L += rest
    sk = p.lab('gb')
    p.e(f's_cmp_lg_u32 s{S_WV}, 0\ns_cbranch_scc1 {sk}\ns_cmp_ge_u32 s{S_MI}, 32\ns_cbranch_scc1 {sk}')
    gb_issue()
    p.e(f'{sk}:')
    p.e('s_waitcnt lgkmcnt(0)\ns_barrier')
    p.stamp('t7')
    p.e(f'ds_read_b128 {vr(A)}, v{A0}\nds_read_b128 {vr(A + 4)}, v{A0 + 1}\ns_waitcnt lgkmcnt(0)')
    sp_gemv(p, F0, A, ACC, IDX)
    sp_fold(p, ACC, OUT)
    for d in range(4):
        p.e(f'v_cvt_pk_bf16_f32 v{G + d}, v{OUT + 2 * d}, v{OUT + 2 * d + 1}')
    p.e(f'buffer_store_dwordx4 {vr(G)}, v7, {sr(SRD_WS, 4)}, s{S_OUT} offen sc1')
    p.stamp('f_stored')
    end = p.lab('mend')
    multi = CFG['E5W'] > 1
    p.e(f's_cmp_ge_u32 s{S_MI}, 32\ns_cbranch_scc1 {end}')
    if not multi:
        p.e(f's_cmp_lg_u32 s{S_WV}, 0\ns_cbranch_scc1 {end}')
    p.lane(11, [(4, 2, 8192), (0, 4, 16)], tmp=3)
    p.e(f's_lshl_b32 s{S_U + 7}, s{S_MI}, 8\ns_add_u32 s{S_U + 7}, s{S_U + 7}, {WS_FP}')
    for k in range(4):
        p.e(f'v_mov_b32 v{D + k}, 0')

    def consts():
        p.srd(SRD_A, P_OUT, 8192)
        p.e(f'v_add_u32 v2, s{S_U + 6}, v10\nds_read_b64 {vr(X1 + 4, 2)}, v2 offset:{L_X1}\ns_waitcnt vmcnt(1) lgkmcnt(0)')
        p.check_retry(gb_issue, [GB, GB + 1], 3)
        p.unpack(GB + 1, GB + 2, GB + 3)
        p.unpack(GB, 4, GB + 1)
        p.e(f'v_mov_b32 v{GB}, v4')
        p.unpack(X1 + 4, X1, X1 + 1)
        p.unpack(X1 + 5, X1 + 2, X1 + 3)
    acc5 = lambda t, r: p.e(f'v_mfma_f32_16x16x32_bf16 {vr(D)}, {vr(SEL)}, {vr(r)}, {vr(D)}')
    if not multi:
        consts()
        p.stamp('t8')
        p.poll_pipe([t * 4 * 8192 for t in range(14)], S_U + 7, 11, (64, 120), 3, acc5, CFG['P5'])
        p.stamp('e5_ok')
    else:
        w0, jn = p.lab('w0'), p.lab('jn')
        p.e(f's_cmp_eq_u32 s{S_WV}, 0\ns_cbranch_scc1 {w0}')
        p.e(f's_lshl_b32 s{S_T0}, s{S_WV}, 16\ns_add_u32 s{S_U + 7}, s{S_U + 7}, s{S_T0}\ns_sub_u32 s{S_U + 7}, s{S_U + 7}, 65536')
        p.e(f's_lshl_b32 s{S_T0}, s{S_WV}, 10\nv_add_u32 v4, s{S_T0}, v0')
        p.poll_first([0, 4 * 8192], S_U + 7, 11, 64)
        if CFG['E4KS']:
            selectors(p, SEL, 2, 4)
        p.e('s_waitcnt vmcnt(0)')
        p.poll_rr([0, 4 * 8192], S_U + 7, 11, 64, 3, acc5, True)
        p.e(f'ds_write_b128 v4, {vr(D)}\ns_waitcnt lgkmcnt(0)\ns_branch {jn}\n{w0}:')
        consts()
        p.stamp('t8')
        p.e(f'{jn}:\ns_barrier\ns_cmp_lg_u32 s{S_WV}, 0\ns_cbranch_scc1 {end}')
        for k in range(7):
            p.e(f'ds_read_b128 {vr(64 + 4 * k)}, v0 offset:{1024 + 1024 * k}')
        p.stamp('e5_ok')
        p.e('s_waitcnt lgkmcnt(0)')
        for a_, b_ in ((64, 80), (68, 84), (72, 88), (68, 76), (64, 72)):
            for r in (0, 2):
                p.e(f'v_pk_add_f32 {vr(a_ + r, 2)}, {vr(a_ + r, 2)}, {vr(b_ + r, 2)}')
        for r in (0, 2):
            p.e(f'v_pk_add_f32 {vr(D + r, 2)}, {vr(64 + r, 2)}, {vr(68 + r, 2)}')
    for r in (0, 2):
        p.e(f'v_pk_fma_f32 {vr(D + r, 2)}, {vr(D + r, 2)}, {vr(GB + r, 2)}, {vr(X1 + r, 2)}')
    p.e(f'v_cvt_pk_bf16_f32 v{D}, v{D}, v{D + 1}\nv_cvt_pk_bf16_f32 v{D + 1}, v{D + 2}, v{D + 3}')
    p.exec_set(0xffffffff)
    p.e(f'buffer_store_dwordx2 {vr(D, 2)}, v2, {sr(SRD_A, 4)}, 0 offen')
    p.exec_all()
    p.e(f'{end}:')


DOC = """
;
;   Q  [120,184)  64 columns of wq, LN 1      P  [184,200)  64 columns of w_mod (shift/scale of block A)
;   PR [200,216)  as P, later the gate gb     R  [216,256)  64 columns of w_mod (ga, sb, cb) plus a K-quarter of cb
; Hand-offs between workgroups go through d_ws with write-through (sc1) stores and sc1 loads. Each workgroup first
; re-reads a slot until no dword holds that pattern. Chain: w_mod -> q -> scores, split (max, sum) -> scaled
; rescaled to the row maximum gathered from all splits. Loads whose result is unused only move weights towards the
; chip (L2 / last-level cache) for another workgroup. The code is emitted per role by a generator script.
"""


def generate():
    hdr = open('cdna_kernels/' + NAME + '.s.ref').read().split('\n')
    out = [l for l in hdr if l.startswith(';') and '@launch' not in l]
    out.append(f'; @launch grid=(256,1,1) block=(512,1,1) lds={L_TOTAL}')
    out += DOC.strip().split('\n')
    out += ['.amdgcn_target "amdgcn-amd-amdhsa--gfx950"', '.text', f'.globl {NAME}_kernel', '.p2align 8',
            f'.type {NAME}_kernel,@function', f'{NAME}_kernel:']
    e = Prog('E')
    entry(e)
    body = list(e.L)
    names = {}
    for cls in ('O', 'M', 'Q', 'P', 'PR', 'R'):
        p = build_class(cls, e)
        body.append('.p2align 6')
        body += p.L
        names[cls] = p.stamp_names
    body += ['L_end:', 's_endpgm']
    out += pad_hazards(body)
    out += ['.fill 64, 4, 0xbf800000', '.p2align 8', 'L_code_end:']
    out += ['.section .rodata,"a"', '.p2align 6', f'.amdhsa_kernel {NAME}_kernel',
            '  .amdhsa_next_free_vgpr 256', '  .amdhsa_next_free_sgpr 102', '  .amdhsa_accum_offset 256',
            '  .amdhsa_group_segment_fixed_size 0', '  .amdhsa_kernarg_size 112', '  .amdhsa_user_sgpr_count 2',
            '  .amdhsa_user_sgpr_kernarg_segment_ptr 1', '  .amdhsa_system_sgpr_workgroup_id_x 1',
            '  .amdhsa_float_denorm_mode_32 3', '.end_amdhsa_kernel']
    return '\n'.join(out) + '\n', names


if __name__ == '__main__':
    path = sys.argv[1]
    for kv in sys.argv[2:]:
        k, v = kv.split('=')
        CFG[k] = eval(v)
    txt, names = generate()
    open(path, 'w').write(txt)
    import json
    json.dump(names, open(path + '.stamps.json', 'w'))
```

```python
import sys
from collections import deque
from asmlib import pad_hazards

NAME = 'adaLN_cond__gqa_block_cached__glu_gated_swiglu__decode'

CFG = dict(
    W=4,
    W_O=4, W_M=6, W_R=5, W_Q=4, W_P=4, W_PR=4,
    C3O=0, C3Q='O', C3W1='M', C3W3='OP', C3MOD='O', T_LOW_R=1,
    W_PRE=24, W_PREQ=8, W_INIT=5, W_LOW=2, T_LOW=2, T_LOW_M=2,
    W_POST=6, W_POSTP=4, H5W=2, W_END=None,
    SC_AT=3, Q_AT=12, BURST=3, BURST_L=3, E_BURST=6, E_BURST_O=4, P_EARLY=0, MOD_AT=0, P5='rr', E5W=7, STAGE=7, SL3=0, SL4=0, EARLY3=True, W2PRE=4, XCLS='Q+P+PR+R', PRIO='qk', QLIN=True, LATE3=2, E4KS=True, GATE=False, GATE_MISS=0, ENTRY=False, XPRE=1, MGATE_MISS=6, W_GATE=8, H6W=6, USH=1, OLATE=False, JUMP0=False, GMAP=False, R_AT=4, TOUCH=False, P_HOLD=1, Q_BURST=0, XAT=4, XSLOW=0, XW=2, H5X=True, H6=(3,), ML_AT=4, ML_AT_M=8, C3H=False,
    HP3=True, C3=True, H5=2, REWARM=False,
    STAMPS=False, DBGOUT=False,
    SPIN=1 << 18,
)

WS_MOD = 0x00000
WS_CBP = 0x18000
WS_Q = 0x10000
WS_ML = 0x20000
WS_AP = 0x30000
WS_OP = 0x40000
WS_FP = 0xC0000
WS_STAMP = 0x200000
WS_BYTES = 268435456

L_KT = 0
L_OPART = 0
L_XA = 40960
L_ZERO = 49152
L_MLW = 49664
L_CNT = 50176
L_STATS = 50432
L_X2 = 50688
L_FINB = 51200
L_X1 = 52224
L_RED = 60416
L_RED2 = 83968
L_STASH = 83968
L_TOTAL = 149504

CLASS_RANGES = dict(O=(0, 64), M=(64, 120), Q=(120, 184), P=(184, 200), PR=(200, 216), R=(216, 256))


def vr(a, n=4):
    return f'v[{a}:{a + n - 1}]' if n > 1 else f'v{a}'


def sr(a, n=2):
    return f's[{a}:{a + n - 1}]' if n > 1 else f's{a}'


S_WV, S_W8, S_ROT, S_KV = 3, 4, 6, 7
SRD_K, SRD_V, SRD_WS, SRD_W, SRD_A, SRD_D = 8, 12, 16, 20, 24, 28
P_X, P_K, P_V, P_WQ, P_WO, P_W1, P_W3, P_W2, P_C, P_WMOD, P_OUT, P_DBG, P_WS = 32, 34, 36, 38, 40, 44, 46, 48, 50, 52, 54, 56, 58
S_T0, S_T1, S_T2, S_T3 = 60, 61, 62, 63
S_PLO, S_PHI = 64, 65
S_MASK = 66
S_SAVE = 68
S_SPIN = 70
S_VALID = 71
S_U = 72
S_STG = 42
S_C64 = 80
S_C64B = 82
S_STAMP = 84


class Prog:
    def __init__(self, name):
        self.name = name
        self.L = []
        self.vm = []
        self.stream = deque()
        self.released = set()
        self.W = CFG['W']
        self.nlab = 0
        self.slow = 0
        self.nstamp = 0
        self.stamp_names = []

    def e(self, s):
        for line in s.split('\n'):
            line = line.strip()
            if line:
                self.L.append(line)

    def lab(self, base):
        self.nlab += 1
        return f'L_{self.name}_{base}{self.nlab}'

    def vmem(self, s, tag):
        self.e(s)
        self.vm.append(tag)
        assert len(self.vm) <= 56, 'too many outstanding'

    def waitn(self, n):
        if len(self.vm) > n:
            self.e(f's_waitcnt vmcnt({n})')
            self.vm = self.vm[len(self.vm) - n:] if n else []

    def wait(self, tag):
        if tag in self.vm:
            idx = len(self.vm) - 1 - self.vm[::-1].index(tag)
            self.waitn(len(self.vm) - 1 - idx)

    def push(self, tag, fn, need=None):
        self.stream.append((tag, fn, need))

    def can_pump(self):
        return self.stream and (self.stream[0][2] is None or self.stream[0][2] in self.released)

    def pump(self, k=1):
        for _ in range(k):
            if not self.can_pump():
                return
            tag, fn, _n = self.stream.popleft()
            self.waitn(self.W - 1)
            if self.slow > 0:
                self.slow -= 1
                self.waitn(CFG['XW'] - 1)
            fn(tag)

    def fill(self):
        while self.can_pump() and len(self.vm) < self.W:
            self.pump(1)

    def burst(self, k):
        self.W += k
        self.fill()
        self.W -= k

    def need(self, tag):
        while any(t[0] == tag for t in self.stream):
            assert self.can_pump(), f'{self.name}: stream blocked before {tag} at {self.stream[0][0]}'
            self.pump(1)
        while tag in self.vm:
            if self.can_pump() and self.vm[::-1].index(tag) <= self.W - 1:
                self.pump(1)
            else:
                self.wait(tag)

    def release(self, x):
        self.released.add(x)

    def stamp(self, name):
        if CFG['STAMPS'] == 'lite' and name not in ('start', 'pre_done', 'q_ok', 'k_done', 'o_stored', 'post_done', 'q_done', 'e3_ok', 'a_stored', 'w_ready', 'e4_ok', 'f_stored', 'end'):
            return
        if CFG['STAMPS'] == 't' and name not in ('start', 'e3_ok', 'o1', 'o2', 'o3', 'a_stored', 'e4_ok', 't1', 't2', 'h2', 't3', 't4', 't5', 't6', 'wm5', 't7', 'f_stored', 't8', 'e5_ok', 'end'):
            return
        if CFG['STAMPS'] != 't' and name[0] in 'to' and name[1:].isdigit():
            return
        if CFG['STAMPS'] == 'e' and name not in ('start', 'first', 'arrived', 'k0', 'w_landed', 'pre_done', 'end'):
            return
        if CFG['STAMPS'] != 'e' and name in ('first', 'k0'):
            return
        if CFG['STAMPS'] == 'm' and name not in ('start', 'q_ok', 'softmax', 'v2', 'pv_done', 'o_stored', 'wm0', 'wm1', 'wm2', 'wm4', 'wm3', 'wm5', 'mod_landed', 'gate', 'e4_ok', 'end'):
            return
        if CFG['STAMPS'] is True and name in ('mod_ok', 'gate', 'arrived', 'v2', 'wm0', 'wm1', 'wm2', 'wm4', 'wm3', 'wm5'):
            return
        if CFG['STAMPS']:
            k = S_STAMP + self.nstamp
            assert k < 100
            self.e(f's_memrealtime s[100:101]\ns_waitcnt lgkmcnt(0)\ns_mov_b32 s{k}, s100')
            self.nstamp += 1
            self.stamp_names.append(name)

    def srd(self, d, p, nbytes):
        self.e(f's_mov_b32 s{d}, s{p}\ns_mov_b32 s{d + 1}, s{p + 1}\ns_mov_b32 s{d + 2}, {hex(nbytes)}\ns_mov_b32 s{d + 3}, 0x20000')

    def lane(self, dst, terms, const=0, sadd=None, tmp=None):
        first = True
        for sh, bits, mul in terms:
            t = dst if first else tmp
            assert t is not None
            if sh == 0 and bits >= 6:
                src = 'v1'
            elif sh == 0:
                self.e(f'v_and_b32 v{t}, {(1 << bits) - 1}, v1')
                src = f'v{t}'
            elif sh + bits >= 6:
                self.e(f'v_lshrrev_b32 v{t}, {sh}, v1')
                src = f'v{t}'
            else:
                self.e(f'v_bfe_u32 v{t}, v1, {sh}, {bits}')
                src = f'v{t}'
            if first:
                if mul & (mul - 1) == 0:
                    self.e(f'v_lshlrev_b32 v{dst}, {mul.bit_length() - 1}, {src}')
                else:
                    self.e(f'v_mul_u32_u24 v{dst}, {mul}, {src}')
            else:
                if mul & (mul - 1) == 0:
                    self.e(f'v_lshl_add_u32 v{dst}, {src}, {mul.bit_length() - 1}, v{dst}')
                else:
                    self.e(f'v_mul_u32_u24 v{t}, {mul}, {src}\nv_add_u32 v{dst}, v{t}, v{dst}')
            first = False
        if const:
            self.e(f'v_add_u32 v{dst}, {const}, v{dst}')
        if sadd is not None:
            self.e(f'v_add_u32 v{dst}, s{sadd}, v{dst}')

    def exec_set(self, mask):
        lo, hi = mask & 0xffffffff, mask >> 32
        self.e(f's_mov_b32 exec_lo, {hex(lo)}\ns_mov_b32 exec_hi, {hex(hi)}')

    def exec_all(self):
        self.e('s_mov_b64 exec, -1')

    def maxu(self, dst, regs):
        regs = list(regs)
        if len(regs) % 2 == 0:
            self.e(f'v_max_u32 v{dst}, v{regs[0]}, v{regs[1]}')
            regs = regs[2:]
        else:
            self.e(f'v_max3_u32 v{dst}, v{regs[0]}, v{regs[1]}, v{regs[2]}')
            regs = regs[3:]
        while regs:
            self.e(f'v_max3_u32 v{dst}, v{dst}, v{regs[0]}, v{regs[1]}')
            regs = regs[2:]

    def check_retry(self, issue, regs, tmp):
        ok, lp = self.lab('ok'), self.lab('retry')
        if len(regs) > 1:
            self.maxu(tmp, regs)
        else:
            tmp = regs[0]
        self.e(f'v_cmp_eq_u32 vcc, -1, v{tmp}\ns_cbranch_vccz {ok}\ns_mov_b32 s{S_SPIN}, 0\n{lp}:')
        issue()
        self.e('s_waitcnt vmcnt(0)')
        if len(regs) > 1:
            self.maxu(tmp, regs)
        self.e(f's_add_u32 s{S_SPIN}, s{S_SPIN}, 1\ns_cmp_ge_u32 s{S_SPIN}, {CFG["SPIN"]}\ns_cbranch_scc1 {ok}')
        self.e(f'v_cmp_eq_u32 vcc, -1, v{tmp}\ns_cbranch_vccnz {lp}\n{ok}:')

    def poll_masked(self, issuers, regs, tmp):
        n = len(issuers)
        lp, done = self.lab('poll'), self.lab('polldone')
        self.waitn(0)
        self.e(f's_mov_b32 s{S_VALID}, 0\ns_mov_b32 s{S_SPIN}, 0\n{lp}:')
        for t in range(n):
            sk = self.lab('pi')
            self.e(f's_bitcmp1_b32 s{S_VALID}, {t}\ns_cbranch_scc1 {sk}')
            issuers[t]()
            self.e(f'{sk}:')
        self.e('s_waitcnt vmcnt(0)')
        for t in range(n):
            sk = self.lab('pc')
            self.e(f's_bitcmp1_b32 s{S_VALID}, {t}\ns_cbranch_scc1 {sk}')
            self.maxu(tmp, regs[t])
            self.e(f'v_cmp_eq_u32 vcc, -1, v{tmp}\ns_cbranch_vccnz {sk}\ns_bitset1_b32 s{S_VALID}, {t}\n{sk}:')
        self.e(f's_add_u32 s{S_SPIN}, s{S_SPIN}, 1\ns_cmp_ge_u32 s{S_SPIN}, {CFG["SPIN"]}\ns_cbranch_scc1 {done}')
        self.e(f's_cmp_lg_u32 s{S_VALID}, {hex((1 << n) - 1)}\ns_cbranch_scc1 {lp}\n{done}:')

    def poll_pipe(self, offs, s_base, vo, sets, tmp, accum, mode='pipe'):
        n = len(offs)
        done = self.lab('ppdone')
        if mode == 'rr':
            return self.poll_rr(offs, s_base, vo, sets[0], tmp, accum)

        def issue(base):
            for t in range(n):
                self.e(f's_bitcmp1_b32 s{S_VALID}, {t}\ns_cselect_b64 exec, 0, -1\ns_add_u32 s{S_T3}, s{s_base}, {offs[t]}')
                self.e(f'buffer_load_dwordx4 {vr(base + 4 * t)}, v{vo}, {sr(SRD_WS, 4)}, s{S_T3} offen sc1')
            self.exec_all()

        def check(base):
            self.e(f's_waitcnt vmcnt({n})')
            for t in range(n):
                sk = self.lab('pc')
                self.e(f's_bitcmp1_b32 s{S_VALID}, {t}\ns_cbranch_scc1 {sk}')
                self.maxu(tmp, range(base + 4 * t, base + 4 * t + 4))
                self.e(f'v_cmp_ne_u32 vcc, -1, v{tmp}\ns_or_b64 vcc, vcc, {sr(S_SAVE)}\ns_cmp_eq_u64 vcc, -1\ns_cbranch_scc0 {sk}')
                accum(t, base + 4 * t)
                self.e(f's_bitset1_b32 s{S_VALID}, {t}\n{sk}:')
            self.e(f's_cmp_eq_u32 s{S_VALID}, {hex((1 << n) - 1)}\ns_cbranch_scc1 {done}')
        lp = self.lab('pp')
        self.e(f's_mov_b32 s{S_VALID}, 0\ns_mov_b32 s{S_SPIN}, 0\ns_mov_b64 {sr(S_SAVE)}, 0')
        issue(sets[0])
        self.e(f'{lp}:')
        issue(sets[1])
        check(sets[0])
        issue(sets[0])
        check(sets[1])
        self.e(f's_add_u32 s{S_SPIN}, s{S_SPIN}, 1\ns_cmp_ge_u32 s{S_SPIN}, {CFG["SPIN"]}\ns_cselect_b64 {sr(S_SAVE)}, -1, 0\ns_branch {lp}\n{done}:')
        self.vm = ['stale'] * n

    def poll_items(self, items, tmp):
        n = len(items)
        lp, chk = self.lab('pg'), self.lab('pgchk')
        self.e(f's_mov_b32 s{S_VALID}, 0\ns_mov_b32 s{S_SPIN}, 0\ns_mov_b64 {sr(S_SAVE)}, 0\ns_branch {chk}\n{lp}:')
        for t, (txt, regs) in enumerate(items):
            sk = self.lab('pi')
            self.e(f's_bitcmp1_b32 s{S_VALID}, {t}\ns_cbranch_scc1 {sk}\n{txt}\n{sk}:')
        self.e(f's_add_u32 s{S_SPIN}, s{S_SPIN}, 1\ns_cmp_ge_u32 s{S_SPIN}, {CFG["SPIN"]}\ns_cselect_b64 {sr(S_SAVE)}, -1, 0\ns_waitcnt vmcnt(0)\n{chk}:')
        for t, (txt, regs) in enumerate(items):
            sk = self.lab('pc')
            self.e(f's_bitcmp1_b32 s{S_VALID}, {t}\ns_cbranch_scc1 {sk}')
            self.maxu(tmp, regs)
            self.e(f'v_cmp_ne_u32 vcc, -1, v{tmp}\ns_or_b64 vcc, vcc, {sr(S_SAVE)}\ns_cmp_eq_u64 vcc, -1\ns_cbranch_scc0 {sk}')
            self.e(f's_bitset1_b32 s{S_VALID}, {t}\n{sk}:')
        self.e(f's_cmp_lg_u32 s{S_VALID}, {hex((1 << n) - 1)}\ns_cbranch_scc1 {lp}')

    def poll_first(self, offs, s_base, vo, base):
        for t, off in enumerate(offs):
            self.e(f's_add_u32 s{S_T3}, s{s_base}, {off}')
            self.vmem(f'buffer_load_dwordx4 {vr(base + 4 * t)}, v{vo}, {sr(SRD_WS, 4)}, s{S_T3} offen sc1', 'poll')

    def poll_rr(self, offs, s_base, vo, base, tmp, accum, landed=False, sleep=0):
        n = len(offs)
        lp, done = self.lab('pr'), self.lab('prdone')
        chk = self.lab('prchk')
        self.e(f's_mov_b32 s{S_VALID}, 0\ns_mov_b32 s{S_SPIN}, 0\ns_mov_b64 {sr(S_SAVE)}, 0')
        if landed:
            self.e(f's_branch {chk}')
        self.e(f'{lp}:')
        if sleep:
            self.e(f's_sleep {sleep}')
        for t in range(n):
            sk = self.lab('pi')
            self.e(f's_bitcmp1_b32 s{S_VALID}, {t}\ns_cbranch_scc1 {sk}\ns_add_u32 s{S_T3}, s{s_base}, {offs[t]}')
            self.e(f'buffer_load_dwordx4 {vr(base + 4 * t)}, v{vo}, {sr(SRD_WS, 4)}, s{S_T3} offen sc1\n{sk}:')
        self.e(f's_add_u32 s{S_SPIN}, s{S_SPIN}, 1\ns_cmp_ge_u32 s{S_SPIN}, {CFG["SPIN"]}\ns_cselect_b64 {sr(S_SAVE)}, -1, 0\ns_waitcnt vmcnt(0)\n{chk}:')
        for t in range(n):
            sk = self.lab('pc')
            self.e(f's_bitcmp1_b32 s{S_VALID}, {t}\ns_cbranch_scc1 {sk}')
            self.maxu(tmp, range(base + 4 * t, base + 4 * t + 4))
            self.e(f'v_cmp_ne_u32 vcc, -1, v{tmp}\ns_or_b64 vcc, vcc, {sr(S_SAVE)}\ns_cmp_eq_u64 vcc, -1\ns_cbranch_scc0 {sk}')
            accum(t, base + 4 * t)
            self.e(f's_bitset1_b32 s{S_VALID}, {t}\n{sk}:')
        self.e(f's_cmp_lg_u32 s{S_VALID}, {hex((1 << n) - 1)}\ns_cbranch_scc1 {lp}\n{done}:')
        self.vm = []

    def perm_chunk(self, raw, dst, pump_every=0, fs=4):
        k = 0
        for c in range(4):
            for hi in range(2):
                for jj in range(4):
                    a, b = raw + 4 * (2 * jj) + c, raw + 4 * (2 * jj + 1) + c
                    sel = S_PHI if hi else S_PLO
                    self.e(f'v_perm_b32 v{dst + fs * (2 * c + hi) + jj}, v{b}, v{a}, s{sel}')
                    k += 1
                    if pump_every and k % pump_every == 0:
                        self.fill()

    def unpack(self, src, d0, d1):
        self.e(f'v_lshlrev_b32 v{d0}, 16, v{src}\nv_and_b32 v{d1}, 0xffff0000, v{src}')

    def rnd2(self, a, b, t):
        self.e(f'v_cvt_pk_bf16_f32 v{t}, v{a}, v{b}')
        self.unpack(t, a, b)

    def tree(self, B, widths):
        for w in widths:
            if w >= 2:
                for k in range(0, w, 2):
                    self.e(f'v_pk_add_f32 {vr(B + k, 2)}, {vr(B + k, 2)}, {vr(B + k + w, 2)}')
            else:
                self.e(f'v_add_f32 v{B}, v{B}, v{B + 1}')

    def rowsum(self, regs, steps):
        for st in steps:
            for r in regs:
                self.e(f'v_add_f32_dpp v{r}, v{r}, v{r} row_ror:{st} row_mask:0xf bank_mask:0xf')

    def swapred(self, op, which, regs, tmps):
        for r, t in zip(regs, tmps):
            self.e(f'v_mov_b32 v{t}, v{r}')
        for r, t in zip(regs, tmps):
            self.e(f'v_permlane{which}_swap_b32 v{r}, v{t}')
        for r, t in zip(regs, tmps):
            self.e(f'{op} v{r}, v{r}, v{t}')


LOG2E = 0x3fb8aa3b
AL_TERMS = [(5, 1, 2048), (0, 4, 16), (4, 1, 8)]
XA_TERMS = [(5, 1, 256), (0, 4, 16), (4, 1, 8)]


def layernorm(p, X, T, fix):
    s0, s1, t0, t1, m0, m1, ad = T[0], T[1], T[2], T[3], T[4], T[5], T[6]
    for q, s in ((0, s0), (1, s1)):
        x = X[4 * q:4 * q + 4]
        p.e(f'v_add_f32 v{s}, v{x[0]}, v{x[1]}\nv_add_f32 v{T[2 + q]}, v{x[2]}, v{x[3]}')
    p.e(f'v_add_f32 v{s0}, v{s0}, v{t0}\nv_add_f32 v{s1}, v{s1}, v{t1}')
    p.rowsum([s0, s1], (8, 4, 2, 1))
    p.swapred('v_add_f32', 16, [s0, s1], [t0, t1])
    A, B = T[8], T[10]
    assert A % 2 == 0 and B % 2 == 0 and T[9] == A + 1 and T[11] == B + 1
    p.e(f'v_mul_f32 v{A}, 0x3c000000, v{s0}\nv_mul_f32 v{B}, 0x3c000000, v{s1}')
    for q, mean in ((0, A), (1, B)):
        x = X[4 * q:4 * q + 4]
        p.e(f'v_sub_f32 v{t0}, v{x[0]}, v{mean}\nv_sub_f32 v{t1}, v{x[1]}, v{mean}')
        p.e(f'v_mul_f32 v{mean + 1}, v{t0}, v{t0}\nv_fmac_f32 v{mean + 1}, v{t1}, v{t1}')
        p.e(f'v_sub_f32 v{t0}, v{x[2]}, v{mean}\nv_sub_f32 v{t1}, v{x[3]}, v{mean}')
        p.e(f'v_fmac_f32 v{mean + 1}, v{t0}, v{t0}\nv_fmac_f32 v{mean + 1}, v{t1}, v{t1}')
    p.rowsum([A + 1, B + 1], (8, 4, 2, 1))
    p.swapred('v_add_f32', 16, [A + 1, B + 1], [t0, t1])
    p.e(f's_lshl_b32 s{S_T0}, s{S_WV}, 5\ns_add_u32 s{S_T0}, s{S_T0}, {L_STATS}')
    p.lane(ad, [(5, 1, 8)], sadd=S_T0)
    p.exec_set(0x0000000100000001)
    p.e(f'ds_write_b64 v{ad}, {vr(A, 2)}\nds_write_b64 v{ad}, {vr(B, 2)} offset:16')
    p.exec_all()
    p.lane(ad, [(0, 3, 32), (5, 1, 8)], const=L_STATS, tmp=t0)
    p.e('s_waitcnt lgkmcnt(0)\ns_barrier')
    p.e(f'ds_read_b64 {vr(A, 2)}, v{ad}\nds_read_b64 {vr(B, 2)}, v{ad} offset:16\ns_waitcnt lgkmcnt(0)')
    p.e(f'v_mov_b32 v{m0}, v{A}\nv_mov_b32 v{m1}, v{B}')
    p.rowsum([m0, m1], (4, 2, 1))
    p.e(f'v_mul_f32 v{m0}, 0x3e000000, v{m0}\nv_mul_f32 v{m1}, 0x3e000000, v{m1}')
    p.e(f'v_sub_f32 v{t0}, v{A}, v{m0}\nv_sub_f32 v{t1}, v{B}, v{m1}')
    p.e(f'v_mul_f32 v{s0}, 0x43000000, v{t0}\nv_mul_f32 v{s1}, 0x43000000, v{t1}')
    p.e(f'v_fmac_f32 v{A + 1}, v{s0}, v{t0}\nv_fmac_f32 v{B + 1}, v{s1}, v{t1}')
    p.rowsum([A + 1, B + 1], (4, 2, 1))
    p.rnd2(m0, m1, t0)
    p.e(f'v_mul_f32 v{s0}, 0x3a800000, v{A + 1}\nv_mul_f32 v{s1}, 0x3a800000, v{B + 1}')
    p.rnd2(s0, s1, t0)
    p.e(f'v_add_f32 v{s0}, 0x3727c5ac, v{s0}\nv_add_f32 v{s1}, 0x3727c5ac, v{s1}')
    p.rnd2(s0, s1, t0)
    p.e(f'v_sqrt_f32 v{s0}, v{s0}\nv_sqrt_f32 v{s1}, v{s1}')
    p.rnd2(s0, s1, t0)
    p.e(f'v_rcp_f32 v{A}, v{s0}\nv_rcp_f32 v{B}, v{s1}')
    for q, m, sd, ri in ((0, m0, s0, A), (1, m1, s1, B)):
        x = X[4 * q:4 * q + 4]
        for r in range(4):
            p.e(f'v_sub_f32 v{x[r]}, v{x[r]}, v{m}')
        p.rnd2(x[0], x[1], t0)
        p.rnd2(x[2], x[3], t1)
        for r in range(4):
            if fix:
                p.e(f'v_mul_f32 v{t0}, v{x[r]}, v{ri}\nv_fma_f32 v{x[r]}, -v{t0}, v{sd}, v{x[r]}\nv_fma_f32 v{x[r]}, v{x[r]}, v{ri}, v{t0}')
            else:
                p.e(f'v_mul_f32 v{x[r]}, v{x[r]}, v{ri}')
        p.rnd2(x[0], x[1], t0)
        p.rnd2(x[2], x[3], t1)


def modulate(p, X, C1, SH, T, out):
    a, b = T[0], T[1]
    for d in range(4):
        x0, x1 = X[2 * d], X[2 * d + 1]
        p.unpack(C1[d], a, b)
        p.e(f'v_mul_f32 v{x0}, v{x0}, v{a}\nv_mul_f32 v{x1}, v{x1}, v{b}')
        p.rnd2(x0, x1, a)
        p.unpack(SH[d], a, b)
        p.e(f'v_add_f32 v{x0}, v{x0}, v{a}\nv_add_f32 v{x1}, v{x1}, v{b}')
        p.e(f'v_cvt_pk_bf16_f32 v{out[d]}, v{x0}, v{x1}')


def one_plus(p, C, T):
    a, b = T[0], T[1]
    for c in C:
        p.unpack(c, a, b)
        p.e(f'v_add_f32 v{a}, 1.0, v{a}\nv_add_f32 v{b}, 1.0, v{b}\nv_cvt_pk_bf16_f32 v{c}, v{a}, v{b}')


def xa_base(p, s):
    p.e(f's_lshl_b32 s{s}, s{S_WV}, 10\ns_add_u32 s{s}, s{s}, {L_XA}')


def push_narrow_weights(p, tag0, pitch, raw0, raw1, vo, s_base, need=None):
    for u, raw in ((0, raw0), (1, raw1)):
        for jj in range(8):
            def fn(tag, u=u, raw=raw, jj=jj):
                p.e(f's_add_u32 s{S_T3}, s{s_base}, {(64 * u + jj) * pitch}')
                p.vmem(f'buffer_load_dwordx4 {vr(raw + 4 * jj)}, v{vo}, {sr(SRD_W, 4)}, s{S_T3} offen nt', tag)
            p.push(f'{tag0}{u}', fn, need[u] if need else None)


def narrow_setup(p, pitch, vo, s_base, s_col, tmp, rows=128):
    p.lane(vo, [(3, 3, 8 * pitch), (0, 3, 16)], tmp=tmp)
    p.e(f's_mul_i32 s{s_base}, s{S_WV}, {rows * pitch}\ns_add_u32 s{s_base}, s{s_base}, s{s_col}')


def narrow_gemv(p, F0, F1, B, ACC, T, s_out, f32=False, before_barrier=None, upper=None):
    a0, a1, t0 = T[0], T[1], T[2]
    xa_base(p, S_T0)
    p.lane(a0, [(0, 2, 256), (4, 2, 32), (3, 1, 16)], sadd=S_T0, tmp=t0)
    p.e(f's_mov_b32 s{S_MASK}, 0x0f0f0f0f\ns_mov_b32 s{S_MASK + 1}, 0x0f0f0f0f\nv_mov_b32 v{t0}, {L_ZERO}')
    p.e(f'v_cndmask_b32 v{a1}, v{a0}, v{t0}, {sr(S_MASK)}\nv_cndmask_b32 v{a0}, v{t0}, v{a0}, {sr(S_MASK)}')
    FF = [F0] if F1 is None else [F0, F1]
    for u in range(len(FF)):
        p.e(f'ds_read_b128 {vr(B + 8 * u)}, v{a0} offset:{128 * u}\nds_read_b128 {vr(B + 8 * u + 4)}, v{a1} offset:{128 * u}')
    p.e(f's_lshl_b32 s{S_T0}, s{S_WV}, 11\ns_add_u32 s{S_T0}, s{S_T0}, {L_RED}')
    p.lane(a0, [(5, 1, 1024), (0, 2, 256), (2, 1, 128), (4, 1, 16)], sadd=S_T0, tmp=t0)
    p.e('s_waitcnt lgkmcnt(0)')
    for u, F in enumerate(FF):
        for e in range(8):
            acc = vr(ACC + 4 * (e & 3))
            c = '0' if (u == 0 and e < 4) else acc
            p.e(f'v_mfma_f32_16x16x32_bf16 {acc}, {vr(F + 4 * e)}, {vr(B + 8 * u + 4 * (e >> 2))}, {c}')
        p.fill()
    p.exec_set(0xff00ff0000ff00ff)
    for a in range(4):
        p.e(f'ds_write_b128 v{a0}, {vr(ACC + 4 * a)} offset:{32 * a}')
    p.exec_all()
    p.e(f's_lshl_b32 s{S_T0}, s{S_WV}, 8\ns_add_u32 s{S_T0}, s{S_T0}, {L_RED}')
    p.lane(a1, [(2, 1, 128), (0, 2, 32), (5, 1, 16), (3, 2, 4)], sadd=S_T0, tmp=t0)
    p.fill()
    if before_barrier:
        before_barrier()
    p.e('s_waitcnt lgkmcnt(0)\ns_barrier')
    sk = p.lab('fin')
    p.e(f's_cmp_ge_u32 s{S_WV}, 4\ns_cbranch_scc1 {sk}')
    for k in range(8):
        p.e(f'ds_read2st64_b32 {vr(B + 2 * k, 2)}, v{a1} offset0:{8 * k} offset1:{8 * k + 4}')
    so, stride = s_out
    p.e(f's_mul_i32 s{S_T0}, s{S_WV}, {stride}\ns_add_u32 s{S_T0}, s{S_T0}, s{so}\nv_lshlrev_b32 v{a0}, {2 if f32 else 1}, v1\ns_waitcnt lgkmcnt(0)')
    for w in (8, 4, 2, 1):
        for k in range(w):
            p.e(f'v_add_f32 v{B + k}, v{B + k}, v{B + k + w}')
    if f32:
        for k in (1, 2, 3):
            p.e(f'v_mov_b32_dpp v{B + k}, v{B} quad_perm:[{k},{k},{k},{k}] row_mask:0xf bank_mask:0xf')
        p.exec_set(0x1111111111111111)
        ACC = B
    else:
        p.e(f'v_mov_b32_dpp v{B + 1}, v{B} quad_perm:[1,1,3,3] row_mask:0xf bank_mask:0xf')
        p.e(f'v_cvt_pk_bf16_f32 v{ACC}, v{B}, v{B + 1}')
        for k in (1, 2, 3):
            p.e(f'v_mov_b32_dpp v{ACC + k}, v{ACC} row_shl:{2 * k} row_mask:0xf bank_mask:0xf')
        p.exec_set(0x0101010101010101)
    p.e(f'buffer_store_dwordx4 {vr(ACC)}, v{a0}, {sr(SRD_WS, 4)}, s{S_T0} offen sc1')
    p.exec_all()
    if upper:
        end = p.lab('fend')
        p.e(f's_branch {end}\n{sk}:')
        upper()
        sk = end
    p.e(f'{sk}:')


def push_al_loads(p, tag, srd, dst, vo, s_base, flags=''):
    def issue(model=True):
        for q in range(2):
            p.e(f's_add_u32 s{S_T3}, s{s_base}, {4096 * q}')
            s = f'buffer_load_dwordx2 {vr(dst + 2 * q, 2)}, v{vo}, {sr(srd, 4)}, s{S_T3} offen {flags}'
            p.vmem(s, tag) if model else p.e(s)
    if tag is not None:
        p.push(tag, lambda t: issue())
    return issue


def silu_to_xa(p, C, T, wa):
    a, b, ea, eb = T[0], T[1], T[2], T[3]
    xa_base(p, S_T0)
    p.lane(wa, XA_TERMS, sadd=S_T0, tmp=a)
    for d in range(4):
        p.unpack(C + d, a, b)
        p.e(f'v_mul_f32 v{ea}, {hex(LOG2E | 0x80000000)}, v{a}\nv_mul_f32 v{eb}, {hex(LOG2E | 0x80000000)}, v{b}')
        p.e(f'v_exp_f32 v{ea}, v{ea}\nv_exp_f32 v{eb}, v{eb}')
        p.e(f'v_add_f32 v{ea}, 1.0, v{ea}\nv_add_f32 v{eb}, 1.0, v{eb}')
        p.e(f'v_rcp_f32 v{T[4]}, v{ea}\nv_rcp_f32 v{T[5]}, v{eb}')
        p.e(f'v_mul_f32 v{T[6]}, v{a}, v{T[4]}\nv_mul_f32 v{T[7]}, v{b}, v{T[5]}')
        p.e(f'v_cvt_pk_bf16_f32 v{C + d}, v{T[6]}, v{T[7]}')
    p.e(f'ds_write_b64 v{wa}, {vr(C, 2)}\nds_write_b64 v{wa}, {vr(C + 2, 2)} offset:512')


R_Q, R_S, R_V01, R_K = 16, 32, 64, 128
R_P0, R_P1, R_ACC = 16, 32, 48
VCH = [64, 96, 128, 160]


def amap():
    if not CFG['GMAP']:
        return '''s_cmp_ge_u32 s2, 120
    s_cselect_b32 s5, 40, 0
    s_cmp_ge_u32 s2, 216
    s_cselect_b32 s5, 0xffffffa0, s5
    s_add_u32 s5, s5, s2'''
    return '''s_cmp_ge_u32 s2, 120
    s_cselect_b32 s5, 120, 0
    s_cselect_b32 s63, 32, 0
    s_cmp_ge_u32 s2, 184
    s_cselect_b32 s5, 64, s5
    s_cselect_b32 s63, 0, s63
    s_cmp_ge_u32 s2, 192
    s_cselect_b32 s5, 128, s5
    s_cselect_b32 s63, 32, s63
    s_sub_u32 s5, s2, s5
    s_and_b32 s62, s5, 0x60
    s_add_u32 s5, s5, s62
    s_or_b32 s5, s5, s63'''


def ids(p):
    p.e(f'''v_lshrrev_b32 v2, 6, v0
    v_and_b32 v1, 63, v0
    s_lshr_b32 s{S_W8}, s2, 3
    v_readfirstlane_b32 s{S_WV}, v2
    v_lshlrev_b32 v0, 4, v1''')


def code_prefetch(p):
    pc = p.lab('pc')
    p.e(f'''s_getpc_b64 s[60:61]
    {pc}:
    s_lshl_b32 s62, s{S_W8}, 3
    s_add_u32 s62, s62, s{S_WV}
    s_lshl_b32 s62, s62, 10
    s_min_u32 s62, s62, L_code_end-{NAME}_kernel-1024
    s_sub_u32 s60, s60, {pc}-{NAME}_kernel
    s_subb_u32 s61, s61, 0
    s_add_u32 s60, s60, s62
    s_addc_u32 s61, s61, 0''')
    p.vmem('global_load_dwordx4 v[252:255], v0, s[60:61]', 'code')


def kv_base(p):
    p.e(f'''s_add_u32 s{S_ROT}, s{S_W8}, s{S_WV}
    s_and_b32 s{S_ROT}, s{S_ROT}, 7
    s_lshl_b32 s{S_ROT}, s{S_ROT}, 12
    {amap()}
    s_lshl_b32 s{S_KV}, s5, 18
    s_add_u32 s{S_KV}, s{S_KV}, s{S_ROT}
    s_mov_b32 s{SRD_K + 2}, 0x4000000
    s_mov_b32 s{SRD_K + 3}, 0x20000''')


def entry(p):
    if CFG['STAMPS'] == 'e' or CFG['ENTRY']:
        p.e('s_memrealtime s[98:99]')
    p.e(f'''
    s_cmp_ge_u32 s2, 256
    s_cbranch_scc1 L_end
    s_load_dwordx16 s[32:47], s[0:1], 0
    s_load_dwordx8 s[48:55], s[0:1], 64
    s_load_dwordx4 s[56:59], s[0:1], 96''')
    disp = '''s_sub_u32 s62, s2, 120
    s_cmp_lt_u32 s62, 64
    s_cbranch_scc1 L_class_Q
    s_cmp_lt_u32 s62, 80
    s_cbranch_scc1 L_class_P
    s_cmp_lt_u32 s62, 96
    s_cbranch_scc1 L_class_PR'''
    if CFG['JUMP0']:
        p.e(disp)
        p.vm_pre = []
    ids(p)
    code_prefetch(p)
    kv_base(p)
    if not CFG['JUMP0']:
        p.e(disp)
        p.vm_pre = list(p.vm)
    got_args(p)
    for j in range(4):
        p.vmem(f'buffer_load_dwordx4 {vr(R_K + 4 * j)}, v0, {sr(SRD_K, 4)}, s{S_KV} offen offset:{1024 * j} nt', 'K0')
    p.e(f'''
    s_cmp_lt_u32 s2, 64
    s_cbranch_scc1 L_class_O
    s_cmp_lt_u32 s2, 120
    s_cbranch_scc1 L_class_M
    s_branch L_class_R''')


def got_args(p):
    p.e(f's_waitcnt lgkmcnt(0)\ns_mov_b32 s{SRD_K}, s{P_K}\ns_mov_b32 s{SRD_K + 1}, s{P_K + 1}')


def common_setup(p):
    if CFG['STAMPS'] == 'e':
        p.e(f's_waitcnt lgkmcnt(0)\ns_mov_b32 s{S_STAMP}, s98')
        p.nstamp = 1
        p.stamp_names = ['entry']
    if CFG['ENTRY']:
        p.e(f's_waitcnt lgkmcnt(0)\ns_mov_b32 s{S_STAMP}, s98')
        p.nstamp = 1
        p.stamp_names = ['start']
    else:
        p.stamp('start')
    if CFG['DBGOUT']:
        p.e('s_memtime s[100:101]\ns_waitcnt lgkmcnt(0)\ns_mov_b32 s99, s100')
    p.srd(SRD_WS, P_WS, WS_BYTES)
    p.e('v_mov_b32 v4, -1\nv_mov_b32 v5, -1\nv_mov_b32 v6, -1\nv_mov_b32 v7, -1')


def common_setup2(p):
    p.srd(SRD_V, P_V, 0x4000000)
    p.srd(SRD_D, P_DBG, 256)
    p.e(f's_mov_b32 s{S_PLO}, 0x05040100\ns_mov_b32 s{S_PHI}, 0x07060302')


def clear_rows(p, s_off, stride, nb):
    lanes = nb // 16
    sh = lanes.bit_length() - 1
    p.lane(2, [(sh, 2, stride), (0, sh, 16)], tmp=3)
    if lanes * 4 < 64:
        p.exec_set((1 << (lanes * 4)) - 1)
    p.e(f'buffer_store_dwordx4 v[4:7], v2, {sr(SRD_WS, 4)}, s{s_off} offen sc1')
    p.exec_all()


def clears(p, role):
    sk = p.lab('clr')
    p.e(f's_cmp_lg_u32 s{S_WV}, 0\ns_cbranch_scc1 {sk}\ns_setprio 3')
    role()
    p.e(f's_lshl_b32 s{S_T0}, s5, 11\ns_add_u32 s{S_T0}, s{S_T0}, {WS_OP}')
    p.e(f'buffer_store_dwordx4 v[4:7], v0, {sr(SRD_WS, 4)}, s{S_T0} offen sc1')
    p.e(f'buffer_store_dwordx4 v[4:7], v0, {sr(SRD_WS, 4)}, s{S_T0} offen offset:1024 sc1')
    p.e(f's_lshl_b32 s{S_T0}, s5, 7\ns_add_u32 s{S_T0}, s{S_T0}, {WS_ML}')
    p.exec_set(0xff)
    p.e(f'buffer_store_dwordx4 v[4:7], v0, {sr(SRD_WS, 4)}, s{S_T0} offen sc1')
    p.exec_all()
    p.e(f'v_mov_b32 v8, 0\nv_mov_b32 v9, 0\nv_lshlrev_b32 v2, 3, v1\nds_write_b64 v2, v[8:9] offset:{L_ZERO}\nds_write_b32 v8, v8 offset:{L_CNT}')
    p.e(f's_setprio 0\n{sk}:')
    p.nclear = len(p.vm)


def prio_young(p, v):
    sk = p.lab('pr')
    p.e(f's_cmp_lt_u32 s{S_WV}, 4\ns_cbranch_scc1 {sk}\ns_setprio {v}\n{sk}:')


def touch(p, cls):
    if not CFG['TOUCH']:
        return
    p.e(f's_lshl_b32 s{S_T0}, s{S_W8}, 3\ns_add_u32 s{S_T0}, s{S_T0}, s{S_WV}')
    if cls == 'O':
        p.e(f's_and_b32 s{S_T0}, s{S_T0}, 31\ns_lshl_b32 s{S_T0}, s{S_T0}, 21\ns_load_dword s43, {sr(P_V)}, s{S_T0}')
    else:
        ptrs = {'M': ((P_W1, 7 << 20), (P_W3, 7 << 20), (P_W2, 7 << 20)), 'R': ((P_WMOD, 12 << 20), (P_WO, 8 << 20), (P_OUT, 4096))}[cls]
        p.e(f's_and_b32 s{S_T0}, s{S_T0}, 7\ns_lshl_b32 s{S_T0}, s{S_T0}, 21')
        for ptr, nb in ptrs:
            p.e(f's_min_u32 s{S_T1}, s{S_T0}, {nb - 64}\ns_load_dword s43, {sr(ptr)}, s{S_T1}')


def count_b(p):
    sk = p.lab('arr')
    p.e(f's_cmp_lg_u32 s{S_WV}, 0\ns_cbranch_scc1 {sk}\ns_mov_b32 s{S_T0}, 1')
    p.e(f's_atomic_add s{S_T0}, {sr(P_DBG)}, 0\n{sk}:')


def arrive(p, off):
    sk = p.lab('arr')
    p.e(f's_cmp_lg_u32 s{S_WV}, 0\ns_cbranch_scc1 {sk}')
    p.e(f's_waitcnt vmcnt({len(p.vm) - p.nclear}) lgkmcnt(0)')
    p.stamp('arrived')
    for o in off:
        p.e(f's_mov_b32 s{S_T0}, 1\ns_atomic_add s{S_T0}, {sr(P_DBG)}, {o}')
    p.e(f'{sk}:\ns_barrier')


def push_cnt(p, dst, tag='CNT', off=0):
    p.push(tag, lambda t: p.vmem(f'buffer_load_dword v{dst}, off, {sr(SRD_D, 4)}, 0 offset:{off} sc1', t))


def check_cnt(p, dst, tag='CNT', off=0, total=256):
    p.need(tag)
    ok, lp = p.lab('cok'), p.lab('cretry')
    p.e(f'v_readfirstlane_b32 s{S_T0}, v{dst}\ns_mov_b32 s{S_SPIN}, 0\ns_cmp_ge_u32 s{S_T0}, {total}\ns_cbranch_scc1 {ok}\n{lp}:')
    p.e(f'buffer_load_dword v{dst}, off, {sr(SRD_D, 4)}, 0 offset:{off} sc1\ns_waitcnt vmcnt(0)\nv_readfirstlane_b32 s{S_T0}, v{dst}')
    p.e(f's_add_u32 s{S_SPIN}, s{S_SPIN}, 1\ns_cmp_ge_u32 s{S_SPIN}, {CFG["SPIN"]}\ns_cbranch_scc1 {ok}')
    p.e(f's_cmp_lt_u32 s{S_T0}, {total}\ns_cbranch_scc1 {lp}\n{ok}:')
    p.release(tag.lower())


def push_page(p, srd, tag, page, dst, need=None):
    for j in range(4):
        def fn(t, j=j):
            if j == 0 or True:
                p.e(f's_add_u32 s{S_T3}, s{S_KV}, {page * 32768}')
            p.vmem(f'buffer_load_dwordx4 {vr(dst + 4 * j)}, v0, {sr(srd, 4)}, s{S_T3} offen offset:{1024 * j} nt', t)
        p.push(tag, fn, need)


def push_k(p, t):
    push_page(p, SRD_K, f'K{t}', t, R_K + 16 * t)


def push_v(p, u, need=None):
    push_page(p, SRD_V, f'V{u}', 2 * u, p.vch[u], need)
    push_page(p, SRD_V, f'V{u}', 2 * u + 1, p.vch[u] + 16, need)


def push_v_lds(p, u):
    for k in range(8):
        def fn(t, k=k):
            if k == 0:
                p.e(f's_lshl_b32 s{S_STG}, s{S_WV}, 13\ns_add_u32 s{S_STG}, s{S_STG}, {L_STASH}')
            p.e(f's_add_u32 m0, s{S_STG}, {1024 * k}\ns_add_u32 s{S_T3}, s{S_KV}, {(2 * u + (k >> 2)) * 32768 + 1024 * (k & 3)}')
            p.vmem(f'buffer_load_dwordx4 v0, {sr(SRD_V, 4)}, s{S_T3} offen nt lds', t)
        p.push(f'V{u}', fn)


def v_from_lds(p, u, tmp):
    p.need(f'V{u}')
    p.e(f'v_add_u32 v{tmp}, s{S_STG}, v0')
    for k in range(8):
        p.e(f'ds_read_b128 {vr(p.vch[u] + 4 * k)}, v{tmp} offset:{1024 * k}')


def k_setup(p):
    p.e(f's_lshl_b32 s{S_T0}, s{S_WV}, 12')
    p.e(f'v_lshrrev_b32 v6, 4, v1\nv_lshlrev_b32 v7, 2, v6\nv_xor_b32 v7, v7, v1\nv_and_b32 v7, 15, v7\nv_lshlrev_b32 v7, 4, v7')
    p.e(f'v_lshl_add_u32 v2, v6, 8, v7\nv_add_u32 v2, s{S_T0}, v2')
    for j in (1, 2, 3):
        p.e(f'v_xor_b32 v{2 + j}, {16 * j}, v2')
    p.e(f'v_xor_b32 v7, v6, v1\nv_and_b32 v7, 15, v7\nv_lshlrev_b32 v7, 4, v7')
    p.e(f'v_and_b32 v8, 3, v1\nv_lshl_add_u32 v7, v8, 10, v7\nv_bfe_u32 v8, v1, 2, 2\nv_lshl_add_u32 v7, v8, 8, v7\nv_add_u32 v6, s{S_T0}, v7')
    for m in (1, 2, 3):
        p.e(f'v_xor_b32 v{6 + m}, {64 * m}, v6')


def k_trans(p, t):
    p.need(f'K{t}')
    for j in range(4):
        p.e(f'ds_write_b128 v{2 + j}, {vr(R_K + 16 * t + 4 * j)} offset:{1024 * j}')
    for m in range(4):
        p.e(f'ds_read_b128 {vr(R_K + 16 * t + 4 * m)}, v{6 + m}')


def q_loads(p, vo):
    def issue(model):
        for j in range(2 if CFG['QLIN'] else 4):
            if CFG['QLIN']:
                s = f'buffer_load_dwordx4 {vr(R_Q + 4 * j)}, v0, {sr(SRD_WS, 4)}, s{S_U + 3} offen offset:{1024 * j} sc1'
            else:
                s = f'buffer_load_dwordx4 {vr(R_Q + 4 * j)}, v{vo}, {sr(SRD_WS, 4)}, s{S_U + 3} offen offset:{64 * j} sc1'
            p.vmem(s, 'Q') if model else p.e(s)
    return issue


def push_q(p, vo):
    def fn(t):
        p.e(f's_lshr_b32 s{S_U + 3}, s5, 4\ns_lshl_b32 s{S_U + 3}, s{S_U + 3}, 11\ns_add_u32 s{S_U + 3}, s{S_U + 3}, {WS_Q}')
        if not CFG['QLIN']:
            p.lane(vo, [(0, 3, 256), (4, 2, 16)], tmp=R_Q)
        q_loads(p, vo)(True)
    p.push('Q', fn, 'cnt')


def qk_softmax(p, vo_q):
    if CFG['QLIN']:
        p.e(f's_lshl_b32 s{S_T0}, s{S_WV}, 12\nv_and_b32 v10, 3, v1\nv_lshlrev_b32 v10, 2, v10\nv_bfe_u32 v11, v1, 2, 1\nv_or_b32 v10, v10, v11')
        p.e(f'v_lshrrev_b32 v11, 4, v1\nv_xor_b32 v10, v10, v11\nv_lshlrev_b32 v10, 4, v10\nv_and_b32 v11, 7, v1\nv_lshl_add_u32 v10, v11, 8, v10\nv_add_u32 v6, s{S_T0}, v10')
        for m in (1, 2, 3):
            p.e(f'v_xor_b32 v{6 + m}, {64 * m}, v6')
        p.need('Q')
        p.check_retry(lambda: q_loads(p, vo_q)(False), list(range(R_Q, R_Q + 8)), 10)
        for j in range(2):
            p.e(f'ds_write_b128 v{2 + j}, {vr(R_Q + 4 * j)} offset:{1024 * j}')
        for m in range(4):
            p.e(f'ds_read_b128 {vr(R_Q + 4 * m)}, v{6 + m}')
    else:
        p.need('Q')
        p.check_retry(lambda: q_loads(p, vo_q)(False), list(range(R_Q, R_Q + 16)), 10)
    p.e('s_waitcnt lgkmcnt(0)')
    p.stamp('q_ok')
    for t in range(8):
        for m in range(4):
            s = vr(R_S + 4 * t)
            p.e(f'v_mfma_f32_16x16x32_bf16 {s}, {vr(R_K + 16 * t + 4 * m)}, {vr(R_Q + 4 * m)}, {"0" if m == 0 else s}')
        if t == 1:
            p.release('K01')
            p.burst(2)
        if t == 7:
            p.release('K47')
            p.burst(p.nburst)
    T = 2
    for t in range(8):
        x = R_S + 4 * t
        for h in (0, 2):
            p.rnd2(x + h, x + h + 1, T + h // 2)
        for r in range(4):
            p.e(f'v_mul_f32 v{x + r}, 0x3db504f3, v{x + r}')
        for h in (0, 2):
            p.rnd2(x + h, x + h + 1, T + h // 2)
        if t == 0:
            p.e(f'v_max_f32 v4, v{x}, v{x + 1}')
        else:
            p.e(f'v_max3_f32 v4, v4, v{x}, v{x + 1}')
        p.e(f'v_max3_f32 v4, v4, v{x + 2}, v{x + 3}')
        if t % 2:
            p.fill()
    p.W += p.nburst - 2
    p.pump(2)
    p.W -= p.nburst - 2
    p.swapred('v_max_f32', 16, [4], [5])
    p.swapred('v_max_f32', 32, [4], [5])
    p.e(f'v_mul_f32 v6, {hex(LOG2E | 0x80000000)}, v4\ns_mov_b32 s{S_T0}, {hex(LOG2E)}')
    p.e(f's_mov_b32 s{S_MASK}, 0x00ff00ff\ns_mov_b32 s{S_MASK + 1}, 0x00ff00ff\nv_mov_b32 v5, 0')
    for t in range(8):
        x = R_S + 4 * t
        for r in range(4):
            p.e(f'v_fma_f32 v{x + r}, v{x + r}, s{S_T0}, v6')
        for r in range(4):
            p.e(f'v_exp_f32 v{x + r}, v{x + r}')
        p.e(f'v_add_f32 v7, v{x}, v{x + 1}\nv_add_f32 v8, v{x + 2}, v{x + 3}')
        p.e(f'v_cvt_pk_bf16_f32 v2, v{x}, v{x + 1}\nv_cvt_pk_bf16_f32 v3, v{x + 2}, v{x + 3}')
        p.e(f'v_add_f32 v5, v5, v7\nv_add_f32 v5, v5, v8')
        for d in range(2):
            p.e(f'v_cndmask_b32 v{R_P0 + 2 * t + d}, 0, v{2 + d}, {sr(S_MASK)}')
            p.e(f'v_cndmask_b32 v{R_P1 + 2 * t + d}, v{2 + d}, 0, {sr(S_MASK)}')
        if t % 2:
            p.fill()
    p.swapred('v_add_f32', 16, [5], [6])
    p.swapred('v_add_f32', 32, [5], [6])
    p.e(f's_lshl_b32 s{S_T0}, s{S_WV}, 6\ns_add_u32 s{S_T0}, s{S_T0}, {L_MLW}\nv_lshlrev_b32 v6, 3, v1\nv_add_u32 v7, s{S_T0}, v6')
    p.e(f'v_mov_b32 v8, 1\nv_mov_b32 v9, {L_CNT}')
    p.exec_set(0xff)
    p.e('ds_write_b64 v7, v[4:5]\ns_mov_b64 exec, 1\nds_add_rtn_u32 v8, v9, v8')
    p.exec_all()
    sk = p.lab('ml')
    p.e(f's_waitcnt lgkmcnt(0)\nv_readfirstlane_b32 s{S_T0}, v8\ns_cmp_lg_u32 s{S_T0}, 7\ns_cbranch_scc1 {sk}')
    p.e(f'ds_read_b64 v[8:9], v6 offset:{L_MLW}\ns_waitcnt lgkmcnt(0)')
    ml_combine(p, 8, 9, 2, 3, 7)
    p.e(f's_lshl_b32 s{S_T0}, s5, 7\ns_add_u32 s{S_T0}, s{S_T0}, {WS_ML}')
    p.exec_set(0xff)
    p.e(f'buffer_store_dwordx2 v[2:3], v6, {sr(SRD_WS, 4)}, s{S_T0} offen sc1')
    p.exec_all()
    p.e(f'{sk}:')
    p.stamp('softmax')


def ml_combine(p, m, l, M, L, t):
    p.e(f'v_max_f32_dpp v{M}, v{m}, v{m} row_ror:8 row_mask:0xf bank_mask:0xf')
    p.swapred('v_max_f32', 16, [M], [t])
    p.swapred('v_max_f32', 32, [M], [t])
    p.e(f'v_sub_f32 v{t}, v{m}, v{M}\nv_mul_f32 v{t}, {hex(LOG2E)}, v{t}\nv_exp_f32 v{t}, v{t}\nv_mul_f32 v{L}, v{l}, v{t}')
    p.e(f'v_add_f32_dpp v{L}, v{L}, v{L} row_ror:8 row_mask:0xf bank_mask:0xf')
    p.swapred('v_add_f32', 16, [L], [t])
    p.swapred('v_add_f32', 32, [L], [t])


def pv_chunk(p, u, T):
    p.need(f'V{u}')
    raw = p.vch[u]
    for c in range(4):
        tb = T + 8 * (c & 1)
        for hi in range(2):
            for jj in range(4):
                a, b = raw + 4 * (2 * jj) + c, raw + 4 * (2 * jj + 1) + c
                p.e(f'v_perm_b32 v{tb + 4 * hi + jj}, v{b}, v{a}, s{S_PHI if hi else S_PLO}')
        for hi in range(2):
            e = 2 * c + hi
            acc = vr(R_ACC + 4 * (e & 3))
            cc = '0' if (u == 0 and e < 4) else acc
            pb = (R_P0 if e < 4 else R_P1) + 4 * u
            p.e(f'v_mfma_f32_16x16x32_bf16 {acc}, {vr(tb + 4 * hi)}, {vr(pb)}, {cc}')
        p.fill()


def ml_loads(p):
    def issue(model):
        for k in range(2):
            s = f'buffer_load_dwordx2 {vr(6 + 2 * k, 2)}, v2, {sr(SRD_WS, 4)}, s{S_U + 3} offen offset:{1024 * k} sc1'
            p.vmem(s, 'ML') if model else p.e(s)
    return issue


def push_ml(p):
    def fn(t):
        p.e(f's_lshr_b32 s{S_U + 3}, s5, 4\ns_lshl_b32 s{S_U + 3}, s{S_U + 3}, 11\ns_add_u32 s{S_U + 3}, s{S_U + 3}, {WS_ML}')
        p.lane(2, [(3, 3, 128), (0, 3, 8)], tmp=3)
        ml_loads(p)(True)
    p.push('ML', fn, 'sm')


def ml_scale(p):
    p.need('ML')
    p.stamp('ml_landed')
    p.check_retry(lambda: ml_loads(p)(False), [6, 7, 8, 9], 3)
    p.e(f'''v_max_f32 v3, v6, v8
    v_sub_f32 v6, v6, v3
    v_sub_f32 v8, v8, v3
    v_mul_f32 v6, {hex(LOG2E)}, v6
    v_mul_f32 v8, {hex(LOG2E)}, v8
    v_exp_f32 v6, v6
    v_exp_f32 v8, v8
    v_mul_f32 v7, v7, v6
    v_fmac_f32 v7, v9, v8''')
    ml_combine(p, 3, 7, 6, 8, 9)
    p.e(f'v_sub_f32 v4, v4, v6\nv_mul_f32 v4, {hex(LOG2E)}, v4\nv_exp_f32 v4, v4\nv_rcp_f32 v8, v8\nv_mul_f32 v5, v4, v8')
    p.e(f's_mul_i32 s{S_T0}, s{S_WV}, 4864\ns_add_u32 s{S_T0}, s{S_T0}, {L_OPART}')
    p.lane(6, [(0, 3, 592), (4, 2, 144), (3, 1, 64)], sadd=S_T0, tmp=3)
    p.e(f's_mul_i32 s{S_T0}, s{S_WV}, 592\ns_add_u32 s{S_T0}, s{S_T0}, {L_OPART}')
    p.lane(7, [(4, 2, 144), (1, 1, 64), (0, 1, 32), (2, 2, 4)], sadd=S_T0, tmp=3)
    p.e('v_add_u32 v8, 16, v7\nv_lshlrev_b32 v9, 2, v1')
    p.e(f's_lshl_b32 s{S_U + 3}, s5, 11\ns_lshl_b32 s{S_T1}, s{S_WV}, 8\ns_add_u32 s{S_U + 3}, s{S_U + 3}, s{S_T1}\ns_add_u32 s{S_U + 3}, s{S_U + 3}, {WS_OP}')


def quad_pack_store(p, D, vo, s_off):
    for k in (1, 2, 3):
        p.e(f'v_mov_b32_dpp v{D + k}, v{D} quad_perm:[{k},{k},{k},{k}] row_mask:0xf bank_mask:0xf')
    p.exec_set(0x1111111111111111)
    p.vmem(f'buffer_store_dwordx4 {vr(D)}, v{vo}, {sr(SRD_WS, 4)}, s{s_off} offen sc1', 'st')
    p.exec_all()


def attn_epilogue(p):
    for k in range(0, 16, 2):
        p.e(f'v_pk_mul_f32 {vr(R_ACC + k, 2)}, {vr(R_ACC + k, 2)}, v[4:5] op_sel:[0,1] op_sel_hi:[1,1]')
        if k % 4 == 2:
            p.e(f'ds_write_b128 v6, {vr(R_ACC + k - 2)} offset:{16 * (k // 4)}')
    p.e('s_waitcnt lgkmcnt(0)\ns_barrier')
    B = R_P0
    for k in range(4):
        p.e(f'ds_read2st64_b32 {vr(B + 2 * k, 2)}, v7 offset0:{38 * k} offset1:{38 * k + 19}')
        p.e(f'ds_read2st64_b32 {vr(B + 8 + 2 * k, 2)}, v8 offset0:{38 * k} offset1:{38 * k + 19}')
    p.e('s_waitcnt lgkmcnt(0)')
    for w in (4, 2, 1):
        p.tree(B, [w])
        p.tree(B + 8, [w])
    p.e(f'v_cvt_pk_bf16_f32 v{B + 4}, v{B}, v{B + 8}')
    quad_pack_store(p, B + 4, 9, S_U + 3)
    p.stamp('o_stored')


def selectors(p, SA, t, n=8):
    p.e(f'v_and_b32 v{t}, 1, v1\nv_cmp_eq_u32 vcc, 1, v{t}\nv_mov_b32 v{t}, 0x3f80\nv_mov_b32 v{t + 1}, 1.0')
    p.e(f'v_cndmask_b32 v{t}, v{t}, v{t + 1}, vcc\nv_bfe_u32 v{t + 1}, v1, 1, 3')
    for d in range(n):
        p.e(f'v_cmp_eq_u32 vcc, {d}, v{t + 1}\nv_cndmask_b32 v{SA + d}, 0, v{t}, vcc')


def wide_b_addrs(p, A, base_terms, s_base, const, t):
    p.lane(t, base_terms, const=const, sadd=s_base, tmp=A)
    p.e(f'v_mov_b32 v{t + 1}, {L_ZERO}')
    for j in range(4):
        m = 0x11111111 << j
        p.e(f's_mov_b32 s{S_MASK}, {hex(m)}\ns_mov_b32 s{S_MASK + 1}, {hex(m)}')
        p.e(f'v_cndmask_b32 v{A + j}, v{t + 1}, v{t}, {sr(S_MASK)}')


def selectors_b(p, SA, t):
    p.e(f'v_and_b32 v{t}, 1, v1\nv_cmp_eq_u32 vcc, 1, v{t}\nv_mov_b32 v{t}, 0x3f80\nv_mov_b32 v{t + 1}, 1.0')
    p.e(f'v_cndmask_b32 v{t}, v{t}, v{t + 1}, vcc')
    p.e(f'v_lshrrev_b32 v{t + 1}, 1, v1\nv_xor_b32 v{t + 1}, v{t + 1}, v1\nv_and_b32 v{t + 1}, 8, v{t + 1}')
    p.e(f'v_bfe_u32 v{SA}, v1, 1, 2\nv_or_b32 v{t + 1}, v{t + 1}, v{SA}\nv_bfe_u32 v{SA}, v1, 5, 1\nv_lshl_or_b32 v{t + 1}, v{SA}, 2, v{t + 1}')
    for d in range(8):
        p.e(f'v_cmp_eq_u32 vcc, {d}, v{t + 1}\nv_cndmask_b32 v{SA + d}, 0, v{t}, vcc')


def sp_addrs(p, A, bstride, s_base, const, t, idx=None):
    p.lane(t, [(2, 2, bstride), (0, 1, bstride // 2), (4, 2, 16)], const=const, sadd=s_base, tmp=A)
    p.e(f'v_mov_b32 v{t + 1}, {L_ZERO}\ns_mov_b32 s{S_MASK}, 0x33333333\ns_mov_b32 s{S_MASK + 1}, 0x33333333')
    p.e(f'v_cndmask_b32 v{A}, v{t + 1}, v{t}, {sr(S_MASK)}\nv_cndmask_b32 v{A + 1}, v{t}, v{t + 1}, {sr(S_MASK)}')
    if idx is not None:
        p.e(f's_mov_b32 s{S_MASK}, 0x55555555\ns_mov_b32 s{S_MASK + 1}, 0x55555555\nv_mov_b32 v{t}, 0xeeee\nv_mov_b32 v{t + 1}, 0x4444')
        p.e(f'v_cndmask_b32 v{idx}, v{t}, v{t + 1}, {sr(S_MASK)}')


def sp_gemv(p, F, A, ACC, idx):
    for e in range(8):
        p.e(f'v_smfmac_f32_16x16x64_bf16 {vr(ACC + 4 * (e & 3))}, {vr(A + 4 * (e >> 2))}, {vr(F + 8 * e, 8)}, v{idx}')


def lines_of(p, fn):
    old, p.L = p.L, []
    fn()
    out, p.L = p.L, old
    return out


def interleave(p, main, fill, per):
    fill = list(fill)
    for m in main:
        p.L.append(m)
        p.L += fill[:per]
        fill = fill[per:]
    p.L += fill


def sp_fold(p, ACC, OUT):
    for e in range(8):
        r = ACC + 4 * (e & 3) + 2 * (e >> 2)
        p.e(f'v_add_f32 v{OUT + e}, v{r}, v{r + 1}')


def push_wide_rows(p, tag, raw, vo, s_base, row0, need=None):
    for jj in range(8):
        def fn(t, jj=jj):
            p.e(f's_add_u32 s{S_T3}, s{s_base}, {(row0 + (jj & ~1)) * 2048}')
            p.vmem(f'buffer_load_dwordx4 {vr(raw + 4 * jj)}, v{vo}, {sr(SRD_W, 4)}, s{S_T3} offen offset:{2048 * (jj & 1)} nt', t)
        p.push(tag, fn, need)


def finish(p):
    if CFG['DBGOUT']:
        p.stamp('end')
        sk = p.lab('dbg')
        p.e(f's_cmp_lg_u32 s{S_WV}, 0\ns_cbranch_scc1 {sk}')
        sk2 = p.lab('dbg')
        p.e(f's_cmp_lg_u32 s2, 64\ns_cbranch_scc1 {sk2}\ns_memtime s[100:101]\ns_waitcnt lgkmcnt(0)\ns_sub_u32 s100, s100, s99')
        p.e(f's_atomic_umax s100, {sr(P_DBG)}, 56\ns_sub_u32 s{S_T0}, s{S_STAMP + p.nstamp - 1}, s{S_STAMP}\ns_atomic_umax s{S_T0}, {sr(P_DBG)}, 60\n{sk2}:')
        slots = ['start', 'pre_done', 'k_done', 'q_ok', 'o_stored', 'e3_ok', 'a_stored', 'w_ready', 'e4_ok', 'f_stored', 'end']
        p.e(f's_not_b32 s{S_T0}, s{S_STAMP}\ns_atomic_umax s{S_T0}, {sr(P_DBG)}, 4')
        for k, n in enumerate(p.stamp_names):
            if n in slots:
                p.e(f's_atomic_umax s{S_STAMP + k}, {sr(P_DBG)}, {8 + 4 * slots.index(n)}')
        p.e(f'{sk}:')
    elif CFG['STAMPS']:
        p.e(f's_lshl_b32 s{S_T0}, s2, 3\ns_add_u32 s{S_T0}, s{S_T0}, s{S_WV}\ns_lshl_b32 s{S_T0}, s{S_T0}, 7\ns_add_u32 s{S_T0}, s{S_T0}, {WS_STAMP}')
        p.stamp('end')
        p.e('s_mov_b64 exec, 1\nv_mov_b32 v2, 0')
        for k in range(p.nstamp):
            p.e(f'v_mov_b32 v3, s{S_STAMP + k}\nbuffer_store_dword v3, v2, {sr(SRD_WS, 4)}, s{S_T0} offen offset:{4 * k}')
    p.e('s_endpgm')


def unit_index(p, dst, base, n):
    p.e(f's_sub_u32 s{dst}, s2, {base - CFG["USH"]}')
    if CFG['USH']:
        p.e(f's_cmp_ge_u32 s{dst}, {n}\ns_cselect_b32 s{S_T0}, {n}, 0\ns_sub_u32 s{dst}, s{dst}, s{S_T0}')


def mod_unit_setup(p, s_unit, s_col, s_out):
    p.e(f's_lshl_b32 s{s_col}, s{s_unit}, 7')
    p.e(f's_lshr_b32 s{s_out}, s{s_unit}, 4\ns_lshl_b32 s{s_out}, s{s_out}, 13\ns_and_b32 s{S_T0}, s{s_unit}, 15')
    p.e(f's_lshl_b32 s{S_T0}, s{S_T0}, 7\ns_add_u32 s{s_out}, s{s_out}, s{S_T0}')
    if WS_MOD:
        p.e(f's_add_u32 s{s_out}, s{s_out}, {WS_MOD}')


def quarter_loads(p, s_col, raw=128):
    p.lane(15, [(3, 3, 4 * 12288), (0, 3, 16)], tmp=raw)
    p.e(f's_mul_i32 s{S_T2}, s{S_WV}, {32 * 12288}\ns_add_u32 s{S_T2}, s{S_T2}, s{s_col}')
    for jj in range(4):
        p.e(f's_add_u32 s{S_T3}, s{S_T2}, {jj * 12288}')
        p.waitn(p.W - 1)
        p.vmem(f'buffer_load_dwordx4 {vr(raw + 4 * jj)}, v15, {sr(SRD_W, 4)}, s{S_T3} offen nt', 'WQ')


def quarter_compute(p, raw=128, F=144, B=160, ACC=176):
    a0, a1, t0 = 10, 11, 15
    p.e(f's_and_b32 s{S_T0}, s2, 3\ns_lshl_b32 s{S_T0}, s{S_T0}, 1\ns_lshr_b32 s{S_T1}, s{S_WV}, 2\ns_add_u32 s{S_T0}, s{S_T0}, s{S_T1}')
    p.e(f's_lshl_b32 s{S_T0}, s{S_T0}, 10\ns_and_b32 s{S_T1}, s{S_WV}, 3\ns_lshl_b32 s{S_T1}, s{S_T1}, 6\ns_add_u32 s{S_T0}, s{S_T0}, s{S_T1}\ns_add_u32 s{S_T0}, s{S_T0}, {L_XA}')
    p.lane(a0, [(0, 2, 256), (4, 2, 16), (3, 1, 8)], sadd=S_T0, tmp=t0)
    p.e(f's_mov_b32 s{S_MASK}, 0x0f0f0f0f\ns_mov_b32 s{S_MASK + 1}, 0x0f0f0f0f\nv_mov_b32 v{t0}, {L_ZERO}')
    p.e(f'v_cndmask_b32 v{a1}, v{a0}, v{t0}, {sr(S_MASK)}\nv_cndmask_b32 v{a0}, v{t0}, v{a0}, {sr(S_MASK)}')
    p.e(f'ds_read_b64 {vr(B, 2)}, v{a0}\nds_read_b64 {vr(B + 2, 2)}, v{a1}')
    p.e(f's_lshl_b32 s{S_T0}, s{S_WV}, 11\ns_add_u32 s{S_T0}, s{S_T0}, {L_RED2}')
    p.lane(a0, [(5, 1, 1024), (0, 2, 256), (2, 1, 128), (4, 1, 16)], sadd=S_T0, tmp=t0)
    p.need('WQ')
    for c in range(4):
        for hi in range(2):
            for jj in range(2):
                p.e(f'v_perm_b32 v{F + 2 * (2 * c + hi) + jj}, v{raw + 4 * (2 * jj + 1) + c}, v{raw + 4 * (2 * jj) + c}, s{S_PHI if hi else S_PLO}')
    p.e('s_waitcnt lgkmcnt(0)')
    for e in range(8):
        acc = vr(ACC + 4 * (e & 3))
        p.e(f'v_mfma_f32_16x16x16_bf16 {acc}, {vr(F + 2 * e, 2)}, {vr(B + 2 * (e >> 2), 2)}, {"0" if e < 4 else acc}')
    p.e(f's_lshl_b32 s{S_T0}, s{S_WV}, 8\ns_add_u32 s{S_T0}, s{S_T0}, {L_RED2 - 1024}')
    p.lane(a1, [(2, 1, 128), (0, 2, 32), (5, 1, 16), (3, 2, 4)], sadd=S_T0, tmp=t0)
    p.exec_set(0xff00ff0000ff00ff)
    for a in range(4):
        p.e(f'ds_write_b128 v{a0}, {vr(ACC + 4 * a)} offset:{32 * a}')
    p.exec_all()


def quarter_final(p, s_out, B=160):
    a0, a1 = 10, 11
    end = p.lab('qend')
    p.e(f's_cmp_ge_u32 s2, 248\ns_cbranch_scc1 {end}')
    for k in range(8):
        p.e(f'ds_read2st64_b32 {vr(B + 2 * k, 2)}, v{a1} offset0:{8 * k} offset1:{8 * k + 4}')
    p.e(f's_lshl_b32 s{S_T0}, s{S_WV}, 11\ns_add_u32 s{S_T0}, s{S_T0}, s{s_out}\ns_sub_u32 s{S_T0}, s{S_T0}, 8192\nv_lshlrev_b32 v{a0}, 2, v1\ns_waitcnt lgkmcnt(0)')
    for w in (8, 4, 2, 1):
        for k in range(w):
            p.e(f'v_add_f32 v{B + k}, v{B + k}, v{B + k + w}')
    for k in (1, 2, 3):
        p.e(f'v_mov_b32_dpp v{B + k}, v{B} quad_perm:[{k},{k},{k},{k}] row_mask:0xf bank_mask:0xf')
    p.exec_set(0x1111111111111111)
    p.e(f'buffer_store_dwordx4 {vr(B)}, v{a0}, {sr(SRD_WS, 4)}, s{S_T0} offen sc1')
    p.exec_all()
    p.e(f'{end}:')


def capture(p, fn):
    old, p.stream = p.stream, deque()
    fn()
    items, p.stream = list(p.stream), old
    return items


def weave(a, b, lead=0):
    out, a, b = [], list(a), list(b)
    out += b[:lead]
    b = b[lead:]
    while a or b:
        if b:
            out.append(b.pop(0))
        if a:
            out.append(a.pop(0))
    return out


def push_c3(p, tag, ptr, nbytes, wbase, n, first=0, dst=252, stride=None):
    def setup(t):
        p.srd(SRD_A, ptr, nbytes)
        p.e(f's_sub_u32 s{S_T2}, s2, {wbase}\ns_lshl_b32 s{S_T2}, s{S_T2}, 3\ns_add_u32 s{S_T2}, s{S_T2}, s{S_WV}')
        p.e(f's_mul_i32 s{S_T2}, s{S_T2}, {(stride or n) * 8192}\ns_add_u32 s{S_T2}, s{S_T2}, {first * 8192 + 384}')
        p.lane(15, [(3, 3, 1024), (0, 3, 16)], tmp=dst)
        p.e(f's_min_u32 s{S_T2}, s{S_T2}, {nbytes - n * 8192 + 384}')
        for k in range(n):
            if k:
                p.e(f's_add_u32 s{S_T2}, s{S_T2}, 8192')
            p.vmem(f'buffer_load_dwordx4 {vr(dst)}, v15, {sr(SRD_A, 4)}, s{S_T2} offen', t)
    p.push(tag, setup)


def push_c3half(p, ptr, wbase, dst=252):
    def fn(t):
        p.srd(SRD_A, ptr, 1024 * 7168)
        p.e(f's_sub_u32 s{S_T2}, s2, {wbase}\ns_mul_i32 s{S_T3}, s{S_T2}, 37\ns_lshr_b32 s{S_T3}, s{S_T3}, 8\ns_mul_i32 s{S_T3}, s{S_T3}, 7')
        p.e(f's_add_u32 s{S_T2}, s{S_T2}, s{S_T3}\ns_add_u32 s{S_T2}, s{S_T2}, 7\ns_lshl_b32 s{S_T2}, s{S_T2}, 3\ns_add_u32 s{S_T2}, s{S_T2}, s{S_WV}')
        p.e(f's_lshl_b32 s{S_T2}, s{S_T2}, 13')
        p.lane(15, [(3, 3, 1024), (0, 3, 16)], tmp=dst)
        p.vmem(f'buffer_load_dwordx4 {vr(dst)}, v15, {sr(SRD_A, 4)}, s{S_T2} offen offset:384', t)
    p.push('c3', fn)


def push_c3mod(p, wbase, dst=252):
    def fn(t):
        p.srd(SRD_A, P_WMOD, 1024 * 12288)
        p.e(f's_sub_u32 s{S_T2}, s2, {wbase}\ns_lshl_b32 s{S_T2}, s{S_T2}, 3\ns_add_u32 s{S_T2}, s{S_T2}, s{S_WV}')
        p.e(f's_lshr_b32 s{S_T3}, s{S_T2}, 7\ns_lshl_b32 s{S_T3}, s{S_T3}, 10\ns_and_b32 s{S_T2}, s{S_T2}, 127')
        p.e(f's_mul_i32 s{S_T2}, s{S_T2}, {8 * 12288}\ns_add_u32 s{S_T2}, s{S_T2}, s{S_T3}\ns_add_u32 s{S_T2}, s{S_T2}, 4096')
        p.lane(15, [(3, 3, 12288), (0, 3, 16)], tmp=dst)
        p.vmem(f'buffer_load_dwordx4 {vr(dst)}, v15, {sr(SRD_A, 4)}, s{S_T2} offen offset:384', t)
        sk = p.lab('c3')
        p.e(f's_cmp_ge_u32 s{S_T3}, 2048\ns_cbranch_scc1 {sk}\ns_add_u32 s{S_T2}, s{S_T2}, 4096')
        p.e(f'buffer_load_dwordx4 {vr(dst)}, v15, {sr(SRD_A, 4)}, s{S_T2} offen offset:384\n{sk}:')
    p.push('c3', fn)


def push_c3mod_late(p, dst=252):
    def fn(t):
        sk = p.lab('c3')
        p.e(f's_bitcmp1_b32 s2, 2\ns_cbranch_scc0 {sk}')
        p.srd(SRD_A, P_WMOD, 1024 * 12288)
        p.e(f's_lshl_b32 s{S_T2}, s{S_W8}, 2\ns_and_b32 s{S_T3}, s2, 3\ns_add_u32 s{S_T2}, s{S_T2}, s{S_T3}\ns_lshl_b32 s{S_T2}, s{S_T2}, 3\ns_add_u32 s{S_T2}, s{S_T2}, s{S_WV}')
        p.e(f's_lshr_b32 s{S_T3}, s{S_T2}, 7\ns_lshl_b32 s{S_T3}, s{S_T3}, 10\ns_and_b32 s{S_T2}, s{S_T2}, 127')
        p.e(f's_mul_i32 s{S_T2}, s{S_T2}, {8 * 12288}\ns_add_u32 s{S_T2}, s{S_T2}, s{S_T3}\ns_add_u32 s{S_T2}, s{S_T2}, 4096')
        p.lane(15, [(3, 3, 12288), (0, 3, 16)], tmp=dst)
        for k in range(3):
            if k:
                p.e(f's_add_u32 s{S_T2}, s{S_T2}, 2048')
            p.e(f'buffer_load_dwordx4 {vr(dst)}, v15, {sr(SRD_A, 4)}, s{S_T2} offen offset:384')
        p.e(f'{sk}:')
    p.push('c3', fn)


def rewarm(p, label, n, dst):
    if not CFG['REWARM']:
        return
    here = p.lab('pc')
    p.e(f's_getpc_b64 s[{S_T0}:{S_T1}]\n{here}:\ns_lshl_b32 s{S_T2}, s{S_WV}, 10\ns_add_u32 s{S_T2}, s{S_T2}, ({label}-{here})&0xfffffff0')
    p.e(f's_min_u32 s{S_T2}, s{S_T2}, (L_code_end-{here}-{1024 + 8192 * (n - 1)})&0xfffffff0')
    p.e(f's_and_b32 s{S_T0}, s{S_T0}, 0xfffffff0\ns_add_u32 s{S_T0}, s{S_T0}, s{S_T2}\ns_addc_u32 s{S_T1}, s{S_T1}, 0')
    for k in range(n):
        if k:
            p.e(f's_add_u32 s{S_T0}, s{S_T0}, 8192\ns_addc_u32 s{S_T1}, s{S_T1}, 0')
        p.vmem(f'global_load_dwordx4 {vr(dst)}, v0, s[{S_T0}:{S_T1}]', 'code')


def helper_gate(p, cls, miss=None, va=15, vd=14):
    lp, ok = p.lab('hg'), p.lab('hgok')
    if miss is None:
        miss = CFG['GATE_MISS']
    if cls in 'RM':
        p.e(f's_and_b32 s{S_T0}, s2, 3\ns_add_u32 s{S_T0}, s{S_T0}, 10')
    else:
        p.e(f's_lshr_b32 s{S_T0}, s5, 4')
    p.e(f's_lshl_b32 s{S_T0}, s{S_T0}, 15\ns_add_u32 s{S_T0}, s{S_T0}, {WS_OP + 2044}\ns_mov_b32 s{S_SPIN}, 0')
    p.lane(va, [(0, 4, 2048)])
    p.e(f'{lp}:\nbuffer_load_dword v{vd}, v{va}, {sr(SRD_WS, 4)}, s{S_T0} offen sc1')
    p.e(f's_add_u32 s{S_SPIN}, s{S_SPIN}, 1\ns_cmp_ge_u32 s{S_SPIN}, {CFG["SPIN"]}\ns_cbranch_scc1 {ok}\ns_waitcnt vmcnt(0)')
    p.e(f'v_cmp_eq_u32 vcc, -1, v{vd}\ns_bcnt1_i32_b64 s{S_T1}, vcc\ns_cmp_gt_u32 s{S_T1}, {4 * miss}\ns_cbranch_scc1 {lp}\n{ok}:')
    p.vm = []


def h6_prefetch(p, cls):
    sk = p.lab('h6')
    p.srd(SRD_A, P_W1, 1024 * 7168)
    p.srd(SRD_W, P_W3, 1024 * 7168)
    p.e(f's_sub_u32 s{S_T0}, s{S_W8}, {dict(P=23, Q=15 - 2, R=27 - 10)[cls]}\ns_cmp_ge_u32 s{S_T0}, 14\ns_cbranch_scc1 {sk}')
    p.e(f's_lshl_b32 s{S_T0}, s{S_T0}, 3\ns_add_u32 s{S_T0}, s{S_T0}, s{S_WV}\ns_add_u32 s{S_T1}, s2, {CFG["USH"]}\ns_and_b32 s{S_T1}, s{S_T1}, 7\ns_lshl_b32 s{S_T1}, s{S_T1}, 7')
    p.lane(15, [(3, 3, 1024), (0, 3, 16)], sadd=S_T1, tmp=14)
    for ch in CFG['H6']:
        for half in range(2):
            p.e(f's_add_u32 s{S_T1}, s{S_T0}, {112 * half}\ns_mul_i32 s{S_T2}, s{S_T1}, 2341\ns_lshr_b32 s{S_T2}, s{S_T2}, 16')
            p.e(f's_mul_i32 s{S_T2}, s{S_T2}, {896 - 28 * 8}\ns_lshl_b32 s{S_T1}, s{S_T1}, 3\ns_add_u32 s{S_T2}, s{S_T2}, s{S_T1}')
            p.e(f's_add_u32 s{S_T2}, s{S_T2}, {32 * ch * 7}\ns_lshl_b32 s{S_T2}, s{S_T2}, 10')
            p.e(f's_waitcnt vmcnt({CFG["H6W"] - 2})')
            p.e(f'buffer_load_dwordx4 v[252:255], v15, {sr(SRD_A, 4)}, s{S_T2} offen')
            p.e(f'buffer_load_dwordx4 v[252:255], v15, {sr(SRD_W, 4)}, s{S_T2} offen')
    p.e(f'{sk}:')


def h5_prefetch(p, cls):
    p.srd(SRD_A, P_W2, 3584 * 2048)
    if CFG['H5X']:
        p.e(f's_sub_u32 s{S_T0}, s{S_W8}, {dict(P=23, Q=15 - 2, R=27 - 10)[cls]}\ns_lshr_b32 s{S_T2}, s{S_T0}, 1\ns_lshl_b32 s{S_T2}, s{S_T2}, 3')
        p.e(f's_add_u32 s{S_T1}, s2, {CFG["USH"]}\ns_and_b32 s{S_T1}, s{S_T1}, 7\ns_add_u32 s{S_T2}, s{S_T2}, s{S_T1}\ns_lshl_b32 s{S_T2}, s{S_T2}, 17')
    else:
        p.e(f's_sub_u32 s{S_T0}, s2, {dict(Q=120 - 16, R=216 - 80, P=184)[cls]}')
        p.e(f's_lshr_b32 s{S_T2}, s{S_T0}, 1\ns_lshl_b32 s{S_T2}, s{S_T2}, 17')
    p.e(f's_and_b32 s{S_T0}, s{S_T0}, 1\ns_lshl_b32 s{S_T0}, s{S_T0}, 15')
    p.e(f's_add_u32 s{S_T2}, s{S_T2}, s{S_T0}\ns_add_u32 s{S_T2}, s{S_T2}, s{S_ROT}')
    sk = p.lab('h5')
    p.e(f's_cmp_ge_u32 s{S_T2}, {3584 * 2048}\ns_cbranch_scc1 {sk}')
    for off in (0, 65536)[:CFG['H5']]:
        p.e(f's_add_u32 s{S_T3}, s{S_T2}, {off}')
        for j in range(4):
            p.waitn(CFG['H5W'] - 1)
            p.vmem(f'buffer_load_dwordx4 v[252:255], v0, {sr(SRD_A, 4)}, s{S_T3} offen offset:{1024 * j}', 'h5')
    p.e(f'{sk}:')


def build_class(cls, ent):
    p = Prog(cls)
    pre = {'P': 'mod', 'PR': 'mod', 'Q': 'q'}.get(cls)
    p.vm = list(ent.vm_pre if pre else ent.vm)
    p.e(f'L_class_{cls}:')
    if pre:
        if CFG['JUMP0']:
            ids(p)
            code_prefetch(p)
            kv_base(p)
        got_args(p)
    common_setup(p)
    Wattn = CFG['W_' + cls]
    er = cls == 'R' and CFG['R_AT']
    late = pre or er
    stage = CFG['STAGE'] and not late
    p.nburst = CFG['BURST_L' if late else 'BURST']
    p.vch = [64, 96, 160, 128] if stage else VCH
    S_COL, S_OUT, S_WB = S_U, S_U + 1, S_U + 2
    S_OUT2, S_COL2 = S_U + 4, S_U + 5
    roles = []
    if pre == 'mod':
        p.srd(SRD_W, P_WMOD, 1024 * 12288)
        p.srd(SRD_A, P_C, 8192)
        unit_index(p, S_T1, 184, 32)
        mod_unit_setup(p, S_T1, S_COL, S_OUT)
        narrow_setup(p, 12288, 10, S_WB, S_COL, 3)
    if pre == 'q':
        p.srd(SRD_W, P_WQ, 1024 * 8192)
        p.srd(SRD_A, P_X, 8192)
        unit_index(p, S_COL, 120, 64)
        p.e(f's_lshl_b32 s{S_COL}, s{S_COL}, 7\ns_add_u32 s{S_OUT}, s{S_COL}, {WS_Q}')
        narrow_setup(p, 8192, 10, S_WB, S_COL, 3)
    if pre:
        p.lane(11, AL_TERMS, tmp=3)
        p.e(f's_lshl_b32 s{S_U + 6}, s{S_WV}, 8')
        push_al_loads(p, 'ACT', SRD_A, 16, 11, S_U + 6)
        push_narrow_weights(p, 'WA', 12288 if pre == 'mod' else 8192, 64, 96, 10, S_WB)
        roles.append(lambda: clear_rows(p, S_OUT, 2048 if pre == 'mod' else 8192, 128))
    if cls == 'O' and CFG['HP3']:
        p.srd(SRD_W, P_WMOD, 1024 * 12288)
        p.e(f's_lshl_b32 s{S_T0}, s2, 3\ns_add_u32 s{S_T0}, s{S_T0}, s{S_WV}\ns_lshr_b32 s{S_T1}, s{S_T0}, 7\ns_lshl_b32 s{S_T1}, s{S_T1}, 10')
        p.e(f's_and_b32 s{S_T0}, s{S_T0}, 127\ns_mul_i32 s{S_T0}, s{S_T0}, {8 * 12288}\ns_add_u32 s{S_T0}, s{S_T0}, s{S_T1}')
        p.lane(10, [(3, 3, 12288), (0, 3, 16)], tmp=3)
        p.vmem(f'buffer_load_dwordx4 v[252:255], v10, {sr(SRD_W, 4)}, s{S_T0} offen offset:384', 'hp3')
    if cls in ('PR', 'R'):
        unit_index(p, S_T1, *((216, 40) if cls == 'R' else (200, 16)))
        p.e(f's_add_u32 s{S_T1}, s{S_T1}, {32 if cls == "R" else 80}')
        mod_unit_setup(p, S_T1, S_COL2, S_OUT2)
        roles.append(lambda: clear_rows(p, S_OUT2, 2048, 128))
    if cls == 'R':
        p.e(f's_sub_u32 s{S_T1}, s2, 216\ns_and_b32 s{S_T0}, s{S_T1}, 3\ns_lshr_b32 s{S_T1}, s{S_T1}, 2')
        p.e(f's_lshl_b32 s{S_OUT}, s{S_T0}, 13\ns_lshl_b32 s{S_COL}, s{S_T1}, 8\ns_add_u32 s{S_OUT}, s{S_OUT}, s{S_COL}\ns_add_u32 s{S_OUT}, s{S_OUT}, {WS_CBP}')
        p.e(f's_mul_i32 s{S_T0}, s{S_T0}, {256 * 12288}\ns_lshl_b32 s{S_COL}, s{S_T1}, 7\ns_add_u32 s{S_COL}, s{S_COL}, s{S_T0}\ns_add_u32 s{S_COL}, s{S_COL}, {72 * 128}')

        def q_clear():
            sk = p.lab('qclr')
            p.e(f's_cmp_ge_u32 s2, 248\ns_cbranch_scc1 {sk}')
            clear_rows(p, S_OUT, 2048, 256)
            p.e(f'{sk}:')
        roles.append(q_clear)
    if cls == 'O':
        p.e(f's_and_b32 s{S_COL}, s2, 7\ns_lshl_b32 s{S_OUT}, s{S_COL}, 13\ns_lshl_b32 s{S_T0}, s{S_W8}, 8')
        p.e(f's_add_u32 s{S_OUT}, s{S_OUT}, s{S_T0}\ns_add_u32 s{S_OUT}, s{S_OUT}, {WS_AP}')
        roles.append(lambda: clear_rows(p, S_OUT, 2048, 256))
    if cls == 'M':
        unit_index(p, S_COL, 64, 56)
        p.e(f's_lshl_b32 s{S_OUT}, s{S_COL}, 13\ns_lshl_b32 s{S_T0}, s{S_WV}, 10')
        p.e(f's_add_u32 s{S_OUT}, s{S_OUT}, s{S_T0}\ns_add_u32 s{S_OUT}, s{S_OUT}, {WS_FP}')

        def fp_clear():
            for k in range(8):
                if k % 4 == 0:
                    p.e(f's_add_u32 s{S_T0}, s{S_OUT}, {1024 * k}')
                p.e(f'buffer_store_dwordx4 v[4:7], v0, {sr(SRD_WS, 4)}, s{S_T0} offen offset:{1024 * (k % 4)} sc1')
        roles.append(fp_clear)
    clears(p, lambda: [r() for r in roles])

    def role_setup():
        if cls == 'O':
            p.srd(SRD_W, P_WO, 4096 * 2048)
            p.lane(12, [(4, 2, 8 * 2048), (0, 4, 16)], tmp=13)
            p.e(f's_lshl_b32 s{S_WB}, s{S_COL}, 3\ns_add_u32 s{S_WB}, s{S_WB}, s{S_WV}\ns_lshl_b32 s{S_WB}, s{S_WB}, 17')
            p.e(f's_lshl_b32 s{S_T0}, s{S_W8}, 8\ns_add_u32 s{S_WB}, s{S_WB}, s{S_T0}')
        if cls in ('PR', 'R'):
            p.srd(SRD_W, P_WMOD, 1024 * 12288)
            p.srd(SRD_A, P_C, 8192)
            narrow_setup(p, 12288, 12, S_WB, S_COL2, 13)
            p.lane(13, AL_TERMS, tmp=14)
            p.e(f's_lshl_b32 s{S_U + 6}, s{S_WV}, 8')
        if cls == 'M':
            p.srd(SRD_W, P_W2, 3584 * 2048)
            p.srd(SRD_A, P_X, 8192)
            p.e(f's_mov_b32 s{S_MASK}, 0xff00ff00\ns_mov_b32 s{S_MASK + 1}, 0xff00ff00')
            p.e(f'v_mov_b32 v12, s{P_W1}\nv_mov_b32 v13, s{P_W1 + 1}\nv_mov_b32 v14, s{P_W3}\nv_mov_b32 v15, s{P_W3 + 1}')
            p.e(f'v_cndmask_b32 v12, v12, v14, {sr(S_MASK)}\nv_cndmask_b32 v13, v13, v15, {sr(S_MASK)}')
            p.e(f's_mul_i32 s{S_T0}, s{S_WV}, {128 * 7168}\ns_lshl_b32 s{S_T1}, s{S_COL}, 7\ns_add_u32 s{S_T0}, s{S_T0}, s{S_T1}')
            p.lane(14, [(4, 2, 8 * 7168), (0, 3, 16)], sadd=S_T0, tmp=15)
            p.e('v_mov_b32 v15, 0\nv_lshl_add_u64 v[12:13], v[14:15], 0, v[12:13]')
            p.e(f's_mov_b32 s{S_C64}, 7168\ns_mov_b32 s{S_C64 + 1}, 0\ns_mov_b32 s{S_C64B}, {25 * 7168}\ns_mov_b32 s{S_C64B + 1}, 0')
            p.lane(14, [(4, 2, 8 * 2048), (0, 4, 16)], tmp=15)
            p.e(f's_lshl_b32 s{S_WB}, s{S_COL}, 17\ns_lshl_b32 s{S_T0}, s{S_WV}, 8\ns_add_u32 s{S_WB}, s{S_WB}, s{S_T0}')

    def sc_issue(model):
        for k, chunk in ((0, 0), (1, 1)):
            for q in range(2):
                p.e(f's_add_u32 s{S_T3}, s{S_U + 6}, {WS_MOD + chunk * 8192 + 4096 * q}')
                s = f'buffer_load_dwordx2 {vr(24 + 4 * k + 2 * q, 2)}, v11, {sr(SRD_WS, 4)}, s{S_T3} offen sc1'
                p.vmem(s, 'SC') if model else p.e(s)

    def w13(u, raw, nd):
        def mk(jj):
            def fn(t):
                p.vmem(f'global_load_dwordx4 {vr(raw + 4 * jj)}, v[12:13], off nt', t)
                p.e(f'v_lshl_add_u64 v[12:13], {sr(S_C64B if jj == 7 else S_C64)}, 0, v[12:13]')
            return fn
        return [(f'WM{u}', mk(jj), nd) for jj in range(8)]

    for t in range(0 if pre else 1, 8):
        if t == 4 and CFG['C3']:
            base = dict(O=(0, 2), Q=(120, 2), R=(216, 3), M=(64, 2), P=(184, 4), PR=(184, 4))
            if cls == CFG['C3W1'] or (CFG['C3W1'] == 'P' and cls == 'PR'):
                push_c3half(p, P_W1, base[cls][0]) if CFG['C3H'] else push_c3(p, 'c3', P_W1, 1024 * 7168, *base[cls])
        if t == 5 and CFG['C3']:
            if CFG['C3W3'] in ('OP', 'QP') and cls in (CFG['C3W3'][0], 'P', 'PR'):
                push_c3(p, 'c3', P_W3, 1024 * 7168, *dict(O=(0, 1, 0), Q=(120, 1, 0), P=(184, 2, 512), PR=(200, 1, 768))[cls])
            if cls == CFG['C3W3'] or (CFG['C3W3'] == 'P' and cls == 'PR'):
                push_c3half(p, P_W3, base[cls][0]) if CFG['C3H'] else push_c3(p, 'c3', P_W3, 1024 * 7168, *base[cls])
        if t == 5 and CFG['C3O'] and cls in ('P', 'PR'):
            push_c3(p, 'c3', P_WO, 4096 * 2048, 184, CFG['C3O'], stride=4)
        if t == 1 and CFG['C3Q'] and cls in CFG['C3Q']:
            wb, n, first = dict(O=(0, 1, 0), R=(216, 1, 512), M=(64, 1, 512))[cls]
            push_c3(p, 'c3', P_WQ, 1024 * 8192, wb, n, first)
        if t == (1 if CFG['R_AT'] else 6) and cls == CFG['C3MOD']:
            push_c3mod_late(p) if CFG['OLATE'] else push_c3mod(p, dict(O=0, Q=120, M=64)[cls])
        if pre == 'q' and t == 0:
            push_cnt(p, 14, 'CNTA', 128)
        if pre == 'q' and t == CFG['SC_AT']:
            p.push('SC', lambda tg: sc_issue(True), 'cnta')
        if er and t == CFG['R_AT']:
            p.push('Rs', lambda tg: role_setup())
            push_al_loads(p, 'ACT2', SRD_A, 32, 13, S_U + 6)
            push_narrow_weights(p, 'WB', 12288, 64, 96, 12, S_WB)
            p.push('WQ', lambda tg: quarter_loads(p, S_COL, 16))
        if late and t == 6:
            push_cnt(p, 127 if er else 10)
        push_page(p, SRD_K, f'K{t}', t, R_K + 16 * t, 'pre' if (pre == 'mod' and t == CFG['P_HOLD']) else None)
    vv = capture(p, lambda: push_v(p, 0, 'pre' if late else None)) + capture(p, lambda: push_v(p, 1, 'pre' if late else None))
    qi = capture(p, lambda: push_q(p, 11))
    if stage:
        vv += capture(p, lambda: push_v_lds(p, 2))
    if late:
        p.stream += qi + vv
    else:
        k = CFG['Q_AT'] + (CFG['STAGE'] if stage else 0)
        p.stream += vv[:k - 6] + capture(p, lambda: push_cnt(p, 10)) + vv[k - 6:k] + qi + vv[k:]
    v3 = capture(p, lambda: push_v(p, 3, 'K01' if stage else 'pv0'))
    ml = capture(p, lambda: push_ml(p))
    if not stage:
        push_v(p, 2, 'K01')
    p.stream += v3[:3] + ml + v3[3:] if late else v3
    mark = len(p.stream)
    if cls == 'O':
        push_wide_rows(p, 'WO0', 192, 12, S_WB, 0, 'K47')
        push_wide_rows(p, 'WO1', 224, 12, S_WB, 32)
    if cls in ('R', 'PR') and not er:
        wb = capture(p, lambda: push_narrow_weights(p, 'WB', 12288, 192, 224, 12, S_WB))
        wb = [(t, f, 'K47') for t, f, _ in wb]
        wb.insert(0 if cls == 'R' else 8, ('ACT2', capture(p, lambda: push_al_loads(p, 'ACT2', SRD_A, 96, 13, S_U + 6))[0][1], 'pv1'))
        k = 99 if cls == 'R' else CFG['P_EARLY']
        p.stream += wb[:k] + [(t, f, 'ost') for t, f, _ in wb[k:]]
    if cls == 'M':
        l3 = CFG['LATE3']
        if l3 == 3:
            x = CFG['XPRE']
            assert x <= 2
            post = sum((w13(u, r, 'K47' if u < x else 'gate') for u, r in enumerate((192, 224, 96, 128))), [])
            post.insert(8 * x, ('MOD', lambda t: m_mod_issue(p, True), 'ost'))
        else:
            post = w13(0, 192, 'K47') + w13(1, 224, None) + w13(2, 96, 'pv1') + w13(3, 128, 'modok' if l3 == 2 else 'pv3')
            post.insert(len(post) - (8 if l3 else 0), ('MOD', lambda t: m_mod_issue(p, True), 'p2'))
        p.stream += post
        p.w2raw = (128, 96) if l3 else (96, 128)
        p.w2late = capture(p, lambda: push_wide_rows(p, 'WM4', p.w2raw[0], 14, S_WB, 0)) + capture(p, lambda: push_wide_rows(p, 'WM5', p.w2raw[1], 14, S_WB, 32))
    if not late:
        k = CFG['ML_AT_M' if cls == 'M' else 'ML_AT']
        if cls == 'M' and CFG['LATE3'] == 3:
            k = min(k, 8 * CFG['XPRE'])
        p.stream.insert(mark + k, ml[0])

    p.W = CFG['W_PRE'] if pre == 'mod' else CFG['W_PREQ'] if pre else CFG['W_INIT']
    while p.can_pump() and len(p.vm) < p.W and p.stream[0][0] not in ('CNTA', 'K0'):
        p.pump(1)
    p.stamp('first')
    if not pre:
        touch(p, cls)
    common_setup2(p)
    k_setup(p)
    arrive(p, {'mod': [128, 0], 'q': [0], None: []}[pre])
    p.W = Wattn if pre else CFG['W_LOW']
    if CFG['PRIO'] == 'all':
        prio_young(p, 1)
    if not pre:
        k_trans(p, 0)
        p.stamp('k0')
    if pre == 'mod':
        p.need('ACT')
        silu_to_xa(p, 16, list(range(20, 28)), 12)
        p.need('WA0')
        p.perm_chunk(64, 32)
        p.need('WA1')
        p.stamp('w_landed')
        p.perm_chunk(96, 64)
        narrow_gemv(p, 32, 64, 96, 112, [12, 13, 14], (S_OUT, 2048))
        p.release('pre')
        p.stamp('pre_done')
    if pre == 'q':
        p.need('ACT')
        X = list(range(40, 48))
        for d in range(4):
            p.unpack(16 + d, X[2 * d], X[2 * d + 1])
        layernorm(p, X, list(range(48, 60)), True)
        for d in range(4):
            p.e(f'v_cvt_pk_bf16_f32 v{16 + d}, v{X[2 * d]}, v{X[2 * d + 1]}')
        p.need('WA0')
        p.perm_chunk(64, 32)
        p.need('WA1')
        p.stamp('w_landed')
        p.perm_chunk(96, 64)
        check_cnt(p, 14, 'CNTA', 128, 32)
    for t in range(0 if pre else 1, 8):
        if not pre and t == CFG[dict(M='T_LOW_M', R='T_LOW_R').get(cls, 'T_LOW')]:
            p.W = Wattn
        if t == CFG['XAT'] and cls in CFG['XCLS'].split('+'):
            p.slow = CFG['XSLOW']
        k_trans(p, t)
        if not pre and t == 1:
            count_b(p)
        if pre == 'q' and t == CFG['SC_AT'] - 1:
            p.need('SC')
            p.burst(CFG['Q_BURST'])
            p.stamp('sc_landed')
            p.check_retry(lambda: sc_issue(False), list(range(24, 32)), 12)
            p.stamp('sc_ok')
            X = list(range(96, 104))
            for d in range(4):
                p.unpack(16 + d, X[2 * d], X[2 * d + 1])
            one_plus(p, [28, 29, 30, 31], [104, 105])
            modulate(p, X, [28, 29, 30, 31], [24, 25, 26, 27], [104, 105], [16, 17, 18, 19])
            xa_base(p, S_T0)
            p.lane(12, XA_TERMS, sadd=S_T0, tmp=13)
            p.e('ds_write_b64 v12, v[16:17]\nds_write_b64 v12, v[18:19] offset:512')
            narrow_gemv(p, 32, 64, 96, 112, [12, 13, 14], (S_OUT, 8192))
            p.release('pre')
            p.stamp('pre_done')
        if er and t == CFG['R_AT'] - 1:
            p.need('ACT2')
            silu_to_xa(p, 32, list(range(36, 44)), 10)
            p.need('WB0')
            p.perm_chunk(64, 32)
            p.need('WB1')
            p.perm_chunk(96, 64)
            p.burst(2)
            narrow_gemv(p, 32, 64, 96, 112, [12, 13, 14], (S_OUT2, 2048))
            quarter_compute(p, 16, 32, 48, 64)
            sk = p.lab('qf')
            p.burst(3)
            p.e(f's_waitcnt lgkmcnt(0)\ns_barrier\ns_cmp_lt_u32 s{S_WV}, 4\ns_cbranch_scc1 {sk}')
            quarter_final(p, S_OUT, 48)
            p.e(f'{sk}:')
            p.release('pre')
            p.stamp('q_done')
        if late and t == 6:
            check_cnt(p, 127 if er else 10)
    if not er:
        role_setup()
    p.stamp('k_done')
    if not late:
        check_cnt(p, 10)
    if CFG['PRIO'] in ('qk', 'qk+'):
        prio_young(p, 1)
    qk_softmax(p, 11)
    if CFG['PRIO'] == 'qk':
        p.e('s_setprio 0')
    p.release('sm')
    if CFG['XAT'] == 'sm' and cls in CFG['XCLS'].split('+'):
        p.slow = CFG['XSLOW']
    pv_chunk(p, 0, 160)
    p.release('pv0')
    if stage:
        v_from_lds(p, 2, 10)
    pv_chunk(p, 1, 64)
    p.release('pv1')
    if stage:
        p.e('s_waitcnt lgkmcnt(0)')
    if CFG['W_END'] and late:
        p.W = max(p.W, CFG['W_END'])
    pv_chunk(p, 2, 64)
    p.stamp('v2')
    if late:
        ml_scale(p)
        p.stamp('ml_ok')
    pv_chunk(p, 3, 64)
    p.release('pv3')
    p.stamp('pv_done')
    if cls == 'R' and not er:
        p.need('ACT2')
        silu_to_xa(p, 96, list(range(100, 108)), 10)
    if not late:
        ml_scale(p)
        p.stamp('ml_ok')
        p.burst(CFG['E_BURST_O' if cls == 'O' else 'E_BURST'])
    attn_epilogue(p)
    p.release('ost')
    if cls == 'M':
        p.W = max(p.W, CFG['W_POST'])
    if cls == 'PR':
        p.W = CFG['W_POSTP']
    if cls == 'O':
        p.need('WO0')
        p.perm_chunk(192, O_F, fs=8)
        while p.can_pump():
            p.pump(1)
        o_setup(p, S_COL, S_OUT)
        if CFG['EARLY3']:
            p.poll_first(E3_OFFS, S_U + 7, 13, O_E3)
        p.need('WO1')
        p.perm_chunk(224, O_F + 4, fs=8)
        p.stamp('w_ready')
        p.e('L_otail:')
        o_tail(p, S_OUT)
    if cls == 'PR':
        p.need('ACT2')
        silu_to_xa(p, 96, list(range(100, 108)), 10)
        p.perm_chunk(192, 32)
        p.need('WB1')
        p.perm_chunk(224, 64)
        narrow_gemv(p, 32, 64, 96, 112, [12, 13, 14], (S_OUT2, 2048))
        p.stamp('post_done')
    if cls == 'R' and not er:
        p.need('WB0')
        while p.can_pump():
            p.pump(1)
        quarter_loads(p, S_COL)
        p.perm_chunk(192, 32)
        p.need('WB1')
        p.perm_chunk(224, 64)
        narrow_gemv(p, 32, 64, 96, 112, [12, 13, 14], (S_OUT2, 2048), before_barrier=lambda: quarter_compute(p),
                    upper=lambda: quarter_final(p, S_OUT))
        p.stamp('q_done')
    if cls == 'M':
        m_tail(p, S_COL, S_OUT)
    if cls in ('Q', 'R', 'P') and CFG['GATE']:
        helper_gate(p, cls)
    if cls in ('Q', 'R', 'P') and CFG['H6']:
        h6_prefetch(p, cls)
    if cls in ('Q', 'R', 'P') and CFG['H5']:
        h5_prefetch(p, cls)
    assert not p.stream, [t[0] for t in p.stream]
    finish(p)
    return p


O_SEL, O_E3, O_B, O_F = 16, 64, 24, 96
E3_OFFS = [(t >> 2) * 2 * 4 * 16 * 2048 + (t & 3) * 4 * 2048 for t in range(8)]
RED_W = [(4, 2, 512), (0, 4, 32)]


def o_setup(p, S_KS, S_OUT):
    selectors(p, O_SEL, 10)
    p.lane(13, [(3, 1, 4 * 16 * 2048), (4, 2, 2048), (0, 3, 16)], tmp=10)
    p.e(f's_lshr_b32 s{S_T0}, s{S_KS}, 1\ns_lshl_b32 s{S_T0}, s{S_T0}, 15\ns_and_b32 s{S_T1}, s{S_KS}, 1\ns_lshl_b32 s{S_T1}, s{S_T1}, 10')
    p.e(f's_add_u32 s{S_T0}, s{S_T0}, s{S_T1}\ns_lshl_b32 s{S_T1}, s{S_WV}, 7\ns_add_u32 s{S_T0}, s{S_T0}, s{S_T1}\ns_add_u32 s{S_U + 7}, s{S_T0}, {WS_OP}')
    xa_base(p, S_T0)
    p.lane(14, [(5, 1, 256), (3, 1, 128), (0, 3, 8), (4, 1, 4)], sadd=S_T0, tmp=10)
    sp_addrs(p, O_B, 128, S_T0, 0, 10, O_B + 2)
    p.e(f's_lshl_b32 s{S_T0}, s{S_WV}, 11\ns_add_u32 s{S_T0}, s{S_T0}, {L_RED}')
    p.lane(15, RED_W, sadd=S_T0, tmp=10)
    p.e(f's_lshl_b32 s{S_T0}, s{S_WV}, 9\ns_add_u32 s{S_T0}, s{S_T0}, {L_RED}')
    p.lane(O_B + 4, [(0, 6, 8)], sadd=S_T0)
    p.e(f's_lshl_b32 s{S_T0}, s{S_WV}, 11\ns_add_u32 s{S_OUT}, s{S_OUT}, s{S_T0}')
    for k in range(20):
        p.e(f'v_mov_b32 v{32 + k}, 0')


def o_tail(p, S_OUT):
    ACC, D, OUT, A = 32, 48, 52, 160
    p.waitn(0)
    p.poll_rr(E3_OFFS, S_U + 7, 13, O_E3, 10,
              lambda t, r: p.e(f'v_mfma_f32_16x16x32_bf16 {vr(D)}, {vr(O_SEL + 4 * (t >> 2))}, {vr(r)}, {vr(D)}'), CFG['EARLY3'], CFG['SL3'])
    p.stamp('e3_ok')
    p.e(f'v_cvt_pk_bf16_f32 v{D}, v{D}, v{D + 1}\nv_cvt_pk_bf16_f32 v{D + 1}, v{D + 2}, v{D + 3}')
    p.e(f'ds_write2_b32 v14, v{D}, v{D + 1} offset0:0 offset1:16')
    p.e(f'ds_read_b128 {vr(A)}, v{O_B}\nds_read_b128 {vr(A + 4)}, v{O_B + 1}\ns_waitcnt lgkmcnt(0)')
    p.stamp('o1')
    sp_gemv(p, O_F, A, ACC, O_B + 2)
    sp_fold(p, ACC, OUT)
    p.e(f'ds_write_b128 v15, {vr(OUT)}\nds_write_b128 v15, {vr(OUT + 4)} offset:16')
    sk = p.lab('ofin')
    p.stamp('o2')
    p.e(f's_waitcnt lgkmcnt(0)\ns_barrier')
    p.stamp('o3')
    p.e(f's_cmp_ge_u32 s{S_WV}, 4\ns_cbranch_scc1 {sk}')
    B = 168
    for k in range(4):
        p.e(f'ds_read2st64_b64 {vr(B + 4 * k)}, v{O_B + 4} offset0:{8 * k} offset1:{8 * k + 4}')
    p.e('s_waitcnt lgkmcnt(0)')
    p.tree(B, (8, 4, 2))
    p.e(f'v_cvt_pk_bf16_f32 v{B + 4}, v{B}, v{B + 1}')
    quad_pack_store(p, B + 4, 9, S_OUT)
    p.e(f'{sk}:')
    p.stamp('a_stored')


CB_OFFS = [WS_CBP - 2048 + 8192 * kq + 4096 * q for kq in range(4) for q in range(2)]


def m_mod_issue(p, first):
    if first:
        p.lane(112, AL_TERMS, tmp=2)
        p.lane(113, [(5, 1, 2048), (0, 4, 32), (4, 1, 16)], tmp=2)
        p.e(f's_lshl_b32 s{S_U + 6}, s{S_WV}, 8\ns_lshl_b32 s{S_U + 5}, s{S_WV}, 9')
        for k in range(104, 108):
            p.e(f'v_mov_b32 v{k}, 0')
        push_al_loads(p, None, SRD_A, 96, 112, S_U + 6)(False)
    hi, jn = p.lab('cbhi'), p.lab('cbj')
    p.e(f's_cmp_ge_u32 s{S_WV}, 4\ns_cbranch_scc1 {hi}')
    for q in range(2):
        p.e(f's_add_u32 s{S_T3}, s{S_U + 6}, {WS_MOD + 4 * 8192 + 4096 * q}')
        p.e(f'buffer_load_dwordx2 {vr(104 + 2 * q, 2)}, v112, {sr(SRD_WS, 4)}, s{S_T3} offen sc1')
    if first:
        p.e(f's_branch {jn}\n{hi}:')
        for t, off in enumerate(CB_OFFS):
            p.e(f's_add_u32 s{S_T3}, s{S_U + 5}, {off}')
            p.e(f'buffer_load_dwordx4 {vr(160 + 4 * t)}, v113, {sr(SRD_WS, 4)}, s{S_T3} offen sc1')
        p.e(f'{jn}:')
    else:
        p.e(f'{hi}:')
    for k, chunk in ((0, 2), (2, 3)):
        for q in range(2):
            p.e(f's_add_u32 s{S_T3}, s{S_U + 6}, {WS_MOD + chunk * 8192 + 4096 * q}')
            s = f'buffer_load_dwordx2 {vr(100 + 4 * k + 2 * q, 2)}, v112, {sr(SRD_WS, 4)}, s{S_T3} offen sc1'
            p.vmem(s, 'MOD') if first else p.e(s)


def m_tail(p, S_MI, S_OUT):
    raw = [192, 224, 96, 128]
    F = [32, 36, 192, 196]
    F0, F1 = 32, 192

    def w2_issue(a, b):
        for t, f, _ in p.w2late[a:b]:
            f(t)
    SP, SEL, D = 160, 16, 24
    IDX, A0 = 4, 5
    p.fill()
    for u in range(CFG['XPRE']) if CFG['LATE3'] == 3 else (0, 1, 2):
        p.need(f'WM{u}')
        p.stamp(f'wm{u}')
        p.perm_chunk(raw[u], F[u], fs=8)
    p.release('p2')
    while p.can_pump():
        p.pump(1)
    if CFG['E4KS']:
        selectors_b(p, SEL, 2)
        p.lane(11, [(4, 2, 2048), (0, 4, 16)], tmp=2)
    else:
        selectors(p, SEL, 2)
        p.lane(11, [(4, 2, 8192), (0, 4, 16)], tmp=2)
    p.e(f's_add_u32 s{S_U + 7}, s{S_U + 6}, {WS_AP}')
    xa_base(p, S_T0)
    sp_addrs(p, A0, 256, S_T0, 0, 2, IDX)
    VX1 = 12
    l3 = CFG['LATE3']
    E4R = p.w2raw[1]

    def late_addrs():
        xa_base(p, S_T0)
        p.lane(13, [(5, 1, 256), (0, 4, 8), (4, 1, 4)], sadd=S_T0, tmp=2)
        p.e(f's_add_u32 s{S_T0}, s{S_U + 6}, {L_X1}')
        p.lane(VX1, AL_TERMS, sadd=S_T0, tmp=2)

    def perm3():
        p.need('WM3')
        p.stamp('wm3')
        p.perm_chunk(raw[3], F[3], fs=8)
    p.e(f's_lshl_b32 s{S_T0}, s{S_WV}, 11\ns_add_u32 s{S_T0}, s{S_T0}, {L_RED}')
    p.lane(15, RED_W, sadd=S_T0, tmp=2)
    p.e(f's_lshr_b32 s{S_T0}, s{S_WV}, 1\ns_lshl_b32 s{S_T0}, s{S_T0}, 9\ns_and_b32 s{S_T1}, s{S_WV}, 1\ns_lshl_b32 s{S_T2}, s{S_T1}, 7')
    p.e(f's_add_u32 s{S_T2}, s{S_T2}, s{S_T0}\ns_add_u32 s{S_T2}, s{S_T2}, {L_RED}')
    p.lane(8, [(5, 1, 256), (0, 5, 4)], sadd=S_T2, tmp=2)
    p.e(f's_lshr_b32 s{S_T0}, s{S_T0}, 2\ns_lshl_b32 s{S_T1}, s{S_T1}, 5\ns_add_u32 s{S_T0}, s{S_T0}, s{S_T1}\ns_add_u32 s{S_T0}, s{S_T0}, {L_X2}')
    p.lane(9, [(1, 1, 64), (2, 3, 4), (0, 1, 2)], sadd=S_T0, tmp=2)
    p.lane(7, [(2, 2, 256), (4, 2, 64), (0, 2, 16)], tmp=2)
    p.e(f's_lshl_b32 s{S_T0}, s{S_WV}, 4\ns_add_u32 s{S_T0}, s{S_T0}, {L_FINB}')
    p.lane(10, [(5, 1, 128), (4, 1, 8)], sadd=S_T0, tmp=2)
    p.lane(3, [(5, 1, 128), (0, 4, 8)], const=L_FINB, tmp=2)
    offs = [t * 8192 if CFG['E4KS'] else (t & 1) * 4 * 8192 + (t >> 1) * 2048 for t in range(8)]
    if not l3:
        perm3()
        p.poll_first(offs, S_U + 7, 11, E4R)
        late_addrs()
    for k in range(8):
        p.e(f'v_mov_b32 v{D + k}, 0')
    p.need('MOD')
    p.stamp('mod_landed')
    def packed(chunk, reg):
        txt = '\n'.join(f's_add_u32 s{S_T3}, s{S_U + 6}, {WS_MOD + chunk * 8192 + 4096 * q}\n'
                        f'buffer_load_dwordx2 {vr(reg + 2 * q, 2)}, v112, {sr(SRD_WS, 4)}, s{S_T3} offen sc1' for q in range(2))
        return (txt, list(range(reg, reg + 4)))

    def partial(kq):
        txt = '\n'.join(f's_add_u32 s{S_T3}, s{S_U + 5}, {CB_OFFS[2 * kq + q]}\n'
                        f'buffer_load_dwordx4 {vr(160 + 8 * kq + 4 * q)}, v113, {sr(SRD_WS, 4)}, s{S_T3} offen sc1' for q in range(2))
        return (txt, list(range(160 + 8 * kq, 168 + 8 * kq)))
    hi, jn = p.lab('mhi'), p.lab('mjn')
    p.e(f's_cmp_ge_u32 s{S_WV}, 4\ns_cbranch_scc1 {hi}')
    p.poll_items([packed(2, 100), packed(4, 104), packed(3, 108)], 2)
    p.e(f's_branch {jn}\n{hi}:')
    p.poll_items([packed(2, 100), packed(3, 108)] + [partial(k) for k in range(4)], 2)
    p.e(f'{jn}:')
    if l3 == 2:
        p.release('modok')
        p.burst(8)
    sk = p.lab('cbs')
    p.e(f's_cmp_lt_u32 s{S_WV}, 4\ns_cbranch_scc1 {sk}')
    for k in range(16):
        p.e(f'v_add_f32 v{160 + k}, v{160 + k}, v{176 + k}')
    for k in range(8):
        p.e(f'v_add_f32 v{160 + k}, v{160 + k}, v{168 + k}')
    for d in range(4):
        p.e(f'v_cvt_pk_bf16_f32 v{104 + d}, v{160 + 2 * d}, v{161 + 2 * d}')
    p.e(f'{sk}:')
    p.e('L_mtail:')
    one_plus(p, list(range(104, 108)), [2, 114])
    for k, dst in enumerate((SP, SP + 16, SP + 8, SP + 24)):
        for d in range(4):
            p.unpack(96 + 4 * k + d, dst + 2 * d, dst + 2 * d + 1)
    if l3 == 3:
        p.stamp('mod_ok')
        helper_gate(p, 'M', CFG['MGATE_MISS'], 2, 114)
        p.stamp('gate')
        p.release('gate')
        p.W = CFG['W_GATE']
        for u in range(CFG['XPRE'], 3):
            p.need(f'WM{u}')
            p.stamp(f'wm{u}')
            p.perm_chunk(raw[u], F[u], fs=8)
        while p.can_pump():
            p.pump(1)
    if l3:
        p.poll_first(offs, S_U + 7, 11, E4R)
        late_addrs()
        perm3()
    p.stamp('w_ready')
    k0 = CFG['W2PRE']
    w2_issue(0, k0)
    p.wait('poll')
    keep = list(p.vm)

    def acc4(t, r):
        if CFG['E4KS']:
            for q in range(2):
                p.e(f'v_mfma_f32_16x16x32_bf16 {vr(D + 4 * q)}, {vr(SEL + 4 * q)}, {vr(r)}, {vr(D + 4 * q)}')
        else:
            p.e(f'v_mfma_f32_16x16x32_bf16 {vr(D + 4 * (t >> 2))}, {vr(SEL + 4 * ((t >> 1) & 1))}, {vr(r)}, {vr(D + 4 * (t >> 2))}')
    p.poll_rr(offs, S_U + 7, 11, E4R, 2, acc4, True, CFG['SL4'])
    p.vm = keep
    p.stamp('e4_ok')
    X = list(range(D, D + 8))
    w2_issue(k0, k0 + 4)
    for k in range(0, 8, 2):
        p.e(f'v_pk_fma_f32 {vr(SP + k, 2)}, {vr(X[k], 2)}, {vr(SP + 16 + k, 2)}, {vr(SP + k, 2)}')
    PK = SP + 16
    for d in range(4):
        p.e(f'v_cvt_pk_bf16_f32 v{PK + d}, v{SP + 2 * d}, v{SP + 2 * d + 1}')
    for d in range(4):
        p.unpack(PK + d, X[2 * d], X[2 * d + 1])
    T = SP + 4
    for q in range(2):
        p.e(f'v_pk_mul_f32 {vr(T + 2 * q, 2)}, {vr(X[4 * q], 2)}, {vr(X[4 * q], 2)}')
    for q in range(2):
        p.e(f'v_pk_add_f32 {vr(SP + 2 * q, 2)}, {vr(X[4 * q], 2)}, {vr(X[4 * q + 2], 2)}')
    for q in range(2):
        p.e(f'v_pk_fma_f32 {vr(T + 2 * q, 2)}, {vr(X[4 * q + 2], 2)}, {vr(X[4 * q + 2], 2)}, {vr(T + 2 * q, 2)}')
    for q in range(2):
        p.e(f'v_add_f32 v{SP + 2 * q}, v{SP + 2 * q}, v{SP + 2 * q + 1}')
    for q in range(2):
        p.e(f'v_add_f32 v{SP + 2 * q + 1}, v{T + 2 * q}, v{T + 2 * q + 1}')
    R4 = [SP, SP + 2, SP + 1, SP + 3]
    p.rowsum(R4, (8, 4, 2, 1))
    p.stamp('t1')
    p.exec_set(0x0001000100010001)
    p.e(f'ds_write_b64 v10, {vr(SP, 2)}\nds_write_b64 v10, {vr(SP + 2, 2)} offset:256')
    p.exec_all()
    p.e(f'ds_write_b64 v{VX1}, {vr(PK, 2)}\nds_write_b64 v{VX1}, {vr(PK + 2, 2)} offset:4096')
    for k in range(0, 8, 2):
        p.e(f'v_pk_mul_f32 {vr(X[k], 2)}, {vr(X[k], 2)}, {vr(SP + 8 + k, 2)}')
    p.e(f's_mov_b32 s{S_T0}, 0x3a800000\ns_mov_b32 s{S_T1}, 0x3a800000\ns_waitcnt lgkmcnt(2)\ns_barrier')
    p.e(f'ds_read_b64 {vr(SP, 2)}, v3\nds_read_b64 {vr(SP + 2, 2)}, v3 offset:256')
    w2_issue(k0 + 4, k0 + 8)
    p.e('s_waitcnt lgkmcnt(0)')
    p.stamp('t2')
    p.rowsum(R4, (8, 4, 2, 1))
    for q in range(2):
        p.e(f'v_pk_mul_f32 {vr(SP + 2 * q, 2)}, {vr(SP + 2 * q, 2)}, s[{S_T0}:{S_T1}]')
    for q in range(2):
        p.e(f'v_fma_f32 v{SP + 2 * q + 1}, -v{SP + 2 * q}, v{SP + 2 * q}, v{SP + 2 * q + 1}')
    for q in range(2):
        p.e(f'v_max_f32 v{SP + 2 * q + 1}, 0, v{SP + 2 * q + 1}')
    for q in range(2):
        p.e(f'v_add_f32 v{SP + 2 * q + 1}, 0x3727c5ac, v{SP + 2 * q + 1}')
    for q in range(2):
        p.e(f'v_rsq_f32 v{SP + 2 * q + 1}, v{SP + 2 * q + 1}')
    for k in range(0, 8, 2):
        p.e(f'v_pk_fma_f32 {vr(X[k], 2)}, {vr(SP + 8 + k, 2)}, {vr(SP + 2 * (k >> 2), 2)}, {vr(X[k], 2)} op_sel:[0,0,0] op_sel_hi:[1,0,1] neg_lo:[0,1,0] neg_hi:[0,1,0]')
    for k in range(0, 8, 2):
        p.e(f'v_pk_fma_f32 {vr(SP + 24 + k, 2)}, {vr(X[k], 2)}, {vr(SP + 2 * (k >> 2), 2)}, {vr(SP + 24 + k, 2)} op_sel:[0,1,0] op_sel_hi:[1,1,1]')
    for d in range(4):
        p.e(f'v_cvt_pk_bf16_f32 v{SP + d}, v{SP + 24 + 2 * d}, v{SP + 24 + 2 * d + 1}')
    p.e(f'ds_write2_b32 v13, v{SP}, v{SP + 1} offset0:0 offset1:32\nds_write2_b32 v13, v{SP + 2}, v{SP + 3} offset0:128 offset1:160')
    p.stamp('h2')
    A, ACC, OUT = SP, SP + 16, D
    for pi in range(2):
        p.e(f'ds_read_b128 {vr(A + 8 * pi)}, v{A0} offset:{64 * pi}\nds_read_b128 {vr(A + 8 * pi + 4)}, v{A0 + 1} offset:{64 * pi}')
    for k in range(16):
        p.e(f'v_mov_b32 v{ACC + k}, 0')
    GB, X1 = 232, 236

    def misc():
        p.lane(10, [(2, 2, 2048), (0, 2, 16), (4, 1, 8)], tmp=3)
        p.e(f's_lshl_b32 s{S_U + 6}, s{S_MI}, 6\ns_add_u32 s{S_T2}, s{S_U + 6}, {WS_MOD + 5 * 8192}')
        sp_addrs(p, A0, 128, None, L_X2, 2)
    p.e('s_waitcnt lgkmcnt(2)')
    interleave(p, lines_of(p, lambda: sp_gemv(p, F0, A, ACC, IDX)), lines_of(p, misc), 3)
    w2_issue(k0 + 8, 16)
    p.e('s_waitcnt lgkmcnt(0)')
    p.wait('WM4')
    interleave(p, lines_of(p, lambda: sp_gemv(p, F1, A + 8, ACC, IDX)), lines_of(p, lambda: p.perm_chunk(p.w2raw[0], F0, fs=8)), 4)
    sp_fold(p, ACC, OUT)
    p.e(f'ds_write_b128 v15, {vr(OUT)}\nds_write_b128 v15, {vr(OUT + 4)} offset:16')
    p.stamp('t3')
    for k in range(16):
        p.e(f'v_mov_b32 v{ACC + k}, 0')
    p.e('s_waitcnt lgkmcnt(0)\ns_barrier')
    p.stamp('t5')
    G = 224
    for k in range(4):
        p.e(f'ds_read2st64_b32 {vr(G + 2 * k, 2)}, v8 offset0:{16 * k} offset1:{16 * k + 8}')
    p.wait('WM5')
    p.stamp('wm5')

    def gb_issue():
        p.e(f'buffer_load_dwordx2 {vr(GB, 2)}, v10, {sr(SRD_WS, 4)}, s{S_T2} offen sc1')
    perm5 = lines_of(p, lambda: p.perm_chunk(p.w2raw[1], F0 + 4, fs=8))
    p.L += perm5[:20]
    p.e('s_waitcnt lgkmcnt(0)')
    p.tree(G, (4, 2, 1))
    chain = f"""v_cvt_pk_bf16_f32 v{G}, v{G}, v{G}
    v_and_b32 v{G}, 0xffff0000, v{G}
    v_mov_b32 v{G + 1}, v{G}
    @
    @
    v_permlane32_swap_b32 v{G}, v{G + 1}
    v_mul_f32 v{G + 2}, {hex(LOG2E | 0x80000000)}, v{G}
    v_exp_f32 v{G + 2}, v{G + 2}
    @
    v_add_f32 v{G + 2}, 1.0, v{G + 2}
    v_rcp_f32 v{G + 2}, v{G + 2}
    @
    v_mul_f32 v{G}, v{G}, v{G + 2}
    v_mul_f32 v{G}, v{G}, v{G + 1}
    v_cvt_pk_bf16_f32 v{G}, v{G}, v{G}"""
    rest = perm5[20:]
    for ln in chain.split('\n'):
        p.e(rest.pop(0) if ln.strip() == '@' else ln)
    p.exec_set(0xffffffff)
    p.e(f'ds_write_b16 v9, v{G}')
    p.exec_all()
    p.stamp('t6')
    p.L += rest
    sk = p.lab('gb')
    p.e(f's_cmp_lg_u32 s{S_WV}, 0\ns_cbranch_scc1 {sk}\ns_cmp_ge_u32 s{S_MI}, 32\ns_cbranch_scc1 {sk}')
    gb_issue()
    p.e(f'{sk}:')
    p.e('s_waitcnt lgkmcnt(0)\ns_barrier')
    p.stamp('t7')
    p.e(f'ds_read_b128 {vr(A)}, v{A0}\nds_read_b128 {vr(A + 4)}, v{A0 + 1}\ns_waitcnt lgkmcnt(0)')
    sp_gemv(p, F0, A, ACC, IDX)
    sp_fold(p, ACC, OUT)
    for d in range(4):
        p.e(f'v_cvt_pk_bf16_f32 v{G + d}, v{OUT + 2 * d}, v{OUT + 2 * d + 1}')
    p.e(f'buffer_store_dwordx4 {vr(G)}, v7, {sr(SRD_WS, 4)}, s{S_OUT} offen sc1')
    p.stamp('f_stored')
    end = p.lab('mend')
    multi = CFG['E5W'] > 1
    p.e(f's_cmp_ge_u32 s{S_MI}, 32\ns_cbranch_scc1 {end}')
    if not multi:
        p.e(f's_cmp_lg_u32 s{S_WV}, 0\ns_cbranch_scc1 {end}')
    p.lane(11, [(4, 2, 8192), (0, 4, 16)], tmp=3)
    p.e(f's_lshl_b32 s{S_U + 7}, s{S_MI}, 8\ns_add_u32 s{S_U + 7}, s{S_U + 7}, {WS_FP}')
    for k in range(4):
        p.e(f'v_mov_b32 v{D + k}, 0')

    def consts():
        p.srd(SRD_A, P_OUT, 8192)
        p.e(f'v_add_u32 v2, s{S_U + 6}, v10\nds_read_b64 {vr(X1 + 4, 2)}, v2 offset:{L_X1}\ns_waitcnt vmcnt(1) lgkmcnt(0)')
        p.check_retry(gb_issue, [GB, GB + 1], 3)
        p.unpack(GB + 1, GB + 2, GB + 3)
        p.unpack(GB, 4, GB + 1)
        p.e(f'v_mov_b32 v{GB}, v4')
        p.unpack(X1 + 4, X1, X1 + 1)
        p.unpack(X1 + 5, X1 + 2, X1 + 3)
    acc5 = lambda t, r: p.e(f'v_mfma_f32_16x16x32_bf16 {vr(D)}, {vr(SEL)}, {vr(r)}, {vr(D)}')
    if not multi:
        consts()
        p.stamp('t8')
        p.poll_pipe([t * 4 * 8192 for t in range(14)], S_U + 7, 11, (64, 120), 3, acc5, CFG['P5'])
        p.stamp('e5_ok')
    else:
        w0, jn = p.lab('w0'), p.lab('jn')
        p.e(f's_cmp_eq_u32 s{S_WV}, 0\ns_cbranch_scc1 {w0}')
        p.e(f's_lshl_b32 s{S_T0}, s{S_WV}, 16\ns_add_u32 s{S_U + 7}, s{S_U + 7}, s{S_T0}\ns_sub_u32 s{S_U + 7}, s{S_U + 7}, 65536')
        p.e(f's_lshl_b32 s{S_T0}, s{S_WV}, 10\nv_add_u32 v4, s{S_T0}, v0')
        p.poll_first([0, 4 * 8192], S_U + 7, 11, 64)
        if CFG['E4KS']:
            selectors(p, SEL, 2, 4)
        p.e('s_waitcnt vmcnt(0)')
        p.poll_rr([0, 4 * 8192], S_U + 7, 11, 64, 3, acc5, True)
        p.e(f'ds_write_b128 v4, {vr(D)}\ns_waitcnt lgkmcnt(0)\ns_branch {jn}\n{w0}:')
        consts()
        p.stamp('t8')
        p.e(f'{jn}:\ns_barrier\ns_cmp_lg_u32 s{S_WV}, 0\ns_cbranch_scc1 {end}')
        for k in range(7):
            p.e(f'ds_read_b128 {vr(64 + 4 * k)}, v0 offset:{1024 + 1024 * k}')
        p.stamp('e5_ok')
        p.e('s_waitcnt lgkmcnt(0)')
        for a_, b_ in ((64, 80), (68, 84), (72, 88), (68, 76), (64, 72)):
            for r in (0, 2):
                p.e(f'v_pk_add_f32 {vr(a_ + r, 2)}, {vr(a_ + r, 2)}, {vr(b_ + r, 2)}')
        for r in (0, 2):
            p.e(f'v_pk_add_f32 {vr(D + r, 2)}, {vr(64 + r, 2)}, {vr(68 + r, 2)}')
    for r in (0, 2):
        p.e(f'v_pk_fma_f32 {vr(D + r, 2)}, {vr(D + r, 2)}, {vr(GB + r, 2)}, {vr(X1 + r, 2)}')
    p.e(f'v_cvt_pk_bf16_f32 v{D}, v{D}, v{D + 1}\nv_cvt_pk_bf16_f32 v{D + 1}, v{D + 2}, v{D + 3}')
    p.exec_set(0xffffffff)
    p.e(f'buffer_store_dwordx2 {vr(D, 2)}, v2, {sr(SRD_A, 4)}, 0 offen')
    p.exec_all()
    p.e(f'{end}:')


DOC = """
;
;   Q  [120,184)  64 columns of wq, LN 1      P  [184,200)  64 columns of w_mod (shift/scale of block A)
;   PR [200,216)  as P, later the gate gb     R  [216,256)  64 columns of w_mod (ga, sb, cb) plus a K-quarter of cb
; Hand-offs between workgroups go through d_ws with write-through (sc1) stores and sc1 loads. Each workgroup first
; re-reads a slot until no dword holds that pattern. Chain: w_mod -> q -> scores, split (max, sum) -> scaled
; rescaled to the row maximum gathered from all splits. Loads whose result is unused only move weights towards the
; chip (L2 / last-level cache) for another workgroup. The code is emitted per role by a generator script.
"""


def generate():
    hdr = open('cdna_kernels/' + NAME + '.s.ref').read().split('\n')
    out = [l for l in hdr if l.startswith(';') and '@launch' not in l]
    out.append(f'; @launch grid=(256,1,1) block=(512,1,1) lds={L_TOTAL}')
    out += DOC.strip().split('\n')
    out += ['.amdgcn_target "amdgcn-amd-amdhsa--gfx950"', '.text', f'.globl {NAME}_kernel', '.p2align 8',
            f'.type {NAME}_kernel,@function', f'{NAME}_kernel:']
    e = Prog('E')
    entry(e)
    body = list(e.L)
    names = {}
    for cls in ('O', 'M', 'Q', 'P', 'PR', 'R'):
        p = build_class(cls, e)
        body.append('.p2align 6')
        body += p.L
        names[cls] = p.stamp_names
    body += ['L_end:', 's_endpgm']
    out += pad_hazards(body)
    out += ['.fill 64, 4, 0xbf800000', '.p2align 8', 'L_code_end:']
    out += ['.section .rodata,"a"', '.p2align 6', f'.amdhsa_kernel {NAME}_kernel',
            '  .amdhsa_next_free_vgpr 256', '  .amdhsa_next_free_sgpr 102', '  .amdhsa_accum_offset 256',
            '  .amdhsa_group_segment_fixed_size 0', '  .amdhsa_kernarg_size 112', '  .amdhsa_user_sgpr_count 2',
            '  .amdhsa_user_sgpr_kernarg_segment_ptr 1', '  .amdhsa_system_sgpr_workgroup_id_x 1',
            '  .amdhsa_float_denorm_mode_32 3', '.end_amdhsa_kernel']
    return '\n'.join(out) + '\n', names


if __name__ == '__main__':
    path = sys.argv[1]
    for kv in sys.argv[2:]:
        k, v = kv.split('=')
        CFG[k] = eval(v)
    txt, names = generate()
    open(path, 'w').write(txt)
    import json
    json.dump(names, open(path + '.stamps.json', 'w'))
```

```python
import sys
from collections import deque
from asmlib import pad_hazards

NAME = 'adaLN_cond__gqa_block_cached__glu_gated_swiglu__decode'

CFG = dict(
    W=4,
    W_O=4, W_M=6, W_R=5, W_Q=4, W_P=4, W_PR=4,
    C3O=0, C3Q='O', C3W1='M', C3W3='OP', C3MOD='O', T_LOW_R=1,
    W_PRE=24, W_PREQ=8, W_INIT=5, W_LOW=2, T_LOW=2, T_LOW_M=2,
    W_POST=6, W_POSTP=4, H5W=2, W_END=None,
    SC_AT=3, Q_AT=12, BURST=3, BURST_L=3, E_BURST=6, E_BURST_O=4, P_EARLY=0, MOD_AT=0, P5='rr', E5W=7, STAGE=7, SL3=0, SL4=0, EARLY3=True, W2PRE=4, XCLS='Q+P+PR+R', PRIO='qk', QLIN=True, LATE3=2, E4KS=True, GATE=False, GATE_MISS=0, ENTRY=False, XPRE=1, MGATE_MISS=6, W_GATE=8, H6W=6, O48=False, QSKIP=False, USH=1, OLATE=False, JUMP0=False, GMAP=False, R_AT=4, TOUCH=False, P_HOLD=1, Q_BURST=0, XAT=4, XSLOW=0, XW=2, H5X=True, H6=(3,), ML_AT=4, ML_AT_M=8, C3H=False,
    HP3=True, C3=True, H5=2, REWARM=False,
    STAMPS=False, DBGOUT=False,
    SPIN=1 << 18,
)

WS_MOD = 0x00000
WS_CBP = 0x18000
WS_Q = 0x10000
WS_ML = 0x20000
WS_AP = 0x30000
WS_OP = 0x40000
WS_FP = 0xC0000
WS_STAMP = 0x200000
WS_BYTES = 268435456

L_KT = 0
L_OPART = 0
L_XA = 40960
L_ZERO = 49152
L_MLW = 49664
L_CNT = 50176
L_STATS = 50432
L_X2 = 50688
L_FINB = 51200
L_X1 = 52224
L_RED = 60416
L_RED2 = 83968
L_STASH = 83968
L_TOTAL = 149504

CLASS_RANGES = dict(O=(0, 64), M=(64, 120), Q=(120, 184), P=(184, 200), PR=(200, 216), R=(216, 256))


def vr(a, n=4):
    return f'v[{a}:{a + n - 1}]' if n > 1 else f'v{a}'


def sr(a, n=2):
    return f's[{a}:{a + n - 1}]' if n > 1 else f's{a}'


S_WV, S_W8, S_ROT, S_KV = 3, 4, 6, 7
SRD_K, SRD_V, SRD_WS, SRD_W, SRD_A, SRD_D = 8, 12, 16, 20, 24, 28
P_X, P_K, P_V, P_WQ, P_WO, P_W1, P_W3, P_W2, P_C, P_WMOD, P_OUT, P_DBG, P_WS = 32, 34, 36, 38, 40, 44, 46, 48, 50, 52, 54, 56, 58
S_T0, S_T1, S_T2, S_T3 = 60, 61, 62, 63
S_PLO, S_PHI = 64, 65
S_MASK = 66
S_SAVE = 68
S_SPIN = 70
S_VALID = 71
S_U = 72
S_STG = 42
S_C64 = 80
S_C64B = 82
S_STAMP = 84


class Prog:
    def __init__(self, name):
        self.name = name
        self.L = []
        self.vm = []
        self.stream = deque()
        self.released = set()
        self.W = CFG['W']
        self.nlab = 0
        self.slow = 0
        self.nstamp = 0
        self.stamp_names = []

    def e(self, s):
        for line in s.split('\n'):
            line = line.strip()
            if line:
                self.L.append(line)

    def lab(self, base):
        self.nlab += 1
        return f'L_{self.name}_{base}{self.nlab}'

    def vmem(self, s, tag):
        self.e(s)
        self.vm.append(tag)
        assert len(self.vm) <= 56, 'too many outstanding'

    def waitn(self, n):
        if len(self.vm) > n:
            self.e(f's_waitcnt vmcnt({n})')
            self.vm = self.vm[len(self.vm) - n:] if n else []

    def wait(self, tag):
        if tag in self.vm:
            idx = len(self.vm) - 1 - self.vm[::-1].index(tag)
            self.waitn(len(self.vm) - 1 - idx)

    def push(self, tag, fn, need=None):
        self.stream.append((tag, fn, need))

    def can_pump(self):
        return self.stream and (self.stream[0][2] is None or self.stream[0][2] in self.released)

    def pump(self, k=1):
        for _ in range(k):
            if not self.can_pump():
                return
            tag, fn, _n = self.stream.popleft()
            self.waitn(self.W - 1)
            if self.slow > 0:
                self.slow -= 1
                self.waitn(CFG['XW'] - 1)
            fn(tag)

    def fill(self):
        while self.can_pump() and len(self.vm) < self.W:
            self.pump(1)

    def burst(self, k):
        self.W += k
        self.fill()
        self.W -= k

    def need(self, tag):
        while any(t[0] == tag for t in self.stream):
            assert self.can_pump(), f'{self.name}: stream blocked before {tag} at {self.stream[0][0]}'
            self.pump(1)
        while tag in self.vm:
            if self.can_pump() and self.vm[::-1].index(tag) <= self.W - 1:
                self.pump(1)
            else:
                self.wait(tag)

    def release(self, x):
        self.released.add(x)

    def stamp(self, name):
        if CFG['STAMPS'] == 'lite' and name not in ('start', 'pre_done', 'q_ok', 'k_done', 'o_stored', 'post_done', 'q_done', 'e3_ok', 'a_stored', 'w_ready', 'e4_ok', 'f_stored', 'end'):
            return
        if CFG['STAMPS'] == 't' and name not in ('start', 'e3_ok', 'o1', 'o2', 'o3', 'a_stored', 'e4_ok', 't1', 't2', 'h2', 't3', 't4', 't5', 't6', 'wm5', 't7', 'f_stored', 't8', 'e5_ok', 'end'):
            return
        if CFG['STAMPS'] != 't' and name[0] in 'to' and name[1:].isdigit():
            return
        if CFG['STAMPS'] == 'e' and name not in ('start', 'first', 'arrived', 'k0', 'w_landed', 'pre_done', 'end'):
            return
        if CFG['STAMPS'] != 'e' and name in ('first', 'k0'):
            return
        if CFG['STAMPS'] == 'm' and name not in ('start', 'q_ok', 'softmax', 'v2', 'pv_done', 'o_stored', 'wm0', 'wm1', 'wm2', 'wm4', 'wm3', 'wm5', 'mod_landed', 'gate', 'e4_ok', 'end'):
            return
        if CFG['STAMPS'] is True and name in ('mod_ok', 'gate', 'arrived', 'v2', 'wm0', 'wm1', 'wm2', 'wm4', 'wm3', 'wm5'):
            return
        if CFG['STAMPS']:
            k = S_STAMP + self.nstamp
            assert k < 100
            self.e(f's_memrealtime s[100:101]\ns_waitcnt lgkmcnt(0)\ns_mov_b32 s{k}, s100')
            self.nstamp += 1
            self.stamp_names.append(name)

    def srd(self, d, p, nbytes):
        self.e(f's_mov_b32 s{d}, s{p}\ns_mov_b32 s{d + 1}, s{p + 1}\ns_mov_b32 s{d + 2}, {hex(nbytes)}\ns_mov_b32 s{d + 3}, 0x20000')

    def lane(self, dst, terms, const=0, sadd=None, tmp=None):
        first = True
        for sh, bits, mul in terms:
            t = dst if first else tmp
            assert t is not None
            if sh == 0 and bits >= 6:
                src = 'v1'
            elif sh == 0:
                self.e(f'v_and_b32 v{t}, {(1 << bits) - 1}, v1')
                src = f'v{t}'
            elif sh + bits >= 6:
                self.e(f'v_lshrrev_b32 v{t}, {sh}, v1')
                src = f'v{t}'
            else:
                self.e(f'v_bfe_u32 v{t}, v1, {sh}, {bits}')
                src = f'v{t}'
            if first:
                if mul & (mul - 1) == 0:
                    self.e(f'v_lshlrev_b32 v{dst}, {mul.bit_length() - 1}, {src}')
                else:
                    self.e(f'v_mul_u32_u24 v{dst}, {mul}, {src}')
            else:
                if mul & (mul - 1) == 0:
                    self.e(f'v_lshl_add_u32 v{dst}, {src}, {mul.bit_length() - 1}, v{dst}')
                else:
                    self.e(f'v_mul_u32_u24 v{t}, {mul}, {src}\nv_add_u32 v{dst}, v{t}, v{dst}')
            first = False
        if const:
            self.e(f'v_add_u32 v{dst}, {const}, v{dst}')
        if sadd is not None:
            self.e(f'v_add_u32 v{dst}, s{sadd}, v{dst}')

    def exec_set(self, mask):
        lo, hi = mask & 0xffffffff, mask >> 32
        self.e(f's_mov_b32 exec_lo, {hex(lo)}\ns_mov_b32 exec_hi, {hex(hi)}')

    def exec_all(self):
        self.e('s_mov_b64 exec, -1')

    def maxu(self, dst, regs):
        regs = list(regs)
        if len(regs) % 2 == 0:
            self.e(f'v_max_u32 v{dst}, v{regs[0]}, v{regs[1]}')
            regs = regs[2:]
        else:
            self.e(f'v_max3_u32 v{dst}, v{regs[0]}, v{regs[1]}, v{regs[2]}')
            regs = regs[3:]
        while regs:
            self.e(f'v_max3_u32 v{dst}, v{dst}, v{regs[0]}, v{regs[1]}')
            regs = regs[2:]

    def check_retry(self, issue, regs, tmp):
        ok, lp = self.lab('ok'), self.lab('retry')
        if len(regs) > 1:
            self.maxu(tmp, regs)
        else:
            tmp = regs[0]
        self.e(f'v_cmp_eq_u32 vcc, -1, v{tmp}\ns_cbranch_vccz {ok}\ns_mov_b32 s{S_SPIN}, 0\n{lp}:')
        issue()
        self.e('s_waitcnt vmcnt(0)')
        if len(regs) > 1:
            self.maxu(tmp, regs)
        self.e(f's_add_u32 s{S_SPIN}, s{S_SPIN}, 1\ns_cmp_ge_u32 s{S_SPIN}, {CFG["SPIN"]}\ns_cbranch_scc1 {ok}')
        self.e(f'v_cmp_eq_u32 vcc, -1, v{tmp}\ns_cbranch_vccnz {lp}\n{ok}:')

    def poll_masked(self, issuers, regs, tmp):
        n = len(issuers)
        lp, done = self.lab('poll'), self.lab('polldone')
        self.waitn(0)
        self.e(f's_mov_b32 s{S_VALID}, 0\ns_mov_b32 s{S_SPIN}, 0\n{lp}:')
        for t in range(n):
            sk = self.lab('pi')
            self.e(f's_bitcmp1_b32 s{S_VALID}, {t}\ns_cbranch_scc1 {sk}')
            issuers[t]()
            self.e(f'{sk}:')
        self.e('s_waitcnt vmcnt(0)')
        for t in range(n):
            sk = self.lab('pc')
            self.e(f's_bitcmp1_b32 s{S_VALID}, {t}\ns_cbranch_scc1 {sk}')
            self.maxu(tmp, regs[t])
            self.e(f'v_cmp_eq_u32 vcc, -1, v{tmp}\ns_cbranch_vccnz {sk}\ns_bitset1_b32 s{S_VALID}, {t}\n{sk}:')
        self.e(f's_add_u32 s{S_SPIN}, s{S_SPIN}, 1\ns_cmp_ge_u32 s{S_SPIN}, {CFG["SPIN"]}\ns_cbranch_scc1 {done}')
        self.e(f's_cmp_lg_u32 s{S_VALID}, {hex((1 << n) - 1)}\ns_cbranch_scc1 {lp}\n{done}:')

    def poll_pipe(self, offs, s_base, vo, sets, tmp, accum, mode='pipe'):
        n = len(offs)
        done = self.lab('ppdone')
        if mode == 'rr':
            return self.poll_rr(offs, s_base, vo, sets[0], tmp, accum)

        def issue(base):
            for t in range(n):
                self.e(f's_bitcmp1_b32 s{S_VALID}, {t}\ns_cselect_b64 exec, 0, -1\ns_add_u32 s{S_T3}, s{s_base}, {offs[t]}')
                self.e(f'buffer_load_dwordx4 {vr(base + 4 * t)}, v{vo}, {sr(SRD_WS, 4)}, s{S_T3} offen sc1')
            self.exec_all()

        def check(base):
            self.e(f's_waitcnt vmcnt({n})')
            for t in range(n):
                sk = self.lab('pc')
                self.e(f's_bitcmp1_b32 s{S_VALID}, {t}\ns_cbranch_scc1 {sk}')
                self.maxu(tmp, range(base + 4 * t, base + 4 * t + 4))
                self.e(f'v_cmp_ne_u32 vcc, -1, v{tmp}\ns_or_b64 vcc, vcc, {sr(S_SAVE)}\ns_cmp_eq_u64 vcc, -1\ns_cbranch_scc0 {sk}')
                accum(t, base + 4 * t)
                self.e(f's_bitset1_b32 s{S_VALID}, {t}\n{sk}:')
            self.e(f's_cmp_eq_u32 s{S_VALID}, {hex((1 << n) - 1)}\ns_cbranch_scc1 {done}')
        lp = self.lab('pp')
        self.e(f's_mov_b32 s{S_VALID}, 0\ns_mov_b32 s{S_SPIN}, 0\ns_mov_b64 {sr(S_SAVE)}, 0')
        issue(sets[0])
        self.e(f'{lp}:')
        issue(sets[1])
        check(sets[0])
        issue(sets[0])
        check(sets[1])
        self.e(f's_add_u32 s{S_SPIN}, s{S_SPIN}, 1\ns_cmp_ge_u32 s{S_SPIN}, {CFG["SPIN"]}\ns_cselect_b64 {sr(S_SAVE)}, -1, 0\ns_branch {lp}\n{done}:')
        self.vm = ['stale'] * n

    def poll_items(self, items, tmp):
        n = len(items)
        lp, chk = self.lab('pg'), self.lab('pgchk')
        self.e(f's_mov_b32 s{S_VALID}, 0\ns_mov_b32 s{S_SPIN}, 0\ns_mov_b64 {sr(S_SAVE)}, 0\ns_branch {chk}\n{lp}:')
        for t, (txt, regs) in enumerate(items):
            sk = self.lab('pi')
            self.e(f's_bitcmp1_b32 s{S_VALID}, {t}\ns_cbranch_scc1 {sk}\n{txt}\n{sk}:')
        self.e(f's_add_u32 s{S_SPIN}, s{S_SPIN}, 1\ns_cmp_ge_u32 s{S_SPIN}, {CFG["SPIN"]}\ns_cselect_b64 {sr(S_SAVE)}, -1, 0\ns_waitcnt vmcnt(0)\n{chk}:')
        for t, (txt, regs) in enumerate(items):
            sk = self.lab('pc')
            self.e(f's_bitcmp1_b32 s{S_VALID}, {t}\ns_cbranch_scc1 {sk}')
            self.maxu(tmp, regs)
            self.e(f'v_cmp_ne_u32 vcc, -1, v{tmp}\ns_or_b64 vcc, vcc, {sr(S_SAVE)}\ns_cmp_eq_u64 vcc, -1\ns_cbranch_scc0 {sk}')
            self.e(f's_bitset1_b32 s{S_VALID}, {t}\n{sk}:')
        self.e(f's_cmp_lg_u32 s{S_VALID}, {hex((1 << n) - 1)}\ns_cbranch_scc1 {lp}')

    def poll_first(self, offs, s_base, vo, base):
        for t, off in enumerate(offs):
            self.e(f's_add_u32 s{S_T3}, s{s_base}, {off}')
            self.vmem(f'buffer_load_dwordx4 {vr(base + 4 * t)}, v{vo}, {sr(SRD_WS, 4)}, s{S_T3} offen sc1', 'poll')

    def poll_rr(self, offs, s_base, vo, base, tmp, accum, landed=False, sleep=0):
        n = len(offs)
        lp, done = self.lab('pr'), self.lab('prdone')
        chk = self.lab('prchk')
        self.e(f's_mov_b32 s{S_VALID}, 0\ns_mov_b32 s{S_SPIN}, 0\ns_mov_b64 {sr(S_SAVE)}, 0')
        if landed:
            self.e(f's_branch {chk}')
        self.e(f'{lp}:')
        if sleep:
            self.e(f's_sleep {sleep}')
        for t in range(n):
            sk = self.lab('pi')
            self.e(f's_bitcmp1_b32 s{S_VALID}, {t}\ns_cbranch_scc1 {sk}\ns_add_u32 s{S_T3}, s{s_base}, {offs[t]}')
            self.e(f'buffer_load_dwordx4 {vr(base + 4 * t)}, v{vo}, {sr(SRD_WS, 4)}, s{S_T3} offen sc1\n{sk}:')
        self.e(f's_add_u32 s{S_SPIN}, s{S_SPIN}, 1\ns_cmp_ge_u32 s{S_SPIN}, {CFG["SPIN"]}\ns_cselect_b64 {sr(S_SAVE)}, -1, 0\ns_waitcnt vmcnt(0)\n{chk}:')
        for t in range(n):
            sk = self.lab('pc')
            self.e(f's_bitcmp1_b32 s{S_VALID}, {t}\ns_cbranch_scc1 {sk}')
            self.maxu(tmp, range(base + 4 * t, base + 4 * t + 4))
            self.e(f'v_cmp_ne_u32 vcc, -1, v{tmp}\ns_or_b64 vcc, vcc, {sr(S_SAVE)}\ns_cmp_eq_u64 vcc, -1\ns_cbranch_scc0 {sk}')
            accum(t, base + 4 * t)
            self.e(f's_bitset1_b32 s{S_VALID}, {t}\n{sk}:')
        self.e(f's_cmp_lg_u32 s{S_VALID}, {hex((1 << n) - 1)}\ns_cbranch_scc1 {lp}\n{done}:')
        self.vm = []

    def perm_chunk(self, raw, dst, pump_every=0, fs=4):
        k = 0
        for c in range(4):
            for hi in range(2):
                for jj in range(4):
                    a, b = raw + 4 * (2 * jj) + c, raw + 4 * (2 * jj + 1) + c
                    sel = S_PHI if hi else S_PLO
                    self.e(f'v_perm_b32 v{dst + fs * (2 * c + hi) + jj}, v{b}, v{a}, s{sel}')
                    k += 1
                    if pump_every and k % pump_every == 0:
                        self.fill()

    def unpack(self, src, d0, d1):
        self.e(f'v_lshlrev_b32 v{d0}, 16, v{src}\nv_and_b32 v{d1}, 0xffff0000, v{src}')

    def rnd2(self, a, b, t):
        self.e(f'v_cvt_pk_bf16_f32 v{t}, v{a}, v{b}')
        self.unpack(t, a, b)

    def tree(self, B, widths):
        for w in widths:
            if w >= 2:
                for k in range(0, w, 2):
                    self.e(f'v_pk_add_f32 {vr(B + k, 2)}, {vr(B + k, 2)}, {vr(B + k + w, 2)}')
            else:
                self.e(f'v_add_f32 v{B}, v{B}, v{B + 1}')

    def rowsum(self, regs, steps):
        for st in steps:
            for r in regs:
                self.e(f'v_add_f32_dpp v{r}, v{r}, v{r} row_ror:{st} row_mask:0xf bank_mask:0xf')

    def swapred(self, op, which, regs, tmps):
        for r, t in zip(regs, tmps):
            self.e(f'v_mov_b32 v{t}, v{r}')
        for r, t in zip(regs, tmps):
            self.e(f'v_permlane{which}_swap_b32 v{r}, v{t}')
        for r, t in zip(regs, tmps):
            self.e(f'{op} v{r}, v{r}, v{t}')


LOG2E = 0x3fb8aa3b
AL_TERMS = [(5, 1, 2048), (0, 4, 16), (4, 1, 8)]
XA_TERMS = [(5, 1, 256), (0, 4, 16), (4, 1, 8)]


def layernorm(p, X, T, fix):
    s0, s1, t0, t1, m0, m1, ad = T[0], T[1], T[2], T[3], T[4], T[5], T[6]
    for q, s in ((0, s0), (1, s1)):
        x = X[4 * q:4 * q + 4]
        p.e(f'v_add_f32 v{s}, v{x[0]}, v{x[1]}\nv_add_f32 v{T[2 + q]}, v{x[2]}, v{x[3]}')
    p.e(f'v_add_f32 v{s0}, v{s0}, v{t0}\nv_add_f32 v{s1}, v{s1}, v{t1}')
    p.rowsum([s0, s1], (8, 4, 2, 1))
    p.swapred('v_add_f32', 16, [s0, s1], [t0, t1])
    A, B = T[8], T[10]
    assert A % 2 == 0 and B % 2 == 0 and T[9] == A + 1 and T[11] == B + 1
    p.e(f'v_mul_f32 v{A}, 0x3c000000, v{s0}\nv_mul_f32 v{B}, 0x3c000000, v{s1}')
    for q, mean in ((0, A), (1, B)):
        x = X[4 * q:4 * q + 4]
        p.e(f'v_sub_f32 v{t0}, v{x[0]}, v{mean}\nv_sub_f32 v{t1}, v{x[1]}, v{mean}')
        p.e(f'v_mul_f32 v{mean + 1}, v{t0}, v{t0}\nv_fmac_f32 v{mean + 1}, v{t1}, v{t1}')
        p.e(f'v_sub_f32 v{t0}, v{x[2]}, v{mean}\nv_sub_f32 v{t1}, v{x[3]}, v{mean}')
        p.e(f'v_fmac_f32 v{mean + 1}, v{t0}, v{t0}\nv_fmac_f32 v{mean + 1}, v{t1}, v{t1}')
    p.rowsum([A + 1, B + 1], (8, 4, 2, 1))
    p.swapred('v_add_f32', 16, [A + 1, B + 1], [t0, t1])
    p.e(f's_lshl_b32 s{S_T0}, s{S_WV}, 5\ns_add_u32 s{S_T0}, s{S_T0}, {L_STATS}')
    p.lane(ad, [(5, 1, 8)], sadd=S_T0)
    p.exec_set(0x0000000100000001)
    p.e(f'ds_write_b64 v{ad}, {vr(A, 2)}\nds_write_b64 v{ad}, {vr(B, 2)} offset:16')
    p.exec_all()
    p.lane(ad, [(0, 3, 32), (5, 1, 8)], const=L_STATS, tmp=t0)
    p.e('s_waitcnt lgkmcnt(0)\ns_barrier')
    p.e(f'ds_read_b64 {vr(A, 2)}, v{ad}\nds_read_b64 {vr(B, 2)}, v{ad} offset:16\ns_waitcnt lgkmcnt(0)')
    p.e(f'v_mov_b32 v{m0}, v{A}\nv_mov_b32 v{m1}, v{B}')
    p.rowsum([m0, m1], (4, 2, 1))
    p.e(f'v_mul_f32 v{m0}, 0x3e000000, v{m0}\nv_mul_f32 v{m1}, 0x3e000000, v{m1}')
    p.e(f'v_sub_f32 v{t0}, v{A}, v{m0}\nv_sub_f32 v{t1}, v{B}, v{m1}')
    p.e(f'v_mul_f32 v{s0}, 0x43000000, v{t0}\nv_mul_f32 v{s1}, 0x43000000, v{t1}')
    p.e(f'v_fmac_f32 v{A + 1}, v{s0}, v{t0}\nv_fmac_f32 v{B + 1}, v{s1}, v{t1}')
    p.rowsum([A + 1, B + 1], (4, 2, 1))
    p.rnd2(m0, m1, t0)
    p.e(f'v_mul_f32 v{s0}, 0x3a800000, v{A + 1}\nv_mul_f32 v{s1}, 0x3a800000, v{B + 1}')
    p.rnd2(s0, s1, t0)
    p.e(f'v_add_f32 v{s0}, 0x3727c5ac, v{s0}\nv_add_f32 v{s1}, 0x3727c5ac, v{s1}')
    p.rnd2(s0, s1, t0)
    p.e(f'v_sqrt_f32 v{s0}, v{s0}\nv_sqrt_f32 v{s1}, v{s1}')
    p.rnd2(s0, s1, t0)
    p.e(f'v_rcp_f32 v{A}, v{s0}\nv_rcp_f32 v{B}, v{s1}')
    for q, m, sd, ri in ((0, m0, s0, A), (1, m1, s1, B)):
        x = X[4 * q:4 * q + 4]
        for r in range(4):
            p.e(f'v_sub_f32 v{x[r]}, v{x[r]}, v{m}')
        p.rnd2(x[0], x[1], t0)
        p.rnd2(x[2], x[3], t1)
        for r in range(4):
            if fix:
                p.e(f'v_mul_f32 v{t0}, v{x[r]}, v{ri}\nv_fma_f32 v{x[r]}, -v{t0}, v{sd}, v{x[r]}\nv_fma_f32 v{x[r]}, v{x[r]}, v{ri}, v{t0}')
            else:
                p.e(f'v_mul_f32 v{x[r]}, v{x[r]}, v{ri}')
        p.rnd2(x[0], x[1], t0)
        p.rnd2(x[2], x[3], t1)


def modulate(p, X, C1, SH, T, out):
    a, b = T[0], T[1]
    for d in range(4):
        x0, x1 = X[2 * d], X[2 * d + 1]
        p.unpack(C1[d], a, b)
        p.e(f'v_mul_f32 v{x0}, v{x0}, v{a}\nv_mul_f32 v{x1}, v{x1}, v{b}')
        p.rnd2(x0, x1, a)
        p.unpack(SH[d], a, b)
        p.e(f'v_add_f32 v{x0}, v{x0}, v{a}\nv_add_f32 v{x1}, v{x1}, v{b}')
        p.e(f'v_cvt_pk_bf16_f32 v{out[d]}, v{x0}, v{x1}')


def one_plus(p, C, T):
    a, b = T[0], T[1]
    for c in C:
        p.unpack(c, a, b)
        p.e(f'v_add_f32 v{a}, 1.0, v{a}\nv_add_f32 v{b}, 1.0, v{b}\nv_cvt_pk_bf16_f32 v{c}, v{a}, v{b}')


def xa_base(p, s):
    p.e(f's_lshl_b32 s{s}, s{S_WV}, 10\ns_add_u32 s{s}, s{s}, {L_XA}')


def push_narrow_weights(p, tag0, pitch, raw0, raw1, vo, s_base, need=None):
    for u, raw in ((0, raw0), (1, raw1)):
        for jj in range(8):
            def fn(tag, u=u, raw=raw, jj=jj):
                p.e(f's_add_u32 s{S_T3}, s{s_base}, {(64 * u + jj) * pitch}')
                p.vmem(f'buffer_load_dwordx4 {vr(raw + 4 * jj)}, v{vo}, {sr(SRD_W, 4)}, s{S_T3} offen nt', tag)
            p.push(f'{tag0}{u}', fn, need[u] if need else None)


def narrow_setup(p, pitch, vo, s_base, s_col, tmp, rows=128):
    p.lane(vo, [(3, 3, 8 * pitch), (0, 3, 16)], tmp=tmp)
    p.e(f's_mul_i32 s{s_base}, s{S_WV}, {rows * pitch}\ns_add_u32 s{s_base}, s{s_base}, s{s_col}')


def narrow_gemv(p, F0, F1, B, ACC, T, s_out, f32=False, before_barrier=None, upper=None):
    a0, a1, t0 = T[0], T[1], T[2]
    xa_base(p, S_T0)
    p.lane(a0, [(0, 2, 256), (4, 2, 32), (3, 1, 16)], sadd=S_T0, tmp=t0)
    p.e(f's_mov_b32 s{S_MASK}, 0x0f0f0f0f\ns_mov_b32 s{S_MASK + 1}, 0x0f0f0f0f\nv_mov_b32 v{t0}, {L_ZERO}')
    p.e(f'v_cndmask_b32 v{a1}, v{a0}, v{t0}, {sr(S_MASK)}\nv_cndmask_b32 v{a0}, v{t0}, v{a0}, {sr(S_MASK)}')
    FF = [F0] if F1 is None else [F0, F1]
    for u in range(len(FF)):
        p.e(f'ds_read_b128 {vr(B + 8 * u)}, v{a0} offset:{128 * u}\nds_read_b128 {vr(B + 8 * u + 4)}, v{a1} offset:{128 * u}')
    p.e(f's_lshl_b32 s{S_T0}, s{S_WV}, 11\ns_add_u32 s{S_T0}, s{S_T0}, {L_RED}')
    p.lane(a0, [(5, 1, 1024), (0, 2, 256), (2, 1, 128), (4, 1, 16)], sadd=S_T0, tmp=t0)
    p.e('s_waitcnt lgkmcnt(0)')
    for u, F in enumerate(FF):
        for e in range(8):
            acc = vr(ACC + 4 * (e & 3))
            c = '0' if (u == 0 and e < 4) else acc
            p.e(f'v_mfma_f32_16x16x32_bf16 {acc}, {vr(F + 4 * e)}, {vr(B + 8 * u + 4 * (e >> 2))}, {c}')
        p.fill()
    p.exec_set(0xff00ff0000ff00ff)
    for a in range(4):
        p.e(f'ds_write_b128 v{a0}, {vr(ACC + 4 * a)} offset:{32 * a}')
    p.exec_all()
    p.e(f's_lshl_b32 s{S_T0}, s{S_WV}, 8\ns_add_u32 s{S_T0}, s{S_T0}, {L_RED}')
    p.lane(a1, [(2, 1, 128), (0, 2, 32), (5, 1, 16), (3, 2, 4)], sadd=S_T0, tmp=t0)
    p.fill()
    if before_barrier:
        before_barrier()
    p.e('s_waitcnt lgkmcnt(0)\ns_barrier')
    sk = p.lab('fin')
    p.e(f's_cmp_ge_u32 s{S_WV}, 4\ns_cbranch_scc1 {sk}')
    for k in range(8):
        p.e(f'ds_read2st64_b32 {vr(B + 2 * k, 2)}, v{a1} offset0:{8 * k} offset1:{8 * k + 4}')
    so, stride = s_out
    p.e(f's_mul_i32 s{S_T0}, s{S_WV}, {stride}\ns_add_u32 s{S_T0}, s{S_T0}, s{so}\nv_lshlrev_b32 v{a0}, {2 if f32 else 1}, v1\ns_waitcnt lgkmcnt(0)')
    for w in (8, 4, 2, 1):
        for k in range(w):
            p.e(f'v_add_f32 v{B + k}, v{B + k}, v{B + k + w}')
    if f32:
        for k in (1, 2, 3):
            p.e(f'v_mov_b32_dpp v{B + k}, v{B} quad_perm:[{k},{k},{k},{k}] row_mask:0xf bank_mask:0xf')
        p.exec_set(0x1111111111111111)
        ACC = B
    else:
        p.e(f'v_mov_b32_dpp v{B + 1}, v{B} quad_perm:[1,1,3,3] row_mask:0xf bank_mask:0xf')
        p.e(f'v_cvt_pk_bf16_f32 v{ACC}, v{B}, v{B + 1}')
        for k in (1, 2, 3):
            p.e(f'v_mov_b32_dpp v{ACC + k}, v{ACC} row_shl:{2 * k} row_mask:0xf bank_mask:0xf')
        p.exec_set(0x0101010101010101)
    p.e(f'buffer_store_dwordx4 {vr(ACC)}, v{a0}, {sr(SRD_WS, 4)}, s{S_T0} offen sc1')
    p.exec_all()
    if upper:
        end = p.lab('fend')
        p.e(f's_branch {end}\n{sk}:')
        upper()
        sk = end
    p.e(f'{sk}:')


def push_al_loads(p, tag, srd, dst, vo, s_base, flags=''):
    def issue(model=True):
        for q in range(2):
            p.e(f's_add_u32 s{S_T3}, s{s_base}, {4096 * q}')
            s = f'buffer_load_dwordx2 {vr(dst + 2 * q, 2)}, v{vo}, {sr(srd, 4)}, s{S_T3} offen {flags}'
            p.vmem(s, tag) if model else p.e(s)
    if tag is not None:
        p.push(tag, lambda t: issue())
    return issue


def silu_to_xa(p, C, T, wa):
    a, b, ea, eb = T[0], T[1], T[2], T[3]
    xa_base(p, S_T0)
    p.lane(wa, XA_TERMS, sadd=S_T0, tmp=a)
    for d in range(4):
        p.unpack(C + d, a, b)
        p.e(f'v_mul_f32 v{ea}, {hex(LOG2E | 0x80000000)}, v{a}\nv_mul_f32 v{eb}, {hex(LOG2E | 0x80000000)}, v{b}')
        p.e(f'v_exp_f32 v{ea}, v{ea}\nv_exp_f32 v{eb}, v{eb}')
        p.e(f'v_add_f32 v{ea}, 1.0, v{ea}\nv_add_f32 v{eb}, 1.0, v{eb}')
        p.e(f'v_rcp_f32 v{T[4]}, v{ea}\nv_rcp_f32 v{T[5]}, v{eb}')
        p.e(f'v_mul_f32 v{T[6]}, v{a}, v{T[4]}\nv_mul_f32 v{T[7]}, v{b}, v{T[5]}')
        p.e(f'v_cvt_pk_bf16_f32 v{C + d}, v{T[6]}, v{T[7]}')
    p.e(f'ds_write_b64 v{wa}, {vr(C, 2)}\nds_write_b64 v{wa}, {vr(C + 2, 2)} offset:512')


R_Q, R_S, R_V01, R_K = 16, 32, 64, 128
R_P0, R_P1, R_ACC = 16, 32, 48
VCH = [64, 96, 128, 160]


def amap():
    if not CFG['GMAP']:
        return '''s_cmp_ge_u32 s2, 120
    s_cselect_b32 s5, 40, 0
    s_cmp_ge_u32 s2, 216
    s_cselect_b32 s5, 0xffffffa0, s5
    s_add_u32 s5, s5, s2'''
    return '''s_cmp_ge_u32 s2, 120
    s_cselect_b32 s5, 120, 0
    s_cselect_b32 s63, 32, 0
    s_cmp_ge_u32 s2, 184
    s_cselect_b32 s5, 64, s5
    s_cselect_b32 s63, 0, s63
    s_cmp_ge_u32 s2, 192
    s_cselect_b32 s5, 128, s5
    s_cselect_b32 s63, 32, s63
    s_sub_u32 s5, s2, s5
    s_and_b32 s62, s5, 0x60
    s_add_u32 s5, s5, s62
    s_or_b32 s5, s5, s63'''


def ids(p):
    p.e(f'''v_lshrrev_b32 v2, 6, v0
    v_and_b32 v1, 63, v0
    s_lshr_b32 s{S_W8}, s2, 3
    v_readfirstlane_b32 s{S_WV}, v2
    v_lshlrev_b32 v0, 4, v1''')


def code_prefetch(p):
    pc = p.lab('pc')
    p.e(f'''s_getpc_b64 s[60:61]
    {pc}:
    s_lshl_b32 s62, s{S_W8}, 3
    s_add_u32 s62, s62, s{S_WV}
    s_lshl_b32 s62, s62, 10
    s_min_u32 s62, s62, L_code_end-{NAME}_kernel-1024
    s_sub_u32 s60, s60, {pc}-{NAME}_kernel
    s_subb_u32 s61, s61, 0
    s_add_u32 s60, s60, s62
    s_addc_u32 s61, s61, 0''')
    p.vmem('global_load_dwordx4 v[252:255], v0, s[60:61]', 'code')


def kv_base(p):
    p.e(f'''s_add_u32 s{S_ROT}, s{S_W8}, s{S_WV}
    s_and_b32 s{S_ROT}, s{S_ROT}, 7
    s_lshl_b32 s{S_ROT}, s{S_ROT}, 12
    {amap()}
    s_lshl_b32 s{S_KV}, s5, 18
    s_add_u32 s{S_KV}, s{S_KV}, s{S_ROT}
    s_mov_b32 s{SRD_K + 2}, 0x4000000
    s_mov_b32 s{SRD_K + 3}, 0x20000''')


def entry(p):
    if CFG['STAMPS'] == 'e' or CFG['ENTRY']:
        p.e('s_memrealtime s[98:99]')
    p.e(f'''
    s_cmp_ge_u32 s2, 256
    s_cbranch_scc1 L_end
    s_load_dwordx16 s[32:47], s[0:1], 0
    s_load_dwordx8 s[48:55], s[0:1], 64
    s_load_dwordx4 s[56:59], s[0:1], 96''')
    disp = '''s_sub_u32 s62, s2, 120
    s_cmp_lt_u32 s62, 64
    s_cbranch_scc1 L_class_Q
    s_cmp_lt_u32 s62, 80
    s_cbranch_scc1 L_class_P
    s_cmp_lt_u32 s62, 96
    s_cbranch_scc1 L_class_PR'''
    if CFG['JUMP0']:
        p.e(disp)
        p.vm_pre = []
    ids(p)
    code_prefetch(p)
    kv_base(p)
    if not CFG['JUMP0']:
        p.e(disp)
        p.vm_pre = list(p.vm)
    got_args(p)
    for j in range(4):
        p.vmem(f'buffer_load_dwordx4 {vr(R_K + 4 * j)}, v0, {sr(SRD_K, 4)}, s{S_KV} offen offset:{1024 * j} nt', 'K0')
    p.e(f'''
    s_cmp_lt_u32 s2, 64
    s_cbranch_scc1 L_class_O
    s_cmp_lt_u32 s2, 120
    s_cbranch_scc1 L_class_M
    s_branch L_class_R''')


def got_args(p):
    p.e(f's_waitcnt lgkmcnt(0)\ns_mov_b32 s{SRD_K}, s{P_K}\ns_mov_b32 s{SRD_K + 1}, s{P_K + 1}')


def common_setup(p):
    if CFG['STAMPS'] == 'e':
        p.e(f's_waitcnt lgkmcnt(0)\ns_mov_b32 s{S_STAMP}, s98')
        p.nstamp = 1
        p.stamp_names = ['entry']
    if CFG['ENTRY']:
        p.e(f's_waitcnt lgkmcnt(0)\ns_mov_b32 s{S_STAMP}, s98')
        p.nstamp = 1
        p.stamp_names = ['start']
    else:
        p.stamp('start')
    if CFG['DBGOUT']:
        p.e('s_memtime s[100:101]\ns_waitcnt lgkmcnt(0)\ns_mov_b32 s99, s100')
    p.srd(SRD_WS, P_WS, WS_BYTES)
    p.e('v_mov_b32 v4, -1\nv_mov_b32 v5, -1\nv_mov_b32 v6, -1\nv_mov_b32 v7, -1')


def common_setup2(p):
    p.srd(SRD_V, P_V, 0x4000000)
    p.srd(SRD_D, P_DBG, 256)
    p.e(f's_mov_b32 s{S_PLO}, 0x05040100\ns_mov_b32 s{S_PHI}, 0x07060302')


def clear_rows(p, s_off, stride, nb):
    lanes = nb // 16
    sh = lanes.bit_length() - 1
    p.lane(2, [(sh, 2, stride), (0, sh, 16)], tmp=3)
    if lanes * 4 < 64:
        p.exec_set((1 << (lanes * 4)) - 1)
    p.e(f'buffer_store_dwordx4 v[4:7], v2, {sr(SRD_WS, 4)}, s{s_off} offen sc1')
    p.exec_all()


def clears(p, role):
    sk = p.lab('clr')
    p.e(f's_cmp_lg_u32 s{S_WV}, 0\ns_cbranch_scc1 {sk}\ns_setprio 3')
    role()
    p.e(f's_lshl_b32 s{S_T0}, s5, 11\ns_add_u32 s{S_T0}, s{S_T0}, {WS_OP}')
    p.e(f'buffer_store_dwordx4 v[4:7], v0, {sr(SRD_WS, 4)}, s{S_T0} offen sc1')
    p.e(f'buffer_store_dwordx4 v[4:7], v0, {sr(SRD_WS, 4)}, s{S_T0} offen offset:1024 sc1')
    p.e(f's_lshl_b32 s{S_T0}, s5, 7\ns_add_u32 s{S_T0}, s{S_T0}, {WS_ML}')
    p.exec_set(0xff)
    p.e(f'buffer_store_dwordx4 v[4:7], v0, {sr(SRD_WS, 4)}, s{S_T0} offen sc1')
    p.exec_all()
    p.e(f'v_mov_b32 v8, 0\nv_mov_b32 v9, 0\nv_lshlrev_b32 v2, 3, v1\nds_write_b64 v2, v[8:9] offset:{L_ZERO}\nds_write_b32 v8, v8 offset:{L_CNT}')
    p.e(f's_setprio 0\n{sk}:')
    p.nclear = len(p.vm)


def prio_young(p, v):
    sk = p.lab('pr')
    p.e(f's_cmp_lt_u32 s{S_WV}, 4\ns_cbranch_scc1 {sk}\ns_setprio {v}\n{sk}:')


def touch(p, cls):
    if not CFG['TOUCH']:
        return
    p.e(f's_lshl_b32 s{S_T0}, s{S_W8}, 3\ns_add_u32 s{S_T0}, s{S_T0}, s{S_WV}')
    if cls == 'O':
        p.e(f's_and_b32 s{S_T0}, s{S_T0}, 31\ns_lshl_b32 s{S_T0}, s{S_T0}, 21\ns_load_dword s43, {sr(P_V)}, s{S_T0}')
    else:
        ptrs = {'M': ((P_W1, 7 << 20), (P_W3, 7 << 20), (P_W2, 7 << 20)), 'R': ((P_WMOD, 12 << 20), (P_WO, 8 << 20), (P_OUT, 4096))}[cls]
        p.e(f's_and_b32 s{S_T0}, s{S_T0}, 7\ns_lshl_b32 s{S_T0}, s{S_T0}, 21')
        for ptr, nb in ptrs:
            p.e(f's_min_u32 s{S_T1}, s{S_T0}, {nb - 64}\ns_load_dword s43, {sr(ptr)}, s{S_T1}')


def count_b(p):
    sk = p.lab('arr')
    p.e(f's_cmp_lg_u32 s{S_WV}, 0\ns_cbranch_scc1 {sk}\ns_mov_b32 s{S_T0}, 1')
    p.e(f's_atomic_add s{S_T0}, {sr(P_DBG)}, 0\n{sk}:')


def arrive(p, off):
    sk = p.lab('arr')
    p.e(f's_cmp_lg_u32 s{S_WV}, 0\ns_cbranch_scc1 {sk}')
    p.e(f's_waitcnt vmcnt({len(p.vm) - p.nclear}) lgkmcnt(0)')
    p.stamp('arrived')
    for o in off:
        p.e(f's_mov_b32 s{S_T0}, 1\ns_atomic_add s{S_T0}, {sr(P_DBG)}, {o}')
    p.e(f'{sk}:\ns_barrier')


def push_cnt(p, dst, tag='CNT', off=0):
    p.push(tag, lambda t: p.vmem(f'buffer_load_dword v{dst}, off, {sr(SRD_D, 4)}, 0 offset:{off} sc1', t))


def check_cnt(p, dst, tag='CNT', off=0, total=256):
    p.need(tag)
    ok, lp = p.lab('cok'), p.lab('cretry')
    p.e(f'v_readfirstlane_b32 s{S_T0}, v{dst}\ns_mov_b32 s{S_SPIN}, 0\ns_cmp_ge_u32 s{S_T0}, {total}\ns_cbranch_scc1 {ok}\n{lp}:')
    p.e(f'buffer_load_dword v{dst}, off, {sr(SRD_D, 4)}, 0 offset:{off} sc1\ns_waitcnt vmcnt(0)\nv_readfirstlane_b32 s{S_T0}, v{dst}')
    p.e(f's_add_u32 s{S_SPIN}, s{S_SPIN}, 1\ns_cmp_ge_u32 s{S_SPIN}, {CFG["SPIN"]}\ns_cbranch_scc1 {ok}')
    p.e(f's_cmp_lt_u32 s{S_T0}, {total}\ns_cbranch_scc1 {lp}\n{ok}:')
    p.release(tag.lower())


def push_page(p, srd, tag, page, dst, need=None):
    for j in range(4):
        def fn(t, j=j):
            if j == 0 or True:
                p.e(f's_add_u32 s{S_T3}, s{S_KV}, {page * 32768}')
            p.vmem(f'buffer_load_dwordx4 {vr(dst + 4 * j)}, v0, {sr(srd, 4)}, s{S_T3} offen offset:{1024 * j} nt', t)
        p.push(tag, fn, need)


def push_k(p, t):
    push_page(p, SRD_K, f'K{t}', t, R_K + 16 * t)


def push_v(p, u, need=None):
    push_page(p, SRD_V, f'V{u}', 2 * u, p.vch[u], need)
    push_page(p, SRD_V, f'V{u}', 2 * u + 1, p.vch[u] + 16, need)


def push_v_lds(p, u):
    for k in range(8):
        def fn(t, k=k):
            if k == 0:
                p.e(f's_lshl_b32 s{S_STG}, s{S_WV}, 13\ns_add_u32 s{S_STG}, s{S_STG}, {L_STASH}')
            p.e(f's_add_u32 m0, s{S_STG}, {1024 * k}\ns_add_u32 s{S_T3}, s{S_KV}, {(2 * u + (k >> 2)) * 32768 + 1024 * (k & 3)}')
            p.vmem(f'buffer_load_dwordx4 v0, {sr(SRD_V, 4)}, s{S_T3} offen nt lds', t)
        p.push(f'V{u}', fn)


def v_from_lds(p, u, tmp):
    p.need(f'V{u}')
    p.e(f'v_add_u32 v{tmp}, s{S_STG}, v0')
    for k in range(8):
        p.e(f'ds_read_b128 {vr(p.vch[u] + 4 * k)}, v{tmp} offset:{1024 * k}')


def k_setup(p):
    p.e(f's_lshl_b32 s{S_T0}, s{S_WV}, 12')
    p.e(f'v_lshrrev_b32 v6, 4, v1\nv_lshlrev_b32 v7, 2, v6\nv_xor_b32 v7, v7, v1\nv_and_b32 v7, 15, v7\nv_lshlrev_b32 v7, 4, v7')
    p.e(f'v_lshl_add_u32 v2, v6, 8, v7\nv_add_u32 v2, s{S_T0}, v2')
    for j in (1, 2, 3):
        p.e(f'v_xor_b32 v{2 + j}, {16 * j}, v2')
    p.e(f'v_xor_b32 v7, v6, v1\nv_and_b32 v7, 15, v7\nv_lshlrev_b32 v7, 4, v7')
    p.e(f'v_and_b32 v8, 3, v1\nv_lshl_add_u32 v7, v8, 10, v7\nv_bfe_u32 v8, v1, 2, 2\nv_lshl_add_u32 v7, v8, 8, v7\nv_add_u32 v6, s{S_T0}, v7')
    for m in (1, 2, 3):
        p.e(f'v_xor_b32 v{6 + m}, {64 * m}, v6')


def k_trans(p, t):
    p.need(f'K{t}')
    for j in range(4):
        p.e(f'ds_write_b128 v{2 + j}, {vr(R_K + 16 * t + 4 * j)} offset:{1024 * j}')
    for m in range(4):
        p.e(f'ds_read_b128 {vr(R_K + 16 * t + 4 * m)}, v{6 + m}')


def q_loads(p, vo):
    def issue(model):
        for j in range(2 if CFG['QLIN'] else 4):
            if CFG['QLIN']:
                s = f'buffer_load_dwordx4 {vr(R_Q + 4 * j)}, v0, {sr(SRD_WS, 4)}, s{S_U + 3} offen offset:{1024 * j} sc1'
            else:
                s = f'buffer_load_dwordx4 {vr(R_Q + 4 * j)}, v{vo}, {sr(SRD_WS, 4)}, s{S_U + 3} offen offset:{64 * j} sc1'
            p.vmem(s, 'Q') if model else p.e(s)
    return issue


def push_q(p, vo):
    def fn(t):
        p.e(f's_lshr_b32 s{S_U + 3}, s5, 4\ns_lshl_b32 s{S_U + 3}, s{S_U + 3}, 11\ns_add_u32 s{S_U + 3}, s{S_U + 3}, {WS_Q}')
        if not CFG['QLIN']:
            p.lane(vo, [(0, 3, 256), (4, 2, 16)], tmp=R_Q)
        q_loads(p, vo)(True)
    p.push('Q', fn, 'cnt')


def qk_softmax(p, vo_q):
    if CFG['QLIN']:
        p.e(f's_lshl_b32 s{S_T0}, s{S_WV}, 12\nv_and_b32 v10, 3, v1\nv_lshlrev_b32 v10, 2, v10\nv_bfe_u32 v11, v1, 2, 1\nv_or_b32 v10, v10, v11')
        p.e(f'v_lshrrev_b32 v11, 4, v1\nv_xor_b32 v10, v10, v11\nv_lshlrev_b32 v10, 4, v10\nv_and_b32 v11, 7, v1\nv_lshl_add_u32 v10, v11, 8, v10\nv_add_u32 v6, s{S_T0}, v10')
        for m in (1, 2, 3):
            p.e(f'v_xor_b32 v{6 + m}, {64 * m}, v6')
        p.need('Q')
        p.check_retry(lambda: q_loads(p, vo_q)(False), list(range(R_Q, R_Q + 8)), 10)
        for j in range(2):
            p.e(f'ds_write_b128 v{2 + j}, {vr(R_Q + 4 * j)} offset:{1024 * j}')
        for m in range(4):
            p.e(f'ds_read_b128 {vr(R_Q + 4 * m)}, v{6 + m}')
    else:
        p.need('Q')
        p.check_retry(lambda: q_loads(p, vo_q)(False), list(range(R_Q, R_Q + 16)), 10)
    p.e('s_waitcnt lgkmcnt(0)')
    p.stamp('q_ok')
    for t in range(8):
        for m in range(4):
            s = vr(R_S + 4 * t)
            p.e(f'v_mfma_f32_16x16x32_bf16 {s}, {vr(R_K + 16 * t + 4 * m)}, {vr(R_Q + 4 * m)}, {"0" if m == 0 else s}')
        if t == 1:
            p.release('K01')
            p.burst(2)
        if t == 7:
            p.release('K47')
            p.burst(p.nburst)
    T = 2
    for t in range(8):
        x = R_S + 4 * t
        for h in (0, 2):
            p.rnd2(x + h, x + h + 1, T + h // 2)
        for r in range(4):
            p.e(f'v_mul_f32 v{x + r}, 0x3db504f3, v{x + r}')
        for h in (0, 2):
            p.rnd2(x + h, x + h + 1, T + h // 2)
        if t == 0:
            p.e(f'v_max_f32 v4, v{x}, v{x + 1}')
        else:
            p.e(f'v_max3_f32 v4, v4, v{x}, v{x + 1}')
        p.e(f'v_max3_f32 v4, v4, v{x + 2}, v{x + 3}')
        if t % 2:
            p.fill()
    p.W += p.nburst - 2
    p.pump(2)
    p.W -= p.nburst - 2
    p.swapred('v_max_f32', 16, [4], [5])
    p.swapred('v_max_f32', 32, [4], [5])
    p.e(f'v_mul_f32 v6, {hex(LOG2E | 0x80000000)}, v4\ns_mov_b32 s{S_T0}, {hex(LOG2E)}')
    p.e(f's_mov_b32 s{S_MASK}, 0x00ff00ff\ns_mov_b32 s{S_MASK + 1}, 0x00ff00ff\nv_mov_b32 v5, 0')
    for t in range(8):
        x = R_S + 4 * t
        for r in range(4):
            p.e(f'v_fma_f32 v{x + r}, v{x + r}, s{S_T0}, v6')
        for r in range(4):
            p.e(f'v_exp_f32 v{x + r}, v{x + r}')
        p.e(f'v_add_f32 v7, v{x}, v{x + 1}\nv_add_f32 v8, v{x + 2}, v{x + 3}')
        p.e(f'v_cvt_pk_bf16_f32 v2, v{x}, v{x + 1}\nv_cvt_pk_bf16_f32 v3, v{x + 2}, v{x + 3}')
        p.e(f'v_add_f32 v5, v5, v7\nv_add_f32 v5, v5, v8')
        for d in range(2):
            p.e(f'v_cndmask_b32 v{R_P0 + 2 * t + d}, 0, v{2 + d}, {sr(S_MASK)}')
            p.e(f'v_cndmask_b32 v{R_P1 + 2 * t + d}, v{2 + d}, 0, {sr(S_MASK)}')
        if t % 2:
            p.fill()
    p.swapred('v_add_f32', 16, [5], [6])
    p.swapred('v_add_f32', 32, [5], [6])
    p.e(f's_lshl_b32 s{S_T0}, s{S_WV}, 6\ns_add_u32 s{S_T0}, s{S_T0}, {L_MLW}\nv_lshlrev_b32 v6, 3, v1\nv_add_u32 v7, s{S_T0}, v6')
    p.e(f'v_mov_b32 v8, 1\nv_mov_b32 v9, {L_CNT}')
    p.exec_set(0xff)
    p.e('ds_write_b64 v7, v[4:5]\ns_mov_b64 exec, 1\nds_add_rtn_u32 v8, v9, v8')
    p.exec_all()
    sk = p.lab('ml')
    p.e(f's_waitcnt lgkmcnt(0)\nv_readfirstlane_b32 s{S_T0}, v8\ns_cmp_lg_u32 s{S_T0}, 7\ns_cbranch_scc1 {sk}')
    p.e(f'ds_read_b64 v[8:9], v6 offset:{L_MLW}\ns_waitcnt lgkmcnt(0)')
    ml_combine(p, 8, 9, 2, 3, 7)
    p.e(f's_lshl_b32 s{S_T0}, s5, 7\ns_add_u32 s{S_T0}, s{S_T0}, {WS_ML}')
    p.exec_set(0xff)
    p.e(f'buffer_store_dwordx2 v[2:3], v6, {sr(SRD_WS, 4)}, s{S_T0} offen sc1')
    p.exec_all()
    p.e(f'{sk}:')
    p.stamp('softmax')


def ml_combine(p, m, l, M, L, t):
    p.e(f'v_max_f32_dpp v{M}, v{m}, v{m} row_ror:8 row_mask:0xf bank_mask:0xf')
    p.swapred('v_max_f32', 16, [M], [t])
    p.swapred('v_max_f32', 32, [M], [t])
    p.e(f'v_sub_f32 v{t}, v{m}, v{M}\nv_mul_f32 v{t}, {hex(LOG2E)}, v{t}\nv_exp_f32 v{t}, v{t}\nv_mul_f32 v{L}, v{l}, v{t}')
    p.e(f'v_add_f32_dpp v{L}, v{L}, v{L} row_ror:8 row_mask:0xf bank_mask:0xf')
    p.swapred('v_add_f32', 16, [L], [t])
    p.swapred('v_add_f32', 32, [L], [t])


def pv_chunk(p, u, T):
    p.need(f'V{u}')
    raw = p.vch[u]
    for c in range(4):
        tb = T + 8 * (c & 1)
        for hi in range(2):
            for jj in range(4):
                a, b = raw + 4 * (2 * jj) + c, raw + 4 * (2 * jj + 1) + c
                p.e(f'v_perm_b32 v{tb + 4 * hi + jj}, v{b}, v{a}, s{S_PHI if hi else S_PLO}')
        for hi in range(2):
            e = 2 * c + hi
            acc = vr(R_ACC + 4 * (e & 3))
            cc = '0' if (u == 0 and e < 4) else acc
            pb = (R_P0 if e < 4 else R_P1) + 4 * u
            p.e(f'v_mfma_f32_16x16x32_bf16 {acc}, {vr(tb + 4 * hi)}, {vr(pb)}, {cc}')
        p.fill()


def ml_loads(p):
    def issue(model):
        for k in range(2):
            s = f'buffer_load_dwordx2 {vr(6 + 2 * k, 2)}, v2, {sr(SRD_WS, 4)}, s{S_U + 3} offen offset:{1024 * k} sc1'
            p.vmem(s, 'ML') if model else p.e(s)
    return issue


def push_ml(p):
    def fn(t):
        p.e(f's_lshr_b32 s{S_U + 3}, s5, 4\ns_lshl_b32 s{S_U + 3}, s{S_U + 3}, 11\ns_add_u32 s{S_U + 3}, s{S_U + 3}, {WS_ML}')
        p.lane(2, [(3, 3, 128), (0, 3, 8)], tmp=3)
        ml_loads(p)(True)
    p.push('ML', fn, 'sm')


def ml_scale(p):
    p.need('ML')
    p.stamp('ml_landed')
    p.check_retry(lambda: ml_loads(p)(False), [6, 7, 8, 9], 3)
    p.e(f'''v_max_f32 v3, v6, v8
    v_sub_f32 v6, v6, v3
    v_sub_f32 v8, v8, v3
    v_mul_f32 v6, {hex(LOG2E)}, v6
    v_mul_f32 v8, {hex(LOG2E)}, v8
    v_exp_f32 v6, v6
    v_exp_f32 v8, v8
    v_mul_f32 v7, v7, v6
    v_fmac_f32 v7, v9, v8''')
    ml_combine(p, 3, 7, 6, 8, 9)
    p.e(f'v_sub_f32 v4, v4, v6\nv_mul_f32 v4, {hex(LOG2E)}, v4\nv_exp_f32 v4, v4\nv_rcp_f32 v8, v8\nv_mul_f32 v5, v4, v8')
    p.e(f's_mul_i32 s{S_T0}, s{S_WV}, 4864\ns_add_u32 s{S_T0}, s{S_T0}, {L_OPART}')
    p.lane(6, [(0, 3, 592), (4, 2, 144), (3, 1, 64)], sadd=S_T0, tmp=3)
    p.e(f's_mul_i32 s{S_T0}, s{S_WV}, 592\ns_add_u32 s{S_T0}, s{S_T0}, {L_OPART}')
    p.lane(7, [(4, 2, 144), (1, 1, 64), (0, 1, 32), (2, 2, 4)], sadd=S_T0, tmp=3)
    p.e('v_add_u32 v8, 16, v7\nv_lshlrev_b32 v9, 2, v1')
    p.e(f's_lshl_b32 s{S_U + 3}, s5, 11\ns_lshl_b32 s{S_T1}, s{S_WV}, 8\ns_add_u32 s{S_U + 3}, s{S_U + 3}, s{S_T1}\ns_add_u32 s{S_U + 3}, s{S_U + 3}, {WS_OP}')


def quad_pack_store(p, D, vo, s_off):
    for k in (1, 2, 3):
        p.e(f'v_mov_b32_dpp v{D + k}, v{D} quad_perm:[{k},{k},{k},{k}] row_mask:0xf bank_mask:0xf')
    p.exec_set(0x1111111111111111)
    p.vmem(f'buffer_store_dwordx4 {vr(D)}, v{vo}, {sr(SRD_WS, 4)}, s{s_off} offen sc1', 'st')
    p.exec_all()


def attn_epilogue(p):
    for k in range(0, 16, 2):
        p.e(f'v_pk_mul_f32 {vr(R_ACC + k, 2)}, {vr(R_ACC + k, 2)}, v[4:5] op_sel:[0,1] op_sel_hi:[1,1]')
        if k % 4 == 2:
            p.e(f'ds_write_b128 v6, {vr(R_ACC + k - 2)} offset:{16 * (k // 4)}')
    p.e('s_waitcnt lgkmcnt(0)\ns_barrier')
    B = R_P0
    for k in range(4):
        p.e(f'ds_read2st64_b32 {vr(B + 2 * k, 2)}, v7 offset0:{38 * k} offset1:{38 * k + 19}')
        p.e(f'ds_read2st64_b32 {vr(B + 8 + 2 * k, 2)}, v8 offset0:{38 * k} offset1:{38 * k + 19}')
    p.e('s_waitcnt lgkmcnt(0)')
    for w in (4, 2, 1):
        p.tree(B, [w])
        p.tree(B + 8, [w])
    p.e(f'v_cvt_pk_bf16_f32 v{B + 4}, v{B}, v{B + 8}')
    quad_pack_store(p, B + 4, 9, S_U + 3)
    p.stamp('o_stored')


def selectors(p, SA, t, n=8):
    p.e(f'v_and_b32 v{t}, 1, v1\nv_cmp_eq_u32 vcc, 1, v{t}\nv_mov_b32 v{t}, 0x3f80\nv_mov_b32 v{t + 1}, 1.0')
    p.e(f'v_cndmask_b32 v{t}, v{t}, v{t + 1}, vcc\nv_bfe_u32 v{t + 1}, v1, 1, 3')
    for d in range(n):
        p.e(f'v_cmp_eq_u32 vcc, {d}, v{t + 1}\nv_cndmask_b32 v{SA + d}, 0, v{t}, vcc')


def wide_b_addrs(p, A, base_terms, s_base, const, t):
    p.lane(t, base_terms, const=const, sadd=s_base, tmp=A)
    p.e(f'v_mov_b32 v{t + 1}, {L_ZERO}')
    for j in range(4):
        m = 0x11111111 << j
        p.e(f's_mov_b32 s{S_MASK}, {hex(m)}\ns_mov_b32 s{S_MASK + 1}, {hex(m)}')
        p.e(f'v_cndmask_b32 v{A + j}, v{t + 1}, v{t}, {sr(S_MASK)}')


def selectors_b(p, SA, t):
    p.e(f'v_and_b32 v{t}, 1, v1\nv_cmp_eq_u32 vcc, 1, v{t}\nv_mov_b32 v{t}, 0x3f80\nv_mov_b32 v{t + 1}, 1.0')
    p.e(f'v_cndmask_b32 v{t}, v{t}, v{t + 1}, vcc')
    p.e(f'v_lshrrev_b32 v{t + 1}, 1, v1\nv_xor_b32 v{t + 1}, v{t + 1}, v1\nv_and_b32 v{t + 1}, 8, v{t + 1}')
    p.e(f'v_bfe_u32 v{SA}, v1, 1, 2\nv_or_b32 v{t + 1}, v{t + 1}, v{SA}\nv_bfe_u32 v{SA}, v1, 5, 1\nv_lshl_or_b32 v{t + 1}, v{SA}, 2, v{t + 1}')
    for d in range(8):
        p.e(f'v_cmp_eq_u32 vcc, {d}, v{t + 1}\nv_cndmask_b32 v{SA + d}, 0, v{t}, vcc')


def sp_addrs(p, A, bstride, s_base, const, t, idx=None):
    p.lane(t, [(2, 2, bstride), (0, 1, bstride // 2), (4, 2, 16)], const=const, sadd=s_base, tmp=A)
    p.e(f'v_mov_b32 v{t + 1}, {L_ZERO}\ns_mov_b32 s{S_MASK}, 0x33333333\ns_mov_b32 s{S_MASK + 1}, 0x33333333')
    p.e(f'v_cndmask_b32 v{A}, v{t + 1}, v{t}, {sr(S_MASK)}\nv_cndmask_b32 v{A + 1}, v{t}, v{t + 1}, {sr(S_MASK)}')
    if idx is not None:
        p.e(f's_mov_b32 s{S_MASK}, 0x55555555\ns_mov_b32 s{S_MASK + 1}, 0x55555555\nv_mov_b32 v{t}, 0xeeee\nv_mov_b32 v{t + 1}, 0x4444')
        p.e(f'v_cndmask_b32 v{idx}, v{t}, v{t + 1}, {sr(S_MASK)}')


def sp_gemv(p, F, A, ACC, idx):
    for e in range(8):
        p.e(f'v_smfmac_f32_16x16x64_bf16 {vr(ACC + 4 * (e & 3))}, {vr(A + 4 * (e >> 2))}, {vr(F + 8 * e, 8)}, v{idx}')


def lines_of(p, fn):
    old, p.L = p.L, []
    fn()
    out, p.L = p.L, old
    return out


def interleave(p, main, fill, per):
    fill = list(fill)
    for m in main:
        p.L.append(m)
        p.L += fill[:per]
        fill = fill[per:]
    p.L += fill


def sp_fold(p, ACC, OUT):
    for e in range(8):
        r = ACC + 4 * (e & 3) + 2 * (e >> 2)
        p.e(f'v_add_f32 v{OUT + e}, v{r}, v{r + 1}')


def push_wide_rows(p, tag, raw, vo, s_base, row0, need=None):
    for jj in range(8):
        def fn(t, jj=jj):
            p.e(f's_add_u32 s{S_T3}, s{s_base}, {(row0 + (jj & ~1)) * 2048}')
            p.vmem(f'buffer_load_dwordx4 {vr(raw + 4 * jj)}, v{vo}, {sr(SRD_W, 4)}, s{S_T3} offen offset:{2048 * (jj & 1)} nt', t)
        p.push(tag, fn, need)


def finish(p):
    if CFG['DBGOUT']:
        p.stamp('end')
        sk = p.lab('dbg')
        p.e(f's_cmp_lg_u32 s{S_WV}, 0\ns_cbranch_scc1 {sk}')
        sk2 = p.lab('dbg')
        p.e(f's_cmp_lg_u32 s2, 64\ns_cbranch_scc1 {sk2}\ns_memtime s[100:101]\ns_waitcnt lgkmcnt(0)\ns_sub_u32 s100, s100, s99')
        p.e(f's_atomic_umax s100, {sr(P_DBG)}, 56\ns_sub_u32 s{S_T0}, s{S_STAMP + p.nstamp - 1}, s{S_STAMP}\ns_atomic_umax s{S_T0}, {sr(P_DBG)}, 60\n{sk2}:')
        slots = ['start', 'pre_done', 'k_done', 'q_ok', 'o_stored', 'e3_ok', 'a_stored', 'w_ready', 'e4_ok', 'f_stored', 'end']
        p.e(f's_not_b32 s{S_T0}, s{S_STAMP}\ns_atomic_umax s{S_T0}, {sr(P_DBG)}, 4')
        for k, n in enumerate(p.stamp_names):
            if n in slots:
                p.e(f's_atomic_umax s{S_STAMP + k}, {sr(P_DBG)}, {8 + 4 * slots.index(n)}')
        p.e(f'{sk}:')
    elif CFG['STAMPS']:
        p.e(f's_lshl_b32 s{S_T0}, s2, 3\ns_add_u32 s{S_T0}, s{S_T0}, s{S_WV}\ns_lshl_b32 s{S_T0}, s{S_T0}, 7\ns_add_u32 s{S_T0}, s{S_T0}, {WS_STAMP}')
        p.stamp('end')
        p.e('s_mov_b64 exec, 1\nv_mov_b32 v2, 0')
        for k in range(p.nstamp):
            p.e(f'v_mov_b32 v3, s{S_STAMP + k}\nbuffer_store_dword v3, v2, {sr(SRD_WS, 4)}, s{S_T0} offen offset:{4 * k}')
    p.e('s_endpgm')


def unit_index(p, dst, base, n):
    p.e(f's_sub_u32 s{dst}, s2, {base - CFG["USH"]}')
    if CFG['USH']:
        p.e(f's_cmp_ge_u32 s{dst}, {n}\ns_cselect_b32 s{S_T0}, {n}, 0\ns_sub_u32 s{dst}, s{dst}, s{S_T0}')


def mod_unit_setup(p, s_unit, s_col, s_out):
    p.e(f's_lshl_b32 s{s_col}, s{s_unit}, 7')
    p.e(f's_lshr_b32 s{s_out}, s{s_unit}, 4\ns_lshl_b32 s{s_out}, s{s_out}, 13\ns_and_b32 s{S_T0}, s{s_unit}, 15')
    p.e(f's_lshl_b32 s{S_T0}, s{S_T0}, 7\ns_add_u32 s{s_out}, s{s_out}, s{S_T0}')
    if WS_MOD:
        p.e(f's_add_u32 s{s_out}, s{s_out}, {WS_MOD}')


def quarter_loads(p, s_col, raw=128):
    sk = p.lab('ql')
    if CFG['QSKIP']:
        p.e(f's_cmp_ge_u32 s2, 248\ns_cbranch_scc1 {sk}')
    p.lane(15, [(3, 3, 4 * 12288), (0, 3, 16)], tmp=raw)
    p.e(f's_mul_i32 s{S_T2}, s{S_WV}, {32 * 12288}\ns_add_u32 s{S_T2}, s{S_T2}, s{s_col}')
    for jj in range(4):
        p.e(f's_add_u32 s{S_T3}, s{S_T2}, {jj * 12288}')
        txt = f'buffer_load_dwordx4 {vr(raw + 4 * jj)}, v15, {sr(SRD_W, 4)}, s{S_T3} offen nt'
        if CFG['QSKIP']:
            p.e(f's_waitcnt vmcnt({p.W - 1})\n{txt}')
        else:
            p.waitn(p.W - 1)
            p.vmem(txt, 'WQ')
    if CFG['QSKIP']:
        p.e(f'{sk}:')
        p.qmark = True


def quarter_compute(p, raw=128, F=144, B=160, ACC=176):
    a0, a1, t0 = 10, 11, 15
    p.e(f's_and_b32 s{S_T0}, s2, 3\ns_lshl_b32 s{S_T0}, s{S_T0}, 1\ns_lshr_b32 s{S_T1}, s{S_WV}, 2\ns_add_u32 s{S_T0}, s{S_T0}, s{S_T1}')
    p.e(f's_lshl_b32 s{S_T0}, s{S_T0}, 10\ns_and_b32 s{S_T1}, s{S_WV}, 3\ns_lshl_b32 s{S_T1}, s{S_T1}, 6\ns_add_u32 s{S_T0}, s{S_T0}, s{S_T1}\ns_add_u32 s{S_T0}, s{S_T0}, {L_XA}')
    p.lane(a0, [(0, 2, 256), (4, 2, 16), (3, 1, 8)], sadd=S_T0, tmp=t0)
    p.e(f's_mov_b32 s{S_MASK}, 0x0f0f0f0f\ns_mov_b32 s{S_MASK + 1}, 0x0f0f0f0f\nv_mov_b32 v{t0}, {L_ZERO}')
    p.e(f'v_cndmask_b32 v{a1}, v{a0}, v{t0}, {sr(S_MASK)}\nv_cndmask_b32 v{a0}, v{t0}, v{a0}, {sr(S_MASK)}')
    p.e(f'ds_read_b64 {vr(B, 2)}, v{a0}\nds_read_b64 {vr(B + 2, 2)}, v{a1}')
    p.e(f's_lshl_b32 s{S_T0}, s{S_WV}, 11\ns_add_u32 s{S_T0}, s{S_T0}, {L_RED2}')
    p.lane(a0, [(5, 1, 1024), (0, 2, 256), (2, 1, 128), (4, 1, 16)], sadd=S_T0, tmp=t0)
    if CFG['QSKIP']:
        p.need(f'K{CFG["R_AT"]}')
    else:
        p.need('WQ')
    for c in range(4):
        for hi in range(2):
            for jj in range(2):
                p.e(f'v_perm_b32 v{F + 2 * (2 * c + hi) + jj}, v{raw + 4 * (2 * jj + 1) + c}, v{raw + 4 * (2 * jj) + c}, s{S_PHI if hi else S_PLO}')
    p.e('s_waitcnt lgkmcnt(0)')
    for e in range(8):
        acc = vr(ACC + 4 * (e & 3))
        p.e(f'v_mfma_f32_16x16x16_bf16 {acc}, {vr(F + 2 * e, 2)}, {vr(B + 2 * (e >> 2), 2)}, {"0" if e < 4 else acc}')
    p.e(f's_lshl_b32 s{S_T0}, s{S_WV}, 8\ns_add_u32 s{S_T0}, s{S_T0}, {L_RED2 - 1024}')
    p.lane(a1, [(2, 1, 128), (0, 2, 32), (5, 1, 16), (3, 2, 4)], sadd=S_T0, tmp=t0)
    p.exec_set(0xff00ff0000ff00ff)
    for a in range(4):
        p.e(f'ds_write_b128 v{a0}, {vr(ACC + 4 * a)} offset:{32 * a}')
    p.exec_all()


def quarter_final(p, s_out, B=160):
    a0, a1 = 10, 11
    end = p.lab('qend')
    p.e(f's_cmp_ge_u32 s2, 248\ns_cbranch_scc1 {end}')
    for k in range(8):
        p.e(f'ds_read2st64_b32 {vr(B + 2 * k, 2)}, v{a1} offset0:{8 * k} offset1:{8 * k + 4}')
    p.e(f's_lshl_b32 s{S_T0}, s{S_WV}, 11\ns_add_u32 s{S_T0}, s{S_T0}, s{s_out}\ns_sub_u32 s{S_T0}, s{S_T0}, 8192\nv_lshlrev_b32 v{a0}, 2, v1\ns_waitcnt lgkmcnt(0)')
    for w in (8, 4, 2, 1):
        for k in range(w):
            p.e(f'v_add_f32 v{B + k}, v{B + k}, v{B + k + w}')
    for k in (1, 2, 3):
        p.e(f'v_mov_b32_dpp v{B + k}, v{B} quad_perm:[{k},{k},{k},{k}] row_mask:0xf bank_mask:0xf')
    p.exec_set(0x1111111111111111)
    p.e(f'buffer_store_dwordx4 {vr(B)}, v{a0}, {sr(SRD_WS, 4)}, s{S_T0} offen sc1')
    p.exec_all()
    p.e(f'{end}:')


def capture(p, fn):
    old, p.stream = p.stream, deque()
    fn()
    items, p.stream = list(p.stream), old
    return items


def weave(a, b, lead=0):
    out, a, b = [], list(a), list(b)
    out += b[:lead]
    b = b[lead:]
    while a or b:
        if b:
            out.append(b.pop(0))
        if a:
            out.append(a.pop(0))
    return out


def push_c3(p, tag, ptr, nbytes, wbase, n, first=0, dst=252, stride=None):
    def setup(t):
        p.srd(SRD_A, ptr, nbytes)
        p.e(f's_sub_u32 s{S_T2}, s2, {wbase}\ns_lshl_b32 s{S_T2}, s{S_T2}, 3\ns_add_u32 s{S_T2}, s{S_T2}, s{S_WV}')
        p.e(f's_mul_i32 s{S_T2}, s{S_T2}, {(stride or n) * 8192}\ns_add_u32 s{S_T2}, s{S_T2}, {first * 8192 + 384}')
        p.lane(15, [(3, 3, 1024), (0, 3, 16)], tmp=dst)
        p.e(f's_min_u32 s{S_T2}, s{S_T2}, {nbytes - n * 8192 + 384}')
        for k in range(n):
            if k:
                p.e(f's_add_u32 s{S_T2}, s{S_T2}, 8192')
            p.vmem(f'buffer_load_dwordx4 {vr(dst)}, v15, {sr(SRD_A, 4)}, s{S_T2} offen', t)
    p.push(tag, setup)


def o48_slot(p, dst, tmp, skip):
    p.e(f's_and_b32 s{tmp}, s{S_W8}, 3\ns_cmp_eq_u32 s{tmp}, 1\ns_cbranch_scc1 {skip}')
    p.e(f's_add_u32 s{tmp}, s{S_W8}, 2\ns_lshr_b32 s{tmp}, s{tmp}, 2\ns_lshl_b32 s{tmp}, s{tmp}, 3\ns_sub_u32 s{dst}, s2, s{tmp}')
    p.e(f's_lshl_b32 s{dst}, s{dst}, 3\ns_add_u32 s{dst}, s{dst}, s{S_WV}')


def push_o48(p, kind, dst=252):
    def fn(t):
        sk = p.lab('o48')
        o48_slot(p, S_T2, S_T3, sk)
        if kind in ('wq', 'w3'):
            ptr, nb, n = (P_WQ, 1024 * 8192, 1) if kind == 'wq' else (P_W3, 1024 * 7168, 2)
            p.srd(SRD_A, ptr, nb)
            p.e(f's_lshl_b32 s{S_T2}, s{S_T2}, {12 + n}')
            p.lane(15, [(3, 3, 1024), (0, 3, 16)], tmp=dst)
            step = 8192
        else:
            p.srd(SRD_A, P_WMOD, 1024 * 12288)
            p.e(f's_lshr_b32 s{S_T3}, s{S_T2}, 7\ns_lshl_b32 s{S_T3}, s{S_T3}, 10\ns_and_b32 s{S_T2}, s{S_T2}, 127')
            p.e(f's_mul_i32 s{S_T2}, s{S_T2}, {8 * 12288}\ns_add_u32 s{S_T2}, s{S_T2}, s{S_T3}\ns_add_u32 s{S_T2}, s{S_T2}, 4096')
            p.lane(15, [(3, 3, 12288), (0, 3, 16)], tmp=dst)
            n, step = 2, 3072
        for k in range(n):
            if k:
                p.e(f's_add_u32 s{S_T2}, s{S_T2}, {step}')
            p.e(f'buffer_load_dwordx4 {vr(dst)}, v15, {sr(SRD_A, 4)}, s{S_T2} offen offset:384')
        p.e(f'{sk}:')
    p.push('c3', fn)


def push_c3half(p, ptr, wbase, dst=252):
    def fn(t):
        p.srd(SRD_A, ptr, 1024 * 7168)
        p.e(f's_sub_u32 s{S_T2}, s2, {wbase}\ns_mul_i32 s{S_T3}, s{S_T2}, 37\ns_lshr_b32 s{S_T3}, s{S_T3}, 8\ns_mul_i32 s{S_T3}, s{S_T3}, 7')
        p.e(f's_add_u32 s{S_T2}, s{S_T2}, s{S_T3}\ns_add_u32 s{S_T2}, s{S_T2}, 7\ns_lshl_b32 s{S_T2}, s{S_T2}, 3\ns_add_u32 s{S_T2}, s{S_T2}, s{S_WV}')
        p.e(f's_lshl_b32 s{S_T2}, s{S_T2}, 13')
        p.lane(15, [(3, 3, 1024), (0, 3, 16)], tmp=dst)
        p.vmem(f'buffer_load_dwordx4 {vr(dst)}, v15, {sr(SRD_A, 4)}, s{S_T2} offen offset:384', t)
    p.push('c3', fn)


def push_c3mod(p, wbase, dst=252):
    def fn(t):
        p.srd(SRD_A, P_WMOD, 1024 * 12288)
        p.e(f's_sub_u32 s{S_T2}, s2, {wbase}\ns_lshl_b32 s{S_T2}, s{S_T2}, 3\ns_add_u32 s{S_T2}, s{S_T2}, s{S_WV}')
        p.e(f's_lshr_b32 s{S_T3}, s{S_T2}, 7\ns_lshl_b32 s{S_T3}, s{S_T3}, 10\ns_and_b32 s{S_T2}, s{S_T2}, 127')
        p.e(f's_mul_i32 s{S_T2}, s{S_T2}, {8 * 12288}\ns_add_u32 s{S_T2}, s{S_T2}, s{S_T3}\ns_add_u32 s{S_T2}, s{S_T2}, 4096')
        p.lane(15, [(3, 3, 12288), (0, 3, 16)], tmp=dst)
        p.vmem(f'buffer_load_dwordx4 {vr(dst)}, v15, {sr(SRD_A, 4)}, s{S_T2} offen offset:384', t)
        sk = p.lab('c3')
        p.e(f's_cmp_ge_u32 s{S_T3}, 2048\ns_cbranch_scc1 {sk}\ns_add_u32 s{S_T2}, s{S_T2}, 4096')
        p.e(f'buffer_load_dwordx4 {vr(dst)}, v15, {sr(SRD_A, 4)}, s{S_T2} offen offset:384\n{sk}:')
    p.push('c3', fn)


def push_c3mod_late(p, dst=252):
    def fn(t):
        sk = p.lab('c3')
        p.e(f's_bitcmp1_b32 s2, 2\ns_cbranch_scc0 {sk}')
        p.srd(SRD_A, P_WMOD, 1024 * 12288)
        p.e(f's_lshl_b32 s{S_T2}, s{S_W8}, 2\ns_and_b32 s{S_T3}, s2, 3\ns_add_u32 s{S_T2}, s{S_T2}, s{S_T3}\ns_lshl_b32 s{S_T2}, s{S_T2}, 3\ns_add_u32 s{S_T2}, s{S_T2}, s{S_WV}')
        p.e(f's_lshr_b32 s{S_T3}, s{S_T2}, 7\ns_lshl_b32 s{S_T3}, s{S_T3}, 10\ns_and_b32 s{S_T2}, s{S_T2}, 127')
        p.e(f's_mul_i32 s{S_T2}, s{S_T2}, {8 * 12288}\ns_add_u32 s{S_T2}, s{S_T2}, s{S_T3}\ns_add_u32 s{S_T2}, s{S_T2}, 4096')
        p.lane(15, [(3, 3, 12288), (0, 3, 16)], tmp=dst)
        for k in range(3):
            if k:
                p.e(f's_add_u32 s{S_T2}, s{S_T2}, 2048')
            p.e(f'buffer_load_dwordx4 {vr(dst)}, v15, {sr(SRD_A, 4)}, s{S_T2} offen offset:384')
        p.e(f'{sk}:')
    p.push('c3', fn)


def rewarm(p, label, n, dst):
    if not CFG['REWARM']:
        return
    here = p.lab('pc')
    p.e(f's_getpc_b64 s[{S_T0}:{S_T1}]\n{here}:\ns_lshl_b32 s{S_T2}, s{S_WV}, 10\ns_add_u32 s{S_T2}, s{S_T2}, ({label}-{here})&0xfffffff0')
    p.e(f's_min_u32 s{S_T2}, s{S_T2}, (L_code_end-{here}-{1024 + 8192 * (n - 1)})&0xfffffff0')
    p.e(f's_and_b32 s{S_T0}, s{S_T0}, 0xfffffff0\ns_add_u32 s{S_T0}, s{S_T0}, s{S_T2}\ns_addc_u32 s{S_T1}, s{S_T1}, 0')
    for k in range(n):
        if k:
            p.e(f's_add_u32 s{S_T0}, s{S_T0}, 8192\ns_addc_u32 s{S_T1}, s{S_T1}, 0')
        p.vmem(f'global_load_dwordx4 {vr(dst)}, v0, s[{S_T0}:{S_T1}]', 'code')


def helper_gate(p, cls, miss=None, va=15, vd=14):
    lp, ok = p.lab('hg'), p.lab('hgok')
    if miss is None:
        miss = CFG['GATE_MISS']
    if cls in 'RM':
        p.e(f's_and_b32 s{S_T0}, s2, 3\ns_add_u32 s{S_T0}, s{S_T0}, 10')
    else:
        p.e(f's_lshr_b32 s{S_T0}, s5, 4')
    p.e(f's_lshl_b32 s{S_T0}, s{S_T0}, 15\ns_add_u32 s{S_T0}, s{S_T0}, {WS_OP + 2044}\ns_mov_b32 s{S_SPIN}, 0')
    p.lane(va, [(0, 4, 2048)])
    p.e(f'{lp}:\nbuffer_load_dword v{vd}, v{va}, {sr(SRD_WS, 4)}, s{S_T0} offen sc1')
    p.e(f's_add_u32 s{S_SPIN}, s{S_SPIN}, 1\ns_cmp_ge_u32 s{S_SPIN}, {CFG["SPIN"]}\ns_cbranch_scc1 {ok}\ns_waitcnt vmcnt(0)')
    p.e(f'v_cmp_eq_u32 vcc, -1, v{vd}\ns_bcnt1_i32_b64 s{S_T1}, vcc\ns_cmp_gt_u32 s{S_T1}, {4 * miss}\ns_cbranch_scc1 {lp}\n{ok}:')
    p.vm = []


def h6_prefetch(p, cls):
    sk = p.lab('h6')
    p.srd(SRD_A, P_W1, 1024 * 7168)
    p.srd(SRD_W, P_W3, 1024 * 7168)
    p.e(f's_sub_u32 s{S_T0}, s{S_W8}, {dict(P=23, Q=15 - 2, R=27 - 10)[cls]}\ns_cmp_ge_u32 s{S_T0}, 14\ns_cbranch_scc1 {sk}')
    p.e(f's_lshl_b32 s{S_T0}, s{S_T0}, 3\ns_add_u32 s{S_T0}, s{S_T0}, s{S_WV}\ns_add_u32 s{S_T1}, s2, {CFG["USH"]}\ns_and_b32 s{S_T1}, s{S_T1}, 7\ns_lshl_b32 s{S_T1}, s{S_T1}, 7')
    p.lane(15, [(3, 3, 1024), (0, 3, 16)], sadd=S_T1, tmp=14)
    for ch in CFG['H6']:
        for half in range(2):
            p.e(f's_add_u32 s{S_T1}, s{S_T0}, {112 * half}\ns_mul_i32 s{S_T2}, s{S_T1}, 2341\ns_lshr_b32 s{S_T2}, s{S_T2}, 16')
            p.e(f's_mul_i32 s{S_T2}, s{S_T2}, {896 - 28 * 8}\ns_lshl_b32 s{S_T1}, s{S_T1}, 3\ns_add_u32 s{S_T2}, s{S_T2}, s{S_T1}')
            p.e(f's_add_u32 s{S_T2}, s{S_T2}, {32 * ch * 7}\ns_lshl_b32 s{S_T2}, s{S_T2}, 10')
            p.e(f's_waitcnt vmcnt({CFG["H6W"] - 2})')
            p.e(f'buffer_load_dwordx4 v[252:255], v15, {sr(SRD_A, 4)}, s{S_T2} offen')
            p.e(f'buffer_load_dwordx4 v[252:255], v15, {sr(SRD_W, 4)}, s{S_T2} offen')
    p.e(f'{sk}:')


def h5_prefetch(p, cls):
    p.srd(SRD_A, P_W2, 3584 * 2048)
    if CFG['H5X']:
        p.e(f's_sub_u32 s{S_T0}, s{S_W8}, {dict(P=23, Q=15 - 2, R=27 - 10)[cls]}\ns_lshr_b32 s{S_T2}, s{S_T0}, 1\ns_lshl_b32 s{S_T2}, s{S_T2}, 3')
        p.e(f's_add_u32 s{S_T1}, s2, {CFG["USH"]}\ns_and_b32 s{S_T1}, s{S_T1}, 7\ns_add_u32 s{S_T2}, s{S_T2}, s{S_T1}\ns_lshl_b32 s{S_T2}, s{S_T2}, 17')
    else:
        p.e(f's_sub_u32 s{S_T0}, s2, {dict(Q=120 - 16, R=216 - 80, P=184)[cls]}')
        p.e(f's_lshr_b32 s{S_T2}, s{S_T0}, 1\ns_lshl_b32 s{S_T2}, s{S_T2}, 17')
    p.e(f's_and_b32 s{S_T0}, s{S_T0}, 1\ns_lshl_b32 s{S_T0}, s{S_T0}, 15')
    p.e(f's_add_u32 s{S_T2}, s{S_T2}, s{S_T0}\ns_add_u32 s{S_T2}, s{S_T2}, s{S_ROT}')
    sk = p.lab('h5')
    p.e(f's_cmp_ge_u32 s{S_T2}, {3584 * 2048}\ns_cbranch_scc1 {sk}')
    for off in (0, 65536)[:CFG['H5']]:
        p.e(f's_add_u32 s{S_T3}, s{S_T2}, {off}')
        for j in range(4):
            p.waitn(CFG['H5W'] - 1)
            p.vmem(f'buffer_load_dwordx4 v[252:255], v0, {sr(SRD_A, 4)}, s{S_T3} offen offset:{1024 * j}', 'h5')
    p.e(f'{sk}:')


def build_class(cls, ent):
    p = Prog(cls)
    pre = {'P': 'mod', 'PR': 'mod', 'Q': 'q'}.get(cls)
    p.vm = list(ent.vm_pre if pre else ent.vm)
    p.e(f'L_class_{cls}:')
    if pre:
        if CFG['JUMP0']:
            ids(p)
            code_prefetch(p)
            kv_base(p)
        got_args(p)
    common_setup(p)
    Wattn = CFG['W_' + cls]
    er = cls == 'R' and CFG['R_AT']
    late = pre or er
    stage = CFG['STAGE'] and not late
    p.nburst = CFG['BURST_L' if late else 'BURST']
    p.vch = [64, 96, 160, 128] if stage else VCH
    S_COL, S_OUT, S_WB = S_U, S_U + 1, S_U + 2
    S_OUT2, S_COL2 = S_U + 4, S_U + 5
    roles = []
    if pre == 'mod':
        p.srd(SRD_W, P_WMOD, 1024 * 12288)
        p.srd(SRD_A, P_C, 8192)
        unit_index(p, S_T1, 184, 32)
        mod_unit_setup(p, S_T1, S_COL, S_OUT)
        narrow_setup(p, 12288, 10, S_WB, S_COL, 3)
    if pre == 'q':
        p.srd(SRD_W, P_WQ, 1024 * 8192)
        p.srd(SRD_A, P_X, 8192)
        unit_index(p, S_COL, 120, 64)
        p.e(f's_lshl_b32 s{S_COL}, s{S_COL}, 7\ns_add_u32 s{S_OUT}, s{S_COL}, {WS_Q}')
        narrow_setup(p, 8192, 10, S_WB, S_COL, 3)
    if pre:
        p.lane(11, AL_TERMS, tmp=3)
        p.e(f's_lshl_b32 s{S_U + 6}, s{S_WV}, 8')
        push_al_loads(p, 'ACT', SRD_A, 16, 11, S_U + 6)
        push_narrow_weights(p, 'WA', 12288 if pre == 'mod' else 8192, 64, 96, 10, S_WB)
        roles.append(lambda: clear_rows(p, S_OUT, 2048 if pre == 'mod' else 8192, 128))
    if cls == 'O' and CFG['HP3']:
        p.srd(SRD_W, P_WMOD, 1024 * 12288)
        p.e(f's_lshl_b32 s{S_T0}, s2, 3\ns_add_u32 s{S_T0}, s{S_T0}, s{S_WV}\ns_lshr_b32 s{S_T1}, s{S_T0}, 7\ns_lshl_b32 s{S_T1}, s{S_T1}, 10')
        p.e(f's_and_b32 s{S_T0}, s{S_T0}, 127\ns_mul_i32 s{S_T0}, s{S_T0}, {8 * 12288}\ns_add_u32 s{S_T0}, s{S_T0}, s{S_T1}')
        p.lane(10, [(3, 3, 12288), (0, 3, 16)], tmp=3)
        p.vmem(f'buffer_load_dwordx4 v[252:255], v10, {sr(SRD_W, 4)}, s{S_T0} offen offset:384', 'hp3')
    if cls in ('PR', 'R'):
        unit_index(p, S_T1, *((216, 40) if cls == 'R' else (200, 16)))
        p.e(f's_add_u32 s{S_T1}, s{S_T1}, {32 if cls == "R" else 80}')
        mod_unit_setup(p, S_T1, S_COL2, S_OUT2)
        roles.append(lambda: clear_rows(p, S_OUT2, 2048, 128))
    if cls == 'R':
        p.e(f's_sub_u32 s{S_T1}, s2, 216\ns_and_b32 s{S_T0}, s{S_T1}, 3\ns_lshr_b32 s{S_T1}, s{S_T1}, 2')
        p.e(f's_lshl_b32 s{S_OUT}, s{S_T0}, 13\ns_lshl_b32 s{S_COL}, s{S_T1}, 8\ns_add_u32 s{S_OUT}, s{S_OUT}, s{S_COL}\ns_add_u32 s{S_OUT}, s{S_OUT}, {WS_CBP}')
        p.e(f's_mul_i32 s{S_T0}, s{S_T0}, {256 * 12288}\ns_lshl_b32 s{S_COL}, s{S_T1}, 7\ns_add_u32 s{S_COL}, s{S_COL}, s{S_T0}\ns_add_u32 s{S_COL}, s{S_COL}, {72 * 128}')

        def q_clear():
            sk = p.lab('qclr')
            p.e(f's_cmp_ge_u32 s2, 248\ns_cbranch_scc1 {sk}')
            clear_rows(p, S_OUT, 2048, 256)
            p.e(f'{sk}:')
        roles.append(q_clear)
    if cls == 'O':
        p.e(f's_and_b32 s{S_COL}, s2, 7\ns_lshl_b32 s{S_OUT}, s{S_COL}, 13\ns_lshl_b32 s{S_T0}, s{S_W8}, 8')
        p.e(f's_add_u32 s{S_OUT}, s{S_OUT}, s{S_T0}\ns_add_u32 s{S_OUT}, s{S_OUT}, {WS_AP}')
        roles.append(lambda: clear_rows(p, S_OUT, 2048, 256))
    if cls == 'M':
        unit_index(p, S_COL, 64, 56)
        p.e(f's_lshl_b32 s{S_OUT}, s{S_COL}, 13\ns_lshl_b32 s{S_T0}, s{S_WV}, 10')
        p.e(f's_add_u32 s{S_OUT}, s{S_OUT}, s{S_T0}\ns_add_u32 s{S_OUT}, s{S_OUT}, {WS_FP}')

        def fp_clear():
            for k in range(8):
                if k % 4 == 0:
                    p.e(f's_add_u32 s{S_T0}, s{S_OUT}, {1024 * k}')
                p.e(f'buffer_store_dwordx4 v[4:7], v0, {sr(SRD_WS, 4)}, s{S_T0} offen offset:{1024 * (k % 4)} sc1')
        roles.append(fp_clear)
    clears(p, lambda: [r() for r in roles])

    def role_setup():
        if cls == 'O':
            p.srd(SRD_W, P_WO, 4096 * 2048)
            p.lane(12, [(4, 2, 8 * 2048), (0, 4, 16)], tmp=13)
            p.e(f's_lshl_b32 s{S_WB}, s{S_COL}, 3\ns_add_u32 s{S_WB}, s{S_WB}, s{S_WV}\ns_lshl_b32 s{S_WB}, s{S_WB}, 17')
            p.e(f's_lshl_b32 s{S_T0}, s{S_W8}, 8\ns_add_u32 s{S_WB}, s{S_WB}, s{S_T0}')
        if cls in ('PR', 'R'):
            p.srd(SRD_W, P_WMOD, 1024 * 12288)
            p.srd(SRD_A, P_C, 8192)
            narrow_setup(p, 12288, 12, S_WB, S_COL2, 13)
            p.lane(13, AL_TERMS, tmp=14)
            p.e(f's_lshl_b32 s{S_U + 6}, s{S_WV}, 8')
        if cls == 'M':
            p.srd(SRD_W, P_W2, 3584 * 2048)
            p.srd(SRD_A, P_X, 8192)
            p.e(f's_mov_b32 s{S_MASK}, 0xff00ff00\ns_mov_b32 s{S_MASK + 1}, 0xff00ff00')
            p.e(f'v_mov_b32 v12, s{P_W1}\nv_mov_b32 v13, s{P_W1 + 1}\nv_mov_b32 v14, s{P_W3}\nv_mov_b32 v15, s{P_W3 + 1}')
            p.e(f'v_cndmask_b32 v12, v12, v14, {sr(S_MASK)}\nv_cndmask_b32 v13, v13, v15, {sr(S_MASK)}')
            p.e(f's_mul_i32 s{S_T0}, s{S_WV}, {128 * 7168}\ns_lshl_b32 s{S_T1}, s{S_COL}, 7\ns_add_u32 s{S_T0}, s{S_T0}, s{S_T1}')
            p.lane(14, [(4, 2, 8 * 7168), (0, 3, 16)], sadd=S_T0, tmp=15)
            p.e('v_mov_b32 v15, 0\nv_lshl_add_u64 v[12:13], v[14:15], 0, v[12:13]')
            p.e(f's_mov_b32 s{S_C64}, 7168\ns_mov_b32 s{S_C64 + 1}, 0\ns_mov_b32 s{S_C64B}, {25 * 7168}\ns_mov_b32 s{S_C64B + 1}, 0')
            p.lane(14, [(4, 2, 8 * 2048), (0, 4, 16)], tmp=15)
            p.e(f's_lshl_b32 s{S_WB}, s{S_COL}, 17\ns_lshl_b32 s{S_T0}, s{S_WV}, 8\ns_add_u32 s{S_WB}, s{S_WB}, s{S_T0}')

    def sc_issue(model):
        for k, chunk in ((0, 0), (1, 1)):
            for q in range(2):
                p.e(f's_add_u32 s{S_T3}, s{S_U + 6}, {WS_MOD + chunk * 8192 + 4096 * q}')
                s = f'buffer_load_dwordx2 {vr(24 + 4 * k + 2 * q, 2)}, v11, {sr(SRD_WS, 4)}, s{S_T3} offen sc1'
                p.vmem(s, 'SC') if model else p.e(s)

    def w13(u, raw, nd):
        def mk(jj):
            def fn(t):
                p.vmem(f'global_load_dwordx4 {vr(raw + 4 * jj)}, v[12:13], off nt', t)
                p.e(f'v_lshl_add_u64 v[12:13], {sr(S_C64B if jj == 7 else S_C64)}, 0, v[12:13]')
            return fn
        return [(f'WM{u}', mk(jj), nd) for jj in range(8)]

    for t in range(0 if pre else 1, 8):
        if t == 4 and CFG['C3']:
            base = dict(O=(0, 2), Q=(120, 2), R=(216, 3), M=(64, 2), P=(184, 4), PR=(184, 4))
            if cls == CFG['C3W1'] or (CFG['C3W1'] == 'P' and cls == 'PR'):
                push_c3half(p, P_W1, base[cls][0]) if CFG['C3H'] else push_c3(p, 'c3', P_W1, 1024 * 7168, *base[cls])
        if t == 5 and CFG['C3']:
            if CFG['O48'] and cls == 'O':
                push_o48(p, 'w3')
            elif CFG['O48'] and cls in ('P', 'PR'):
                if cls == 'P':
                    push_c3(p, 'c3', P_W3, 1024 * 7168, 184, 1, 768)
            elif CFG['C3W3'] in ('OP', 'QP') and cls in (CFG['C3W3'][0], 'P', 'PR'):
                push_c3(p, 'c3', P_W3, 1024 * 7168, *dict(O=(0, 1, 0), Q=(120, 1, 0), P=(184, 2, 512), PR=(200, 1, 768))[cls])
            if cls == CFG['C3W3'] or (CFG['C3W3'] == 'P' and cls == 'PR'):
                push_c3half(p, P_W3, base[cls][0]) if CFG['C3H'] else push_c3(p, 'c3', P_W3, 1024 * 7168, *base[cls])
        if t == 5 and CFG['C3O'] and cls in ('P', 'PR'):
            push_c3(p, 'c3', P_WO, 4096 * 2048, 184, CFG['C3O'], stride=4)
        if t == 1 and CFG['C3Q'] and cls in CFG['C3Q']:
            wb, n, first = dict(O=(0, 2 if '2' in CFG['C3Q'] else 1, 512 if 'h' in CFG['C3Q'] else 0), R=(216, 1, 512), M=(64, 1, 512))[cls]
            push_o48(p, 'wq') if CFG['O48'] else push_c3(p, 'c3', P_WQ, 1024 * 8192, wb, n, first)
        if t == (1 if CFG['R_AT'] else 6) and cls == CFG['C3MOD']:
            push_o48(p, 'mod') if CFG['O48'] else push_c3mod_late(p) if CFG['OLATE'] else push_c3mod(p, dict(O=0, Q=120, M=64)[cls])
        if pre == 'q' and t == 0:
            push_cnt(p, 14, 'CNTA', 128)
        if pre == 'q' and t == CFG['SC_AT']:
            p.push('SC', lambda tg: sc_issue(True), 'cnta')
        if er and t == CFG['R_AT']:
            p.push('Rs', lambda tg: role_setup())
            push_al_loads(p, 'ACT2', SRD_A, 32, 13, S_U + 6)
            push_narrow_weights(p, 'WB', 12288, 64, 96, 12, S_WB)
            p.push('WQ', lambda tg: quarter_loads(p, S_COL, 16))
        if late and t == 6:
            push_cnt(p, 127 if er else 10)
        push_page(p, SRD_K, f'K{t}', t, R_K + 16 * t, 'pre' if (pre == 'mod' and t == CFG['P_HOLD']) else None)
    vv = capture(p, lambda: push_v(p, 0, 'pre' if late else None)) + capture(p, lambda: push_v(p, 1, 'pre' if late else None))
    qi = capture(p, lambda: push_q(p, 11))
    if stage:
        vv += capture(p, lambda: push_v_lds(p, 2))
    if late:
        p.stream += qi + vv
    else:
        k = CFG['Q_AT'] + (CFG['STAGE'] if stage else 0)
        p.stream += vv[:k - 6] + capture(p, lambda: push_cnt(p, 10)) + vv[k - 6:k] + qi + vv[k:]
    v3 = capture(p, lambda: push_v(p, 3, 'K01' if stage else 'pv0'))
    ml = capture(p, lambda: push_ml(p))
    if not stage:
        push_v(p, 2, 'K01')
    p.stream += v3[:3] + ml + v3[3:] if late else v3
    mark = len(p.stream)
    if cls == 'O':
        push_wide_rows(p, 'WO0', 192, 12, S_WB, 0, 'K47')
        push_wide_rows(p, 'WO1', 224, 12, S_WB, 32)
    if cls in ('R', 'PR') and not er:
        wb = capture(p, lambda: push_narrow_weights(p, 'WB', 12288, 192, 224, 12, S_WB))
        wb = [(t, f, 'K47') for t, f, _ in wb]
        wb.insert(0 if cls == 'R' else 8, ('ACT2', capture(p, lambda: push_al_loads(p, 'ACT2', SRD_A, 96, 13, S_U + 6))[0][1], 'pv1'))
        k = 99 if cls == 'R' else CFG['P_EARLY']
        p.stream += wb[:k] + [(t, f, 'ost') for t, f, _ in wb[k:]]
    if cls == 'M':
        l3 = CFG['LATE3']
        if l3 == 3:
            x = CFG['XPRE']
            assert x <= 2
            post = sum((w13(u, r, 'K47' if u < x else 'gate') for u, r in enumerate((192, 224, 96, 128))), [])
            post.insert(8 * x, ('MOD', lambda t: m_mod_issue(p, True), 'ost'))
        else:
            post = w13(0, 192, 'K47') + w13(1, 224, None) + w13(2, 96, 'pv1') + w13(3, 128, 'modok' if l3 == 2 else 'pv3')
            post.insert(len(post) - (8 if l3 else 0), ('MOD', lambda t: m_mod_issue(p, True), 'p2'))
        p.stream += post
        p.w2raw = (128, 96) if l3 else (96, 128)
        p.w2late = capture(p, lambda: push_wide_rows(p, 'WM4', p.w2raw[0], 14, S_WB, 0)) + capture(p, lambda: push_wide_rows(p, 'WM5', p.w2raw[1], 14, S_WB, 32))
    if not late:
        k = CFG['ML_AT_M' if cls == 'M' else 'ML_AT']
        if cls == 'M' and CFG['LATE3'] == 3:
            k = min(k, 8 * CFG['XPRE'])
        p.stream.insert(mark + k, ml[0])

    p.W = CFG['W_PRE'] if pre == 'mod' else CFG['W_PREQ'] if pre else CFG['W_INIT']
    while p.can_pump() and len(p.vm) < p.W and p.stream[0][0] not in ('CNTA', 'K0'):
        p.pump(1)
    p.stamp('first')
    if not pre:
        touch(p, cls)
    common_setup2(p)
    k_setup(p)
    arrive(p, {'mod': [128, 0], 'q': [0], None: []}[pre])
    p.W = Wattn if pre else CFG['W_LOW']
    if CFG['PRIO'] == 'all':
        prio_young(p, 1)
    if not pre:
        k_trans(p, 0)
        p.stamp('k0')
    if pre == 'mod':
        p.need('ACT')
        silu_to_xa(p, 16, list(range(20, 28)), 12)
        p.need('WA0')
        p.perm_chunk(64, 32)
        p.need('WA1')
        p.stamp('w_landed')
        p.perm_chunk(96, 64)
        narrow_gemv(p, 32, 64, 96, 112, [12, 13, 14], (S_OUT, 2048))
        p.release('pre')
        p.stamp('pre_done')
    if pre == 'q':
        p.need('ACT')
        X = list(range(40, 48))
        for d in range(4):
            p.unpack(16 + d, X[2 * d], X[2 * d + 1])
        layernorm(p, X, list(range(48, 60)), True)
        for d in range(4):
            p.e(f'v_cvt_pk_bf16_f32 v{16 + d}, v{X[2 * d]}, v{X[2 * d + 1]}')
        p.need('WA0')
        p.perm_chunk(64, 32)
        p.need('WA1')
        p.stamp('w_landed')
        p.perm_chunk(96, 64)
        check_cnt(p, 14, 'CNTA', 128, 32)
    for t in range(0 if pre else 1, 8):
        if not pre and t == CFG[dict(M='T_LOW_M', R='T_LOW_R').get(cls, 'T_LOW')]:
            p.W = Wattn
        if t == CFG['XAT'] and cls in CFG['XCLS'].split('+'):
            p.slow = CFG['XSLOW']
        k_trans(p, t)
        if not pre and t == 1:
            count_b(p)
        if pre == 'q' and t == CFG['SC_AT'] - 1:
            p.need('SC')
            p.burst(CFG['Q_BURST'])
            p.stamp('sc_landed')
            p.check_retry(lambda: sc_issue(False), list(range(24, 32)), 12)
            p.stamp('sc_ok')
            X = list(range(96, 104))
            for d in range(4):
                p.unpack(16 + d, X[2 * d], X[2 * d + 1])
            one_plus(p, [28, 29, 30, 31], [104, 105])
            modulate(p, X, [28, 29, 30, 31], [24, 25, 26, 27], [104, 105], [16, 17, 18, 19])
            xa_base(p, S_T0)
            p.lane(12, XA_TERMS, sadd=S_T0, tmp=13)
            p.e('ds_write_b64 v12, v[16:17]\nds_write_b64 v12, v[18:19] offset:512')
            narrow_gemv(p, 32, 64, 96, 112, [12, 13, 14], (S_OUT, 8192))
            p.release('pre')
            p.stamp('pre_done')
        if er and t == CFG['R_AT'] - 1:
            p.need('ACT2')
            silu_to_xa(p, 32, list(range(36, 44)), 10)
            p.need('WB0')
            p.perm_chunk(64, 32)
            p.need('WB1')
            p.perm_chunk(96, 64)
            p.burst(2)
            narrow_gemv(p, 32, 64, 96, 112, [12, 13, 14], (S_OUT2, 2048))
            quarter_compute(p, 16, 32, 48, 64)
            sk = p.lab('qf')
            p.burst(3)
            p.e(f's_waitcnt lgkmcnt(0)\ns_barrier\ns_cmp_lt_u32 s{S_WV}, 4\ns_cbranch_scc1 {sk}')
            quarter_final(p, S_OUT, 48)
            p.e(f'{sk}:')
            p.release('pre')
            p.stamp('q_done')
        if late and t == 6:
            check_cnt(p, 127 if er else 10)
    if not er:
        role_setup()
    p.stamp('k_done')
    if not late:
        check_cnt(p, 10)
    if CFG['PRIO'] in ('qk', 'qk+'):
        prio_young(p, 1)
    qk_softmax(p, 11)
    if CFG['PRIO'] == 'qk':
        p.e('s_setprio 0')
    p.release('sm')
    if CFG['XAT'] == 'sm' and cls in CFG['XCLS'].split('+'):
        p.slow = CFG['XSLOW']
    pv_chunk(p, 0, 160)
    p.release('pv0')
    if stage:
        v_from_lds(p, 2, 10)
    pv_chunk(p, 1, 64)
    p.release('pv1')
    if stage:
        p.e('s_waitcnt lgkmcnt(0)')
    if CFG['W_END'] and late:
        p.W = max(p.W, CFG['W_END'])
    pv_chunk(p, 2, 64)
    p.stamp('v2')
    if late:
        ml_scale(p)
        p.stamp('ml_ok')
    pv_chunk(p, 3, 64)
    p.release('pv3')
    p.stamp('pv_done')
    if cls == 'R' and not er:
        p.need('ACT2')
        silu_to_xa(p, 96, list(range(100, 108)), 10)
    if not late:
        ml_scale(p)
        p.stamp('ml_ok')
        p.burst(CFG['E_BURST_O' if cls == 'O' else 'E_BURST'])
    attn_epilogue(p)
    p.release('ost')
    if cls == 'M':
        p.W = max(p.W, CFG['W_POST'])
    if cls == 'PR':
        p.W = CFG['W_POSTP']
    if cls == 'O':
        p.need('WO0')
        p.perm_chunk(192, O_F, fs=8)
        while p.can_pump():
            p.pump(1)
        o_setup(p, S_COL, S_OUT)
        if CFG['EARLY3']:
            p.poll_first(E3_OFFS, S_U + 7, 13, O_E3)
        p.need('WO1')
        p.perm_chunk(224, O_F + 4, fs=8)
        p.stamp('w_ready')
        p.e('L_otail:')
        o_tail(p, S_OUT)
    if cls == 'PR':
        p.need('ACT2')
        silu_to_xa(p, 96, list(range(100, 108)), 10)
        p.perm_chunk(192, 32)
        p.need('WB1')
        p.perm_chunk(224, 64)
        narrow_gemv(p, 32, 64, 96, 112, [12, 13, 14], (S_OUT2, 2048))
        p.stamp('post_done')
    if cls == 'R' and not er:
        p.need('WB0')
        while p.can_pump():
            p.pump(1)
        quarter_loads(p, S_COL)
        p.perm_chunk(192, 32)
        p.need('WB1')
        p.perm_chunk(224, 64)
        narrow_gemv(p, 32, 64, 96, 112, [12, 13, 14], (S_OUT2, 2048), before_barrier=lambda: quarter_compute(p),
                    upper=lambda: quarter_final(p, S_OUT))
        p.stamp('q_done')
    if cls == 'M':
        m_tail(p, S_COL, S_OUT)
    if cls in ('Q', 'R', 'P') and CFG['GATE']:
        helper_gate(p, cls)
    if cls in ('Q', 'R', 'P') and CFG['H6']:
        h6_prefetch(p, cls)
    if cls in ('Q', 'R', 'P') and CFG['H5']:
        h5_prefetch(p, cls)
    assert not p.stream, [t[0] for t in p.stream]
    finish(p)
    return p


O_SEL, O_E3, O_B, O_F = 16, 64, 24, 96
E3_OFFS = [(t >> 2) * 2 * 4 * 16 * 2048 + (t & 3) * 4 * 2048 for t in range(8)]
RED_W = [(4, 2, 512), (0, 4, 32)]


def o_setup(p, S_KS, S_OUT):
    selectors(p, O_SEL, 10)
    p.lane(13, [(3, 1, 4 * 16 * 2048), (4, 2, 2048), (0, 3, 16)], tmp=10)
    p.e(f's_lshr_b32 s{S_T0}, s{S_KS}, 1\ns_lshl_b32 s{S_T0}, s{S_T0}, 15\ns_and_b32 s{S_T1}, s{S_KS}, 1\ns_lshl_b32 s{S_T1}, s{S_T1}, 10')
    p.e(f's_add_u32 s{S_T0}, s{S_T0}, s{S_T1}\ns_lshl_b32 s{S_T1}, s{S_WV}, 7\ns_add_u32 s{S_T0}, s{S_T0}, s{S_T1}\ns_add_u32 s{S_U + 7}, s{S_T0}, {WS_OP}')
    xa_base(p, S_T0)
    p.lane(14, [(5, 1, 256), (3, 1, 128), (0, 3, 8), (4, 1, 4)], sadd=S_T0, tmp=10)
    sp_addrs(p, O_B, 128, S_T0, 0, 10, O_B + 2)
    p.e(f's_lshl_b32 s{S_T0}, s{S_WV}, 11\ns_add_u32 s{S_T0}, s{S_T0}, {L_RED}')
    p.lane(15, RED_W, sadd=S_T0, tmp=10)
    p.e(f's_lshl_b32 s{S_T0}, s{S_WV}, 9\ns_add_u32 s{S_T0}, s{S_T0}, {L_RED}')
    p.lane(O_B + 4, [(0, 6, 8)], sadd=S_T0)
    p.e(f's_lshl_b32 s{S_T0}, s{S_WV}, 11\ns_add_u32 s{S_OUT}, s{S_OUT}, s{S_T0}')
    for k in range(20):
        p.e(f'v_mov_b32 v{32 + k}, 0')


def o_tail(p, S_OUT):
    ACC, D, OUT, A = 32, 48, 52, 160
    p.waitn(0)
    p.poll_rr(E3_OFFS, S_U + 7, 13, O_E3, 10,
              lambda t, r: p.e(f'v_mfma_f32_16x16x32_bf16 {vr(D)}, {vr(O_SEL + 4 * (t >> 2))}, {vr(r)}, {vr(D)}'), CFG['EARLY3'], CFG['SL3'])
    p.stamp('e3_ok')
    p.e(f'v_cvt_pk_bf16_f32 v{D}, v{D}, v{D + 1}\nv_cvt_pk_bf16_f32 v{D + 1}, v{D + 2}, v{D + 3}')
    p.e(f'ds_write2_b32 v14, v{D}, v{D + 1} offset0:0 offset1:16')
    p.e(f'ds_read_b128 {vr(A)}, v{O_B}\nds_read_b128 {vr(A + 4)}, v{O_B + 1}\ns_waitcnt lgkmcnt(0)')
    p.stamp('o1')
    sp_gemv(p, O_F, A, ACC, O_B + 2)
    sp_fold(p, ACC, OUT)
    p.e(f'ds_write_b128 v15, {vr(OUT)}\nds_write_b128 v15, {vr(OUT + 4)} offset:16')
    sk = p.lab('ofin')
    p.stamp('o2')
    p.e(f's_waitcnt lgkmcnt(0)\ns_barrier')
    p.stamp('o3')
    p.e(f's_cmp_ge_u32 s{S_WV}, 4\ns_cbranch_scc1 {sk}')
    B = 168
    for k in range(4):
        p.e(f'ds_read2st64_b64 {vr(B + 4 * k)}, v{O_B + 4} offset0:{8 * k} offset1:{8 * k + 4}')
    p.e('s_waitcnt lgkmcnt(0)')
    p.tree(B, (8, 4, 2))
    p.e(f'v_cvt_pk_bf16_f32 v{B + 4}, v{B}, v{B + 1}')
    quad_pack_store(p, B + 4, 9, S_OUT)
    p.e(f'{sk}:')
    p.stamp('a_stored')


CB_OFFS = [WS_CBP - 2048 + 8192 * kq + 4096 * q for kq in range(4) for q in range(2)]


def m_mod_issue(p, first):
    if first:
        p.lane(112, AL_TERMS, tmp=2)
        p.lane(113, [(5, 1, 2048), (0, 4, 32), (4, 1, 16)], tmp=2)
        p.e(f's_lshl_b32 s{S_U + 6}, s{S_WV}, 8\ns_lshl_b32 s{S_U + 5}, s{S_WV}, 9')
        for k in range(104, 108):
            p.e(f'v_mov_b32 v{k}, 0')
        push_al_loads(p, None, SRD_A, 96, 112, S_U + 6)(False)
    hi, jn = p.lab('cbhi'), p.lab('cbj')
    p.e(f's_cmp_ge_u32 s{S_WV}, 4\ns_cbranch_scc1 {hi}')
    for q in range(2):
        p.e(f's_add_u32 s{S_T3}, s{S_U + 6}, {WS_MOD + 4 * 8192 + 4096 * q}')
        p.e(f'buffer_load_dwordx2 {vr(104 + 2 * q, 2)}, v112, {sr(SRD_WS, 4)}, s{S_T3} offen sc1')
    if first:
        p.e(f's_branch {jn}\n{hi}:')
        for t, off in enumerate(CB_OFFS):
            p.e(f's_add_u32 s{S_T3}, s{S_U + 5}, {off}')
            p.e(f'buffer_load_dwordx4 {vr(160 + 4 * t)}, v113, {sr(SRD_WS, 4)}, s{S_T3} offen sc1')
        p.e(f'{jn}:')
    else:
        p.e(f'{hi}:')
    for k, chunk in ((0, 2), (2, 3)):
        for q in range(2):
            p.e(f's_add_u32 s{S_T3}, s{S_U + 6}, {WS_MOD + chunk * 8192 + 4096 * q}')
            s = f'buffer_load_dwordx2 {vr(100 + 4 * k + 2 * q, 2)}, v112, {sr(SRD_WS, 4)}, s{S_T3} offen sc1'
            p.vmem(s, 'MOD') if first else p.e(s)


def m_tail(p, S_MI, S_OUT):
    raw = [192, 224, 96, 128]
    F = [32, 36, 192, 196]
    F0, F1 = 32, 192

    def w2_issue(a, b):
        for t, f, _ in p.w2late[a:b]:
            f(t)
    SP, SEL, D = 160, 16, 24
    IDX, A0 = 4, 5
    p.fill()
    for u in range(CFG['XPRE']) if CFG['LATE3'] == 3 else (0, 1, 2):
        p.need(f'WM{u}')
        p.stamp(f'wm{u}')
        p.perm_chunk(raw[u], F[u], fs=8)
    p.release('p2')
    while p.can_pump():
        p.pump(1)
    if CFG['E4KS']:
        selectors_b(p, SEL, 2)
        p.lane(11, [(4, 2, 2048), (0, 4, 16)], tmp=2)
    else:
        selectors(p, SEL, 2)
        p.lane(11, [(4, 2, 8192), (0, 4, 16)], tmp=2)
    p.e(f's_add_u32 s{S_U + 7}, s{S_U + 6}, {WS_AP}')
    xa_base(p, S_T0)
    sp_addrs(p, A0, 256, S_T0, 0, 2, IDX)
    VX1 = 12
    l3 = CFG['LATE3']
    E4R = p.w2raw[1]

    def late_addrs():
        xa_base(p, S_T0)
        p.lane(13, [(5, 1, 256), (0, 4, 8), (4, 1, 4)], sadd=S_T0, tmp=2)
        p.e(f's_add_u32 s{S_T0}, s{S_U + 6}, {L_X1}')
        p.lane(VX1, AL_TERMS, sadd=S_T0, tmp=2)

    def perm3():
        p.need('WM3')
        p.stamp('wm3')
        p.perm_chunk(raw[3], F[3], fs=8)
    p.e(f's_lshl_b32 s{S_T0}, s{S_WV}, 11\ns_add_u32 s{S_T0}, s{S_T0}, {L_RED}')
    p.lane(15, RED_W, sadd=S_T0, tmp=2)
    p.e(f's_lshr_b32 s{S_T0}, s{S_WV}, 1\ns_lshl_b32 s{S_T0}, s{S_T0}, 9\ns_and_b32 s{S_T1}, s{S_WV}, 1\ns_lshl_b32 s{S_T2}, s{S_T1}, 7')
    p.e(f's_add_u32 s{S_T2}, s{S_T2}, s{S_T0}\ns_add_u32 s{S_T2}, s{S_T2}, {L_RED}')
    p.lane(8, [(5, 1, 256), (0, 5, 4)], sadd=S_T2, tmp=2)
    p.e(f's_lshr_b32 s{S_T0}, s{S_T0}, 2\ns_lshl_b32 s{S_T1}, s{S_T1}, 5\ns_add_u32 s{S_T0}, s{S_T0}, s{S_T1}\ns_add_u32 s{S_T0}, s{S_T0}, {L_X2}')
    p.lane(9, [(1, 1, 64), (2, 3, 4), (0, 1, 2)], sadd=S_T0, tmp=2)
    p.lane(7, [(2, 2, 256), (4, 2, 64), (0, 2, 16)], tmp=2)
    p.e(f's_lshl_b32 s{S_T0}, s{S_WV}, 4\ns_add_u32 s{S_T0}, s{S_T0}, {L_FINB}')
    p.lane(10, [(5, 1, 128), (4, 1, 8)], sadd=S_T0, tmp=2)
    p.lane(3, [(5, 1, 128), (0, 4, 8)], const=L_FINB, tmp=2)
    offs = [t * 8192 if CFG['E4KS'] else (t & 1) * 4 * 8192 + (t >> 1) * 2048 for t in range(8)]
    if not l3:
        perm3()
        p.poll_first(offs, S_U + 7, 11, E4R)
        late_addrs()
    for k in range(8):
        p.e(f'v_mov_b32 v{D + k}, 0')
    p.need('MOD')
    p.stamp('mod_landed')
    def packed(chunk, reg):
        txt = '\n'.join(f's_add_u32 s{S_T3}, s{S_U + 6}, {WS_MOD + chunk * 8192 + 4096 * q}\n'
                        f'buffer_load_dwordx2 {vr(reg + 2 * q, 2)}, v112, {sr(SRD_WS, 4)}, s{S_T3} offen sc1' for q in range(2))
        return (txt, list(range(reg, reg + 4)))

    def partial(kq):
        txt = '\n'.join(f's_add_u32 s{S_T3}, s{S_U + 5}, {CB_OFFS[2 * kq + q]}\n'
                        f'buffer_load_dwordx4 {vr(160 + 8 * kq + 4 * q)}, v113, {sr(SRD_WS, 4)}, s{S_T3} offen sc1' for q in range(2))
        return (txt, list(range(160 + 8 * kq, 168 + 8 * kq)))
    hi, jn = p.lab('mhi'), p.lab('mjn')
    p.e(f's_cmp_ge_u32 s{S_WV}, 4\ns_cbranch_scc1 {hi}')
    p.poll_items([packed(2, 100), packed(4, 104), packed(3, 108)], 2)
    p.e(f's_branch {jn}\n{hi}:')
    p.poll_items([packed(2, 100), packed(3, 108)] + [partial(k) for k in range(4)], 2)
    p.e(f'{jn}:')
    if l3 == 2:
        p.release('modok')
        p.burst(8)
    sk = p.lab('cbs')
    p.e(f's_cmp_lt_u32 s{S_WV}, 4\ns_cbranch_scc1 {sk}')
    for k in range(16):
        p.e(f'v_add_f32 v{160 + k}, v{160 + k}, v{176 + k}')
    for k in range(8):
        p.e(f'v_add_f32 v{160 + k}, v{160 + k}, v{168 + k}')
    for d in range(4):
        p.e(f'v_cvt_pk_bf16_f32 v{104 + d}, v{160 + 2 * d}, v{161 + 2 * d}')
    p.e(f'{sk}:')
    p.e('L_mtail:')
    one_plus(p, list(range(104, 108)), [2, 114])
    for k, dst in enumerate((SP, SP + 16, SP + 8, SP + 24)):
        for d in range(4):
            p.unpack(96 + 4 * k + d, dst + 2 * d, dst + 2 * d + 1)
    if l3 == 3:
        p.stamp('mod_ok')
        helper_gate(p, 'M', CFG['MGATE_MISS'], 2, 114)
        p.stamp('gate')
        p.release('gate')
        p.W = CFG['W_GATE']
        for u in range(CFG['XPRE'], 3):
            p.need(f'WM{u}')
            p.stamp(f'wm{u}')
            p.perm_chunk(raw[u], F[u], fs=8)
        while p.can_pump():
            p.pump(1)
    if l3:
        p.poll_first(offs, S_U + 7, 11, E4R)
        late_addrs()
        perm3()
    p.stamp('w_ready')
    k0 = CFG['W2PRE']
    w2_issue(0, k0)
    p.wait('poll')
    keep = list(p.vm)

    def acc4(t, r):
        if CFG['E4KS']:
            for q in range(2):
                p.e(f'v_mfma_f32_16x16x32_bf16 {vr(D + 4 * q)}, {vr(SEL + 4 * q)}, {vr(r)}, {vr(D + 4 * q)}')
        else:
            p.e(f'v_mfma_f32_16x16x32_bf16 {vr(D + 4 * (t >> 2))}, {vr(SEL + 4 * ((t >> 1) & 1))}, {vr(r)}, {vr(D + 4 * (t >> 2))}')
    p.poll_rr(offs, S_U + 7, 11, E4R, 2, acc4, True, CFG['SL4'])
    p.vm = keep
    p.stamp('e4_ok')
    X = list(range(D, D + 8))
    w2_issue(k0, k0 + 4)
    for k in range(0, 8, 2):
        p.e(f'v_pk_fma_f32 {vr(SP + k, 2)}, {vr(X[k], 2)}, {vr(SP + 16 + k, 2)}, {vr(SP + k, 2)}')
    PK = SP + 16
    for d in range(4):
        p.e(f'v_cvt_pk_bf16_f32 v{PK + d}, v{SP + 2 * d}, v{SP + 2 * d + 1}')
    for d in range(4):
        p.unpack(PK + d, X[2 * d], X[2 * d + 1])
    T = SP + 4
    for q in range(2):
        p.e(f'v_pk_mul_f32 {vr(T + 2 * q, 2)}, {vr(X[4 * q], 2)}, {vr(X[4 * q], 2)}')
    for q in range(2):
        p.e(f'v_pk_add_f32 {vr(SP + 2 * q, 2)}, {vr(X[4 * q], 2)}, {vr(X[4 * q + 2], 2)}')
    for q in range(2):
        p.e(f'v_pk_fma_f32 {vr(T + 2 * q, 2)}, {vr(X[4 * q + 2], 2)}, {vr(X[4 * q + 2], 2)}, {vr(T + 2 * q, 2)}')
    for q in range(2):
        p.e(f'v_add_f32 v{SP + 2 * q}, v{SP + 2 * q}, v{SP + 2 * q + 1}')
    for q in range(2):
        p.e(f'v_add_f32 v{SP + 2 * q + 1}, v{T + 2 * q}, v{T + 2 * q + 1}')
    R4 = [SP, SP + 2, SP + 1, SP + 3]
    p.rowsum(R4, (8, 4, 2, 1))
    p.stamp('t1')
    p.exec_set(0x0001000100010001)
    p.e(f'ds_write_b64 v10, {vr(SP, 2)}\nds_write_b64 v10, {vr(SP + 2, 2)} offset:256')
    p.exec_all()
    p.e(f'ds_write_b64 v{VX1}, {vr(PK, 2)}\nds_write_b64 v{VX1}, {vr(PK + 2, 2)} offset:4096')
    for k in range(0, 8, 2):
        p.e(f'v_pk_mul_f32 {vr(X[k], 2)}, {vr(X[k], 2)}, {vr(SP + 8 + k, 2)}')
    p.e(f's_mov_b32 s{S_T0}, 0x3a800000\ns_mov_b32 s{S_T1}, 0x3a800000\ns_waitcnt lgkmcnt(2)\ns_barrier')
    p.e(f'ds_read_b64 {vr(SP, 2)}, v3\nds_read_b64 {vr(SP + 2, 2)}, v3 offset:256')
    w2_issue(k0 + 4, k0 + 8)
    p.e('s_waitcnt lgkmcnt(0)')
    p.stamp('t2')
    p.rowsum(R4, (8, 4, 2, 1))
    for q in range(2):
        p.e(f'v_pk_mul_f32 {vr(SP + 2 * q, 2)}, {vr(SP + 2 * q, 2)}, s[{S_T0}:{S_T1}]')
    for q in range(2):
        p.e(f'v_fma_f32 v{SP + 2 * q + 1}, -v{SP + 2 * q}, v{SP + 2 * q}, v{SP + 2 * q + 1}')
    for q in range(2):
        p.e(f'v_max_f32 v{SP + 2 * q + 1}, 0, v{SP + 2 * q + 1}')
    for q in range(2):
        p.e(f'v_add_f32 v{SP + 2 * q + 1}, 0x3727c5ac, v{SP + 2 * q + 1}')
    for q in range(2):
        p.e(f'v_rsq_f32 v{SP + 2 * q + 1}, v{SP + 2 * q + 1}')
    for k in range(0, 8, 2):
        p.e(f'v_pk_fma_f32 {vr(X[k], 2)}, {vr(SP + 8 + k, 2)}, {vr(SP + 2 * (k >> 2), 2)}, {vr(X[k], 2)} op_sel:[0,0,0] op_sel_hi:[1,0,1] neg_lo:[0,1,0] neg_hi:[0,1,0]')
    for k in range(0, 8, 2):
        p.e(f'v_pk_fma_f32 {vr(SP + 24 + k, 2)}, {vr(X[k], 2)}, {vr(SP + 2 * (k >> 2), 2)}, {vr(SP + 24 + k, 2)} op_sel:[0,1,0] op_sel_hi:[1,1,1]')
    for d in range(4):
        p.e(f'v_cvt_pk_bf16_f32 v{SP + d}, v{SP + 24 + 2 * d}, v{SP + 24 + 2 * d + 1}')
    p.e(f'ds_write2_b32 v13, v{SP}, v{SP + 1} offset0:0 offset1:32\nds_write2_b32 v13, v{SP + 2}, v{SP + 3} offset0:128 offset1:160')
    p.stamp('h2')
    A, ACC, OUT = SP, SP + 16, D
    for pi in range(2):
        p.e(f'ds_read_b128 {vr(A + 8 * pi)}, v{A0} offset:{64 * pi}\nds_read_b128 {vr(A + 8 * pi + 4)}, v{A0 + 1} offset:{64 * pi}')
    for k in range(16):
        p.e(f'v_mov_b32 v{ACC + k}, 0')
    GB, X1 = 232, 236

    def misc():
        p.lane(10, [(2, 2, 2048), (0, 2, 16), (4, 1, 8)], tmp=3)
        p.e(f's_lshl_b32 s{S_U + 6}, s{S_MI}, 6\ns_add_u32 s{S_T2}, s{S_U + 6}, {WS_MOD + 5 * 8192}')
        sp_addrs(p, A0, 128, None, L_X2, 2)
    p.e('s_waitcnt lgkmcnt(2)')
    interleave(p, lines_of(p, lambda: sp_gemv(p, F0, A, ACC, IDX)), lines_of(p, misc), 3)
    w2_issue(k0 + 8, 16)
    p.e('s_waitcnt lgkmcnt(0)')
    p.wait('WM4')
    interleave(p, lines_of(p, lambda: sp_gemv(p, F1, A + 8, ACC, IDX)), lines_of(p, lambda: p.perm_chunk(p.w2raw[0], F0, fs=8)), 4)
    sp_fold(p, ACC, OUT)
    p.e(f'ds_write_b128 v15, {vr(OUT)}\nds_write_b128 v15, {vr(OUT + 4)} offset:16')
    p.stamp('t3')
    for k in range(16):
        p.e(f'v_mov_b32 v{ACC + k}, 0')
    p.e('s_waitcnt lgkmcnt(0)\ns_barrier')
    p.stamp('t5')
    G = 224
    for k in range(4):
        p.e(f'ds_read2st64_b32 {vr(G + 2 * k, 2)}, v8 offset0:{16 * k} offset1:{16 * k + 8}')
    p.wait('WM5')
    p.stamp('wm5')

    def gb_issue():
        p.e(f'buffer_load_dwordx2 {vr(GB, 2)}, v10, {sr(SRD_WS, 4)}, s{S_T2} offen sc1')
    perm5 = lines_of(p, lambda: p.perm_chunk(p.w2raw[1], F0 + 4, fs=8))
    p.L += perm5[:20]
    p.e('s_waitcnt lgkmcnt(0)')
    p.tree(G, (4, 2, 1))
    chain = f"""v_cvt_pk_bf16_f32 v{G}, v{G}, v{G}
    v_and_b32 v{G}, 0xffff0000, v{G}
    v_mov_b32 v{G + 1}, v{G}
    @
    @
    v_permlane32_swap_b32 v{G}, v{G + 1}
    v_mul_f32 v{G + 2}, {hex(LOG2E | 0x80000000)}, v{G}
    v_exp_f32 v{G + 2}, v{G + 2}
    @
    v_add_f32 v{G + 2}, 1.0, v{G + 2}
    v_rcp_f32 v{G + 2}, v{G + 2}
    @
    v_mul_f32 v{G}, v{G}, v{G + 2}
    v_mul_f32 v{G}, v{G}, v{G + 1}
    v_cvt_pk_bf16_f32 v{G}, v{G}, v{G}"""
    rest = perm5[20:]
    for ln in chain.split('\n'):
        p.e(rest.pop(0) if ln.strip() == '@' else ln)
    p.exec_set(0xffffffff)
    p.e(f'ds_write_b16 v9, v{G}')
    p.exec_all()
    p.stamp('t6')
    p.L += rest
    sk = p.lab('gb')
    p.e(f's_cmp_lg_u32 s{S_WV}, 0\ns_cbranch_scc1 {sk}\ns_cmp_ge_u32 s{S_MI}, 32\ns_cbranch_scc1 {sk}')
    gb_issue()
    p.e(f'{sk}:')
    p.e('s_waitcnt lgkmcnt(0)\ns_barrier')
    p.stamp('t7')
    p.e(f'ds_read_b128 {vr(A)}, v{A0}\nds_read_b128 {vr(A + 4)}, v{A0 + 1}\ns_waitcnt lgkmcnt(0)')
    sp_gemv(p, F0, A, ACC, IDX)
    sp_fold(p, ACC, OUT)
    for d in range(4):
        p.e(f'v_cvt_pk_bf16_f32 v{G + d}, v{OUT + 2 * d}, v{OUT + 2 * d + 1}')
    p.e(f'buffer_store_dwordx4 {vr(G)}, v7, {sr(SRD_WS, 4)}, s{S_OUT} offen sc1')
    p.stamp('f_stored')
    end = p.lab('mend')
    multi = CFG['E5W'] > 1
    p.e(f's_cmp_ge_u32 s{S_MI}, 32\ns_cbranch_scc1 {end}')
    if not multi:
        p.e(f's_cmp_lg_u32 s{S_WV}, 0\ns_cbranch_scc1 {end}')
    p.lane(11, [(4, 2, 8192), (0, 4, 16)], tmp=3)
    p.e(f's_lshl_b32 s{S_U + 7}, s{S_MI}, 8\ns_add_u32 s{S_U + 7}, s{S_U + 7}, {WS_FP}')
    for k in range(4):
        p.e(f'v_mov_b32 v{D + k}, 0')

    def consts():
        p.srd(SRD_A, P_OUT, 8192)
        p.e(f'v_add_u32 v2, s{S_U + 6}, v10\nds_read_b64 {vr(X1 + 4, 2)}, v2 offset:{L_X1}\ns_waitcnt vmcnt(1) lgkmcnt(0)')
        p.check_retry(gb_issue, [GB, GB + 1], 3)
        p.unpack(GB + 1, GB + 2, GB + 3)
        p.unpack(GB, 4, GB + 1)
        p.e(f'v_mov_b32 v{GB}, v4')
        p.unpack(X1 + 4, X1, X1 + 1)
        p.unpack(X1 + 5, X1 + 2, X1 + 3)
    acc5 = lambda t, r: p.e(f'v_mfma_f32_16x16x32_bf16 {vr(D)}, {vr(SEL)}, {vr(r)}, {vr(D)}')
    if not multi:
        consts()
        p.stamp('t8')
        p.poll_pipe([t * 4 * 8192 for t in range(14)], S_U + 7, 11, (64, 120), 3, acc5, CFG['P5'])
        p.stamp('e5_ok')
    else:
        w0, jn = p.lab('w0'), p.lab('jn')
        p.e(f's_cmp_eq_u32 s{S_WV}, 0\ns_cbranch_scc1 {w0}')
        p.e(f's_lshl_b32 s{S_T0}, s{S_WV}, 16\ns_add_u32 s{S_U + 7}, s{S_U + 7}, s{S_T0}\ns_sub_u32 s{S_U + 7}, s{S_U + 7}, 65536')
        p.e(f's_lshl_b32 s{S_T0}, s{S_WV}, 10\nv_add_u32 v4, s{S_T0}, v0')
        p.poll_first([0, 4 * 8192], S_U + 7, 11, 64)
        if CFG['E4KS']:
            selectors(p, SEL, 2, 4)
        p.e('s_waitcnt vmcnt(0)')
        p.poll_rr([0, 4 * 8192], S_U + 7, 11, 64, 3, acc5, True)
        p.e(f'ds_write_b128 v4, {vr(D)}\ns_waitcnt lgkmcnt(0)\ns_branch {jn}\n{w0}:')
        consts()
        p.stamp('t8')
        p.e(f'{jn}:\ns_barrier\ns_cmp_lg_u32 s{S_WV}, 0\ns_cbranch_scc1 {end}')
        for k in range(7):
            p.e(f'ds_read_b128 {vr(64 + 4 * k)}, v0 offset:{1024 + 1024 * k}')
        p.stamp('e5_ok')
        p.e('s_waitcnt lgkmcnt(0)')
        for a_, b_ in ((64, 80), (68, 84), (72, 88), (68, 76), (64, 72)):
            for r in (0, 2):
                p.e(f'v_pk_add_f32 {vr(a_ + r, 2)}, {vr(a_ + r, 2)}, {vr(b_ + r, 2)}')
        for r in (0, 2):
            p.e(f'v_pk_add_f32 {vr(D + r, 2)}, {vr(64 + r, 2)}, {vr(68 + r, 2)}')
    for r in (0, 2):
        p.e(f'v_pk_fma_f32 {vr(D + r, 2)}, {vr(D + r, 2)}, {vr(GB + r, 2)}, {vr(X1 + r, 2)}')
    p.e(f'v_cvt_pk_bf16_f32 v{D}, v{D}, v{D + 1}\nv_cvt_pk_bf16_f32 v{D + 1}, v{D + 2}, v{D + 3}')
    p.exec_set(0xffffffff)
    p.e(f'buffer_store_dwordx2 {vr(D, 2)}, v2, {sr(SRD_A, 4)}, 0 offen')
    p.exec_all()
    p.e(f'{end}:')


DOC = """
;
;   O  [0,64)     512x128 tile of wo          M  [64,120)   64 hidden columns of w1/w3/w2, LayerNorm 2, final sum
;   Q  [120,184)  64 columns of wq, LN 1      P  [184,200)  64 columns of w_mod (shift/scale of block A)
;   PR [200,216)  as P, later the gate gb     R  [216,256)  64 columns of w_mod (ga, sb, cb) plus a K-quarter of cb
; Hand-offs between workgroups go through d_ws with write-through (sc1) stores and sc1 loads. Each workgroup first
; re-reads a slot until no dword holds that pattern. Chain: w_mod -> q -> scores, split (max, sum) -> scaled
; rescaled to the row maximum gathered from all splits. Loads whose result is unused only move weights towards the
; chip (L2 / last-level cache) for another workgroup. The code is emitted per role by a generator script.
"""


def generate():
    hdr = open('cdna_kernels/' + NAME + '.s.ref').read().split('\n')
    out = [l for l in hdr if l.startswith(';') and '@launch' not in l]
    out.append(f'; @launch grid=(256,1,1) block=(512,1,1) lds={L_TOTAL}')
    out += DOC.strip().split('\n')
    out += ['.amdgcn_target "amdgcn-amd-amdhsa--gfx950"', '.text', f'.globl {NAME}_kernel', '.p2align 8',
            f'.type {NAME}_kernel,@function', f'{NAME}_kernel:']
    e = Prog('E')
    entry(e)
    body = list(e.L)
    names = {}
    for cls in ('O', 'M', 'Q', 'P', 'PR', 'R'):
        p = build_class(cls, e)
        body.append('.p2align 6')
        body += p.L
        names[cls] = p.stamp_names
    body += ['L_end:', 's_endpgm']
    out += pad_hazards(body)
    out += ['.fill 64, 4, 0xbf800000', '.p2align 8', 'L_code_end:']
    out += ['.section .rodata,"a"', '.p2align 6', f'.amdhsa_kernel {NAME}_kernel',
            '  .amdhsa_next_free_vgpr 256', '  .amdhsa_next_free_sgpr 102', '  .amdhsa_accum_offset 256',
            '  .amdhsa_group_segment_fixed_size 0', '  .amdhsa_kernarg_size 112', '  .amdhsa_user_sgpr_count 2',
            '  .amdhsa_user_sgpr_kernarg_segment_ptr 1', '  .amdhsa_system_sgpr_workgroup_id_x 1',
            '  .amdhsa_float_denorm_mode_32 3', '.end_amdhsa_kernel']
    return '\n'.join(out) + '\n', names


if __name__ == '__main__':
    path = sys.argv[1]
    for kv in sys.argv[2:]:
        k, v = kv.split('=')
        CFG[k] = eval(v)
    txt, names = generate()
    open(path, 'w').write(txt)
    import json
    json.dump(names, open(path + '.stamps.json', 'w'))
```
